```python
import torch

def _softmax(x, axis=-1):
    return torch.softmax(x, dim=axis)
def _gelu(x):
    return torch.nn.functional.gelu(x, approximate="tanh")
def _silu(x):
    return torch.nn.functional.silu(x)
def _sigmoid(x):
    return torch.sigmoid(x)
def _layernorm(x, axis=-1, eps=1e-5):
    m = x.mean(dim=axis, keepdim=True)
    v = x.var(dim=axis, keepdim=True, unbiased=False)
    return (x - m) / torch.sqrt(v + eps)
def _scatter_add(tgt, idx, src, axis=0):
    return tgt.clone().index_add_(axis, idx, src)
def _segment_sum(src, seg, n):
    out = torch.zeros((n,) + src.shape[1:], dtype=src.dtype)
    return out.index_add_(0, seg, src)
def _pad(x, pw):
    flat = tuple(v for pair in reversed(pw) for v in pair)
    return torch.nn.functional.pad(x, flat)

kernel_name = 'sequential_preLN__ssm_conv_s4d__glu_gated_swiglu__prompt'

def setup_inputs():

    _w = (lambda a: (lambda t: t.to(torch.bfloat16) if t.is_floating_point() else t)(torch.as_tensor(a)))
    def _A_setup():
        Bsz, L, D, N = 1, 2048, 448, 256
        return {
            "u": _w((lambda *s: torch.randn(*s, dtype=torch.bfloat16) * 0.05)(Bsz, L, D)),
            "log_A_real": _w((lambda *s: torch.randn(*s, dtype=torch.bfloat16) * 6.4)(D, N) * 0.5),
            "A_imag": _w((lambda *s: torch.randn(*s, dtype=torch.bfloat16) * 0.05)(D, N) * 3.14),
            "C_real": _w((lambda *s: torch.randn(*s, dtype=torch.bfloat16) * 0.05)(D, N) / N ** 0.5),
            "C_imag": _w((lambda *s: torch.randn(*s, dtype=torch.bfloat16) * 0.05)(D, N) / N ** 0.5),
            "log_dt": _w((lambda *s: torch.randn(*s, dtype=torch.bfloat16) * 0.05)(D) * 0.5 - 4.0),
            "D_skip": _w((lambda *s: torch.randn(*s, dtype=torch.bfloat16) * 0.05)(D)),
        }
    _A_in = _A_setup()

    def _B_setup():
        B, S, D, F = 1, 2048, 448, 1792
        return {
            "x": _w((lambda *s: torch.randn(*s, dtype=torch.bfloat16) * 0.05)(B, S, D)),
            "w1": _w((lambda *s: torch.randn(*s, dtype=torch.bfloat16) * 0.4)(D, F) * (2.0 / D) ** 0.5),
            "w3": _w((lambda *s: torch.randn(*s, dtype=torch.bfloat16) * 0.4)(D, F) * (2.0 / D) ** 0.5),
            "w2": _w((lambda *s: torch.randn(*s, dtype=torch.bfloat16) * 0.4)(F, D) * (2.0 / F) ** 0.5),
        }
    _B_in = _B_setup()

    return {
        "A_u": _A_in["u"],
        "A_log_A_real": _A_in["log_A_real"],
        "A_A_imag": _A_in["A_imag"],
        "A_C_real": _A_in["C_real"],
        "A_C_imag": _A_in["C_imag"],
        "A_log_dt": _A_in["log_dt"],
        "A_D_skip": _A_in["D_skip"],
        "B_x": _B_in["x"],
        "B_w1": _B_in["w1"],
        "B_w3": _B_in["w3"],
        "B_w2": _B_in["w2"],
    }

def reference(A_u, A_log_A_real, A_A_imag, A_C_real, A_C_imag, A_log_dt, A_D_skip, B_x, B_w1, B_w3, B_w2):
    def _A_ref(u, log_A_real, A_imag, C_real, C_imag, log_dt, D_skip):
        L = u.shape[1]
        dt = torch.exp(log_dt)
        A = -torch.exp(log_A_real) + 1j * A_imag
        C = (C_real + 1j * C_imag) * dt[:, None]
        pos = (lambda x, dt: x.to(dt))(torch.arange(L), log_dt.dtype)
        P = torch.exp((A * dt[:, None])[:, :, None] * pos[None, None, :])
        K = 2.0 * torch.einsum("dn,dnl->dl", C, P).real
        L2 = 2 * L
        u_t = (lambda x, *d: x.permute(*d))(u, 0, 2, 1)
        Kf = (lambda x, *a, **k: torch.fft.rfft(x.float(), *a, **k))(K, L2)
        Uf = (lambda x, *a, **k: torch.fft.rfft(x.float(), *a, **k))(u_t, L2)
        y = (lambda x, *a, **k: torch.fft.irfft(x, *a, **k).to(torch.bfloat16))(Uf * Kf[None, :, :], L2)[:, :, :L]
        y = (lambda x, *d: x.permute(*d))(y, 0, 2, 1)
        return y + u * D_skip[None, None, :]

    def _B_ref(x, w1, w3, w2):
        gate = torch.einsum("bsd,df->bsf", x, w1)
        up = torch.einsum("bsd,df->bsf", x, w3)
        h = _silu(gate) * up
        out = torch.einsum("bsf,fd->bsd", h, w2)
        return out

    x = A_u
    h = x + _A_ref(_layernorm(x, axis=-1), A_log_A_real, A_A_imag, A_C_real, A_C_imag, A_log_dt, A_D_skip)
    h2 = h + _B_ref(_layernorm(h, axis=-1), B_w1, B_w3, B_w2)
    return h2
```

```python
import re

TRANS = ("v_exp_f32", "v_log_f32", "v_rcp_f32", "v_rsq_f32", "v_sqrt_f32", "v_sin_f32", "v_cos_f32", "v_rcp_iflag_f32")

def regs_of(tok):
    tok = tok.strip()
    tok = re.sub(r"^-|^\|", "", tok); tok = re.sub(r"\|$", "", tok)
    m = re.match(r"^abs\((.*)\)$", tok)
    if m: tok = m.group(1)
    m = re.match(r"^([vas])(\d+)$", tok)
    if m: return [(m.group(1), int(m.group(2)))]
    m = re.match(r"^([vas])\[(\d+):(\d+)\]$", tok)
    if m: return [(m.group(1), i) for i in range(int(m.group(2)), int(m.group(3)) + 1)]
    if tok in ("vcc", "vcc_lo", "vcc_hi"): return [("vcc", 0)]
    if tok in ("exec", "exec_lo", "exec_hi"): return [("exec", 0)]
    if tok == "m0": return [("m0", 0)]
    return []

class Ins:
    def __init__(self, text):
        self.text = text
        t = text.split(";")[0].strip()
        self.is_label = t.endswith(":")
        self.is_dir = t.startswith(".")
        self.op = ""
        self.defs = []; self.uses = []
        if not t or self.is_label or self.is_dir:
            return
        parts = t.split(None, 1)
        self.op = parts[0]
        rest = parts[1] if len(parts) > 1 else ""
        ops = []
        depth = 0; cur = ""
        for ch in rest:
            if ch in "[(": depth += 1
            if ch in "])": depth -= 1
            if ch == "," and depth == 0:
                ops.append(cur.strip()); cur = ""
            else:
                cur += ch
        if cur.strip(): ops.append(cur.strip())
        clean = []
        for o in ops:
            clean.append(o.split()[0] if o.split() else o)
        self.ops = clean
        self.mods = rest
        op = self.op
        R = [regs_of(o) for o in clean]
        self.valu = op.startswith("v_") and not op.startswith("v_mfma")
        self.mfma = op.startswith("v_mfma")
        self.trans = op.replace("_e32", "").replace("_e64", "") in TRANS
        self.vmem = op.startswith(("buffer_", "global_", "flat_"))
        self.ds = op.startswith("ds_")
        self.salu = op.startswith("s_")
        self.dpp = "_dpp" in op or "quad_perm" in rest or "row_" in rest
        self.lds_dma = self.vmem and (" lds" in (" " + rest + " ").replace(" lds ", " lds ") and re.search(r"\blds\b", rest) is not None or "load_lds" in op)
        flat = lambda L: [x for l in L for x in l]
        if self.vmem:
            if "store" in op or ("atomic" in op):
                self.uses = flat(R)
                if "atomic" in op and "sc0" in rest: self.defs = R[0]
            elif self.lds_dma:
                self.uses = flat(R) + [("m0", 0)]
            elif op in ("buffer_inv", "buffer_wbl2"):
                pass
            else:
                self.defs = R[0]; self.uses = flat(R[1:])
        elif self.ds:
            if op.startswith(("ds_write", "ds_add", "ds_max", "ds_min")) and "rtn" not in op:
                self.uses = flat(R)
                if "addtid" in op: self.uses += [("m0", 0)]
            else:
                self.defs = R[0]; self.uses = flat(R[1:])
        elif self.mfma:
            self.defs = R[0]; self.uses = flat(R[1:]); self.srcc = R[3] if len(R) > 3 else []
            self.srcab = R[1] + R[2]
            self.passes = 8 if "32x32x16" in op else 4 if "16x16x32" in op else 16
        elif self.valu:
            if op.startswith("v_cmpx"):
                self.defs = R[0] + [("exec", 0)]; self.uses = flat(R[1:])
            elif op.startswith("v_cmp"):
                self.defs = R[0]; self.uses = flat(R[1:])
            elif op.startswith(("v_add_co", "v_sub_co", "v_addc_co", "v_subb_co", "v_subrev_co")):
                self.defs = R[0] + R[1]; self.uses = flat(R[2:])
            elif op.startswith(("v_permlane32_swap", "v_permlane16_swap", "v_swap")):
                self.defs = R[0] + R[1]; self.uses = R[0] + R[1]
            else:
                self.defs = R[0]; self.uses = flat(R[1:])
                if op.startswith(("v_fmac", "v_dot2c", "v_pk_fmac", "v_writelane")) or self.dpp:
                    self.uses += R[0]
                if op.startswith("v_cndmask") and len(R) == 3:
                    self.uses += [("vcc", 0)]
        elif self.salu:
            if op.startswith(("s_cmp", "s_cbranch", "s_branch", "s_waitcnt", "s_barrier", "s_nop", "s_endpgm", "s_sleep", "s_setprio", "s_bitcmp")):
                self.uses = flat(R)
            elif "saveexec" in op:
                self.defs = R[0] + [("exec", 0)]; self.uses = flat(R[1:]) + [("exec", 0)]
            else:
                self.defs = R[0] if R else []; self.uses = flat(R[1:])

    def states(self):
        if self.is_label or self.is_dir or not self.op: return 0
        if self.op == "s_nop":
            return int(self.ops[0], 0) + 1
        return 1

def isv(r): return r[0] in ("v", "a")

def need(prod, cons):
    n = 0
    pd = set(prod.defs); cu = set(cons.uses); cd = set(cons.defs)
    raw = pd & cu
    vraw = {r for r in raw if isv(r)}
    sraw = {r for r in raw if r[0] in ("s", "vcc")}
    if prod.valu:
        if prod.trans and cons.valu and not cons.trans and vraw: n = max(n, 1)
        if prod.trans and cons.mfma and vraw: n = max(n, 2)
        if cons.mfma and vraw: n = max(n, 2)
        if cons.valu and cons.dpp and vraw: n = max(n, 2)
        if cons.op.startswith("v_permlane") and vraw: n = max(n, 2)
        if cons.op.startswith(("v_readfirstlane", "v_readlane")) and vraw: n = max(n, 1)
        if sraw:
            if cons.valu: n = max(n, 2)
            if cons.op.startswith(("v_readlane", "v_writelane")): n = max(n, 4)
            if cons.vmem: n = max(n, 5)
            if cons.salu: n = max(n, 4)
        if ("exec", 0) in pd and (cons.valu or cons.mfma or cons.vmem or cons.ds): n = max(n, 5)
        if "sdwa" in prod.text and vraw and cons.valu: n = max(n, 1)
    if prod.op.startswith("v_dot"):
        if cons.op == prod.op:
            ab = set(regs_of(cons.ops[1])) | set(regs_of(cons.ops[2]))
            if pd & ab: n = max(n, 3)
        elif (pd & cu) or (pd & cd): n = max(n, 3)
    if prod.mfma:
        p = prod.passes
        tab_valu = {2: 5, 4: 8, 8: 12, 16: 20}[p]
        if cons.mfma:
            if pd & set(cons.srcab): n = max(n, tab_valu)
            ov = pd & set(cons.srcc)
            if ov:
                if set(cons.srcc) == pd and cons.passes == p: n = max(n, 2 if p == 2 else 0)
                else: n = max(n, {2: 4, 4: 6, 8: 10, 16: 18}[p])
        else:
            if (pd & cu) or (pd & cd): n = max(n, tab_valu)
        if cons.valu and (set(prod.srcc) & cd): n = max(n, {2: 1, 4: 3, 8: 7, 16: 15}[p])
    if prod.vmem and "store" in prod.op and ("x4" in prod.op or "x3" in prod.op):
        data = set(prod.ops and regs_of(prod.ops[0] if prod.op.startswith("buffer") else prod.ops[1]))
        if (cons.valu or cons.mfma) and (data & cd): n = max(n, 2)
    if prod.salu and ("m0", 0) in pd and ("m0", 0) in cu and (cons.vmem or cons.ds): n = max(n, 1)
    return n

class Asm:
    def __init__(self):
        self.lines = []
    def __call__(self, text):
        for l in text.split("\n"):
            l = l.strip()
            if l: self.lines.append(l)
    def label(self, n): self.lines.append(n + ":")
    def comment(self, c): self.lines.append("; " + c)
    def finish(self, window=24):
        out = []; hist = []
        nn = 0
        for l in self.lines:
            ins = Ins(l)
            if ins.op and not ins.is_label and not ins.is_dir:
                dist = 0; req = 0
                for p in reversed(hist[-window:]):
                    if p.op:
                        k = need(p, ins)
                        if k - dist > req: req = k - dist
                    dist += p.states()
                    if dist >= 24: break
                while req > 0:
                    c = min(req, 16)
                    nop = Ins(f"s_nop {c-1}")
                    out.append(f"    s_nop {c-1}"); hist.append(nop); req -= c; nn += 1
            if ins.is_label or ins.is_dir: out.append(l)
            else: out.append("    " + l)
            hist.append(ins)
        self.nops = nn
        return "\n".join(out) + "\n"

def kd(name, vgpr, sgpr, accum):
    return f""".p2align 6
.amdhsa_kernel {name}
  .amdhsa_next_free_vgpr {vgpr}
  .amdhsa_next_free_sgpr {sgpr}
  .amdhsa_accum_offset {accum}
  .amdhsa_group_segment_fixed_size 0
  .amdhsa_kernarg_size 112
  .amdhsa_user_sgpr_count 2
  .amdhsa_user_sgpr_kernarg_segment_ptr 1
  .amdhsa_system_sgpr_workgroup_id_x 1
  .amdhsa_float_denorm_mode_32 3
.end_amdhsa_kernel
"""

def srd(a, s, ptr, nbytes):
    a(f"s_mov_b32 s{s}, s{ptr}")
    a(f"s_mov_b32 s{s+1}, s{ptr+1}")
    a(f"s_mov_b32 s{s+2}, {nbytes}")
    a(f"s_mov_b32 s{s+3}, 0x20000")
```

```python
from asm import *

WS_STATS = 0x0
WS_HT    = 0x10000
WS_HN    = 0x200000
WS_HF    = 0x400000
L, D, N, F = 2048, 448, 256, 1792
LOG2E = 0x3FB8AA3B
INV2PI = 0x3E22F983

def k0_stats(a, name):
    a(f".globl {name}\n.p2align 8\n.type {name},@function")
    a.label(name)
    a("s_cmp_ge_u32 s2, 64")
    a(f"s_cbranch_scc1 L_{name}_done")
    a("s_load_dwordx2 s[4:5], s[0:1], 0")
    a("s_load_dwordx2 s[6:7], s[0:1], 104")
    a("v_lshrrev_b32 v1, 3, v0")
    a("s_lshl_b32 s3, s2, 5")
    a("v_add_u32 v1, s3, v1")
    a("v_and_b32 v2, 7, v0")
    a("s_movk_i32 s20, 896")
    a("v_mul_lo_u32 v3, v1, s20")
    a("v_lshl_add_u32 v3, v2, 4, v3")
    a("s_waitcnt lgkmcnt(0)")
    srd(a, 8, 4, L * D * 2)
    a("s_add_u32 s6, s6, %d" % WS_STATS)
    a("s_addc_u32 s7, s7, 0")
    srd(a, 12, 6, L * 4)
    for i in range(7):
        a(f"buffer_load_dwordx4 v[{8+4*i}:{11+4*i}], v3, s[8:11], 0 offen offset:{128*i}")
    a("v_mov_b32 v4, 0")
    a("v_mov_b32 v5, 0")
    a("v_mov_b32 v6, 0x3f803f80")
    for i in range(7):
        a(f"s_waitcnt vmcnt({6-i})")
        for j in range(4):
            r = 8 + 4 * i + j
            a(f"v_dot2_f32_bf16 v4, v{r}, v6, v4")
            a(f"v_dot2_f32_bf16 v5, v{r}, v{r}, v5")
    stats_finish(a, 4, 5, 7, 448)
    a("v_cmp_eq_u32 vcc, 0, v2")
    a("s_and_saveexec_b64 s[22:23], vcc")
    a(f"s_cbranch_execz L_{name}_done")
    a("v_lshlrev_b32 v1, 2, v1")
    a("buffer_store_dword v7, v1, s[12:15], 0 offen")
    a("s_waitcnt vmcnt(0)")
    a.label(f"L_{name}_done")
    a("s_endpgm")

def reduce8(a, r):
    a(f"v_add_f32_dpp v{r}, v{r}, v{r} quad_perm:[1,0,3,2] row_mask:0xf bank_mask:0xf")
    a(f"v_add_f32_dpp v{r}, v{r}, v{r} quad_perm:[2,3,0,1] row_mask:0xf bank_mask:0xf")
    a(f"v_add_f32_dpp v{r}, v{r}, v{r} row_half_mirror row_mask:0xf bank_mask:0xf")

def stats_pack(a, vs, vq, vd, n, t):
    inv = {448: 0x3B124925}[n]
    a(f"v_mul_f32 v{vs}, {inv:#x}, v{vs}")
    a(f"v_mul_f32 v{vq}, {inv:#x}, v{vq}")
    a(f"v_fma_f32 v{vq}, -v{vs}, v{vs}, v{vq}")
    a(f"v_max_f32 v{vq}, 0, v{vq}")
    a(f"v_cvt_pk_bf16_f32 v{t}, v{vq}, v{vs}")
    a(f"v_lshlrev_b32 v{t+1}, 16, v{t}")
    a(f"v_add_f32 v{t+1}, 0x3727c5ac, v{t+1}")
    a(f"v_cvt_pk_bf16_f32 v{t+1}, v{t+1}, v{t+1}")
    a(f"v_lshlrev_b32 v{t+1}, 16, v{t+1}")
    a(f"v_sqrt_f32 v{t+1}, v{t+1}")
    a(f"v_cvt_pk_bf16_f32 v{t+1}, v{t+1}, v{t+1}")
    a(f"v_lshrrev_b32 v{t}, 16, v{t}")
    a(f"v_and_b32 v{t+1}, 0xffff0000, v{t+1}")
    a(f"v_or_b32 v{vd}, v{t}, v{t+1}")

def stats_finish(a, vs, vq, vd, n):
    reduce8(a, vs); reduce8(a, vq)
    stats_pack(a, vs, vq, vd, n, 40)

OPS = 1056
OP_CH = 53 * OPS
TB0 = 0
TB_CH = 1312
UA0 = TB0 + 2 * TB_CH
UA_CH = 4576
XA0 = UA0 + 2 * UA_CH
XA_CH = 4096
OP0 = XA0 + 2 * XA_CH
K1_LDS = OP0 + 2 * OP_CH
KC0 = OP0
KC_CH = 16640
KC_CP = 4160

def cmul(a, dst, x, z, tmp, conj=False):
    a(f"v_pk_mul_f32 v[{tmp}:{tmp+1}], v[{x}:{x+1}], v[{z}:{z+1}] op_sel:[0,0] op_sel_hi:[1,0]")
    neg = "neg_hi:[1,0,0]" if conj else "neg_lo:[1,0,0]"
    a(f"v_pk_fma_f32 v[{dst}:{dst+1}], v[{x}:{x+1}], v[{z}:{z+1}], v[{tmp}:{tmp+1}] op_sel:[1,1,0] op_sel_hi:[0,1,1] {neg}")

def k1_conv(a, name):
    a(f".globl {name}\n.p2align 8\n.type {name},@function")
    a.label(name)
    a("s_cmp_ge_u32 s2, 224")
    a(f"s_cbranch_scc1 L_{name}_done")
    a("s_load_dwordx4 s[4:7], s[0:1], 0")
    a("s_load_dwordx4 s[8:11], s[0:1], 16")
    a("s_load_dwordx4 s[12:15], s[0:1], 32")
    a("s_load_dwordx2 s[16:17], s[0:1], 48")
    a("s_load_dwordx2 s[18:19], s[0:1], 104")
    a("v_and_b32 v1, 63, v0")
    a("v_lshrrev_b32 v2, 6, v0")
    a("s_nop 0")
    a("v_readfirstlane_b32 s20, v2")
    a("s_lshr_b32 s21, s20, 1")
    a("s_and_b32 s22, s20, 1")
    a("s_waitcnt lgkmcnt(0)")
    a("s_lshl_b32 s23, s2, 2")
    a("s_load_dword s24, s[14:15], s23")
    a("s_load_dword s25, s[16:17], s23")
    srd(a, 28, 4, L * D * 2)
    srd(a, 32, 6, D * N * 2); srd(a, 36, 8, D * N * 2); srd(a, 40, 10, D * N * 2); srd(a, 44, 12, D * N * 2)
    a(f"s_add_u32 s26, s18, {WS_STATS}"); a("s_addc_u32 s27, s19, 0")
    srd(a, 48, 26, L * 4)
    a(f"s_add_u32 s26, s18, {WS_HT}"); a("s_addc_u32 s27, s19, 0")
    srd(a, 52, 26, L * D * 2)
    a("s_lshl_b32 s26, s2, 1"); a("s_add_u32 s26, s26, s21")
    a("s_lshl_b32 s27, s26, 9"); a("s_lshl_b32 s56, s22, 8"); a("s_add_u32 s27, s27, s56")
    a("v_lshl_add_u32 v3, v1, 2, s27")
    a("buffer_load_dword v10, v3, s[32:35], 0 offen")
    a("buffer_load_dword v11, v3, s[36:39], 0 offen")
    a("buffer_load_dword v12, v3, s[40:43], 0 offen")
    a("buffer_load_dword v13, v3, s[44:47], 0 offen")
    a("s_movk_i32 s56, 7168")
    a("v_mul_lo_u32 v4, v0, s56")
    a("s_lshl_b32 s57, s2, 2")
    a("v_add_u32 v4, s57, v4")
    a("v_add_u32 v5, 4480, v4")
    for i in range(5): a(f"buffer_load_dword v{200+i}, v4, s[28:31], 0 offen offset:{896*i}")
    for i in range(3): a(f"buffer_load_dword v{205+i}, v5, s[28:31], 0 offen offset:{896*i}")
    a("v_lshlrev_b32 v6, 5, v0")
    a("buffer_load_dwordx4 v[208:211], v6, s[48:51], 0 offen")
    a("buffer_load_dwordx4 v[212:215], v6, s[48:51], 0 offen offset:16")
    a("v_mov_b32 v20, 0\nv_mov_b32 v21, 0\nv_mov_b32 v22, 0\nv_mov_b32 v23, 0")
    a("v_lshlrev_b32 v7, 4, v0")
    a("v_cmp_gt_u32 vcc, 30, v0")
    a("s_and_saveexec_b64 s[58:59], vcc")
    a(f"ds_write_b128 v7, v[20:23] offset:{UA0}")
    a(f"ds_write_b128 v7, v[20:23] offset:{UA0+UA_CH}")
    a("s_mov_b64 exec, s[58:59]")
    a("s_waitcnt lgkmcnt(0)")
    a("s_lshl_b32 s56, s21, 4")
    a("s_lshr_b32 s57, s24, s56"); a("s_lshl_b32 s57, s57, 16")
    a("s_lshr_b32 s60, s25, s56"); a("s_lshl_b32 s60, s60, 16")
    a(f"v_mov_b32 v14, {LOG2E:#x}")
    a("v_mul_f32 v15, s57, v14")
    a("v_exp_f32 v15, v15")
    a("v_cvt_pk_bf16_f32 v15, v15, v15")
    a("v_lshlrev_b32 v15, 16, v15")
    a("s_waitcnt vmcnt(10)")
    a("v_lshlrev_b32 v16, 16, v10"); a("v_and_b32 v17, 0xffff0000, v10")
    a("v_mul_f32 v16, v14, v16"); a("v_mul_f32 v17, v14, v17")
    a("v_exp_f32 v16, v16"); a("v_exp_f32 v17, v17")
    a("v_cvt_pk_bf16_f32 v16, v16, v17")
    a("v_lshlrev_b32 v18, 16, v16"); a("v_and_b32 v19, 0xffff0000, v16")
    a("v_mul_f32 v18, v18, v15"); a("v_mul_f32 v19, v19, v15")
    a("v_mul_f32 v18, -v14, v18") if False else (a("v_mul_f32_e64 v18, -v18, v14"), a("v_mul_f32_e64 v19, -v19, v14"))
    a("v_lshlrev_b32 v24, 16, v11"); a("v_and_b32 v25, 0xffff0000, v11")
    a("v_mul_f32 v24, v24, v15"); a("v_mul_f32 v25, v25, v15")
    a(f"v_mul_f32 v24, {INV2PI:#x}, v24"); a(f"v_mul_f32 v25, {INV2PI:#x}, v25")
    P = [18, 19]; Q = [24, 25]
    X = [30, 32]; Xb = [34, 36]
    a("v_add_f32 v26, v15, v15")
    a("v_lshlrev_b32 v30, 16, v12"); a("v_and_b32 v32, 0xffff0000, v12")
    a("v_lshlrev_b32 v31, 16, v13"); a("v_and_b32 v33, 0xffff0000, v13")
    a("v_mul_f32 v30, v30, v26"); a("v_mul_f32 v32, v32, v26")
    a("v_mul_f32_e64 v31, -v31, v26"); a("v_mul_f32_e64 v33, -v33, v26")
    Z = {1: [40, 42], 8: [44, 46], 256: [48, 50], 2: [52, 54], 4: [56, 58]}
    for t in (1, 8, 256):
        for m in range(2):
            z = Z[t][m]; tm = 60 + 4 * m
            if t == 1:
                a(f"v_exp_f32 v{tm}, v{P[m]}")
                a(f"v_fract_f32 v{tm+1}, v{Q[m]}")
            else:
                c = {8: 0x41000000, 256: 0x43800000}[t]
                a(f"v_mul_f32 v{tm}, {c:#x}, v{P[m]}")
                a(f"v_mul_f32 v{tm+1}, {c:#x}, v{Q[m]}")
                a(f"v_exp_f32 v{tm}, v{tm}")
                a(f"v_fract_f32 v{tm+1}, v{tm+1}")
            a(f"v_cos_f32 v{z}, v{tm+1}")
            a(f"v_sin_f32 v{z+1}, v{tm+1}")
            a(f"v_mul_f32 v{z}, v{z}, v{tm}")
            a(f"v_mul_f32 v{z+1}, v{z+1}, v{tm}")
    T = [68, 70]
    for m in range(2): cmul(a, Z[2][m], Z[1][m], Z[1][m], T[m])
    for m in range(2): cmul(a, Z[4][m], Z[2][m], Z[2][m], T[m])
    a(f"s_mul_i32 s56, s21, {OP_CH}"); a("s_lshl_b32 s57, s22, 9"); a("s_add_u32 s56, s56, s57"); a(f"s_add_u32 s56, s56, {OP0}")
    a("v_lshl_add_u32 v8, v1, 3, s56")
    pk = [72, 74, 76, 78]; pki = [0]
    def put(row, src):
        r = pk[pki[0] % 4]; pki[0] += 1
        a(f"v_cvt_pk_bf16_f32 v{r}, v{src[0]}, v{src[0]+1}")
        a(f"v_cvt_pk_bf16_f32 v{r+1}, v{src[1]}, v{src[1]+1}")
        a(f"ds_write_b64 v8, v[{r}:{r+1}] offset:{row*OPS}")
    Y = [80, 82]
    X256 = [84, 86]; X512 = [88, 90]; X768 = [92, 94]; XW = [96, 98]
    T2 = [100, 102]
    xsteps = []
    cur = X
    for c in range(1, 8): xsteps.append((c, Xb, X if c == 1 else Xb, Z[1]))
    xsteps.append((8, X256, X, Z[256]))
    xsteps.append((9, XW, X256, Z[2])); xsteps.append((10, XW, XW, Z[2])); xsteps.append((11, XW, XW, Z[2]))
    xsteps.append((12, X512, X256, Z[256])); xsteps.append((13, XW, X512, Z[4]))
    xsteps.append((14, X768, X512, Z[256])); xsteps.append((15, XW, X768, Z[4]))
    xsteps.append((16, XW, X768, Z[256]))
    for r in range(17, 21): xsteps.append((r, XW, XW, Z[256]))
    put(0, X)
    a("v_mov_b32 v104, 0x3f80\nv_mov_b32 v105, 0x3f80")
    a(f"ds_write_b64 v8, v[104:105] offset:{21*OPS}")
    put(22, Z[8])
    ysteps = list(range(2, 32))
    xi = 0
    for k, b in enumerate(ysteps):
        src = Z[8] if b == 2 else Y
        for m in range(2): cmul(a, Y[m], src[m], Z[8][m], T[m])
        if xi < len(xsteps):
            row, dst, s, z = xsteps[xi]; xi += 1
            for m in range(2): cmul(a, dst[m], s[m], z[m], T2[m], conj=True)
            put(21 + b, Y); put(row, dst)
        else:
            put(21 + b, Y)
    assert xi == len(xsteps)
    a("s_waitcnt vmcnt(0)")
    for i in range(8):
        st = 208 + i; x = 200 + i; o = 110 + 8 * (i % 2)
        a(f"v_lshlrev_b32 v{o}, 16, v{st}")
        a(f"v_and_b32 v{o+1}, 0xffff0000, v{st}")
        a(f"v_rcp_f32 v{o+1}, v{o+1}")
        a(f"v_lshlrev_b32 v{o+2}, 16, v{x}"); a(f"v_and_b32 v{o+3}, 0xffff0000, v{x}")
        a(f"v_sub_f32 v{o+2}, v{o+2}, v{o}"); a(f"v_sub_f32 v{o+3}, v{o+3}, v{o}")
        a(f"v_cvt_pk_bf16_f32 v{o+2}, v{o+2}, v{o+3}")
        a(f"v_and_b32 v{o+3}, 0xffff0000, v{o+2}"); a(f"v_lshlrev_b32 v{o+2}, 16, v{o+2}")
        a(f"v_mul_f32 v{130+2*i}, v{o+2}, v{o+1}"); a(f"v_mul_f32 v{131+2*i}, v{o+3}, v{o+1}")
    a("s_mov_b32 s56, 0x05040100\ns_mov_b32 s57, 0x07060302")
    for k in range(4):
        a(f"v_cvt_pk_bf16_f32 v{148+k}, v{130+4*k}, v{132+4*k}")
        a(f"v_cvt_pk_bf16_f32 v{152+k}, v{131+4*k}, v{133+4*k}")
        a(f"v_perm_b32 v{156+k}, v{201+2*k}, v{200+2*k}, s56")
        a(f"v_perm_b32 v{160+k}, v{201+2*k}, v{200+2*k}, s57")
    a(f"ds_write_b128 v7, v[148:151] offset:{UA0+480}")
    a(f"ds_write_b128 v7, v[152:155] offset:{UA0+UA_CH+480}")
    a(f"ds_write_b128 v7, v[156:159] offset:{XA0}")
    a(f"ds_write_b128 v7, v[160:163] offset:{XA0+XA_CH}")
    a("s_waitcnt lgkmcnt(0)")
    a("s_barrier")
    a("v_and_b32 v9, 15, v1"); a("v_lshrrev_b32 v10, 4, v1")
    a(f"s_movk_i32 s56, {OPS}")
    a("v_mul_lo_u32 v11, v9, s56")
    a("v_lshl_add_u32 v11, v10, 4, v11")
    a(f"s_mul_i32 s57, s21, {OP_CH}"); a(f"s_add_u32 s57, s57, {OP0}")
    a("v_add_u32 v11, s57, v11")
    a(f"s_mul_i32 s58, s22, {16*OPS}"); a(f"s_add_u32 s58, s58, {21*OPS}")
    a("v_add_u32 v12, s58, v11")
    for r in range(8): a(f"v_mov_b32 v{16+r}, 0")
    def rd(s):
        b = 32 + 12 * (s % 4)
        a(f"ds_read_b128 v[{b}:{b+3}], v11 offset:{64*s}")
        a(f"ds_read_b128 v[{b+4}:{b+7}], v11 offset:{16*OPS+64*s}")
        a(f"ds_read_b128 v[{b+8}:{b+11}], v12 offset:{64*s}")
    for s in range(3): rd(s)
    for s in range(16):
        if s + 3 < 16: rd(s + 3)
        left = min(15 - s, 3)
        a(f"s_waitcnt lgkmcnt({3*left})")
        b = 32 + 12 * (s % 4)
        a(f"v_mfma_f32_16x16x32_bf16 v[16:19], v[{b}:{b+3}], v[{b+8}:{b+11}], v[16:19]")
        a(f"v_mfma_f32_16x16x32_bf16 v[20:23], v[{b+4}:{b+7}], v[{b+8}:{b+11}], v[20:23]")
    a("s_lshl_b32 s56, s22, 4"); a("v_add_u32 v13, s56, v9")
    a(f"s_mul_i32 s57, s21, {TB_CH}"); a(f"s_add_u32 s57, s57, {TB0}")
    a("v_lshlrev_b32 v14, 4, v13")
    a("v_lshl_add_u32 v14, v10, 3, v14")
    a("v_lshlrev_b32 v15, 3, v13"); a("v_add_u32 v15, 512, v15")
    a("v_cmp_eq_u32 vcc, 2, v10"); a("v_cndmask_b32 v14, v14, v15, vcc")
    a("v_lshlrev_b32 v15, 2, v13"); a("v_add_u32 v15, 768, v15")
    a("v_add_u32 v24, 4, v14")
    a("v_add_u32 v25, 128, v15")
    a("v_cmp_eq_u32 vcc, 3, v10"); a("v_cndmask_b32 v14, v14, v15, vcc"); a("v_cndmask_b32 v24, v24, v25, vcc")
    a("v_add_u32 v14, s57, v14"); a("v_add_u32 v24, s57, v24")
    a("v_lshlrev_b32 v15, 1, v13"); a("v_add_u32 v15, 1024, v15")
    a("v_mov_b32 v25, 1288")
    a("v_cmp_eq_u32 vcc, 0, v10"); a("v_cndmask_b32 v26, v25, v15, vcc")
    a("v_lshl_add_u32 v27, v10, 8, v13")
    a("v_mov_b32 v28, 1280")
    a("v_cmp_eq_u32 vcc, 0x100, v27"); a("v_cndmask_b32 v27, v26, v28, vcc")
    a("v_cmp_eq_u32 vcc, 0, v10")
    for r in range(1, 4):
        a(f"v_add_u32 v{28+r}, {64*r}, v15"); a(f"v_cndmask_b32 v{28+r}, v25, v{28+r}, vcc")
        a(f"v_add_u32 v{28+r}, s57, v{28+r}")
    a("v_add_u32 v27, s57, v27")
    a("v_cvt_pk_bf16_f32 v16, v16, v17"); a("v_cvt_pk_bf16_f32 v17, v18, v19")
    a("v_cvt_pk_bf16_f32 v20, v20, v21"); a("v_cvt_pk_bf16_f32 v22, v22, v23")
    a("ds_write_b32 v14, v16"); a("ds_write_b32 v24, v17")
    a("ds_write_b16 v27, v20"); a("ds_write_b16_d16_hi v29, v20"); a("ds_write_b16 v30, v22"); a("ds_write_b16_d16_hi v31, v22")
    a("v_mov_b32 v32, 0"); a("v_mov_b32 v33, s57")
    a("ds_write_b16 v33, v32 offset:1282")
    a("s_waitcnt lgkmcnt(0)")
    a("s_barrier")
    a("v_lshlrev_b32 v9, 3, v0"); a("v_sub_u32 v9, 2047, v9")
    for e in range(11):
        a(f"v_subrev_u32 v{16+e}, {e}, v9")
    for e in range(0, 12, 2):
        a(f"v_cvt_f32_i32 v{32+e}, v{16+e}")
        if e + 1 < 11: a(f"v_cvt_f32_i32 v{33+e}, v{17+e}")
        a(f"v_cvt_pk_bf16_f32 v{44+e//2}, v{32+e}, v{33+e if e+1 < 11 else 32+e}")
    for e in range(11):
        pkr = 44 + e // 2
        if e % 2 == 0: a(f"v_and_b32 v{52+e}, 0xffff, v{pkr}")
        else: a(f"v_lshrrev_b32 v{52+e}, 16, v{pkr}")
        a(f"v_add_u32 v{52+e}, -17024, v{52+e}") if False else a(f"v_subrev_u32 v{52+e}, 17024, v{52+e}")
        a(f"v_min_i32 v{16+e}, 128, v{16+e}")
        a(f"v_max_i32 v{52+e}, v{52+e}, v{16+e}")
    for e in range(8, 11):
        a(f"v_cmp_gt_i32 vcc, {e}, v9")
        a(f"v_mov_b32 v64, 641")
        a(f"v_cndmask_b32 v{52+e}, v{52+e}, v64, vcc")
    for e in range(11):
        a(f"v_lshlrev_b32 v{52+e}, 1, v{52+e}")
    for ch in range(2):
        for e in range(11):
            a(f"ds_read_u16 v{70+16*ch+e}, v{52+e} offset:{TB0+TB_CH*ch}")

    a("v_lshlrev_b32 v7, 4, v0")
    for ch in range(2):
        a(f"s_waitcnt lgkmcnt({11 if ch == 0 else 0})") if ch == 0 else a("s_waitcnt lgkmcnt(4)")
        for c in range(4):
            o = 110 + 16 * ch + 4 * c
            for k in range(4):
                lo = 70 + 16 * ch + c + 2 * k
                a(f"v_lshl_or_b32 v{o+k}, v{lo+1}, 16, v{lo}")
            a(f"ds_write_b128 v7, v[{o}:{o+3}] offset:{KC0+KC_CH*ch+KC_CP*c+32}")
    a("v_mov_b32 v20, 0\nv_mov_b32 v21, 0\nv_mov_b32 v22, 0\nv_mov_b32 v23, 0")
    a("v_lshrrev_b32 v16, 1, v0")
    a(f"s_movk_i32 s56, {KC_CP}"); a("v_mul_lo_u32 v16, v16, s56")
    a("v_and_b32 v17, 1, v0"); a("v_lshl_add_u32 v16, v17, 4, v16")
    a("v_cmp_gt_u32 vcc, 16, v0"); a("s_and_saveexec_b64 s[58:59], vcc")
    a(f"ds_write_b128 v16, v[20:23] offset:{KC0+4128}")
    a("s_mov_b64 exec, s[58:59]")
    a("s_waitcnt lgkmcnt(0)")
    a("s_barrier")
    a("v_and_b32 v9, 15, v1"); a("v_lshrrev_b32 v10, 4, v1")
    a("v_sub_u32 v11, 3, v9"); a("v_and_b32 v11, 3, v11")
    a(f"s_movk_i32 s56, {KC_CP}"); a("v_mul_lo_u32 v12, v11, s56")
    a("v_lshlrev_b32 v13, 3, v10"); a("v_sub_u32 v13, v13, v9"); a("v_sub_u32 v13, v13, v11")
    a("v_add_u32 v13, 2047, v13"); a("v_lshl_add_u32 v12, v13, 1, v12")
    a(f"s_mul_i32 s57, s21, {KC_CH}"); a(f"s_add_u32 s57, s57, {KC0 - 64*63}")
    a("v_add_u32 v12, s57, v12")
    a(f"s_mul_i32 s57, s21, {UA_CH}"); a(f"s_add_u32 s57, s57, {UA0}")
    a("v_lshlrev_b32 v13, 5, v9"); a("v_lshl_add_u32 v13, v10, 4, v13"); a("v_add_u32 v13, s57, v13")
    a("v_lshlrev_b32 v14, 5, v9"); a("v_lshl_add_u32 v14, v10, 3, v14")
    a("s_add_u32 s58, s57, 480"); a("v_add_u32 v15, s58, v14")
    a(f"s_mul_i32 s57, s21, {XA_CH}"); a(f"s_add_u32 s57, s57, {XA0}"); a("v_add_u32 v16, s57, v14")
    a("s_lshl_b32 s57, s26, 12"); a("v_add_u32 v17, s57, v14")
    a("s_cmp_eq_u32 s22, 0")
    a(f"s_cbranch_scc0 L_{name}_half1")
    for half, tiles in ((0, [7, 6, 1, 0]), (1, [5, 4, 3, 2])):
        if half == 1: a.label(f"L_{name}_half1")
        smax = 8 * max(tiles) + 7
        for s in range(smax + 1):
            a(f"ds_read_b64 a[{4*s}:{4*s+1}], v12 offset:{64*(63-s)}")
            a(f"ds_read_b64 a[{4*s+2}:{4*s+3}], v12 offset:{64*(63-s)+8}")
        acc = {t: 20 + 4 * i for i, t in enumerate(tiles)}
        for r in range(16): a(f"v_mov_b32 v{20+r}, 0")
        betas = list(range(-7, 8 * max(tiles) + 1))
        NB = 6
        def rdb(k):
            b = 40 + 4 * (k % NB)
            a(f"ds_read_b128 v[{b}:{b+3}], v13 offset:{64*(betas[k]+7)}")
        for k in range(NB - 1): rdb(k)
        for k, beta in enumerate(betas):
            if k + NB - 1 < len(betas): rdb(k + NB - 1)
            left = min(len(betas) - 1 - k, NB - 1)
            a(f"s_waitcnt lgkmcnt({left})")
            b = 40 + 4 * (k % NB)
            for t in tiles:
                s = 8 * t - beta
                if beta <= 8 * t:
                    a(f"v_mfma_f32_16x16x32_bf16 v[{acc[t]}:{acc[t]+3}], a[{4*s}:{4*s+3}], v[{b}:{b+3}], v[{acc[t]}:{acc[t]+3}]")
        for i, t in enumerate(tiles):
            a(f"ds_read_b64 v[{70+4*i}:{71+4*i}], v15 offset:{512*t}")
            a(f"ds_read_b64 v[{72+4*i}:{73+4*i}], v16 offset:{512*t}")
        a("s_waitcnt lgkmcnt(0)")
        for i, t in enumerate(tiles):
            A = acc[t]; U = 70 + 4 * i; X_ = 72 + 4 * i; o = 90 + 16 * i
            a(f"v_cvt_pk_bf16_f32 v{o}, v{A}, v{A+1}"); a(f"v_cvt_pk_bf16_f32 v{o+1}, v{A+2}, v{A+3}")
            for k in range(2):
                a(f"v_lshlrev_b32 v{o+2}, 16, v{U+k}"); a(f"v_and_b32 v{o+3}, 0xffff0000, v{U+k}")
                a(f"v_mul_f32 v{o+2}, s60, v{o+2}"); a(f"v_mul_f32 v{o+3}, s60, v{o+3}")
                a(f"v_cvt_pk_bf16_f32 v{o+4}, v{o+2}, v{o+3}")
                a(f"v_lshlrev_b32 v{o+5}, 16, v{o+k}"); a(f"v_and_b32 v{o+6}, 0xffff0000, v{o+k}")
                a(f"v_lshlrev_b32 v{o+7}, 16, v{o+4}"); a(f"v_and_b32 v{o+8}, 0xffff0000, v{o+4}")
                a(f"v_add_f32 v{o+5}, v{o+5}, v{o+7}"); a(f"v_add_f32 v{o+6}, v{o+6}, v{o+8}")
                a(f"v_cvt_pk_bf16_f32 v{o+4}, v{o+5}, v{o+6}")
                a(f"v_lshlrev_b32 v{o+5}, 16, v{o+4}"); a(f"v_and_b32 v{o+6}, 0xffff0000, v{o+4}")
                a(f"v_lshlrev_b32 v{o+7}, 16, v{X_+k}"); a(f"v_and_b32 v{o+8}, 0xffff0000, v{X_+k}")
                a(f"v_add_f32 v{o+5}, v{o+5}, v{o+7}"); a(f"v_add_f32 v{o+6}, v{o+6}, v{o+8}")
                a(f"v_cvt_pk_bf16_f32 v{o+10+k}, v{o+5}, v{o+6}")
            a(f"buffer_store_dwordx2 v[{o+10}:{o+11}], v17, s[52:55], 0 offen offset:{512*t}")
        a("s_waitcnt vmcnt(0)")
        a("s_endpgm")
    a.label(f"L_{name}_done")
    a("s_endpgm")
```

```python
from asm import *
from k01 import *

NLOG2E = 0xBFB8AA3B

class VM:
    def __init__(self): self.q = []
    def issue(self, tag): self.q.append(tag)
    def wait_for(self, a, pred):
        last = max((i for i, t in enumerate(self.q) if pred(t)), default=-1)
        n = len(self.q) - 1 - last
        a(f"s_waitcnt vmcnt({min(n,63)})")

K2_H = 0
K2_RING = 114688
K2_WRING = 12288
K2_LDS = K2_RING + 4 * K2_WRING

def k2_gemm1(a, name):
    a(f".globl {name}\n.p2align 8\n.type {name},@function")
    a.label(name)
    a("s_cmp_ge_u32 s2, 224")
    a(f"s_cbranch_scc1 L_{name}_done")
    a("s_load_dwordx4 s[4:7], s[0:1], 64")
    a("s_load_dwordx2 s[8:9], s[0:1], 104")
    a("v_and_b32 v1, 63, v0"); a("v_lshrrev_b32 v2, 6, v0"); a("s_nop 0")
    a("v_readfirstlane_b32 s20, v2")
    a("s_and_b32 s10, s2, 7"); a("s_mul_i32 s10, s10, 28"); a("s_lshr_b32 s11, s2, 3"); a("s_add_u32 s10, s10, s11")
    a("s_lshr_b32 s21, s10, 4")
    a("s_and_b32 s22, s10, 15")
    a("s_waitcnt lgkmcnt(0)")
    srd(a, 24, 4, D * F * 2); srd(a, 28, 6, D * F * 2)
    a(f"s_add_u32 s10, s8, {WS_HT}"); a("s_addc_u32 s11, s9, 0"); srd(a, 32, 10, L * D * 2)
    a(f"s_add_u32 s10, s8, {WS_HN}"); a("s_addc_u32 s11, s9, 0"); srd(a, 36, 10, L * D * 2)
    a(f"s_add_u32 s10, s8, {WS_HF}"); a("s_addc_u32 s11, s9, 0"); srd(a, 40, 10, L * F * 2)
    a("v_lshrrev_b32 v3, 4, v1"); a("v_and_b32 v4, 15, v1")
    a("v_lshlrev_b32 v5, 2, v3"); a("v_xor_b32 v5, v5, v4"); a("v_lshlrev_b32 v5, 4, v5")
    a("v_lshl_add_u32 v5, v3, 12, v5")
    a("s_lshl_b32 s10, s20, 14"); a("s_lshl_b32 s11, s22, 8"); a("s_add_u32 s10, s10, s11")
    a("v_add_u32 v5, s10, v5")
    a("v_lshrrev_b32 v6, 2, v1"); a("s_movk_i32 s10, 3584"); a("v_mul_lo_u32 v6, v6, s10")
    a("v_and_b32 v7, 3, v1"); a("v_lshl_add_u32 v6, v7, 4, v6")
    a("s_lshl_b32 s10, s21, 8"); a("s_lshl_b32 s11, s20, 6"); a("s_add_u32 s10, s10, s11")
    a("v_add_u32 v6, s10, v6")
    a("s_lshl_b32 s44, s20, 10")
    a(f"s_mul_i32 s45, s20, {K2_WRING}"); a(f"s_add_u32 s45, s45, {K2_RING}")
    vm = VM()
    def dma_h(ks):
        a(f"s_add_u32 m0, s44, {4096*ks}")
        a(f"s_mov_b32 s46, {65536*ks}")
        a("buffer_load_dwordx4 v5, s[32:35], s46 offen lds"); vm.issue(("H", ks))
    def dma_w(ks):
        slot = ks % 6
        a(f"s_add_u32 m0, s45, {2048*slot}")
        a(f"s_mov_b32 s46, {57344*ks}")
        a("buffer_load_dwordx4 v6, s[24:27], s46 offen lds"); vm.issue(("W", ks))
        a(f"s_add_u32 m0, s45, {2048*slot+1024}")
        a("buffer_load_dwordx4 v6, s[28:31], s46 offen lds"); vm.issue(("W", ks))
    for g in range(3):
        for ks in (2 * g, 2 * g + 1): dma_h(ks)
        for ks in (2 * g, 2 * g + 1): dma_w(ks)
    a("v_lshrrev_b32 v8, 4, v1"); a("v_and_b32 v9, 1, v8"); a("v_lshrrev_b32 v10, 1, v8")
    a("v_bfe_u32 v11, v1, 2, 2"); a("v_and_b32 v12, 3, v1")
    a("v_lshl_add_u32 v13, v10, 3, v11")
    a("v_and_b32 v14, 1, v12"); a("v_lshlrev_b32 v14, 1, v14"); a("v_lshrrev_b32 v15, 1, v12"); a("v_or_b32 v14, v14, v15")
    a("v_lshl_add_u32 v14, v9, 2, v14"); a("v_lshlrev_b32 v14, 3, v14")
    a("v_lshl_add_u32 v14, v13, 6, v14"); a("v_add_u32 v14, s45, v14")
    for jj in range(4):
        a(f"s_add_u32 s10, s20, {jj}"); a("s_and_b32 s10, s10, 3")
        a(f"v_xor_b32 v{16+jj}, s10, v11"); a(f"v_lshlrev_b32 v{16+jj}, 6, v{16+jj}")
        a(f"v_lshl_add_u32 v{16+jj}, v13, 8, v{16+jj}")
        a(f"v_lshl_add_u32 v{16+jj}, v9, 5, v{16+jj}"); a(f"v_lshl_add_u32 v{16+jj}, v12, 3, v{16+jj}")
    for r in range(128): a(f"v_accvgpr_write_b32 a{r}, 0")
    a("v_mov_b32 v20, 0\nv_mov_b32 v21, 0\nv_mov_b32 v22, 0\nv_mov_b32 v23, 0")
    a("v_mov_b32 v24, 0x3f803f80")
    FR = [32, 64]
    hi = [False]
    def reads(ks):
        fb = FR[ks & 1]; slot = ks % 6
        if ks >= 16 and not hi[0]:
            hi[0] = True
            for jj in range(4): a(f"v_add_u32 v{16+jj}, 0x10000, v{16+jj}")
        ho = 4096 * (ks - 16 if ks >= 16 else ks)
        a(f"ds_read_b64_tr_b16 v[{fb}:{fb+1}], v14 offset:{2048*slot}")
        a(f"ds_read_b64_tr_b16 v[{fb+2}:{fb+3}], v14 offset:{2048*slot+256}")
        a(f"ds_read_b64_tr_b16 v[{fb+8}:{fb+9}], v16 offset:{ho}")
        a(f"ds_read_b64_tr_b16 v[{fb+10}:{fb+11}], v16 offset:{ho+1024}")
        a(f"ds_read_b64_tr_b16 v[{fb+4}:{fb+5}], v14 offset:{2048*slot+1024}")
        a(f"ds_read_b64_tr_b16 v[{fb+6}:{fb+7}], v14 offset:{2048*slot+1024+256}")
        for jj in range(1, 4):
            a(f"ds_read_b64_tr_b16 v[{fb+8+4*jj}:{fb+9+4*jj}], v{16+jj} offset:{ho}")
            a(f"ds_read_b64_tr_b16 v[{fb+10+4*jj}:{fb+11+4*jj}], v{16+jj} offset:{ho+1024}")
    NK = 28
    vm.wait_for(a, lambda t: t[1] in (0, 1)); a("s_barrier")
    reads(0)
    for ks in range(NK):
        if ks + 1 < NK:
            if (ks + 1) % 2 == 0:
                g = (ks + 1) // 2
                vm.wait_for(a, lambda t: t[1] in (2 * g, 2 * g + 1)); a("s_barrier")
            reads(ks + 1)
            a("s_waitcnt lgkmcnt(12)")
        else:
            a("s_waitcnt lgkmcnt(0)")
        fb = FR[ks & 1]
        pend = []
        if ks % 2 == 1:
            g = ks // 2 + 3
            if 2 * g < NK: pend = [("h", 2 * g), ("h", 2 * g + 1), ("w", 2 * g), ("w", 2 * g + 1)]
        k = 0
        for jj in range(4):
            for mat in range(2):
                acc = 64 * mat + 16 * jj
                a(f"v_mfma_f32_32x32x16_bf16 a[{acc}:{acc+15}], v[{fb+4*mat}:{fb+4*mat+3}], v[{fb+8+4*jj}:{fb+11+4*jj}], a[{acc}:{acc+15}]")
                if k < 4:
                    a(f"v_dot2_f32_bf16 v20, v{fb+8+k}, v24, v20"); a(f"v_dot2_f32_bf16 v21, v{fb+8+k}, v{fb+8+k}, v21")
                else:
                    a(f"v_dot2_f32_bf16 v22, v{fb+k-4}, v24, v22"); a(f"v_dot2_f32_bf16 v23, v{fb+k}, v24, v23")
                if pend and k % 2 == 1:
                    kind, kk = pend.pop(0)
                    (dma_h if kind == "h" else dma_w)(kk)
                k += 1
    for r in (20, 21, 22, 23):
        a(f"v_mov_b32 v25, v{r}"); a(f"v_permlane32_swap_b32 v{r}, v25"); a(f"v_add_f32 v{r}, v{r}, v25")
    stats_pack(a, 20, 21, 26, 448, 27)
    a("v_lshlrev_b32 v28, 16, v26"); a("v_and_b32 v29, 0xffff0000, v26"); a("v_rcp_f32 v29, v29")
    a("s_barrier")
    a("v_and_b32 v30, 31, v1"); a("s_lshl_b32 s10, s20, 8"); a("v_lshl_add_u32 v31, v30, 3, s10")
    a("ds_write_b64 v31, v[28:29]")
    a("s_lshl_b32 s10, s20, 8"); a("s_add_u32 s10, s10, 1024"); a("v_lshl_add_u32 v31, v30, 2, s10")
    a("ds_write_b32 v31, v22"); a("ds_write_b32 v31, v23 offset:128")
    a("s_waitcnt lgkmcnt(0)"); a("s_barrier")
    for jj in range(4):
        a(f"s_add_u32 s10, s20, {jj}"); a("s_and_b32 s10, s10, 3"); a("s_lshl_b32 s10, s10, 8")
        a("v_lshl_add_u32 v31, v30, 3, s10")
        a(f"ds_read_b64 v[{32+2*jj}:{33+2*jj}], v31")
    a("v_lshrrev_b32 v31, 5, v1"); a("v_lshlrev_b32 v31, 4, v31"); a("s_lshl_b32 s10, s20, 8"); a("s_add_u32 s10, s10, 1024"); a("v_add_u32 v31, s10, v31")
    for q in range(4):
        a(f"ds_read_b128 v[{40+4*q}:{43+4*q}], v31 offset:{32*q}")
        a(f"ds_read_b128 v[{56+4*q}:{59+4*q}], v31 offset:{128+32*q}")
    a("s_waitcnt lgkmcnt(0)")
    a("v_lshlrev_b32 v72, 4, v1")
    for jj in range(4):
        a(f"s_add_u32 s10, s20, {jj}"); a("s_and_b32 s10, s10, 3")
        a("s_lshl_b32 s11, s22, 2"); a("s_add_u32 s10, s10, s11"); a("s_mul_i32 s10, s10, 112")
        a("s_lshl_b32 s11, s21, 3"); a("s_add_u32 s10, s10, s11"); a("s_lshl_b32 s11, s20, 1"); a("s_add_u32 s10, s10, s11")
        a(f"s_lshl_b32 s{48+jj}, s10, 10")
    a(f"v_mov_b32 v73, {NLOG2E:#x}")
    for jj in range(4):
        m = 32 + 2 * jj; ri = 33 + 2 * jj
        for s in range(2):
            o = 80 + 40 * ((2 * jj + s) % 2)
            for e in range(8):
                r = 8 * s + e
                g = o + e; u = o + 8 + e
                a(f"v_accvgpr_read_b32 v{g}, a{16*jj+r}"); a(f"v_accvgpr_read_b32 v{u}, a{64+16*jj+r}")
            for e in range(8):
                r = 8 * s + e; g = o + e; u = o + 8 + e
                a(f"v_fma_f32 v{g}, -v{m}, v{40+r}, v{g}"); a(f"v_fma_f32 v{u}, -v{m}, v{56+r}, v{u}")
                a(f"v_mul_f32 v{g}, v{g}, v{ri}"); a(f"v_mul_f32 v{u}, v{u}, v{ri}")
            for e in range(8):
                g = o + e; t = o + 16 + e
                a(f"v_mul_f32 v{t}, v73, v{g}"); a(f"v_exp_f32 v{t}, v{t}")
            for e in range(8):
                t = o + 16 + e
                a(f"v_add_f32 v{t}, 1.0, v{t}"); a(f"v_rcp_f32 v{t}, v{t}")
            for e in range(8):
                g = o + e; u = o + 8 + e; t = o + 16 + e
                a(f"v_mul_f32 v{g}, v{g}, v{u}"); a(f"v_mul_f32 v{g}, v{g}, v{t}")
            for k in range(4):
                a(f"v_cvt_pk_bf16_f32 v{o+24+k}, v{o+2*k}, v{o+2*k+1}")
            a(f"buffer_store_dwordx4 v[{o+24}:{o+27}], v72, s[40:43], s{48+jj} offen offset:{1024*s}")
    a("s_waitcnt vmcnt(0)")
    a.label(f"L_{name}_done")
    a("s_endpgm")
    return vm


K3_RING = 24576
K3_RED = 4 * K3_RING
K3_LDS = K3_RED + 49152

def k3_gemm2(a, name):
    a(f".globl {name}\n.p2align 8\n.type {name},@function")
    a.label(name)
    a("s_cmp_ge_u32 s2, 224")
    a(f"s_cbranch_scc1 L_{name}_done")
    a("s_load_dwordx2 s[4:5], s[0:1], 80")
    a("s_load_dwordx2 s[6:7], s[0:1], 88")
    a("s_load_dwordx2 s[8:9], s[0:1], 104")
    a("v_and_b32 v1, 63, v0"); a("v_lshrrev_b32 v2, 6, v0"); a("s_nop 0")
    a("v_readfirstlane_b32 s20, v2")
    a("s_and_b32 s10, s2, 7"); a("s_mul_i32 s10, s10, 28"); a("s_lshr_b32 s11, s2, 3"); a("s_add_u32 s10, s10, s11")
    a("s_mul_i32 s22, s10, 9363"); a("s_lshr_b32 s22, s22, 16")
    a("s_mul_i32 s11, s22, 7"); a("s_sub_u32 s21, s10, s11")
    a("s_lshr_b32 s12, s20, 1"); a("s_and_b32 s13, s20, 1")
    a("s_waitcnt lgkmcnt(0)")
    srd(a, 24, 4, F * D * 2); srd(a, 28, 6, L * D * 2)
    a(f"s_add_u32 s10, s8, {WS_HT}"); a("s_addc_u32 s11, s9, 0"); srd(a, 32, 10, L * D * 2)
    a(f"s_add_u32 s10, s8, {WS_HF}"); a("s_addc_u32 s11, s9, 0"); srd(a, 40, 10, L * F * 2)
    a("v_lshrrev_b32 v6, 2, v1"); a("s_mul_i32 s10, s20, 448"); a("v_add_u32 v6, s10, v6")
    a("s_movk_i32 s10, 896"); a("v_mul_lo_u32 v6, v6, s10")
    a("v_and_b32 v7, 3, v1"); a("v_lshl_add_u32 v6, v7, 4, v6")
    a("s_lshl_b32 s10, s21, 7"); a("v_add_u32 v6, s10, v6")
    a("v_add_u32 v7, 64, v6")
    a(f"s_mul_i32 s45, s20, {K3_RING}")
    a("v_lshlrev_b32 v8, 4, v1")
    for ns in range(2):
        a(f"s_xor_b32 s10, s13, {ns}"); a("s_lshl_b32 s11, s22, 1"); a("s_add_u32 s10, s10, s11"); a("s_mul_i32 s10, s10, 112")
        a("s_mul_i32 s11, s20, 28"); a("s_add_u32 s10, s10, s11"); a("s_lshl_b32 s10, s10, 10")
        a(f"v_add_u32 v{9+ns}, s10, v8")
    vm = VM()
    NK = 28; PF = 8; NS = 12
    BB = 64
    def issue(k):
        slot = k % NS
        a(f"s_add_u32 m0, s45, {2048*slot}"); a(f"s_mov_b32 s46, {14336*k}")
        a("buffer_load_dwordx4 v6, s[24:27], s46 offen lds"); vm.issue(("W", k))
        a(f"s_add_u32 m0, s45, {2048*slot+1024}")
        a("buffer_load_dwordx4 v7, s[24:27], s46 offen lds"); vm.issue(("W", k))
        b = BB + 8 * (k % (PF + 1))
        a(f"s_mov_b32 s47, {1024*k}")
        a(f"buffer_load_dwordx4 v[{b}:{b+3}], v9, s[40:43], s47 offen"); vm.issue(("B", k))
        a(f"buffer_load_dwordx4 v[{b+4}:{b+7}], v10, s[40:43], s47 offen"); vm.issue(("B", k))
    for k in range(PF): issue(k)
    a("v_lshrrev_b32 v11, 4, v1"); a("v_and_b32 v12, 1, v11"); a("v_lshrrev_b32 v13, 1, v11")
    a("v_bfe_u32 v14, v1, 2, 2"); a("v_and_b32 v15, 3, v1")
    a("v_lshl_add_u32 v16, v13, 3, v14")
    a("v_and_b32 v17, 1, v15"); a("v_lshlrev_b32 v17, 1, v17"); a("v_lshrrev_b32 v18, 1, v15"); a("v_or_b32 v17, v17, v18")
    a("v_lshl_add_u32 v17, v12, 2, v17"); a("v_lshlrev_b32 v17, 3, v17"); a("v_lshl_add_u32 v17, v16, 6, v17"); a("v_add_u32 v17, s45, v17")
    for ms in range(2):
        a(f"s_xor_b32 s10, s12, {ms}"); a("s_lshl_b32 s10, s10, 10"); a(f"v_add_u32 v{20+ms}, s10, v17")
    for r in range(64): a(f"v_accvgpr_write_b32 a{r}, 0")
    AF = [32, 40]
    def reads(k):
        fb = AF[k & 1]; slot = k % NS
        for ms in range(2):
            a(f"ds_read_b64_tr_b16 v[{fb+4*ms}:{fb+4*ms+1}], v{20+ms} offset:{2048*slot}")
            a(f"ds_read_b64_tr_b16 v[{fb+4*ms+2}:{fb+4*ms+3}], v{20+ms} offset:{2048*slot+256}")
    vm.wait_for(a, lambda t: t[1] == 0)
    reads(0)
    for k in range(NK):
        if k + PF < NK: issue(k + PF)
        if k + 1 < NK:
            vm.wait_for(a, lambda t: t[1] == k + 1)
            reads(k + 1); a("s_waitcnt lgkmcnt(4)")
        else:
            a("s_waitcnt lgkmcnt(0)")
        fb = AF[k & 1]; b = BB + 8 * (k % (PF + 1))
        for ms in range(2):
            for ns in range(2):
                acc = 16 * (2 * ms + ns)
                a(f"v_mfma_f32_32x32x16_bf16 a[{acc}:{acc+15}], v[{fb+4*ms}:{fb+4*ms+3}], v[{b+4*ns}:{b+4*ns+3}], a[{acc}:{acc+15}]")
    a("v_lshlrev_b32 v8, 4, v1")
    for x in range(1, 4):
        a(f"s_xor_b32 s10, s20, {x}"); a("s_mul_i32 s10, s10, 12288"); a(f"s_add_u32 s10, s10, {K3_RED + (x-1)*4096}")
        a("v_add_u32 v22, s10, v8")
        for q in range(4):
            for e in range(4): a(f"v_accvgpr_read_b32 v{48+e+4*(q%2)}, a{16*x+4*q+e}")
            a(f"ds_write_b128 v22, v[{48+4*(q%2)}:{51+4*(q%2)}] offset:{1024*q}")
    a("v_and_b32 v23, 31, v1"); a("v_lshrrev_b32 v24, 5, v1")
    a("s_lshl_b32 s10, s21, 6"); a("s_lshl_b32 s11, s12, 5"); a("s_add_u32 s14, s10, s11")
    a("s_lshl_b32 s10, s22, 6"); a("s_lshl_b32 s11, s13, 5"); a("s_add_u32 s15, s10, s11")
    a("v_lshlrev_b32 v25, 3, v24"); a("v_add_u32 v25, s14, v25")
    a("v_add_u32 v26, s15, v23")
    a("v_lshlrev_b32 v27, 12, v25"); a("v_lshl_add_u32 v27, v26, 1, v27")
    for s in range(2):
        for e in range(8):
            a(f"s_mov_b32 s47, {(16*s+e)*4096}")
            a(f"buffer_load_ushort v{140+8*s+e}, v27, s[32:35], s47 offen")
    a("s_movk_i32 s10, 896"); a("v_mul_lo_u32 v28, v26, s10"); a("v_lshl_add_u32 v28, v25, 1, v28")
    a("s_waitcnt lgkmcnt(0)"); a("s_barrier")
    a("s_mul_i32 s10, s20, 12288"); a(f"s_add_u32 s10, s10, {K3_RED}"); a("v_add_u32 v22, s10, v8")
    for r in range(16): a(f"v_accvgpr_read_b32 v{48+r}, a{r}")
    for x in range(3):
        for q in range(4):
            a(f"ds_read_b128 v[{64+16*x+4*q}:{67+16*x+4*q}], v22 offset:{4096*x+1024*q}")
    a("s_waitcnt lgkmcnt(0)")
    for x in range(3):
        for r in range(16): a(f"v_add_f32 v{48+r}, v{48+r}, v{64+16*x+r}")
    a("s_waitcnt vmcnt(0)")
    for s in range(2):
        for k in range(4):
            r = 8 * s + 2 * k
            a(f"v_cvt_pk_bf16_f32 v30, v{48+r}, v{49+r}")
            a("v_lshlrev_b32 v31, 16, v30"); a("v_and_b32 v30, 0xffff0000, v30")
            a(f"v_lshlrev_b32 v32, 16, v{140+r}"); a(f"v_lshlrev_b32 v33, 16, v{141+r}")
            a("v_add_f32 v31, v31, v32"); a("v_add_f32 v30, v30, v33")
            a(f"v_cvt_pk_bf16_f32 v{160+4*s+k}, v31, v30")
        a(f"buffer_store_dwordx4 v[{160+4*s}:{163+4*s}], v28, s[28:31], 0 offen offset:{32*s}")
    a("s_waitcnt vmcnt(0)")
    a.label(f"L_{name}_done")
    a("s_endpgm")
```

```python
import sys
from asm import *
from k01 import *
from k23 import *
hdr = open("sequential_preLN__ssm_conv_s4d__glu_gated_swiglu__prompt.s.ref").read().split("\n")
comments = [l for l in hdr if l.startswith(";") and "@launch" not in l and "Override" not in l and "grid=ceil" not in l]
a = Asm()
k0_stats(a, "k0_kernel"); k1_conv(a, "k1_kernel"); k2_gemm1(a, "k2_kernel"); k3_gemm2(a, "k3_kernel")
body = a.finish()
out = "\n".join(comments) + "\n"
out += "; @launch kernel=k0_kernel grid=(64,1,1) block=(256,1,1) lds=0\n"
out += f"; @launch kernel=k1_kernel grid=(224,1,1) block=(256,1,1) lds={K1_LDS}\n"
out += f"; @launch kernel=k2_kernel grid=(224,1,1) block=(256,1,1) lds={K2_LDS}\n"
out += f"; @launch kernel=k3_kernel grid=(224,1,1) block=(256,1,1) lds={K3_LDS}\n"
out += '.amdgcn_target "amdgcn-amd-amdhsa--gfx950"\n.text\n' + body
out += '.section .rodata,"a"\n' + kd("k0_kernel", 64, 64, 64) + kd("k1_kernel", 512, 96, 256) + kd("k2_kernel", 384, 96, 256) + kd("k3_kernel", 320, 96, 256)
open(sys.argv[1], "w").write(out)
print("nops inserted:", a.nops, "bytes:", len(out))
```

```python
import re

TRANS = ("v_exp_f32", "v_log_f32", "v_rcp_f32", "v_rsq_f32", "v_sqrt_f32", "v_sin_f32", "v_cos_f32", "v_rcp_iflag_f32")

def regs_of(tok):
    tok = tok.strip()
    tok = re.sub(r"^-|^\|", "", tok); tok = re.sub(r"\|$", "", tok)
    m = re.match(r"^abs\((.*)\)$", tok)
    if m: tok = m.group(1)
    m = re.match(r"^([vas])(\d+)$", tok)
    if m: return [(m.group(1), int(m.group(2)))]
    m = re.match(r"^([vas])\[(\d+):(\d+)\]$", tok)
    if m: return [(m.group(1), i) for i in range(int(m.group(2)), int(m.group(3)) + 1)]
    if tok in ("vcc", "vcc_lo", "vcc_hi"): return [("vcc", 0)]
    if tok in ("exec", "exec_lo", "exec_hi"): return [("exec", 0)]
    if tok == "m0": return [("m0", 0)]
    return []

class Ins:
    def __init__(self, text):
        self.text = text
        t = text.split(";")[0].strip()
        self.is_label = t.endswith(":")
        self.is_dir = t.startswith(".")
        self.op = ""
        self.defs = []; self.uses = []
        if not t or self.is_label or self.is_dir:
            return
        parts = t.split(None, 1)
        self.op = parts[0]
        rest = parts[1] if len(parts) > 1 else ""
        ops = []
        depth = 0; cur = ""
        for ch in rest:
            if ch in "[(": depth += 1
            if ch in "])": depth -= 1
            if ch == "," and depth == 0:
                ops.append(cur.strip()); cur = ""
            else:
                cur += ch
        if cur.strip(): ops.append(cur.strip())
        clean = []
        for o in ops:
            clean.append(o.split()[0] if o.split() else o)
        self.ops = clean
        self.mods = rest
        op = self.op
        R = [regs_of(o) for o in clean]
        self.valu = op.startswith("v_") and not op.startswith("v_mfma")
        self.mfma = op.startswith("v_mfma")
        self.trans = op.replace("_e32", "").replace("_e64", "") in TRANS
        self.vmem = op.startswith(("buffer_", "global_", "flat_"))
        self.ds = op.startswith("ds_")
        self.salu = op.startswith("s_")
        self.dpp = "_dpp" in op or "quad_perm" in rest or "row_" in rest
        self.lds_dma = self.vmem and (" lds" in (" " + rest + " ").replace(" lds ", " lds ") and re.search(r"\blds\b", rest) is not None or "load_lds" in op)
        flat = lambda L: [x for l in L for x in l]
        if self.vmem:
            if "store" in op or ("atomic" in op):
                self.uses = flat(R)
                if "atomic" in op and "sc0" in rest: self.defs = R[0]
            elif self.lds_dma:
                self.uses = flat(R) + [("m0", 0)]
            elif op in ("buffer_inv", "buffer_wbl2"):
                pass
            else:
                self.defs = R[0]; self.uses = flat(R[1:])
        elif self.ds:
            if op.startswith(("ds_write", "ds_add", "ds_max", "ds_min")) and "rtn" not in op:
                self.uses = flat(R)
                if "addtid" in op: self.uses += [("m0", 0)]
            else:
                self.defs = R[0]; self.uses = flat(R[1:])
        elif self.mfma:
            self.defs = R[0]; self.uses = flat(R[1:]); self.srcc = R[3] if len(R) > 3 else []
            self.srcab = R[1] + R[2]
            self.passes = 8 if "32x32x16" in op else 4 if "16x16x32" in op else 16
        elif self.valu:
            if op.startswith("v_cmpx"):
                self.defs = R[0] + [("exec", 0)]; self.uses = flat(R[1:])
            elif op.startswith("v_cmp"):
                self.defs = R[0]; self.uses = flat(R[1:])
            elif op.startswith(("v_add_co", "v_sub_co", "v_addc_co", "v_subb_co", "v_subrev_co")):
                self.defs = R[0] + R[1]; self.uses = flat(R[2:])
            elif op.startswith(("v_permlane32_swap", "v_permlane16_swap", "v_swap")):
                self.defs = R[0] + R[1]; self.uses = R[0] + R[1]
            else:
                self.defs = R[0]; self.uses = flat(R[1:])
                if op.startswith(("v_fmac", "v_dot2c", "v_pk_fmac", "v_writelane")) or self.dpp:
                    self.uses += R[0]
                if op.startswith("v_cndmask") and len(R) == 3:
                    self.uses += [("vcc", 0)]
        elif self.salu:
            if op.startswith(("s_cmp", "s_cbranch", "s_branch", "s_waitcnt", "s_barrier", "s_nop", "s_endpgm", "s_sleep", "s_setprio", "s_bitcmp")):
                self.uses = flat(R)
            elif "saveexec" in op:
                self.defs = R[0] + [("exec", 0)]; self.uses = flat(R[1:]) + [("exec", 0)]
            else:
                self.defs = R[0] if R else []; self.uses = flat(R[1:])

    def states(self):
        if self.is_label or self.is_dir or not self.op: return 0
        if self.op == "s_nop":
            return int(self.ops[0], 0) + 1
        return 1

def isv(r): return r[0] in ("v", "a")

def need(prod, cons):
    n = 0
    pd = set(prod.defs); cu = set(cons.uses); cd = set(cons.defs)
    raw = pd & cu
    vraw = {r for r in raw if isv(r)}
    sraw = {r for r in raw if r[0] in ("s", "vcc")}
    if prod.valu:
        if prod.trans and cons.valu and not cons.trans and vraw: n = max(n, 1)
        if prod.trans and cons.mfma and vraw: n = max(n, 2)
        if cons.mfma and vraw: n = max(n, 2)
        if cons.valu and cons.dpp and vraw: n = max(n, 2)
        if cons.op.startswith("v_permlane") and vraw: n = max(n, 2)
        if cons.op.startswith(("v_readfirstlane", "v_readlane")) and vraw: n = max(n, 1)
        if sraw:
            if cons.valu: n = max(n, 2)
            if cons.op.startswith(("v_readlane", "v_writelane")): n = max(n, 4)
            if cons.vmem: n = max(n, 5)
            if cons.salu: n = max(n, 4)
        if ("exec", 0) in pd and (cons.valu or cons.mfma or cons.vmem or cons.ds): n = max(n, 5)
        if "sdwa" in prod.text and vraw and cons.valu: n = max(n, 1)
    if prod.op.startswith("v_dot"):
        if cons.op == prod.op:
            ab = set(regs_of(cons.ops[1])) | set(regs_of(cons.ops[2]))
            if pd & ab: n = max(n, 3)
        elif (pd & cu) or (pd & cd): n = max(n, 3)
    if prod.mfma:
        p = prod.passes
        tab_valu = {2: 5, 4: 8, 8: 12, 16: 20}[p]
        if cons.mfma:
            if pd & set(cons.srcab): n = max(n, tab_valu)
            ov = pd & set(cons.srcc)
            if ov:
                if set(cons.srcc) == pd and cons.passes == p: n = max(n, 2 if p == 2 else 0)
                else: n = max(n, {2: 4, 4: 6, 8: 10, 16: 18}[p])
        else:
            if (pd & cu) or (pd & cd): n = max(n, tab_valu)
        if cons.valu and (set(prod.srcc) & cd): n = max(n, {2: 1, 4: 3, 8: 7, 16: 15}[p])
    if prod.vmem and "store" in prod.op and ("x4" in prod.op or "x3" in prod.op):
        data = set(prod.ops and regs_of(prod.ops[0] if prod.op.startswith("buffer") else prod.ops[1]))
        if (cons.valu or cons.mfma) and (data & cd): n = max(n, 2)
    if prod.salu and ("m0", 0) in pd and ("m0", 0) in cu and (cons.vmem or cons.ds): n = max(n, 1)
    return n

class Asm:
    def __init__(self):
        self.lines = []
    def __call__(self, text):
        for l in text.split("\n"):
            l = l.strip()
            if l: self.lines.append(l)
    def label(self, n): self.lines.append(n + ":")
    def comment(self, c): self.lines.append("; " + c)
    def finish(self, window=24):
        out = []; hist = []
        nn = 0
        for l in self.lines:
            ins = Ins(l)
            if ins.op and not ins.is_label and not ins.is_dir:
                dist = 0; req = 0
                for p in reversed(hist[-window:]):
                    if p.op:
                        k = need(p, ins)
                        if k - dist > req: req = k - dist
                    dist += p.states()
                    if dist >= 24: break
                while req > 0:
                    c = min(req, 16)
                    nop = Ins(f"s_nop {c-1}")
                    out.append(f"    s_nop {c-1}"); hist.append(nop); req -= c; nn += 1
            if ins.is_label or ins.is_dir: out.append(l)
            else: out.append("    " + l)
            hist.append(ins)
        self.nops = nn
        return "\n".join(out) + "\n"

def kd(name, vgpr, sgpr, accum):
    return f""".p2align 6
.amdhsa_kernel {name}
  .amdhsa_next_free_vgpr {vgpr}
  .amdhsa_next_free_sgpr {sgpr}
  .amdhsa_accum_offset {accum}
  .amdhsa_group_segment_fixed_size 0
  .amdhsa_kernarg_size 112
  .amdhsa_user_sgpr_count 2
  .amdhsa_user_sgpr_kernarg_segment_ptr 1
  .amdhsa_system_sgpr_workgroup_id_x 1
  .amdhsa_float_denorm_mode_32 3
.end_amdhsa_kernel
"""

def srd(a, s, ptr, nbytes):
    a(f"s_mov_b32 s{s}, s{ptr}")
    a(f"s_mov_b32 s{s+1}, s{ptr+1}")
    a(f"s_mov_b32 s{s+2}, {nbytes}")
    a(f"s_mov_b32 s{s+3}, 0x20000")


WS_STAMP = 0x1000000
STAMPS = {"on": False}
def stamp(a, i):
    if not STAMPS["on"]: return
    a("s_memtime s[98:99]" if STAMPS.get("clk") else "s_memrealtime s[98:99]")
    a("s_waitcnt lgkmcnt(0)")
    a(f"s_mov_b32 s{80+i}, s98")
def stamp_flush(a, kidx, n, wsreg):
    if not STAMPS["on"]: return
    a(f"s_add_u32 s96, s{wsreg}, {WS_STAMP}"); a(f"s_addc_u32 s97, s{wsreg+1}, 0")
    a("s_mov_b32 s92, s96\ns_mov_b32 s93, s97\ns_mov_b32 s94, 0x100000\ns_mov_b32 s95, 0x20000")
    a("s_mov_b64 exec, 1")
    a(f"s_lshl_b32 s96, s2, 2"); a("v_readfirstlane_b32 s97, v0"); a("s_nop 4"); a("s_lshr_b32 s97, s97, 6"); a("s_add_u32 s96, s96, s97")
    a(f"s_lshl_b32 s96, s96, 6"); a(f"s_add_u32 s96, s96, {kidx*65536}")
    for i in range(n):
        a(f"v_mov_b32 v250, s{80+i}"); a("v_mov_b32 v251, s96")
        a(f"buffer_store_dword v250, v251, s[92:95], 0 offen offset:{4*i}")
    a("s_waitcnt vmcnt(0)")

def cstamp(a, i):
    if not STAMPS["on"]: return
    a("s_memtime s[98:99]")
    a("s_waitcnt lgkmcnt(0)")
    a(f"s_mov_b32 s{80+i}, s98")
```

```python
from asm import *
from pA import (L, D, N, F, LOG2E, NLOG2E, INV2PI, WS_GRAN, WS_CS, WS_FLAG2, WS_FLAG4, WS_HT, HTS, WS_HF, WS_SIZE, SRD_WS, SRD_DBG, SPIN_MAX,
                OPS, OP_CH, KC_CH, KC_CP, SB, TB0, TB_CH, UA0, UA_CH, RA0, RA_CH, LDS_TOTAL, cmul1, cmul2, reduce8, stats_pack)
S_WAVE, S_NONCE = 32, 33
W = f"s[{SRD_WS}:{SRD_WS+3}]"
DBG = f"s[{SRD_DBG}:{SRD_DBG+3}]"
OPT = set()
RED0 = RA0 + 2 * RA_CH

def prologue(a):
    a("s_load_dwordx16 s[4:19], s[0:1], 0")
    a("s_load_dwordx8 s[20:27], s[0:1], 64")
    a("s_load_dwordx4 s[28:31], s[0:1], 96")
    a("v_and_b32 v1, 63, v0"); a("v_lshrrev_b32 v2, 6, v0"); a("s_nop 0")
    a(f"v_readfirstlane_b32 s{S_WAVE}, v2")
    a("s_waitcnt lgkmcnt(0)")
    srd(a, SRD_WS, 30, WS_SIZE); srd(a, SRD_DBG, 28, 256)
    a(f"s_or_b32 s64, s2, s{S_WAVE}"); a("s_cmp_eq_u32 s64, 0"); a("s_cbranch_scc0 L_nopub")
    a("s_memrealtime s[64:65]"); a("s_waitcnt lgkmcnt(0)"); a("s_or_b32 s64, s64, 1")
    a("v_mov_b32 v3, s64"); a("v_mov_b32 v4, 0")
    a(f"buffer_store_dword v3, v4, {DBG}, 0 offen sc1")
    a.label("L_nopub")

def get_nonce(a, tag, vt):
    a(f"v_mov_b32 v{vt+1}, 0"); a("s_mov_b32 s66, 0")
    a.label(f"L_nonce_{tag}")
    a(f"buffer_load_dword v{vt}, v{vt+1}, {DBG}, 0 offen sc1")
    a("s_waitcnt vmcnt(0)")
    a(f"v_readfirstlane_b32 s{S_NONCE}, v{vt}")
    a("s_add_u32 s66, s66, 1"); a(f"s_cmp_gt_u32 s66, {SPIN_MAX}"); a(f"s_cbranch_scc1 L_nonce_{tag}_ok")
    a(f"s_cmp_eq_u32 s{S_NONCE}, 0"); a(f"s_cbranch_scc1 L_nonce_{tag}")
    a.label(f"L_nonce_{tag}_ok")

def publish_flag(a, off_sgpr):
    lab = f"L_pub_{len(a.lines)}"
    a(f"s_cmp_eq_u32 s{S_WAVE}, 0"); a(f"s_cbranch_scc0 {lab}")
    a(f"v_mov_b32 v2, s{S_NONCE}"); a(f"v_mov_b32 v3, s{off_sgpr}")
    a("s_mov_b64 exec, 1")
    a(f"buffer_store_dword v2, v3, {W}, 0 offen sc1")
    a("s_mov_b64 exec, -1")
    a.label(lab)

def wait_flags(a, tag, base_sgpr, count, per_lane, vt=32):
    a(f"s_cmp_eq_u32 s{S_WAVE}, 0"); a(f"s_cbranch_scc0 L_wf_{tag}_bar")
    a(f"v_lshlrev_b32 v{vt}, 6, v1"); a(f"v_add_u32 v{vt}, s{base_sgpr}, v{vt}")
    a("s_mov_b32 s66, 0")
    if count < 64:
        a(f"v_cmp_gt_u32 vcc, {count}, v1"); a("s_and_saveexec_b64 s[68:69], vcc")
    a.label(f"L_wf_{tag}")
    for i in range(per_lane):
        if i == 0: a(f"buffer_load_dword v{vt+1}, v{vt}, {W}, 0 offen sc1")
        else:
            a(f"s_mov_b32 s67, {4096*i}"); a(f"buffer_load_dword v{vt+1+i}, v{vt}, {W}, s67 offen sc1")
    a("s_waitcnt vmcnt(0)")
    a(f"v_xor_b32 v{vt+1}, s{S_NONCE}, v{vt+1}")
    for i in range(1, per_lane):
        a(f"v_xor_b32 v{vt+1+i}, s{S_NONCE}, v{vt+1+i}"); a(f"v_or_b32 v{vt+1}, v{vt+1}, v{vt+1+i}")
    a(f"v_cmp_ne_u32 vcc, 0, v{vt+1}")
    a("s_add_u32 s66, s66, 1"); a(f"s_cmp_gt_u32 s66, {SPIN_MAX}"); a(f"s_cbranch_scc1 L_wf_{tag}_ok")
    a(f"s_cbranch_vccnz L_wf_{tag}")
    a.label(f"L_wf_{tag}_ok")
    a("s_mov_b64 exec, -1")
    a.label(f"L_wf_{tag}_bar")
    a("s_barrier")

def helper(a):
    srd(a, 36, 4, L * D * 2)
    a("s_sub_u32 s70, s2, 224")
    a("s_lshl_b32 s64, s70, 6"); a(f"s_lshl_b32 s65, s{S_WAVE}, 3"); a("s_add_u32 s64, s64, s65")
    a("v_lshrrev_b32 v3, 3, v1"); a("v_add_u32 v3, s64, v3")
    a("v_and_b32 v2, 7, v1")
    a("s_movk_i32 s65, 896"); a("v_mul_lo_u32 v4, v3, s65"); a("v_lshl_add_u32 v4, v2, 4, v4")
    for i in range(7): a(f"buffer_load_dwordx4 v[{8+4*i}:{11+4*i}], v4, s[36:39], 0 offen offset:{128*i}")
    a("v_mov_b32 v83, 0"); a(f"buffer_load_dword v82, v83, {DBG}, 0 offen sc1")
    a("v_mov_b32 v70, 0x3f803f80"); a("v_mov_b32 v72, 0"); a("v_mov_b32 v73, 0")
    for i in range(7):
        a(f"s_waitcnt vmcnt({7-i})")
        for j in range(4):
            r = 8 + 4 * i + j
            a(f"v_dot2_f32_bf16 v72, v{r}, v70, v72"); a(f"v_dot2_f32_bf16 v73, v{r}, v{r}, v73")
    reduce8(a, 72); reduce8(a, 73)
    stats_pack(a, 72, 73, 76, 80)
    a("s_waitcnt vmcnt(0)"); a(f"v_readfirstlane_b32 s{S_NONCE}, v82")
    a(f"s_cmp_eq_u32 s{S_NONCE}, 0"); a("s_cbranch_scc0 L_h_have")
    get_nonce(a, "h1", 82)
    a.label("L_h_have")
    a(f"v_mov_b32 v77, s{S_NONCE}")
    a("v_lshlrev_b32 v6, 3, v3")
    a("v_cmp_eq_u32 vcc, 0, v2"); a("s_and_saveexec_b64 s[64:65], vcc")
    a(f"buffer_store_dwordx2 v[76:77], v6, {W}, 0 offen offset:{WS_GRAN} sc1")
    a("s_mov_b64 exec, s[64:65]")
    stamp(a, 1)
    a("s_cmp_lt_u32 s70, 16")
    a("s_cselect_b32 s36, s20, s22"); a("s_cselect_b32 s37, s21, s23")
    a(f"s_mov_b32 s38, {D*F*2}"); a("s_mov_b32 s39, 0x20000")
    a("s_and_b32 s64, s70, 15"); a("s_mul_i32 s64, s64, 224")
    a("v_lshrrev_b32 v2, 4, v1"); a("v_and_b32 v3, 15, v1")
    a(f"s_mul_i32 s65, s{S_WAVE}, 56"); a("v_add_u32 v4, s65, v2")
    a("s_movk_i32 s65, 3584"); a("v_mul_lo_u32 v4, v4, s65"); a("v_lshl_add_u32 v4, v3, 4, v4"); a("v_add_u32 v4, s64, v4")
    for i in range(14):
        a(f"s_mov_b32 s67, {4*3584*i}")
        a(f"buffer_load_dwordx4 v[{8+4*i}:{11+4*i}], v4, s[36:39], s67 offen")
    for e in range(8): a(f"v_mov_b32 v{72+e}, 0")
    for i in range(14):
        a(f"s_waitcnt vmcnt({13-i})")
        for j in range(4):
            r = 8 + 4 * i + j
            a(f"v_lshlrev_b32 v80, 16, v{r}"); a(f"v_and_b32 v81, 0xffff0000, v{r}")
            a(f"v_add_f32 v{72+2*j}, v{72+2*j}, v80"); a(f"v_add_f32 v{73+2*j}, v{73+2*j}, v81")
    a(f"s_lshl_b32 s65, s{S_WAVE}, 2"); a("v_add_u32 v5, s65, v2"); a("v_lshlrev_b32 v5, 9, v5"); a("v_lshl_add_u32 v5, v3, 5, v5")
    a("ds_write_b128 v5, v[72:75]"); a("ds_write_b128 v5, v[76:79] offset:16")
    a("s_waitcnt lgkmcnt(0)"); a("s_barrier")
    a("v_lshlrev_b32 v5, 2, v0")
    a("v_cmp_gt_u32 vcc, 112, v0"); a("s_and_saveexec_b64 s[64:65], vcc"); a("s_cbranch_execz L_h_cs_done")
    for k in range(32): a(f"ds_read_b32 v{8+k}, v5 offset:{512*k}")
    a("s_waitcnt lgkmcnt(0)")
    for k in range(1, 32): a(f"v_add_f32 v8, v8, v{8+k}")
    a("s_mul_i32 s66, s70, 448"); a(f"s_add_u32 s66, s66, {WS_CS}"); a("v_add_u32 v5, s66, v5")
    a(f"buffer_store_dword v8, v5, {W}, 0 offen sc1")
    a.label("L_h_cs_done")
    a("s_mov_b64 exec, s[64:65]")
    a("s_waitcnt vmcnt(0)"); a("s_barrier")
    a("s_lshl_b32 s64, s2, 6"); a(f"s_add_u32 s64, s64, {WS_FLAG2}")
    publish_flag(a, 64)
    stamp(a, 2)

def phaseA(a, hooks):
    a(f"s_lshr_b32 s34, s{S_WAVE}, 2"); a(f"s_and_b32 s35, s{S_WAVE}, 3")
    srd(a, 36, 4, L * D * 2)
    srd(a, 40, 6, D * N * 2); srd(a, 44, 8, D * N * 2); srd(a, 48, 10, D * N * 2); srd(a, 52, 12, D * N * 2)
    a("s_lshl_b32 s64, s2, 2")
    a("s_load_dword s68, s[14:15], s64"); a("s_load_dword s69, s[16:17], s64")
    a("s_lshl_b32 s70, s2, 1"); a("s_add_u32 s70, s70, s34")
    a("s_lshl_b32 s65, s70, 9"); a("s_lshl_b32 s66, s35, 7"); a("s_add_u32 s65, s65, s66")
    a("v_lshl_add_u32 v3, v1, 1, s65")
    a("buffer_load_ushort v10, v3, s[40:43], 0 offen"); a("buffer_load_ushort v11, v3, s[44:47], 0 offen")
    a("buffer_load_ushort v12, v3, s[48:51], 0 offen"); a("buffer_load_ushort v13, v3, s[52:55], 0 offen")
    a("s_movk_i32 s65, 3584"); a("v_mul_lo_u32 v4, v0, s65"); a("v_add_u32 v4, s64, v4")
    def gather(i): return f"buffer_load_dword v{200+i}, v4, s[36:39], 0 offen offset:{896*i}"
    a(gather(0))
    a("v_lshlrev_b32 v7, 4, v0"); a(f"v_add_u32 v7, {SB}, v7")
    a("v_mov_b32 v20, 0\nv_mov_b32 v21, 0\nv_mov_b32 v22, 0\nv_mov_b32 v23, 0")
    a("v_cmp_gt_u32 vcc, 30, v0"); a("s_and_saveexec_b64 s[66:67], vcc")
    a(f"ds_write_b128 v7, v[20:23] offset:{UA0-SB}"); a(f"ds_write_b128 v7, v[20:23] offset:{UA0-SB+UA_CH}")
    a("s_mov_b64 exec, s[66:67]")
    a(gather(1))
    a("v_and_b32 v8, 255, v0"); a("v_lshlrev_b32 v9, 3, v8"); a("v_sub_u32 v9, 2047, v9")
    for e in range(11): a(f"v_subrev_u32 v{30+e}, {e}, v9")
    for e in range(0, 12, 2):
        a(f"v_cvt_f32_i32 v{44+e}, v{30+e}")
        if e + 1 < 11: a(f"v_cvt_f32_i32 v{45+e}, v{31+e}")
        a(f"v_cvt_pk_bf16_f32 v{58+e//2}, v{44+e}, v{45+e if e+1 < 11 else 44+e}")
    for e in range(11):
        p = 58 + e // 2; r = 226 + e
        a(f"v_and_b32 v{r}, 0xffff, v{p}" if e % 2 == 0 else f"v_lshrrev_b32 v{r}, 16, v{p}")
        a(f"v_subrev_u32 v{r}, 17024, v{r}"); a(f"v_min_i32 v{30+e}, 128, v{30+e}"); a(f"v_max_i32 v{r}, v{r}, v{30+e}")
    a("v_mov_b32 v64, 641")
    for e in range(8, 11):
        a(f"v_cmp_gt_i32 vcc, {e}, v9"); a(f"v_cndmask_b32 v{226+e}, v{226+e}, v64, vcc")
    a(f"s_mul_i32 s66, s34, {TB_CH}"); a(f"s_add_u32 s72, s66, {TB0}")
    a("v_mov_b32 v65, s72")
    for e in range(11): a(f"v_lshl_add_u32 v{226+e}, v{226+e}, 1, v65")
    a(gather(2))
    a(f"s_mul_i32 s66, s34, {KC_CH}"); a("s_add_u32 s66, s66, 32"); a("v_lshl_add_u32 v237, v8, 4, s66")
    a("v_and_b32 v9, 15, v1"); a("v_lshrrev_b32 v8, 4, v1")
    a(f"s_and_b32 s73, s{S_WAVE}, 1"); a(f"s_bfe_u32 s74, s{S_WAVE}, 0x10001")
    a("s_lshl_b32 s65, s73, 4"); a("v_add_u32 v30, s65, v9")
    a("v_lshlrev_b32 v31, 4, v30"); a("v_lshl_add_u32 v31, v8, 3, v31")
    a("v_lshlrev_b32 v32, 3, v30"); a("v_add_u32 v32, 512, v32")
    a("v_cmp_eq_u32 vcc, 2, v8"); a("v_cndmask_b32 v31, v31, v32, vcc")
    a("v_lshlrev_b32 v32, 2, v30"); a("v_add_u32 v32, 768, v32")
    a("v_add_u32 v33, 4, v31"); a("v_add_u32 v34, 128, v32")
    a("v_cmp_eq_u32 vcc, 3, v8"); a("v_cndmask_b32 v31, v31, v32, vcc"); a("v_cndmask_b32 v33, v33, v34, vcc")
    a("v_lshlrev_b32 v32, 1, v30"); a("v_add_u32 v32, 1024, v32"); a("v_mov_b32 v34, 1288")
    a("v_cmp_eq_u32 vcc, 0, v8")
    for r in range(4):
        a(f"v_add_u32 v35, {64*r}, v32"); a(f"v_cndmask_b32 v{238+r}, v34, v35, vcc")
    a("v_lshl_add_u32 v35, v8, 8, v30"); a("v_mov_b32 v36, 1280")
    a("v_cmp_eq_u32 vcc, 0x100, v35"); a("v_cndmask_b32 v238, v238, v36, vcc")
    a("s_cmp_eq_u32 s74, 0"); a("s_cbranch_scc0 L_tb_rt1")
    a("v_mov_b32 v238, v31"); a("v_mov_b32 v239, v33")
    a.label("L_tb_rt1")
    for r in range(4): a(f"v_add_u32 v{238+r}, s72, v{238+r}")
    a("v_mov_b32 v36, s72"); a("ds_write_b16 v36, v20 offset:1282")
    a(gather(3))
    a(f"s_movk_i32 s65, {OPS}"); a("v_mul_lo_u32 v248, v9, s65"); a("v_lshl_add_u32 v248, v8, 4, v248")
    a(f"s_mul_i32 s66, s34, {OP_CH}"); a("v_add_u32 v248, s66, v248")
    a(f"s_mul_i32 s67, s73, {16*OPS}"); a(f"s_add_u32 s67, s67, {21*OPS}"); a("v_add_u32 v249, s67, v248")
    a(f"s_mul_i32 s67, s74, {16*OPS}"); a("v_add_u32 v248, s67, v248")
    a("v_sub_u32 v30, 3, v9"); a("v_and_b32 v30, 3, v30")
    a(f"s_movk_i32 s65, {KC_CP}"); a("v_mul_lo_u32 v31, v30, s65")
    a("v_lshlrev_b32 v32, 3, v8"); a("v_sub_u32 v32, v32, v9"); a("v_sub_u32 v32, v32, v30"); a("v_add_u32 v32, 2047, v32")
    a("v_lshl_add_u32 v31, v32, 1, v31")
    a(f"s_mul_i32 s66, s34, {KC_CH}"); a(f"s_sub_u32 s66, s66, {64*63}"); a("v_add_u32 v244, s66, v31")
    a(f"s_mul_i32 s66, s34, {UA_CH}"); a(f"s_add_u32 s66, s66, {UA0}")
    a("v_lshlrev_b32 v31, 5, v9"); a("v_lshl_add_u32 v31, v8, 4, v31"); a("v_add_u32 v245, s66, v31")
    a(f"s_mul_i32 s66, s34, {RA_CH}"); a(f"s_add_u32 s66, s66, {RA0}")
    a("v_lshlrev_b32 v31, 6, v9"); a("v_lshl_add_u32 v31, v8, 4, v31"); a("v_add_u32 v246, s66, v31")
    a(f"s_mul_i32 s66, s70, {HTS}"); a(f"s_add_u32 s66, s66, {WS_HT}")
    a("v_lshlrev_b32 v31, 5, v9"); a("v_lshl_add_u32 v31, v8, 3, v31"); a("v_add_u32 v247, s66, v31")
    a(f"s_mul_i32 s71, s34, {OP_CH}"); a("s_lshl_b32 s66, s35, 8"); a("s_add_u32 s71, s71, s66")
    a("s_waitcnt lgkmcnt(0)")
    a("s_lshl_b32 s65, s34, 4"); a("s_lshr_b32 s66, s68, s65"); a("s_lshl_b32 s66, s66, 16")
    a(f"v_mov_b32 v14, {LOG2E:#x}"); a("v_mul_f32 v15, s66, v14"); a("v_exp_f32 v15, v15")
    a("v_cvt_pk_bf16_f32 v15, v15, v15"); a("v_lshlrev_b32 v15, 16, v15")
    a("s_mov_b32 m0, s71")
    stamp(a, 1)
    a("s_waitcnt vmcnt(4)")
    stamp(a, 2)
    a("v_lshlrev_b32 v16, 16, v10"); a("v_lshlrev_b32 v24, 16, v11"); a("v_mul_f32 v16, v14, v16"); a("v_mul_f32 v24, v24, v15")
    a("v_exp_f32 v16, v16"); a(f"v_mul_f32 v24, {INV2PI:#x}, v24")
    a("v_lshlrev_b32 v30, 16, v12"); a("v_lshlrev_b32 v31, 16, v13")
    a("v_cvt_pk_bf16_f32 v16, v16, v16"); a("v_add_f32 v26, v15, v15")
    a("v_lshlrev_b32 v18, 16, v16")
    a("v_mul_f32 v30, v30, v26"); a("v_mul_f32_e64 v31, -v31, v26")
    a("v_mul_f32 v18, v18, v15"); a("v_mul_f32_e64 v18, -v18, v14")
    P, Q = 18, 24
    X, Xb = 30, 34
    Z = {1: 40, 8: 44, 256: 48, 2: 52, 4: 56}
    for k, t in enumerate((8, 1, 256)):
        tm = 60 + 2 * k
        if t == 1:
            a(f"v_exp_f32 v{tm}, v{P}"); a(f"v_fract_f32 v{tm+1}, v{Q}")
        else:
            c = {8: 0x41000000, 256: 0x43800000}[t]
            a(f"v_mul_f32 v{tm}, {c:#x}, v{P}"); a(f"v_mul_f32 v{tm+1}, {c:#x}, v{Q}")
            a(f"v_exp_f32 v{tm}, v{tm}"); a(f"v_fract_f32 v{tm+1}, v{tm+1}")
    for k, t in enumerate((8, 1, 256)):
        tm = 60 + 2 * k; z = Z[t]
        a(f"v_cos_f32 v{z}, v{tm+1}"); a(f"v_sin_f32 v{z+1}, v{tm+1}")
    for k, t in enumerate((8, 1, 256)):
        tm = 60 + 2 * k; z = Z[t]
        a(f"v_mul_f32 v{z}, v{z}, v{tm}"); a(f"v_mul_f32 v{z+1}, v{z+1}, v{tm}")
    T, T2 = 72, 76
    pk = [80, 81, 82, 83, 84, 85]; pki = [0]
    def put(row, src):
        r = pk[pki[0] % 6]; pki[0] += 1
        a(f"v_cvt_pk_bf16_f32 v{r}, v{src}, v{src+1}")
        a(f"ds_write_addtid_b32 v{r} offset:{row*OPS}")
    Y, X256, X512, X768, XW = 88, 92, 96, 100, 104
    put(0, X); put(22, Z[8])
    a("v_mov_b32 v108, 0x3f80"); a(f"ds_write_addtid_b32 v108 offset:{21*OPS}")
    a(cmul1(0, Z[1], Z[1], T)); a(cmul2(Z[2], Z[1], Z[1], T, False))
    a(cmul1(0, Z[2], Z[2], T)); a(cmul2(Z[4], Z[2], Z[2], T, False))
    xs = [(c, Xb, X if c == 1 else Xb, Z[1]) for c in range(1, 8)]
    xs += [(8, X256, X, Z[256]), (9, XW, X256, Z[2]), (10, XW, XW, Z[2]), (11, XW, XW, Z[2]), (12, X512, X256, Z[256]),
           (13, XW, X512, Z[4]), (14, X768, X512, Z[256]), (15, XW, X768, Z[4]), (16, XW, X768, Z[256])]
    for r in range(17, 21): xs.append((r, XW, XW, Z[256]))
    gi = 1
    for k, b in enumerate(range(2, 32)):
        src = Z[8] if b == 2 else Y
        x = xs[k] if k < len(xs) else None
        a(cmul1(0, src, Z[8], T))
        if x: a(cmul1(0, x[2], x[3], T2))
        a(cmul2(Y, src, Z[8], T, False))
        if x: a(cmul2(x[1], x[2], x[3], T2, True))
        put(21 + b, Y)
        if x: put(x[0], x[1])
    a("v_lshlrev_b32 v3, 5, v0"); a("v_mov_b32 v225, 0")
    def s1_issue():
        a(f"buffer_load_dword v224, v225, {DBG}, 0 offen sc1")
        for i in range(2): a(f"buffer_load_dwordx4 v[{208+4*i}:{211+4*i}], v3, {W}, 0 offen offset:{WS_GRAN+16*i} sc1")
    s1_issue()
    stamp(a, 3)
    a("s_waitcnt lgkmcnt(0)"); a("s_barrier")
    stamp(a, 4)
    for r in range(4): a(f"v_mov_b32 v{16+r}, 0")
    NR = 6
    def rd(s):
        b = 32 + 8 * (s % NR)
        a(f"ds_read_b128 v[{b}:{b+3}], v248 offset:{64*s}"); a(f"ds_read_b128 v[{b+4}:{b+7}], v249 offset:{64*s}")
    for s in range(NR - 1): rd(s)
    for s in range(16):
        if s + NR - 1 < 16: rd(s + NR - 1)
        a(f"s_waitcnt lgkmcnt({2*min(15-s, NR-1)})")
        b = 32 + 8 * (s % NR)
        a(f"v_mfma_f32_16x16x32_bf16 v[16:19], v[{b}:{b+3}], v[{b+4}:{b+7}], v[16:19]")
    a("v_cvt_pk_bf16_f32 v16, v16, v17"); a("v_cvt_pk_bf16_f32 v17, v18, v19")
    a("s_cmp_eq_u32 s74, 0"); a("s_cbranch_scc0 L_tw_rt1")
    a("ds_write_b32 v238, v16"); a("ds_write_b32 v239, v17"); a("s_branch L_tw_done")
    a.label("L_tw_rt1")
    a("ds_write_b16 v238, v16"); a("ds_write_b16_d16_hi v239, v16"); a("ds_write_b16 v240, v17"); a("ds_write_b16_d16_hi v241, v17")
    a.label("L_tw_done")
    a("s_waitcnt lgkmcnt(0)"); a("s_barrier")
    stamp(a, 5)
    for e in range(11): a(f"ds_read_u16 v{70+e}, v{226+e}")
    a("v_mov_b32 v20, 0\nv_mov_b32 v21, 0\nv_mov_b32 v22, 0\nv_mov_b32 v23, 0")
    a("v_lshrrev_b32 v16, 1, v0"); a(f"s_movk_i32 s65, {KC_CP}"); a("v_mul_lo_u32 v16, v16, s65")
    a("v_and_b32 v17, 1, v0"); a("v_lshl_add_u32 v16, v17, 4, v16")
    a("s_waitcnt lgkmcnt(0)")
    for c in range(4):
        o = 110 + 4 * c
        for k in range(4):
            lo = 70 + c + 2 * k
            a(f"v_lshl_or_b32 v{o+k}, v{lo+1}, 16, v{lo}")
        a(f"ds_write_b128 v237, v[{o}:{o+3}] offset:{KC_CP*c}")
    a("v_cmp_gt_u32 vcc, 16, v0"); a("s_and_saveexec_b64 s[66:67], vcc")
    a("ds_write_b128 v16, v[20:23] offset:4128"); a("s_mov_b64 exec, s[66:67]")
    stamp(a, 6)
    a("s_mov_b32 s66, 0")
    a.label("L_s1_chk")
    a("s_waitcnt vmcnt(0)")
    a(f"v_readfirstlane_b32 s{S_NONCE}, v224")
    a(f"v_xor_b32 v16, s{S_NONCE}, v209")
    for i in range(1, 4):
        a(f"v_xor_b32 v17, s{S_NONCE}, v{209+2*i}"); a("v_or_b32 v16, v16, v17")
    a("v_cmp_ne_u32 vcc, 0, v16")
    a(f"s_cmp_eq_u32 s{S_NONCE}, 0"); a("s_cbranch_scc1 L_s1_retry")
    a("s_cbranch_vccz L_s1_ok")
    a.label("L_s1_retry")
    a("s_add_u32 s66, s66, 1"); a(f"s_cmp_gt_u32 s66, {SPIN_MAX}"); a("s_cbranch_scc1 L_s1_ok")
    s1_issue()
    a("s_branch L_s1_chk")
    a.label("L_s1_ok")
    stamp(a, 7)
    a("s_lshl_b32 s64, s69, 16"); a("s_and_b32 s65, s69, 0xffff0000")
    for i in range(4):
        st = 208 + 2 * i; x = 200 + i; o = 30 + 6 * (i % 2)
        a(f"v_and_b32 v{o+1}, 0xffff0000, v{st}"); a(f"v_lshlrev_b32 v{o}, 16, v{st}")
        a(f"v_rcp_f32 v{o+1}, v{o+1}")
        a(f"v_lshlrev_b32 v{o+2}, 16, v{x}"); a(f"v_and_b32 v{o+3}, 0xffff0000, v{x}")
        a(f"v_sub_f32 v{o+4}, v{o+2}, v{o}"); a(f"v_sub_f32 v{o+5}, v{o+3}, v{o}")
        a(f"v_mul_f32 v{130+i}, v{o+4}, v{o+1}"); a(f"v_mul_f32 v{134+i}, v{o+5}, v{o+1}")
        a(f"v_fma_f32 v{140+i}, v{130+i}, s64, v{o+2}"); a(f"v_fma_f32 v{144+i}, v{134+i}, s65, v{o+3}")
    for k in range(2):
        a(f"v_cvt_pk_bf16_f32 v{148+k}, v{130+2*k}, v{131+2*k}"); a(f"v_cvt_pk_bf16_f32 v{150+k}, v{134+2*k}, v{135+2*k}")
    a("v_lshlrev_b32 v9, 3, v0"); a(f"v_add_u32 v9, {UA0+480}, v9")
    a("ds_write_b64 v9, v[148:149]"); a(f"ds_write_b64 v9, v[150:151] offset:{UA_CH}")
    a("v_lshlrev_b32 v9, 4, v0"); a(f"v_add_u32 v9, {RA0}, v9")
    a("ds_write_b128 v9, v[140:143]"); a(f"ds_write_b128 v9, v[144:147] offset:{RA_CH}")
    a("s_waitcnt lgkmcnt(0)"); a("s_barrier")
    stamp(a, 8)
    hooks["setup"](a)
    a("s_lshl_b32 s65, s74, 1"); a("s_or_b32 s65, s65, s73")
    for v in range(3):
        a(f"s_cmp_eq_u32 s65, {v}"); a(f"s_cbranch_scc1 L_conv{v}")
    a("s_branch L_conv3")
    for v in range(4):
        a.label(f"L_conv{v}")
        conv(a, [7, 6, 1, 0] if v < 2 else [5, 4, 3, 2], v & 1, hooks["dma"])
        if v < 3: a("s_branch L_conv_done")
    a.label("L_conv_done")
    stamp(a, 9)
    a("s_waitcnt vmcnt(0)")
    stamp(a, 10)
    a("s_barrier")
    a("s_lshl_b32 s64, s2, 6"); a(f"s_add_u32 s64, s64, {WS_FLAG2}")
    publish_flag(a, 64)
    stamp(a, 11)

def conv(a, tiles, par, dma):
    acc = {t: 16 + 4 * i for i, t in enumerate(tiles)}
    smax = 8 * max(tiles) + 7
    S = [s for s in range(smax + 1) if s % 2 == par]
    steps = {s: [(t, 8 * t - s) for t in tiles if s <= 8 * t + 7] for s in S}
    NBR = 32; NAR = 8; PFD = 4
    uses = {}
    for k, s in enumerate(S):
        for t, b in steps[s]: uses.setdefault(b, []).append(k)
    order = sorted(uses, key=lambda b: (uses[b][0], -b))
    slot_end = [-10**9] * NBR; slot = {}
    plan = {k: [] for k in range(-PFD, len(S))}
    for b in order:
        tau = uses[b][0] - PFD
        cand = [k for k in range(NBR) if slot_end[k] < tau]
        assert cand, "B ring too small"
        k = max(cand, key=lambda k: slot_end[k])
        slot[b] = k; slot_end[k] = uses[b][-1]
        plan[tau].append(("B", b))
    for k, s in enumerate(S): plan[k - PFD].append(("A", k))
    if par == 0:
        for i, t in enumerate(tiles): a(f"ds_read_b128 v[{acc[t]}:{acc[t]+3}], v246 offset:{1024*t}")
    else:
        for r in range(16): a(f"v_mov_b32 v{16+r}, 0")
    issued = []
    def do_loads(k):
        for ld in plan.get(k, []):
            if ld[0] == "A":
                sa = S[ld[1]]; r = 32 + 4 * (ld[1] % NAR)
                a(f"ds_read_b64 v[{r}:{r+1}], v244 offset:{64*(63-sa)}"); issued.append(ld)
                a(f"ds_read_b64 v[{r+2}:{r+3}], v244 offset:{64*(63-sa)+8}"); issued.append(ld)
            else:
                r = 64 + 4 * slot[ld[1]]
                a(f"ds_read_b128 v[{r}:{r+3}], v245 offset:{64*(ld[1]+7)}"); issued.append(ld)
    for k in range(-PFD, 0): do_loads(k)
    for k, s in enumerate(S):
        do_loads(k)
        need = max(i for i, x in enumerate(issued) if x == ("A", k))
        for t, b in steps[s]:
            need = max(need, max(i for i, x in enumerate(issued) if x == ("B", b)))
        n = len(issued) - 1 - need
        a(f"s_waitcnt lgkmcnt({min(n, 15)})")
        ra = 32 + 4 * (k % NAR)
        for t, b in steps[s]:
            rb = 64 + 4 * slot[b]
            a(f"v_mfma_f32_16x16x32_bf16 v[{acc[t]}:{acc[t]+3}], v[{ra}:{ra+3}], v[{rb}:{rb+3}], v[{acc[t]}:{acc[t]+3}]")
        if k % 2 == 1 and k // 2 < 9: dma(a, k // 2)
    keep = [par, par + 2]; send = [1 - par, 3 - par]
    a(f"s_xor_b32 s64, s{S_WAVE}, 1"); a("s_lshl_b32 s64, s64, 11"); a(f"s_add_u32 s64, s64, {RED0}")
    a("v_lshl_add_u32 v2, v1, 4, s64")
    for j, i in enumerate(send): a(f"ds_write_b128 v2, v[{16+4*i}:{19+4*i}] offset:{1024*j}")
    a(f"s_lshl_b32 s64, s{S_WAVE}, 11"); a(f"s_add_u32 s64, s64, {RED0}"); a("v_lshl_add_u32 v3, v1, 4, s64")
    a("s_waitcnt lgkmcnt(0)"); a("s_barrier")
    for j in range(2): a(f"ds_read_b128 v[{32+4*j}:{35+4*j}], v3 offset:{1024*j}")
    a("s_waitcnt lgkmcnt(0)")
    for j, i in enumerate(keep):
        A = 16 + 4 * i; t = tiles[i]
        for r in range(4): a(f"v_add_f32 v{A+r}, v{A+r}, v{32+4*j+r}")
        o = 40 + 2 * j
        a(f"v_cvt_pk_bf16_f32 v{o}, v{A}, v{A+1}"); a(f"v_cvt_pk_bf16_f32 v{o+1}, v{A+2}, v{A+3}")
        a(f"buffer_store_dwordx2 v[{o}:{o+1}], v247, {W}, 0 offen offset:{512*t} sc1")
```

```python
from asm import *
from p8a import *

class VM:
    def __init__(self): self.q = []
    def issue(self, tag): self.q.append(tag)
    def wait_for(self, a, pred):
        last = max((i for i, t in enumerate(self.q) if pred(t)), default=-1)
        n = len(self.q) - 1 - last
        a(f"s_waitcnt vmcnt({min(n,63)})")

def tr_lane_decode(a):
    a("v_lshrrev_b32 v8, 4, v1"); a("v_and_b32 v9, 1, v8"); a("v_lshrrev_b32 v10, 1, v8")
    a("v_bfe_u32 v11, v1, 2, 2"); a("v_and_b32 v12, 3, v1")
    a("v_lshl_add_u32 v13, v10, 3, v11")

AW = 128
NEARLY = 9
def bw_setup(a):
    a("s_and_b32 s64, s2, 7"); a("s_lshr_b32 s65, s2, 3")
    a("s_lshr_b32 s41, s64, 1"); a("s_lshl_b32 s41, s41, 2"); a("s_and_b32 s66, s65, 3"); a("s_add_u32 s41, s41, s66")
    a("s_and_b32 s40, s64, 1"); a("s_mul_i32 s40, s40, 7"); a("s_lshr_b32 s66, s65, 2"); a("s_add_u32 s40, s40, s66")
    a(f"s_lshr_b32 s42, s{S_WAVE}, 2"); a(f"s_lshl_b32 s43, s{S_WAVE}, 10")
    a("s_cmp_eq_u32 s42, 0")
    a("s_cselect_b32 s52, s20, s22"); a("s_cselect_b32 s53, s21, s23")
    a(f"s_mov_b32 s54, {D*F*2}"); a("s_mov_b32 s55, 0x20000")
    a("v_lshrrev_b32 v2, 4, v1"); a("v_and_b32 v3, 15, v1")
    a("v_lshlrev_b32 v250, 1, v2"); a("v_add_u32 v250, s42, v250"); a("v_lshlrev_b32 v250, 1, v250"); a("v_xor_b32 v250, v250, v3"); a("v_lshlrev_b32 v250, 4, v250")
    a(f"s_and_b32 s64, s{S_WAVE}, 3"); a("s_lshl_b32 s64, s64, 2"); a("v_add_u32 v2, s64, v2")
    a("s_movk_i32 s65, 3584"); a("v_mul_lo_u32 v2, v2, s65"); a("v_add_u32 v250, v250, v2")
    a("s_lshl_b32 s65, s40, 8"); a("v_add_u32 v250, s65, v250")
def bw_dma(a, ks, slot):
    a(f"s_add_u32 m0, s43, {8192*slot}"); a(f"s_mov_b32 s67, {57344*ks}")
    a("buffer_load_dwordx4 v250, s[52:55], s67 offen lds")
def bw_early(a, k): bw_dma(a, k, 5 + k)

def cw_setup(a):
    a("s_and_b32 s64, s2, 7"); a("s_mul_i32 s64, s64, 28"); a("s_lshr_b32 s65, s2, 3"); a("s_add_u32 s64, s64, s65")
    a("s_mul_i32 s79, s64, 9363"); a("s_lshr_b32 s79, s79, 16"); a("s_mul_i32 s65, s79, 7"); a("s_sub_u32 s78, s64, s65")
    a(f"s_and_b32 s76, s{S_WAVE}, 3"); a(f"s_lshr_b32 s77, s{S_WAVE}, 2")
    srd(a, 44, 24, F * D * 2)
    a("v_lshrrev_b32 v3, 3, v1"); a("v_and_b32 v4, 7, v1")
    a("v_bfe_u32 v20, v3, 1, 1"); a("v_lshlrev_b32 v20, 2, v20"); a("v_xor_b32 v20, v20, v4"); a("v_lshlrev_b32 v20, 4, v20")
    a("s_mul_i32 s64, s76, 448"); a("s_lshl_b32 s65, s77, 3"); a("s_add_u32 s64, s64, s65"); a("v_add_u32 v3, s64, v3")
    a("s_movk_i32 s65, 896"); a("v_mul_lo_u32 v3, v3, s65"); a("v_add_u32 v20, v20, v3")
    a("s_lshl_b32 s65, s78, 7"); a("v_add_u32 v20, s65, v20")
    a("s_mul_i32 s48, s76, 10240"); a("s_lshl_b32 s64, s77, 10"); a("s_add_u32 s48, s48, s64"); a(f"s_add_u32 s48, s48, {SB}")
    a("s_mul_i32 s49, s76, 28672"); a("s_add_u32 s49, s49, s64")
def cw_dma(a, ksl, base, sl):
    a(f"s_add_u32 m0, s{base}, {2048*sl}"); a(f"s_mov_b32 s67, {14336*ksl}")
    a("buffer_load_dwordx4 v20, s[44:47], s67 offen lds")

def phaseB(a):
    tr_lane_decode(a)
    a("v_and_b32 v14, 1, v12"); a(f"s_lshl_b32 s64, s{S_WAVE}, 1"); a("v_add_u32 v14, s64, v14")
    a("v_lshlrev_b32 v15, 1, v11"); a("v_add_u32 v15, v15, v9"); a("v_lshlrev_b32 v15, 1, v15")
    a("v_xor_b32 v14, v14, v15"); a("v_lshlrev_b32 v14, 4, v14")
    a("v_lshrrev_b32 v15, 1, v12"); a("v_lshl_add_u32 v14, v15, 3, v14")
    a("v_lshl_add_u32 v14, v13, 8, v14"); a("v_lshl_add_u32 v14, v9, 12, v14")
    a("s_lshl_b32 s64, s42, 10"); a("v_add_u32 v16, s64, v14"); a("s_xor_b32 s64, s64, 1024"); a("v_add_u32 v17, s64, v14")
    a("v_add_u32 v18, 0x10000, v16"); a("v_add_u32 v19, 0x10000, v17"); a("v_add_u32 v20, 0x20000, v16"); a("v_add_u32 v21, 0x20000, v17")
    def tr_w(ks, slot):
        off = 8192 * slot; r = AW + 4 * ks
        va = 16 + 2 * (off >> 16); o = off & 0xffff
        a(f"ds_read_b64_tr_b16 v[{r}:{r+1}], v{va} offset:{o}"); a(f"ds_read_b64_tr_b16 v[{r+2}:{r+3}], v{va+1} offset:{o}")
    for ks in range(NEARLY): tr_w(ks, 5 + ks)
    a("s_waitcnt lgkmcnt(0)"); a("s_barrier")
    for ks in range(NEARLY, 28): bw_dma(a, ks, ks - NEARLY)
    stamp(a, 1)
    for jj in range(4):
        a(f"s_add_u32 s64, s{S_WAVE}, {jj}"); a("s_and_b32 s64, s64, 3")
        a(f"v_xor_b32 v{22+jj}, s64, v11"); a(f"v_lshlrev_b32 v{22+jj}, 6, v{22+jj}")
        a(f"v_lshl_add_u32 v{22+jj}, v13, 8, v{22+jj}")
        a(f"v_lshl_add_u32 v{22+jj}, v9, 5, v{22+jj}"); a(f"v_lshl_add_u32 v{22+jj}, v12, 3, v{22+jj}")
        a("s_lshl_b32 s64, s42, 10"); a(f"v_add_u32 v{22+jj}, s64, v{22+jj}")
        a("s_lshl_b32 s64, s42, 11"); a("s_sub_u32 s64, 1024, s64"); a(f"v_add_u32 v{26+jj}, s64, v{22+jj}")
    for r in range(64): a(f"v_mov_b32 v{64+r}, 0")
    a("v_mov_b32 v30, 0"); a("v_mov_b32 v31, 0")
    a("s_waitcnt vmcnt(0)"); a("s_barrier")
    for ks in range(NEARLY, 28): tr_w(ks, ks - NEARLY)
    a("s_waitcnt lgkmcnt(0)")
    cw_setup(a)
    a("v_lshrrev_b32 v3, 4, v1"); a("v_and_b32 v4, 15, v1")
    a("v_lshlrev_b32 v21, 2, v3"); a("v_xor_b32 v21, v21, v4"); a("v_lshlrev_b32 v21, 4, v21")
    a(f"v_mul_u32_u24 v6, {HTS}, v3"); a("v_add_u32 v21, v21, v6")
    a(f"s_mul_i32 s64, s{S_WAVE}, {4*HTS}"); a("s_lshl_b32 s65, s41, 8"); a("s_add_u32 s64, s64, s65"); a(f"s_add_u32 s64, s64, {WS_HT}")
    a("v_add_u32 v21, s64, v21")
    stamp(a, 2)
    a(f"s_mov_b32 s64, {WS_FLAG2}")
    wait_flags(a, "s2", 64, 256, 4)
    stamp(a, 3)
    vm = VM()
    def dma_h(g):
        a(f"s_add_u32 m0, s43, {8192*g}"); a(f"s_mov_b32 s67, {32*HTS*g}")
        a(f"buffer_load_dwordx4 v21, {W}, s67 offen lds"); vm.issue(("H", g))
    HPRE = 4
    for g in range(HPRE): dma_h(g)
    FR = [32, 48, 240]
    hi = [False]
    def reads(ks):
        fb = FR[ks % 3]
        pre = []
        if ks >= 16 and not hi[0]:
            hi[0] = True
            pre = [f"v_add_u32 v{22+jj}, 0x10000, v{22+jj}" for jj in range(8)]
        ho = 4096 * (ks - 16 if ks >= 16 else ks)
        return pre, [f"ds_read_b64_tr_b16 v[{fb+4*jj+2*h}:{fb+4*jj+2*h+1}], v{22+4*h+jj} offset:{ho}" for jj in range(4) for h in range(2)]
    NK = 28; G = 4
    def need(ks_hi):
        vm.wait_for(a, lambda t: t[0] == "H" and t[1] <= ks_hi // 2)
        a("s_barrier")
    need(3)
    stamp(a, 4); cstamp(a, 9)
    for ks in (0, 1):
        pre, rd = reads(ks)
        for x in pre + rd: a(x)
    ready = 3
    early_w2 = list(range(5))
    for ks in range(NK):
        a(f"s_waitcnt lgkmcnt({8 if ks + 1 < NK else 0})")
        rd = []; pre = []
        if ks + 2 < NK:
            if ks + 2 > ready:
                need(ks + 2 + G - 1 if ks + 2 + G - 1 < NK else NK - 1); ready = min(ks + 2 + G - 1, NK - 1)
            pre, rd = reads(ks + 2)
        for x in pre: a(x)
        fb = FR[ks % 3]; ar = AW + 4 * ks
        st = []
        for k in range(2):
            r = fb + k
            st += [f"v_lshlrev_b32 v2, 16, v{r}", f"v_and_b32 v3, 0xffff0000, v{r}", "v_add_f32 v30, v30, v2", "v_fma_f32 v31, v2, v2, v31",
                   "v_add_f32 v30, v30, v3", "v_fma_f32 v31, v3, v3, v31"]
        for jj in range(4):
            acc = 64 + 16 * jj
            a(f"v_mfma_f32_32x32x16_bf16 v[{acc}:{acc+15}], v[{ar}:{ar+3}], v[{fb+4*jj}:{fb+4*jj+3}], v[{acc}:{acc+15}]")
            for x in rd[2*jj:2*jj+2]: a(x)
            for x in st[3*jj:3*jj+3]: a(x)
            if jj == 1:
                g = ks // 2 + HPRE
                if ks % 2 == 0 and g < 14: dma_h(g)
                elif ks % 2 == 1 and ks >= 13 and early_w2:
                    k = early_w2.pop(0); cw_dma(a, k, 48, k); vm.issue(("W2", k))
    assert not early_w2
    stamp(a, 5); cstamp(a, 10)
    SC = 155648
    for r in (30, 31):
        a(f"v_mov_b32 v2, v{r}"); a(f"v_permlane32_swap_b32 v{r}, v2"); a(f"v_add_f32 v{r}, v{r}, v2")
    a("v_and_b32 v4, 31, v1"); a(f"s_lshl_b32 s64, s{S_WAVE}, 8"); a(f"s_add_u32 s64, s64, {SC}"); a("v_lshl_add_u32 v5, v4, 3, s64")
    a("ds_write_b64 v5, v[30:31]")
    a("v_lshrrev_b32 v6, 5, v1"); a("v_lshlrev_b32 v6, 5, v6")
    a("s_lshl_b32 s64, s40, 9"); a(f"s_lshl_b32 s65, s{S_WAVE}, 6"); a("s_add_u32 s64, s64, s65"); a(f"s_add_u32 s64, s64, {WS_CS}")
    a("v_add_u32 v6, s64, v6"); a("v_add_u32 v7, 7168, v6")
    for k in range(2):
        a(f"buffer_load_dwordx4 v[{32+4*k}:{35+4*k}], v6, {W}, 0 offen offset:{16*k}"); vm.issue(("C", 0))
        a(f"buffer_load_dwordx4 v[{40+4*k}:{43+4*k}], v7, {W}, 0 offen offset:{16*k}"); vm.issue(("C", 0))
    vm.wait_for(a, lambda t: t[0] == "W2")
    a("s_waitcnt lgkmcnt(0)"); a("s_barrier")
    a("s_lshr_b32 s50, s76, 1"); a("v_xor_b32 v14, s50, v9"); a("v_lshlrev_b32 v14, 1, v14")
    a("v_and_b32 v15, 1, v12"); a("v_add_u32 v14, v14, v15"); a("s_lshl_b32 s64, s77, 2"); a("v_add_u32 v14, s64, v14")
    a("v_bfe_u32 v15, v11, 1, 1"); a("v_lshlrev_b32 v15, 2, v15"); a("v_xor_b32 v14, v14, v15"); a("v_lshlrev_b32 v14, 4, v14")
    a("v_lshrrev_b32 v15, 1, v12"); a("v_lshl_add_u32 v14, v15, 3, v14"); a("v_lshl_add_u32 v14, v13, 7, v14")
    a("s_mul_i32 s64, s76, 10240"); a(f"s_add_u32 s64, s64, {SB}"); a("v_add_u32 v15, s64, v14")
    a("s_mul_i32 s64, s76, 28672"); a("v_add_u32 v14, s64, v14")
    def tr_w2(ksl, va, sl):
        r = AW + 4 * ksl
        a(f"ds_read_b64_tr_b16 v[{r}:{r+1}], v{va} offset:{2048*sl}"); a(f"ds_read_b64_tr_b16 v[{r+2}:{r+3}], v{va} offset:{2048*sl+512}")
    for jj in range(4):
        a(f"s_add_u32 s64, s{S_WAVE}, {jj}"); a("s_and_b32 s64, s64, 3"); a("s_lshl_b32 s64, s64, 8"); a(f"s_add_u32 s64, s64, {SC}")
        a("v_lshl_add_u32 v5, v4, 3, s64")
        a(f"ds_read_b64 v[{48+4*jj}:{49+4*jj}], v5"); a(f"ds_read_b64 v[{50+4*jj}:{51+4*jj}], v5 offset:1024")
    for k in range(5): tr_w2(k, 15, k)
    for k in range(5, 19):
        cw_dma(a, k, 49, k - 5); vm.issue(("W2", k))
    a("s_waitcnt lgkmcnt(0)")
    for jj in range(4):
        b = 48 + 4 * jj
        a(f"v_add_f32 v{b}, v{b}, v{b+2}"); a(f"v_add_f32 v{b+1}, v{b+1}, v{b+3}")
        stats_pack(a, b, b + 1, b + 2, 22)
        a(f"v_lshlrev_b32 v{b}, 16, v{b+2}"); a(f"v_and_b32 v{b+1}, 0xffff0000, v{b+2}"); a(f"v_rcp_f32 v{b+1}, v{b+1}")
        a(f"v_mul_f32 v{b+2}, {NLOG2E:#x}, v{b+1}"); a(f"v_mul_f32 v{b+3}, v{b+1}, v{b+1}")
    vm.wait_for(a, lambda t: t[0] == "C")
    a("v_lshlrev_b32 v6, 4, v1"); a(f"v_add_u32 v6, {WS_HF}, v6")
    for jj in range(4):
        a(f"s_add_u32 s64, s{S_WAVE}, {jj}"); a("s_and_b32 s64, s64, 3")
        a("s_lshl_b32 s65, s41, 2"); a("s_add_u32 s64, s64, s65"); a("s_mul_i32 s64, s64, 112")
        a("s_lshl_b32 s65, s40, 3"); a("s_add_u32 s64, s64, s65"); a(f"s_add_u32 s64, s64, s{S_WAVE}")
        a(f"s_lshl_b32 s{72+jj}, s64, 10")
    stamp(a, 6)
    for jj in range(4):
        b = 48 + 4 * jj; acc = 64 + 16 * jj; t = 240 + 8 * (jj % 2); o = 24 + 4 * (jj % 2)
        for e in range(8):
            a(f"v_fma_f32 v{acc+e}, -v{b}, v{32+e}, v{acc+e}"); a(f"v_fma_f32 v{acc+8+e}, -v{b}, v{40+e}, v{acc+8+e}")
        for e in range(8):
            a(f"v_mul_f32 v{t+e}, v{acc+e}, v{b+2}"); a(f"v_mul_f32 v{acc+e}, v{acc+e}, v{acc+8+e}")
            a(f"v_exp_f32 v{t+e}, v{t+e}")
        for e in range(8):
            a(f"v_mul_f32 v{acc+e}, v{acc+e}, v{b+3}"); a(f"v_add_f32 v{t+e}, 1.0, v{t+e}"); a(f"v_rcp_f32 v{t+e}, v{t+e}")
        for k in range(4):
            a(f"v_mul_f32 v{acc+2*k}, v{acc+2*k}, v{t+2*k}"); a(f"v_mul_f32 v{acc+2*k+1}, v{acc+2*k+1}, v{t+2*k+1}")
            a(f"v_cvt_pk_bf16_f32 v{o+k}, v{acc+2*k}, v{acc+2*k+1}")
        a(f"buffer_store_dwordx4 v[{o}:{o+3}], v6, {W}, s{72+jj} offen sc1")
    stamp(a, 7)
    a("s_waitcnt vmcnt(0)"); a("s_barrier")
    a("s_mul_i32 s64, s41, 14"); a("s_add_u32 s64, s64, s40"); a("s_lshl_b32 s64, s64, 6"); a(f"s_add_u32 s64, s64, {WS_FLAG4}")
    publish_flag(a, 64)
    stamp(a, 8)
    return tr_w2

RED_C = 114688
def phaseC(a, tr_w2):
    for k in range(5, 19): tr_w2(k, 14, k - 5)
    a("s_waitcnt lgkmcnt(0)"); a("s_barrier")
    for k in range(19, 28): cw_dma(a, k, 49, k - 19)
    srd(a, 52, 26, L * D * 2)
    a("v_and_b32 v23, 31, v1"); a("v_lshrrev_b32 v24, 5, v1")
    a("s_lshl_b32 s64, s78, 6"); a("s_lshl_b32 s65, s77, 5"); a("s_add_u32 s64, s64, s65"); a("s_lshl_b32 s65, s50, 4"); a("s_add_u32 s34, s64, s65")
    a("s_lshl_b32 s64, s79, 6"); a("s_and_b32 s65, s76, 1"); a("s_lshl_b32 s65, s65, 5"); a("s_add_u32 s35, s64, s65")
    a("v_lshlrev_b32 v25, 3, v24"); a("v_add_u32 v25, s34, v25"); a("v_add_u32 v26, s35, v23")
    a(f"v_mul_u32_u24 v27, {HTS}, v25"); a("v_lshl_add_u32 v27, v26, 1, v27"); a(f"v_add_u32 v27, {WS_HT}, v27")
    for e in range(8):
        a(f"s_mov_b32 s67, {e*HTS}"); a(f"buffer_load_ushort v{240+e}, v27, {W}, s67 offen")
    a("s_movk_i32 s64, 896"); a("v_mul_lo_u32 v28, v26, s64"); a("v_lshl_add_u32 v28, v25, 1, v28")
    a("s_mul_i32 s40, s76, 40960"); a("s_lshl_b32 s64, s77, 10"); a("s_add_u32 s41, s40, s64")
    a("v_lshlrev_b32 v5, 4, v1")
    a("s_lshl_b32 s64, s79, 1"); a("s_add_u32 s64, s64, s77"); a("s_mul_i32 s64, s64, 112"); a("s_mul_i32 s65, s76, 28"); a("s_add_u32 s64, s64, s65")
    a("s_lshl_b32 s64, s64, 10"); a(f"s_add_u32 s64, s64, {WS_HF}"); a("v_add_u32 v252, s64, v5")
    a("v_add_u32 v6, s40, v5")
    a("s_and_b32 s64, s76, 1"); a("s_lshl_b32 s64, s64, 10"); a("v_add_u32 v16, s64, v6"); a("s_xor_b32 s64, s64, 1024"); a("v_add_u32 v17, s64, v6")
    for r in range(32): a(f"v_mov_b32 v{64+r}, 0")
    stamp(a, 1)
    a("s_waitcnt vmcnt(0)"); a("s_barrier")
    for k in range(19, 28): tr_w2(k, 14, k - 19)
    a("s_waitcnt lgkmcnt(0)")
    stamp(a, 2)
    a("s_lshr_b32 s64, s79, 1"); a("s_mul_i32 s64, s64, 896"); a(f"s_add_u32 s64, s64, {WS_FLAG4}")
    wait_flags(a, "s4", 64, 14, 1)
    stamp(a, 3)
    vm = VM()
    def dma_b(k):
        a(f"s_add_u32 m0, s41, {2048*(k % 20)}"); a(f"s_mov_b32 s67, {1024*k}")
        a(f"buffer_load_dwordx4 v252, {W}, s67 offen lds"); vm.issue(("B", k))
    PRE = 8
    for k in range(PRE): dma_b(k)
    NBUF = 4
    FR = [32, 40, 48, 56]
    def reads(k):
        fb = FR[k % NBUF]
        return [f"ds_read_b128 v[{fb+4*ns}:{fb+4*ns+3}], v{16+ns} offset:{2048*(k % 20)}" for ns in range(2)]
    NK = 28; G = 4; PD = 3
    def need(k_hi):
        vm.wait_for(a, lambda t: t[1] <= k_hi); a("s_barrier")
    need(3)
    stamp(a, 4)
    for k in range(PD):
        for x in reads(k): a(x)
    ready = 3; nxt = PRE
    for k in range(NK):
        a(f"s_waitcnt lgkmcnt({2*min(PD-1, NK-1-k)})")
        rd = []
        if k + PD < NK:
            if k + PD > ready:
                hi = min(k + PD + G - 1, NK - 1); need(hi); ready = hi
            rd = reads(k + PD)
        fb = FR[k % NBUF]; ar = AW + 4 * k
        for ns in range(2):
            acc = 64 + 16 * ns
            a(f"v_mfma_f32_32x32x16_bf16 v[{acc}:{acc+15}], v[{ar}:{ar+3}], v[{fb+4*ns}:{fb+4*ns+3}], v[{acc}:{acc+15}]")
            if rd: a(rd[ns])
        for _ in range(2):
            if nxt < NK and (nxt < 20 or k >= 9):
                dma_b(nxt); nxt += 1
    assert nxt == NK
    stamp(a, 5)
    a("v_lshlrev_b32 v8, 4, v1")
    a("s_barrier")
    for x in range(1, 4):
        ns, hh = x & 1, x >> 1
        a(f"s_xor_b32 s64, s{S_WAVE}, {x}"); a("s_mul_i32 s64, s64, 6144"); a(f"s_add_u32 s64, s64, {RED_C + (x-1)*2048}")
        a("v_add_u32 v22, s64, v8")
        src = 64 + 16 * ns + 8 * hh
        a(f"ds_write_b128 v22, v[{src}:{src+3}]"); a(f"ds_write_b128 v22, v[{src+4}:{src+7}] offset:1024")
    a(f"s_mul_i32 s64, s{S_WAVE}, 6144"); a(f"s_add_u32 s64, s64, {RED_C}"); a("v_add_u32 v22, s64, v8")
    a("s_waitcnt lgkmcnt(0)"); a("s_barrier")
    for x in range(3):
        a(f"ds_read_b128 v[{96+8*x}:{99+8*x}], v22 offset:{2048*x}"); a(f"ds_read_b128 v[{100+8*x}:{103+8*x}], v22 offset:{2048*x+1024}")
    a("s_waitcnt lgkmcnt(0)")
    for x in range(3):
        for r in range(8): a(f"v_add_f32 v{64+r}, v{64+r}, v{96+8*x+r}")
    stamp(a, 6)
    for k in range(4):
        r = 2 * k
        a(f"v_cvt_pk_bf16_f32 v30, v{64+r}, v{65+r}")
        a("v_lshlrev_b32 v31, 16, v30"); a("v_and_b32 v30, 0xffff0000, v30")
        a(f"v_lshlrev_b32 v32, 16, v{240+r}"); a(f"v_lshlrev_b32 v33, 16, v{241+r}")
        a("v_add_f32 v31, v31, v32"); a("v_add_f32 v30, v30, v33")
        a(f"v_cvt_pk_bf16_f32 v{120+k}, v31, v30")
    a("buffer_store_dwordx4 v[120:123], v28, s[52:55], 0 offen")
    a("s_waitcnt vmcnt(0)")
    stamp(a, 7)
```

```python
from asm import *

L, D, N, F = 2048, 448, 256, 1792
LOG2E = 0x3FB8AA3B
NLOG2E = 0xBFB8AA3B
INV2PI = 0x3E22F983
WS_GRAN = 0x0
WS_CS = 0x8000
WS_FLAG2 = 0x10000
WS_FLAG4 = 0x14000
WS_HT = 0x20000
HTS = 4352
WS_HF = 0x400000
WS_SIZE = 0x1000000
S_WAVE, S_NONCE, S_CH, S_HALF = 32, 33, 34, 35
SRD_WS, SRD_DBG = 56, 60
SPIN_MAX = 200000
OPS = 1056
OP_CH = 53 * OPS
KC_CH, KC_CP = 16640, 4160
SB = 114688
TB0, TB_CH = SB, 1312
UA0, UA_CH = SB + 2624, 4576
RA0, RA_CH = SB + 2624 + 9152, 8192
LDS_TOTAL = 163840

def cmul1(dst, x, z, tmp): return f"v_pk_mul_f32 v[{tmp}:{tmp+1}], v[{x}:{x+1}], v[{z}:{z+1}] op_sel:[0,0] op_sel_hi:[1,0]"
def cmul2(dst, x, z, tmp, conj):
    neg = "neg_hi:[1,0,0]" if conj else "neg_lo:[1,0,0]"
    return f"v_pk_fma_f32 v[{dst}:{dst+1}], v[{x}:{x+1}], v[{z}:{z+1}], v[{tmp}:{tmp+1}] op_sel:[1,1,0] op_sel_hi:[0,1,1] {neg}"

def reduce8(a, r):
    a(f"v_add_f32_dpp v{r}, v{r}, v{r} quad_perm:[1,0,3,2] row_mask:0xf bank_mask:0xf")
    a(f"v_add_f32_dpp v{r}, v{r}, v{r} quad_perm:[2,3,0,1] row_mask:0xf bank_mask:0xf")
    a(f"v_add_f32_dpp v{r}, v{r}, v{r} row_half_mirror row_mask:0xf bank_mask:0xf")

def stats_pack(a, vs, vq, vd, t):
    inv = 0x3B124925
    a(f"v_mul_f32 v{vs}, {inv:#x}, v{vs}")
    a(f"v_mul_f32 v{vq}, {inv:#x}, v{vq}")
    a(f"v_fma_f32 v{vq}, -v{vs}, v{vs}, v{vq}")
    a(f"v_max_f32 v{vq}, 0, v{vq}")
    a(f"v_cvt_pk_bf16_f32 v{t}, v{vq}, v{vs}")
    a(f"v_lshlrev_b32 v{t+1}, 16, v{t}")
    a(f"v_add_f32 v{t+1}, 0x3727c5ac, v{t+1}")
    a(f"v_cvt_pk_bf16_f32 v{t+1}, v{t+1}, v{t+1}")
    a(f"v_lshlrev_b32 v{t+1}, 16, v{t+1}")
    a(f"v_sqrt_f32 v{t+1}, v{t+1}")
    a(f"v_cvt_pk_bf16_f32 v{t+1}, v{t+1}, v{t+1}")
    a(f"v_lshrrev_b32 v{t}, 16, v{t}")
    a(f"v_and_b32 v{t+1}, 0xffff0000, v{t+1}")
    a(f"v_or_b32 v{vd}, v{t}, v{t+1}")

def prologue(a):
    a("s_memrealtime s[64:65]")
    a("s_load_dwordx16 s[4:19], s[0:1], 0")
    a("s_load_dwordx8 s[20:27], s[0:1], 64")
    a("s_load_dwordx4 s[28:31], s[0:1], 96")
    a("v_and_b32 v1, 63, v0"); a("v_lshrrev_b32 v2, 6, v0"); a("s_nop 0")
    a(f"v_readfirstlane_b32 s{S_WAVE}, v2")
    a(f"s_lshr_b32 s{S_CH}, s{S_WAVE}, 1"); a(f"s_and_b32 s{S_HALF}, s{S_WAVE}, 1")
    a("s_waitcnt lgkmcnt(0)")
    srd(a, SRD_WS, 30, WS_SIZE); srd(a, SRD_DBG, 28, 256)
    a(f"s_or_b32 s64, s2, s{S_WAVE}"); a("s_cmp_eq_u32 s64, 0"); a("s_cbranch_scc0 L_nopub")
    a("s_memrealtime s[64:65]"); a("s_waitcnt lgkmcnt(0)"); a("s_or_b32 s64, s64, 1")
    a("v_mov_b32 v3, s64"); a("v_mov_b32 v4, 0")
    a(f"buffer_store_dword v3, v4, s[{SRD_DBG}:{SRD_DBG+3}], 0 offen sc1")
    a.label("L_nopub")

def get_nonce(a, tag, vt):
    a(f"v_mov_b32 v{vt+1}, 0"); a("s_mov_b32 s66, 0")
    a.label(f"L_nonce_{tag}")
    a(f"buffer_load_dword v{vt}, v{vt+1}, s[{SRD_DBG}:{SRD_DBG+3}], 0 offen sc1")
    a("s_waitcnt vmcnt(0)")
    a(f"v_readfirstlane_b32 s{S_NONCE}, v{vt}")
    a("s_add_u32 s66, s66, 1"); a(f"s_cmp_gt_u32 s66, {SPIN_MAX}"); a(f"s_cbranch_scc1 L_nonce_{tag}_ok")
    a(f"s_cmp_eq_u32 s{S_NONCE}, 0"); a(f"s_cbranch_scc1 L_nonce_{tag}")
    a.label(f"L_nonce_{tag}_ok")

def helper_stats1(a):
    srd(a, 36, 4, L * D * 2)
    a("s_sub_u32 s64, s2, 224"); a("s_lshl_b32 s64, s64, 6"); a(f"s_lshl_b32 s65, s{S_WAVE}, 4"); a("s_add_u32 s64, s64, s65")
    a("v_lshrrev_b32 v3, 3, v1"); a("v_add_u32 v3, s64, v3")
    a("v_and_b32 v2, 7, v1")
    a("s_movk_i32 s65, 896"); a("v_mul_lo_u32 v4, v3, s65"); a("v_lshl_add_u32 v4, v2, 4, v4")
    a("v_add_u32 v5, 7168, v4")
    for p in range(2):
        for i in range(7):
            r = 8 + 28 * p + 4 * i
            a(f"buffer_load_dwordx4 v[{r}:{r+3}], v{4+p}, s[36:39], 0 offen offset:{128*i}")
    a("v_mov_b32 v70, 0x3f803f80")
    for p in range(2):
        a(f"v_mov_b32 v{72+2*p}, 0"); a(f"v_mov_b32 v{73+2*p}, 0")
    for p in range(2):
        for i in range(7):
            a(f"s_waitcnt vmcnt({13-7*p-i})")
            for j in range(4):
                r = 8 + 28 * p + 4 * i + j
                a(f"v_dot2_f32_bf16 v{72+2*p}, v{r}, v70, v{72+2*p}")
                a(f"v_dot2_f32_bf16 v{73+2*p}, v{r}, v{r}, v{73+2*p}")
    for p in range(2):
        reduce8(a, 72 + 2 * p); reduce8(a, 73 + 2 * p)
        stats_pack(a, 72 + 2 * p, 73 + 2 * p, 76 + 2 * p, 80)
    get_nonce(a, "h1", 82)
    a(f"v_mov_b32 v77, s{S_NONCE}"); a(f"v_mov_b32 v79, s{S_NONCE}")
    a("v_lshlrev_b32 v6, 3, v3")
    a("v_cmp_eq_u32 vcc, 0, v2"); a("s_and_saveexec_b64 s[64:65], vcc")
    a(f"buffer_store_dwordx2 v[76:77], v6, s[{SRD_WS}:{SRD_WS+3}], 0 offen offset:{WS_GRAN} sc1")
    a(f"buffer_store_dwordx2 v[78:79], v6, s[{SRD_WS}:{SRD_WS+3}], 0 offen offset:{WS_GRAN+64} sc1")
    a("s_mov_b64 exec, s[64:65]")

OPT = set()
def phaseA(a):
    W = f"s[{SRD_WS}:{SRD_WS+3}]"
    srd(a, 36, 4, L * D * 2)
    srd(a, 40, 6, D * N * 2); srd(a, 44, 8, D * N * 2); srd(a, 48, 10, D * N * 2); srd(a, 52, 12, D * N * 2)
    a("s_lshl_b32 s64, s2, 2")
    a("s_load_dword s68, s[14:15], s64"); a("s_load_dword s69, s[16:17], s64")
    a(f"s_lshl_b32 s70, s2, 1"); a(f"s_add_u32 s70, s70, s{S_CH}")
    a("s_lshl_b32 s65, s70, 9"); a(f"s_lshl_b32 s66, s{S_HALF}, 8"); a("s_add_u32 s65, s65, s66")
    a("v_lshl_add_u32 v3, v1, 2, s65")
    a("buffer_load_dword v10, v3, s[40:43], 0 offen"); a("buffer_load_dword v11, v3, s[44:47], 0 offen")
    a("buffer_load_dword v12, v3, s[48:51], 0 offen"); a("buffer_load_dword v13, v3, s[52:55], 0 offen")
    a("s_movk_i32 s65, 7168"); a("v_mul_lo_u32 v4, v0, s65"); a("v_add_u32 v4, s64, v4"); a("v_add_u32 v5, 4480, v4")
    def gather(i):
        return f"buffer_load_dword v{200+i}, v{4 if i < 5 else 5}, s[36:39], 0 offen offset:{896*(i if i < 5 else i-5)}"
    nvm = [4]
    for i in range(2): a(gather(i))
    a("v_lshlrev_b32 v7, 4, v0"); a(f"v_add_u32 v7, {SB}, v7")
    a("v_mov_b32 v20, 0\nv_mov_b32 v21, 0\nv_mov_b32 v22, 0\nv_mov_b32 v23, 0")
    a("v_cmp_gt_u32 vcc, 30, v0"); a("s_and_saveexec_b64 s[66:67], vcc")
    a(f"ds_write_b128 v7, v[20:23] offset:{UA0-SB}"); a(f"ds_write_b128 v7, v[20:23] offset:{UA0-SB+UA_CH}")
    a("s_mov_b64 exec, s[66:67]")
    a("v_lshlrev_b32 v9, 3, v0"); a("v_sub_u32 v9, 2047, v9")
    for e in range(11): a(f"v_subrev_u32 v{30+e}, {e}, v9")
    for e in range(0, 12, 2):
        a(f"v_cvt_f32_i32 v{44+e}, v{30+e}")
        if e + 1 < 11: a(f"v_cvt_f32_i32 v{45+e}, v{31+e}")
        a(f"v_cvt_pk_bf16_f32 v{58+e//2}, v{44+e}, v{45+e if e+1 < 11 else 44+e}")
    for e in range(11):
        p = 58 + e // 2; r = 226 + e
        a(f"v_and_b32 v{r}, 0xffff, v{p}" if e % 2 == 0 else f"v_lshrrev_b32 v{r}, 16, v{p}")
        a(f"v_subrev_u32 v{r}, 17024, v{r}")
        a(f"v_min_i32 v{30+e}, 128, v{30+e}")
        a(f"v_max_i32 v{r}, v{r}, v{30+e}")
    a("v_mov_b32 v64, 641")
    for e in range(8, 11):
        a(f"v_cmp_gt_i32 vcc, {e}, v9"); a(f"v_cndmask_b32 v{226+e}, v{226+e}, v64, vcc")
    a(f"v_mov_b32 v65, {TB0}")
    for e in range(11): a(f"v_lshl_add_u32 v{226+e}, v{226+e}, 1, v65")
    a("v_and_b32 v9, 15, v1"); a("v_lshrrev_b32 v8, 4, v1")
    a(f"s_lshl_b32 s65, s{S_HALF}, 4"); a("v_add_u32 v30, s65, v9")
    a(f"s_mul_i32 s66, s{S_CH}, {TB_CH}"); a(f"s_add_u32 s66, s66, {TB0}")
    a("v_lshlrev_b32 v31, 4, v30"); a("v_lshl_add_u32 v31, v8, 3, v31")
    a("v_lshlrev_b32 v32, 3, v30"); a("v_add_u32 v32, 512, v32")
    a("v_cmp_eq_u32 vcc, 2, v8"); a("v_cndmask_b32 v31, v31, v32, vcc")
    a("v_lshlrev_b32 v32, 2, v30"); a("v_add_u32 v32, 768, v32")
    a("v_add_u32 v33, 4, v31"); a("v_add_u32 v34, 128, v32")
    a("v_cmp_eq_u32 vcc, 3, v8"); a("v_cndmask_b32 v31, v31, v32, vcc"); a("v_cndmask_b32 v33, v33, v34, vcc")
    a("v_add_u32 v238, s66, v31"); a("v_add_u32 v239, s66, v33")
    a("v_lshlrev_b32 v32, 1, v30"); a("v_add_u32 v32, 1024, v32"); a("v_mov_b32 v34, 1288")
    a("v_cmp_eq_u32 vcc, 0, v8")
    for r in range(4):
        a(f"v_add_u32 v35, {64*r}, v32"); a(f"v_cndmask_b32 v{240+r}, v34, v35, vcc")
    a("v_lshl_add_u32 v35, v8, 8, v30"); a("v_mov_b32 v36, 1280")
    a("v_cmp_eq_u32 vcc, 0x100, v35"); a("v_cndmask_b32 v240, v240, v36, vcc")
    for r in range(4): a(f"v_add_u32 v{240+r}, s66, v{240+r}")
    a("v_mov_b32 v36, s66"); a("ds_write_b16 v36, v20 offset:1282")
    a(f"s_movk_i32 s65, {OPS}"); a("v_mul_lo_u32 v248, v9, s65"); a("v_lshl_add_u32 v248, v8, 4, v248")
    a(f"s_mul_i32 s66, s{S_CH}, {OP_CH}"); a("v_add_u32 v248, s66, v248")
    a(f"s_mul_i32 s67, s{S_HALF}, {16*OPS}"); a(f"s_add_u32 s67, s67, {21*OPS}"); a("v_add_u32 v249, s67, v248")
    a("v_sub_u32 v30, 3, v9"); a("v_and_b32 v30, 3, v30")
    a(f"s_movk_i32 s65, {KC_CP}"); a("v_mul_lo_u32 v31, v30, s65")
    a("v_lshlrev_b32 v32, 3, v8"); a("v_sub_u32 v32, v32, v9"); a("v_sub_u32 v32, v32, v30"); a("v_add_u32 v32, 2047, v32")
    a("v_lshl_add_u32 v31, v32, 1, v31")
    a(f"s_mul_i32 s66, s{S_CH}, {KC_CH}"); a(f"s_sub_u32 s66, s66, {64*63}"); a("v_add_u32 v244, s66, v31")
    a(f"s_mul_i32 s66, s{S_CH}, {UA_CH}"); a(f"s_add_u32 s66, s66, {UA0}")
    a("v_lshlrev_b32 v31, 5, v9"); a("v_lshl_add_u32 v31, v8, 4, v31"); a("v_add_u32 v245, s66, v31")
    a(f"s_mul_i32 s66, s{S_CH}, {RA_CH}"); a(f"s_add_u32 s66, s66, {RA0}")
    a("v_lshlrev_b32 v31, 6, v9"); a("v_lshl_add_u32 v31, v8, 4, v31"); a("v_add_u32 v246, s66, v31")
    a("s_lshl_b32 s66, s70, 12"); a(f"s_add_u32 s66, s66, {WS_HT}")
    a("v_lshlrev_b32 v31, 5, v9"); a("v_lshl_add_u32 v31, v8, 3, v31"); a("v_add_u32 v247, s66, v31")
    a(f"s_mul_i32 s65, s{S_CH}, {OP_CH}"); a(f"s_lshl_b32 s66, s{S_HALF}, 9"); a("s_add_u32 s65, s65, s66")
    a("v_lshl_add_u32 v6, v1, 3, s65"); a("s_mov_b32 s71, s65")
    a("s_waitcnt lgkmcnt(0)")
    a(f"s_lshl_b32 s65, s{S_CH}, 4")
    a("s_lshr_b32 s66, s68, s65"); a("s_lshl_b32 s66, s66, 16")
    a(f"v_mov_b32 v14, {LOG2E:#x}"); a("v_mul_f32 v15, s66, v14"); a("v_exp_f32 v15, v15")
    a("v_cvt_pk_bf16_f32 v15, v15, v15"); a("v_lshlrev_b32 v15, 16, v15")
    stamp(a, 1)
    a("s_waitcnt vmcnt(2)")
    stamp(a, 2)
    a("v_lshlrev_b32 v16, 16, v10"); a("v_and_b32 v17, 0xffff0000, v10")
    a("v_mul_f32 v16, v14, v16"); a("v_mul_f32 v17, v14, v17")
    a("v_exp_f32 v16, v16"); a("v_exp_f32 v17, v17")
    a("v_lshlrev_b32 v24, 16, v11"); a("v_and_b32 v25, 0xffff0000, v11")
    a("v_cvt_pk_bf16_f32 v16, v16, v17")
    a("v_mul_f32 v24, v24, v15"); a("v_mul_f32 v25, v25, v15")
    a("v_lshlrev_b32 v18, 16, v16"); a("v_and_b32 v19, 0xffff0000, v16")
    a(f"v_mul_f32 v24, {INV2PI:#x}, v24"); a(f"v_mul_f32 v25, {INV2PI:#x}, v25")
    a("v_mul_f32 v18, v18, v15"); a("v_mul_f32 v19, v19, v15")
    a("v_mul_f32_e64 v18, -v18, v14"); a("v_mul_f32_e64 v19, -v19, v14")
    P = [18, 19]; Q = [24, 25]
    X = [30, 32]; Xb = [34, 36]
    a("v_add_f32 v26, v15, v15")
    a("v_lshlrev_b32 v30, 16, v12"); a("v_and_b32 v32, 0xffff0000, v12")
    a("v_lshlrev_b32 v31, 16, v13"); a("v_and_b32 v33, 0xffff0000, v13")
    a("v_mul_f32 v30, v30, v26"); a("v_mul_f32 v32, v32, v26")
    a("v_mul_f32_e64 v31, -v31, v26"); a("v_mul_f32_e64 v33, -v33, v26")
    Z = {1: [40, 42], 8: [44, 46], 256: [48, 50], 2: [52, 54], 4: [56, 58]}
    k = 0
    for t in (8, 1, 256):
        for m in range(2):
            tm = 60 + 2 * k; k += 1
            if t == 1:
                a(f"v_exp_f32 v{tm}, v{P[m]}"); a(f"v_fract_f32 v{tm+1}, v{Q[m]}")
            else:
                c = {8: 0x41000000, 256: 0x43800000}[t]
                a(f"v_mul_f32 v{tm}, {c:#x}, v{P[m]}"); a(f"v_mul_f32 v{tm+1}, {c:#x}, v{Q[m]}")
                a(f"v_exp_f32 v{tm}, v{tm}"); a(f"v_fract_f32 v{tm+1}, v{tm+1}")
    k = 0
    for t in (8, 1, 256):
        for m in range(2):
            tm = 60 + 2 * k; k += 1; z = Z[t][m]
            a(f"v_cos_f32 v{z}, v{tm+1}"); a(f"v_sin_f32 v{z+1}, v{tm+1}")
    k = 0
    for t in (8, 1, 256):
        for m in range(2):
            tm = 60 + 2 * k; k += 1; z = Z[t][m]
            a(f"v_mul_f32 v{z}, v{z}, v{tm}"); a(f"v_mul_f32 v{z+1}, v{z+1}, v{tm}")
    T = [72, 74]; T2 = [76, 78]
    pk = [80, 82, 84, 86]; pki = [0]
    def put(row, src):
        r = pk[pki[0] % 4]; pki[0] += 1
        a(f"v_cvt_pk_bf16_f32 v{r}, v{src[0]}, v{src[0]+1}"); a(f"v_cvt_pk_bf16_f32 v{r+1}, v{src[1]}, v{src[1]+1}")
        if "nowr" in OPT: return
        if "addtid" in OPT:
            a(f"ds_write_addtid_b32 v{r} offset:{row*OPS}"); a(f"ds_write_addtid_b32 v{r+1} offset:{row*OPS+256}")
        else:
            a(f"ds_write_b64 v6, v[{r}:{r+1}] offset:{row*OPS}")
    if "addtid" in OPT: a("s_mov_b32 m0, s71")
    Y = [88, 90]; X256 = [92, 94]; X512 = [96, 98]; X768 = [100, 102]; XW = [104, 106]
    put(0, X); put(22, Z[8])
    a("v_mov_b32 v108, 0x3f80\nv_mov_b32 v109, 0x3f80")
    if "addtid" in OPT:
        a(f"ds_write_addtid_b32 v108 offset:{21*OPS}"); a(f"ds_write_addtid_b32 v109 offset:{21*OPS+256}")
    else:
        a(f"ds_write_b64 v6, v[108:109] offset:{21*OPS}")
    for m in range(2): a(cmul1(0, Z[1][m], Z[1][m], T[m]))
    for m in range(2): a(cmul2(Z[2][m], Z[1][m], Z[1][m], T[m], False))
    for m in range(2): a(cmul1(0, Z[2][m], Z[2][m], T[m]))
    for m in range(2): a(cmul2(Z[4][m], Z[2][m], Z[2][m], T[m], False))
    xs = []
    for c in range(1, 8): xs.append((c, Xb, X if c == 1 else Xb, Z[1]))
    xs += [(8, X256, X, Z[256]), (9, XW, X256, Z[2]), (10, XW, XW, Z[2]), (11, XW, XW, Z[2]), (12, X512, X256, Z[256]),
           (13, XW, X512, Z[4]), (14, X768, X512, Z[256]), (15, XW, X768, Z[4]), (16, XW, X768, Z[256])]
    for r in range(17, 21): xs.append((r, XW, XW, Z[256]))
    gq = list(range(2, 8))
    for k, b in enumerate(range(2, 32)):
        src = Z[8] if b == 2 else Y
        x = xs[k] if k < len(xs) else None
        for m in range(2): a(cmul1(0, src[m], Z[8][m], T[m]))
        if x:
            for m in range(2): a(cmul1(0, x[2][m], x[3][m], T2[m]))
        for m in range(2): a(cmul2(Y[m], src[m], Z[8][m], T[m], False))
        if x:
            for m in range(2): a(cmul2(x[1][m], x[2][m], x[3][m], T2[m], True))
        put(21 + b, Y)
        if x: put(x[0], x[1])
        if k % 4 == 1 and gq:
            g_ = gq.pop(0)
            if "nogather" not in OPT: a(gather(g_))
    assert not gq
    a("v_lshlrev_b32 v3, 6, v0"); a("v_mov_b32 v225, 0")
    def s1_issue():
        a(f"buffer_load_dword v224, v225, s[{SRD_DBG}:{SRD_DBG+3}], 0 offen sc1")
        for i in range(4): a(f"buffer_load_dwordx4 v[{208+4*i}:{211+4*i}], v3, {W}, 0 offen offset:{WS_GRAN+16*i} sc1")
    s1_issue()
    stamp(a, 3)
    a("s_waitcnt lgkmcnt(0)"); a("s_barrier")
    stamp(a, 4)
    for r in range(8): a(f"v_mov_b32 v{16+r}, 0")
    def rd(s):
        b = 32 + 12 * (s % 4)
        a(f"ds_read_b128 v[{b}:{b+3}], v248 offset:{64*s}")
        a(f"ds_read_b128 v[{b+8}:{b+11}], v249 offset:{64*s}")
        a(f"ds_read_b128 v[{b+4}:{b+7}], v248 offset:{16*OPS+64*s}")
    for s in range(3): rd(s)
    for s in range(16):
        if s + 3 < 16: rd(s + 3)
        a(f"s_waitcnt lgkmcnt({3*min(15-s, 3)})")
        b = 32 + 12 * (s % 4)
        a(f"v_mfma_f32_16x16x32_bf16 v[16:19], v[{b}:{b+3}], v[{b+8}:{b+11}], v[16:19]")
        a(f"v_mfma_f32_16x16x32_bf16 v[20:23], v[{b+4}:{b+7}], v[{b+8}:{b+11}], v[20:23]")
    a("v_cvt_pk_bf16_f32 v16, v16, v17"); a("v_cvt_pk_bf16_f32 v17, v18, v19")
    a("v_cvt_pk_bf16_f32 v20, v20, v21"); a("v_cvt_pk_bf16_f32 v22, v22, v23")
    a("ds_write_b32 v238, v16"); a("ds_write_b32 v239, v17")
    a("ds_write_b16 v240, v20"); a("ds_write_b16_d16_hi v241, v20"); a("ds_write_b16 v242, v22"); a("ds_write_b16_d16_hi v243, v22")
    a("s_waitcnt lgkmcnt(0)"); a("s_barrier")
    stamp(a, 5)
    for ch in range(2):
        for e in range(11): a(f"ds_read_u16 v{70+16*ch+e}, v{226+e} offset:{TB_CH*ch}")
    a("v_lshlrev_b32 v9, 4, v0")
    for ch in range(2):
        a("s_waitcnt lgkmcnt(11)" if ch == 0 else "s_waitcnt lgkmcnt(4)")
        for c in range(4):
            o = 110 + 16 * ch + 4 * c
            for k in range(4):
                lo = 70 + 16 * ch + c + 2 * k
                a(f"v_lshl_or_b32 v{o+k}, v{lo+1}, 16, v{lo}")
            a(f"ds_write_b128 v9, v[{o}:{o+3}] offset:{KC_CH*ch+KC_CP*c+32}")
    a("v_mov_b32 v20, 0\nv_mov_b32 v21, 0\nv_mov_b32 v22, 0\nv_mov_b32 v23, 0")
    a("v_lshrrev_b32 v16, 1, v0"); a(f"s_movk_i32 s65, {KC_CP}"); a("v_mul_lo_u32 v16, v16, s65")
    a("v_and_b32 v17, 1, v0"); a("v_lshl_add_u32 v16, v17, 4, v16")
    a("v_cmp_gt_u32 vcc, 16, v0"); a("s_and_saveexec_b64 s[66:67], vcc")
    a("ds_write_b128 v16, v[20:23] offset:4128"); a("s_mov_b64 exec, s[66:67]")
    stamp(a, 6)
    a("s_mov_b32 s66, 0")
    a.label("L_s1_chk")
    a("s_waitcnt vmcnt(0)")
    a(f"v_readfirstlane_b32 s{S_NONCE}, v224")
    a(f"v_xor_b32 v16, s{S_NONCE}, v209")
    for i in range(1, 8):
        a(f"v_xor_b32 v17, s{S_NONCE}, v{209+2*i}"); a("v_or_b32 v16, v16, v17")
    a("v_cmp_ne_u32 vcc, 0, v16")
    a(f"s_cmp_eq_u32 s{S_NONCE}, 0"); a("s_cbranch_scc1 L_s1_retry")
    a("s_cbranch_vccz L_s1_ok")
    a.label("L_s1_retry")
    a("s_add_u32 s66, s66, 1"); a(f"s_cmp_gt_u32 s66, {SPIN_MAX}"); a("s_cbranch_scc1 L_s1_ok")
    s1_issue()
    a("s_branch L_s1_chk")
    a.label("L_s1_ok")
    stamp(a, 7)
    a("s_lshl_b32 s64, s69, 16"); a("s_and_b32 s65, s69, 0xffff0000")
    for i in range(8):
        st = 208 + 2 * i; x = 200 + i; o = 30 + 6 * (i % 2)
        a(f"v_and_b32 v{o+1}, 0xffff0000, v{st}"); a(f"v_lshlrev_b32 v{o}, 16, v{st}")
        a(f"v_rcp_f32 v{o+1}, v{o+1}")
        a(f"v_lshlrev_b32 v{o+2}, 16, v{x}"); a(f"v_and_b32 v{o+3}, 0xffff0000, v{x}")
        a(f"v_sub_f32 v{o+4}, v{o+2}, v{o}"); a(f"v_sub_f32 v{o+5}, v{o+3}, v{o}")
        a(f"v_mul_f32 v{130+i}, v{o+4}, v{o+1}"); a(f"v_mul_f32 v{138+i}, v{o+5}, v{o+1}")
        a(f"v_fma_f32 v{146+i}, v{130+i}, s64, v{o+2}"); a(f"v_fma_f32 v{154+i}, v{138+i}, s65, v{o+3}")
    for k in range(4):
        a(f"v_cvt_pk_bf16_f32 v{164+k}, v{130+2*k}, v{131+2*k}"); a(f"v_cvt_pk_bf16_f32 v{168+k}, v{138+2*k}, v{139+2*k}")
    a(f"ds_write_b128 v7, v[164:167] offset:{UA0-SB+480}"); a(f"ds_write_b128 v7, v[168:171] offset:{UA0-SB+UA_CH+480}")
    a("v_lshlrev_b32 v9, 5, v0"); a(f"v_add_u32 v9, {RA0}, v9")
    a("ds_write_b128 v9, v[146:149]"); a("ds_write_b128 v9, v[150:153] offset:16")
    a(f"ds_write_b128 v9, v[154:157] offset:{RA_CH}"); a(f"ds_write_b128 v9, v[158:161] offset:{RA_CH+16}")
    a("s_waitcnt lgkmcnt(0)"); a("s_barrier")
    stamp(a, 8)
    a(f"s_cmp_eq_u32 s{S_HALF}, 0"); a("s_cbranch_scc0 L_conv_x")
    conv(a, [7, 6, 1, 0]); a("s_branch L_conv_done")
    a.label("L_conv_x")
    conv(a, [5, 4, 3, 2])
    a.label("L_conv_done")
    stamp(a, 10)
    a("s_waitcnt vmcnt(0)"); a("s_barrier")
    stamp(a, 11)

def conv(a, tiles):
    W = f"s[{SRD_WS}:{SRD_WS+3}]"
    acc = {t: 16 + 4 * i for i, t in enumerate(tiles)}
    smax = 8 * max(tiles) + 7
    steps = [[(t, 8 * t - s) for t in tiles if s <= 8 * t + 7] for s in range(smax + 1)]
    NBR = 32; NAR = 8; PFD = 3
    uses = {}
    for s, ms in enumerate(steps):
        for t, b in ms: uses.setdefault(b, []).append(s)
    order = sorted(uses, key=lambda b: (uses[b][0], -b))
    slot_end = [-10**9] * NBR; slot = {}
    plan = {s: [] for s in range(-PFD, smax + 1)}
    for b in order:
        tau = uses[b][0] - PFD
        cand = [k for k in range(NBR) if slot_end[k] < tau]
        assert cand, "B ring too small"
        k = max(cand, key=lambda k: slot_end[k])
        slot[b] = k; slot_end[k] = uses[b][-1]
        plan[tau].append(("B", b))
    for s in range(smax + 1): plan[s - PFD].append(("A", s))
    for i, t in enumerate(tiles):
        a(f"ds_read_b128 v[{acc[t]}:{acc[t]+3}], v246 offset:{1024*t}")
    issued = []
    def do_loads(s):
        for ld in plan.get(s, []):
            if ld[0] == "A" and "convnoA" in OPT and ld[1] > 4:
                issued.append(ld); issued.pop(); continue
            if ld[0] == "A":
                sa = ld[1]; r = 32 + 4 * (sa % NAR)
                a(f"ds_read_b64 v[{r}:{r+1}], v244 offset:{64*(63-sa)}"); issued.append(ld)
                a(f"ds_read_b64 v[{r+2}:{r+3}], v244 offset:{64*(63-sa)+8}"); issued.append(ld)
            else:
                r = 64 + 4 * slot[ld[1]]
                a(f"ds_read_b128 v[{r}:{r+3}], v245 offset:{64*(ld[1]+7)}"); issued.append(ld)
    for s in range(-PFD, 0): do_loads(s)
    for s in range(smax + 1):
        do_loads(s)
        need = max([i for i, x in enumerate(issued) if x == ("A", s)] + [0])
        for t, b in steps[s]:
            need = max(need, max(i for i, x in enumerate(issued) if x == ("B", b)))
        n = len(issued) - 1 - need
        a(f"s_waitcnt lgkmcnt({min(n, 15)})")
        ra = 32 + 4 * (s % NAR)
        for t, b in steps[s]:
            rb = 64 + 4 * slot[b]
            a(f"v_mfma_f32_16x16x32_bf16 v[{acc[t]}:{acc[t]+3}], v[{ra}:{ra+3}], v[{rb}:{rb+3}], v[{acc[t]}:{acc[t]+3}]")
    stamp(a, 9)
    for i, t in enumerate(tiles):
        A = acc[t]; o = 192 + 2 * i
        a(f"v_cvt_pk_bf16_f32 v{o}, v{A}, v{A+1}"); a(f"v_cvt_pk_bf16_f32 v{o+1}, v{A+2}, v{A+3}")
        a(f"buffer_store_dwordx2 v[{o}:{o+1}], v247, {W}, 0 offen offset:{512*t} sc1")
```

```python
import sys
from asm import *
from p8a import *
from p8bc import *
NAME = "sequential_preLN__ssm_conv_s4d__glu_gated_swiglu__prompt_kernel"
STAMPS["on"] = len(sys.argv) > 2
STAMPS["clk"] = len(sys.argv) > 2 and sys.argv[2] == "c"
import p8a
p8a.OPT.update(sys.argv[3:])
import asm
def flush(kidx, n):
    if not STAMPS["on"]: return
    a(f"s_add_u32 s96, s30, {WS_STAMP}"); a("s_addc_u32 s97, s31, 0")
    a("s_mov_b32 s92, s96\ns_mov_b32 s93, s97\ns_mov_b32 s94, 0x100000\ns_mov_b32 s95, 0x20000")
    a("s_mov_b64 exec, 1")
    a("s_lshl_b32 s96, s2, 3"); a(f"s_add_u32 s96, s96, s{S_WAVE}")
    a(f"s_lshl_b32 s96, s96, 6"); a(f"s_add_u32 s96, s96, {kidx*131072}")
    for i in range(n):
        a(f"v_mov_b32 v2, s{80+i}"); a("v_mov_b32 v3, s96")
        a(f"buffer_store_dword v2, v3, s[92:95], 0 offen offset:{4*i}")
    a("s_mov_b64 exec, -1")
a = Asm()
a(f".globl {NAME}\n.p2align 8\n.type {NAME},@function"); a.label(NAME)
a("s_cmp_ge_u32 s2, 256"); a("s_cbranch_scc1 L_end")
stamp(a, 0)
prologue(a)
a("s_cmp_ge_u32 s2, 224"); a("s_cbranch_scc1 L_helper")
phaseA(a, {"setup": bw_setup, "dma": bw_dma, "tr1": bw_tr1}); flush(0, 12)
stamp(a, 0)
trw2 = phaseB(a); flush(1, 11)
stamp(a, 0)
phaseC(a, trw2); flush(2, 8)
a("s_waitcnt vmcnt(0)")
a("s_endpgm")
a.label("L_helper")
helper(a); flush(3, 3)
a("s_waitcnt vmcnt(0)")
a.label("L_end")
a("s_endpgm")
body = a.finish()
hdr = open("sequential_preLN__ssm_conv_s4d__glu_gated_swiglu__prompt.s.ref").read().split("\n")
comments = [l for l in hdr if l.startswith(";") and "@launch" not in l and "Override" not in l and "grid=ceil" not in l]
out = "\n".join(comments) + "\n"
out += f"; @launch grid=(256,1,1) block=(512,1,1) lds={LDS_TOTAL}\n"
out += '.amdgcn_target "amdgcn-amd-amdhsa--gfx950"\n.text\n' + body
out += '.section .rodata,"a"\n' + kd(NAME, 256, 102, 256)
open(sys.argv[1], "w").write(out)
print("nops inserted:", a.nops, "bytes:", len(out))
```

```python
from asm import *
from pA import (L, D, N, F, LOG2E, NLOG2E, INV2PI, WS_GRAN, WS_CS, WS_FLAG1, WS_FLAG3, WS_G2, WS_XT, WS_FLAG2, WS_FLAG4, WS_HT, HTS, WS_HF, WS_SIZE, SRD_WS, SRD_DBG, SPIN_MAX,
                OPS, OP_CH, KC_CH, KC_CP, SB, TB0, TB_CH, UA0, UA_CH, RA0, RA_CH, LDS_TOTAL, cmul1, cmul2, reduce8, stats_pack)
S_WAVE, S_NONCE = 32, 33
W = f"s[{SRD_WS}:{SRD_WS+3}]"
DBG = f"s[{SRD_DBG}:{SRD_DBG+3}]"
OPT = set()
RED0 = RA0 + 2 * RA_CH

def prologue(a):
    a("s_load_dwordx16 s[4:19], s[0:1], 0")
    a("s_load_dwordx8 s[20:27], s[0:1], 64")
    a("s_load_dwordx4 s[28:31], s[0:1], 96")
    a("v_and_b32 v1, 63, v0"); a("v_lshrrev_b32 v2, 6, v0"); a("s_nop 0")
    a(f"v_readfirstlane_b32 s{S_WAVE}, v2")
    a("s_waitcnt lgkmcnt(0)")
    srd(a, SRD_WS, 30, WS_SIZE); srd(a, SRD_DBG, 28, 256)
    a(f"s_or_b32 s64, s2, s{S_WAVE}"); a("s_cmp_eq_u32 s64, 0"); a("s_cbranch_scc0 L_nopub")
    a("s_memrealtime s[64:65]"); a("s_waitcnt lgkmcnt(0)"); a("s_or_b32 s64, s64, 1")
    a("v_mov_b32 v3, s64"); a("v_mov_b32 v4, 0")
    a(f"buffer_store_dword v3, v4, {DBG}, 0 offen sc1")
    a.label("L_nopub")

def get_nonce(a, tag, vt):
    a(f"v_mov_b32 v{vt+1}, 0"); a("s_mov_b32 s66, 0")
    a.label(f"L_nonce_{tag}")
    a(f"buffer_load_dword v{vt}, v{vt+1}, {DBG}, 0 offen sc1")
    a("s_waitcnt vmcnt(0)")
    a(f"v_readfirstlane_b32 s{S_NONCE}, v{vt}")
    a("s_add_u32 s66, s66, 1"); a(f"s_cmp_gt_u32 s66, {SPIN_MAX}"); a(f"s_cbranch_scc1 L_nonce_{tag}_ok")
    a(f"s_cmp_eq_u32 s{S_NONCE}, 0"); a(f"s_cbranch_scc1 L_nonce_{tag}")
    a.label(f"L_nonce_{tag}_ok")

def publish_flag(a, off_sgpr, vt=2):
    lab = f"L_pub_{len(a.lines)}"
    a(f"s_cmp_eq_u32 s{S_WAVE}, 0"); a(f"s_cbranch_scc0 {lab}")
    a(f"v_mov_b32 v{vt}, s{S_NONCE}"); a(f"v_mov_b32 v{vt+1}, s{off_sgpr}")
    a("s_mov_b64 exec, 1")
    a(f"buffer_store_dword v{vt}, v{vt+1}, {W}, 0 offen sc1")
    a("s_mov_b64 exec, -1")
    a.label(lab)

def wait_flags(a, tag, base_sgpr, count, per_lane, vt=32):
    a(f"s_cmp_eq_u32 s{S_WAVE}, 0"); a(f"s_cbranch_scc0 L_wf_{tag}_bar")
    a(f"v_lshlrev_b32 v{vt}, 6, v1"); a(f"v_add_u32 v{vt}, s{base_sgpr}, v{vt}")
    a("s_mov_b32 s66, 0")
    if count < 64:
        a(f"v_cmp_gt_u32 vcc, {count}, v1"); a("s_and_saveexec_b64 s[68:69], vcc")
    a.label(f"L_wf_{tag}")
    for i in range(per_lane):
        if i == 0: a(f"buffer_load_dword v{vt+1}, v{vt}, {W}, 0 offen sc1")
        else:
            a(f"s_mov_b32 s67, {4096*i}"); a(f"buffer_load_dword v{vt+1+i}, v{vt}, {W}, s67 offen sc1")
    a("s_waitcnt vmcnt(0)")
    a(f"v_xor_b32 v{vt+1}, s{S_NONCE}, v{vt+1}")
    for i in range(1, per_lane):
        a(f"v_xor_b32 v{vt+1+i}, s{S_NONCE}, v{vt+1+i}"); a(f"v_or_b32 v{vt+1}, v{vt+1}, v{vt+1+i}")
    a(f"v_cmp_ne_u32 vcc, 0, v{vt+1}")
    a("s_add_u32 s66, s66, 1"); a(f"s_cmp_gt_u32 s66, {SPIN_MAX}"); a(f"s_cbranch_scc1 L_wf_{tag}_ok")
    a(f"s_cbranch_vccnz L_wf_{tag}")
    a.label(f"L_wf_{tag}_ok")
    a("s_mov_b64 exec, -1")
    a.label(f"L_wf_{tag}_bar")
    a("s_barrier")


X8S = 7168
XS0 = RED0
def xp_issue(a):
    srd(a, 36, 4, L * D * 2)
    a(f"s_lshl_b32 s64, s2, 3"); a(f"s_add_u32 s64, s64, s{S_WAVE}"); a("s_mul_i32 s64, s64, 896")
    a("v_lshl_add_u32 v194, v1, 4, s64")
    for r in range(4): a(f"v_mov_b32 v{196+r}, 0")
    a("v_cmp_gt_u32 vcc, 56, v1"); a("s_and_saveexec_b64 s[66:67], vcc")
    a("buffer_load_dwordx4 v[196:199], v194, s[36:39], 0 offen")
    a("s_mov_b64 exec, s[66:67]")
    a("v_mov_b32 v193, 0"); a(f"buffer_load_dword v195, v193, {DBG}, 0 offen sc1")
def xp_mid(a, tag):
    a(f"s_mul_i32 s64, s{S_WAVE}, 912"); a(f"s_add_u32 s64, s64, {XS0}"); a("v_lshl_add_u32 v194, v1, 4, s64")
    a("v_cmp_gt_u32 vcc, 56, v1"); a("s_and_saveexec_b64 s[66:67], vcc")
    a("ds_write_b128 v194, v[196:199]"); a("s_mov_b64 exec, s[66:67]")
    a("v_mov_b32 v190, 0x3f803f80"); a("v_mov_b32 v188, 0"); a("v_mov_b32 v189, 0")
    for j in range(4):
        a(f"v_dot2_f32_bf16 v188, v{196+j}, v190, v188"); a(f"v_dot2_f32_bf16 v189, v{196+j}, v{196+j}, v189")
    for r in (188, 189):
        a(f"v_add_f32_dpp v{r}, v{r}, v{r} quad_perm:[1,0,3,2] row_mask:0xf bank_mask:0xf")
    for r in (188, 189):
        a(f"v_add_f32_dpp v{r}, v{r}, v{r} quad_perm:[2,3,0,1] row_mask:0xf bank_mask:0xf")
    for r in (188, 189):
        a(f"v_add_f32_dpp v{r}, v{r}, v{r} row_half_mirror row_mask:0xf bank_mask:0xf")
    for r in (188, 189):
        a(f"v_add_f32_dpp v{r}, v{r}, v{r} row_mirror row_mask:0xf bank_mask:0xf")
    for sw in ("v_permlane16_swap_b32", "v_permlane32_swap_b32"):
        a("v_mov_b32 v186, v188"); a("v_mov_b32 v187, v189")
        a(f"{sw} v188, v186"); a(f"{sw} v189, v187")
        a("v_add_f32 v188, v188, v186"); a("v_add_f32 v189, v189, v187")
    stats_pack(a, 188, 189, 186, 184)
    a("v_and_b32 v187, 0xffff0000, v186"); a("v_lshlrev_b32 v186, 16, v186"); a("v_rcp_f32 v188, v187")
    a("v_mul_f32_e64 v189, -v186, v188")
    a(f"s_lshl_b32 s64, s2, 6"); a(f"s_lshl_b32 s65, s{S_WAVE}, 3"); a("s_add_u32 s64, s64, s65"); a("v_mov_b32 v187, s64")
    a("s_mov_b64 exec, 1")
    a(f"buffer_store_dwordx2 v[188:189], v187, {W}, 0 offen offset:{WS_GRAN} sc1")
    a("s_mov_b64 exec, -1")
    a("s_waitcnt lgkmcnt(0)"); a("s_barrier")
    a(f"s_cmp_ge_u32 s{S_WAVE}, 7"); a(f"s_cbranch_scc1 L_xp_notr_{tag}")
    a("v_bfe_u32 v184, v1, 2, 2"); a("v_mul_u32_u24 v184, 912, v184")
    a("v_lshrrev_b32 v185, 4, v1"); a("v_lshl_add_u32 v184, v185, 5, v184"); a("v_and_b32 v185, 3, v1"); a("v_lshl_add_u32 v184, v185, 3, v184")
    a(f"s_lshl_b32 s64, s{S_WAVE}, 7"); a(f"s_add_u32 s64, s64, {XS0}"); a("v_add_u32 v184, s64, v184")
    a("ds_read_b64_tr_b16 v[196:197], v184"); a(f"ds_read_b64_tr_b16 v[198:199], v184 offset:{4*912}")
    a(f"s_mul_i32 s64, s2, {X8S}"); a(f"s_lshl_b32 s65, s{S_WAVE}, 10"); a("s_add_u32 s64, s64, s65"); a(f"s_add_u32 s64, s64, {WS_XT}")
    a("v_lshl_add_u32 v185, v1, 4, s64")
    a("s_waitcnt lgkmcnt(0)")
    a(f"buffer_store_dwordx4 v[196:199], v185, {W}, 0 offen sc1")
    a.label(f"L_xp_notr_{tag}")
def xp_pub(a, tag):
    a("s_waitcnt vmcnt(0)")
    a(f"v_readfirstlane_b32 s{S_NONCE}, v195")
    a(f"s_cmp_eq_u32 s{S_NONCE}, 0"); a(f"s_cbranch_scc0 L_xp_have_{tag}")
    get_nonce(a, "xp" + tag, 194)
    a.label(f"L_xp_have_{tag}")
    a("s_barrier")
    a("s_lshl_b32 s64, s2, 6"); a(f"s_add_u32 s64, s64, {WS_FLAG1}")
    publish_flag(a, 64, 194)

def touch_w13(a):
    a("s_and_b32 s64, s2, 7"); a("s_lshr_b32 s65, s2, 3")
    a("s_and_b32 s66, s64, 1"); a("s_mul_i32 s66, s66, 7"); a("s_lshr_b32 s67, s65, 2"); a("s_add_u32 s66, s66, s67")
    a("s_and_b32 s65, s65, 3")
    a("s_cmp_lt_u32 s65, 2"); a("s_cselect_b32 s76, s20, s22"); a("s_cselect_b32 s77, s21, s23")
    a(f"s_mov_b32 s78, {D*F*2}"); a("s_mov_b32 s79, 0x20000")
    a("s_and_b32 s65, s65, 1"); a("s_mul_i32 s65, s65, 448"); a(f"s_min_u32 s67, s{S_WAVE}, 6"); a("s_lshl_b32 s67, s67, 6"); a("s_add_u32 s65, s65, s67")
    a("v_add_u32 v192, s65, v1")
    a("v_lshrrev_b32 v191, 1, v192"); a("v_mul_u32_u24 v191, 3584, v191"); a("v_and_b32 v192, 1, v192"); a("v_lshl_add_u32 v191, v192, 7, v191")
    a("s_lshl_b32 s66, s66, 8"); a("v_add_u32 v191, s66, v191")
    a("buffer_load_dword v192, v191, s[76:79], 0 offen")

def helper(a):
    a("s_sub_u32 s70, s2, 224")
    xp_issue(a)
    a("s_waitcnt vmcnt(1)")
    xp_mid(a, "h")
    xp_pub(a, "h")
    stamp(a, 1)
    a("s_cmp_lt_u32 s70, 16")
    a("s_cselect_b32 s36, s20, s22"); a("s_cselect_b32 s37, s21, s23")
    a(f"s_mov_b32 s38, {D*F*2}"); a("s_mov_b32 s39, 0x20000")
    a("s_and_b32 s64, s70, 15"); a("s_mul_i32 s64, s64, 224")
    a("v_lshrrev_b32 v2, 4, v1"); a("v_and_b32 v3, 15, v1")
    a(f"s_mul_i32 s65, s{S_WAVE}, 56"); a("v_add_u32 v4, s65, v2")
    a("s_movk_i32 s65, 3584"); a("v_mul_lo_u32 v4, v4, s65"); a("v_lshl_add_u32 v4, v3, 4, v4"); a("v_add_u32 v4, s64, v4")
    for i in range(14):
        a(f"s_mov_b32 s67, {4*3584*i}")
        a(f"buffer_load_dwordx4 v[{8+4*i}:{11+4*i}], v4, s[36:39], s67 offen")
    for e in range(8): a(f"v_mov_b32 v{72+e}, 0")
    for i in range(14):
        a(f"s_waitcnt vmcnt({13-i})")
        for j in range(4):
            r = 8 + 4 * i + j
            a(f"v_lshlrev_b32 v80, 16, v{r}"); a(f"v_and_b32 v81, 0xffff0000, v{r}")
            a(f"v_add_f32 v{72+2*j}, v{72+2*j}, v80"); a(f"v_add_f32 v{73+2*j}, v{73+2*j}, v81")
    a(f"s_lshl_b32 s65, s{S_WAVE}, 2"); a("v_add_u32 v5, s65, v2"); a("v_lshlrev_b32 v5, 9, v5"); a("v_lshl_add_u32 v5, v3, 5, v5")
    a("ds_write_b128 v5, v[72:75]"); a("ds_write_b128 v5, v[76:79] offset:16")
    a("s_waitcnt lgkmcnt(0)"); a("s_barrier")
    a("v_lshlrev_b32 v5, 2, v0")
    a("v_cmp_gt_u32 vcc, 112, v0"); a("s_and_saveexec_b64 s[64:65], vcc"); a("s_cbranch_execz L_h_cs_done")
    for k in range(32): a(f"ds_read_b32 v{8+k}, v5 offset:{512*k}")
    a("s_waitcnt lgkmcnt(0)")
    for k in range(1, 32): a(f"v_add_f32 v8, v8, v{8+k}")
    a("s_mul_i32 s66, s70, 448"); a(f"s_add_u32 s66, s66, {WS_CS}"); a("v_add_u32 v5, s66, v5")
    a(f"buffer_store_dword v8, v5, {W}, 0 offen sc1")
    a.label("L_h_cs_done")
    a("s_mov_b64 exec, s[64:65]")
    a("s_waitcnt vmcnt(0)"); a("s_barrier")
    a("s_lshl_b32 s64, s2, 6"); a(f"s_add_u32 s64, s64, {WS_FLAG2}")
    publish_flag(a, 64)
    srd(a, 36, 24, F * D * 2)
    a("s_lshr_b32 s64, s70, 3"); a("s_mul_i32 s64, s64, 3136"); a(f"s_lshl_b32 s65, s{S_WAVE}, 6"); a("s_add_u32 s64, s64, s65")
    a("v_add_u32 v2, s64, v1"); a("v_lshlrev_b32 v2, 7, v2")
    for i in range(7):
        a(f"s_mov_b32 s67, {512*128*i}")
        a(f"buffer_load_dword v{40+i}, v2, s[36:39], s67 offen")
    a("s_waitcnt vmcnt(0)")
    a(f"s_mov_b32 s64, {WS_FLAG2}")
    wait_flags(a, "hs2", 64, 256, 4)
    a("v_and_b32 v2, 31, v1"); a("v_lshrrev_b32 v3, 5, v1"); a(f"s_lshl_b32 s64, s{S_WAVE}, 1"); a("v_add_u32 v3, s64, v3")
    a(f"v_mul_u32_u24 v3, {HTS}, v3"); a("v_lshl_add_u32 v3, v2, 2, v3"); a("s_lshl_b32 s64, s70, 7"); a(f"s_add_u32 s64, s64, {WS_HT}"); a("v_add_u32 v3, s64, v3")
    for i in range(28):
        a(f"s_mov_b32 s67, {16*HTS*i}"); a(f"buffer_load_dword v{40+i}, v3, {W}, s67 offen")
    for r in range(4): a(f"v_mov_b32 v{8+r}, 0")
    for i in range(28):
        a(f"s_waitcnt vmcnt({27-i})")
        a(f"v_lshlrev_b32 v12, 16, v{40+i}"); a(f"v_and_b32 v13, 0xffff0000, v{40+i}")
        a("v_add_f32 v8, v8, v12"); a("v_add_f32 v9, v9, v13"); a("v_fma_f32 v10, v12, v12, v10"); a("v_fma_f32 v11, v13, v13, v11")
    for r in range(8, 12):
        a(f"v_mov_b32 v12, v{r}"); a(f"v_permlane32_swap_b32 v{r}, v12"); a(f"v_add_f32 v{r}, v{r}, v12")
    a(f"s_lshl_b32 s64, s{S_WAVE}, 9"); a("v_lshl_add_u32 v4, v2, 4, s64")
    a("ds_write_b128 v4, v[8:11]")
    a("s_waitcnt lgkmcnt(0)"); a("s_barrier")
    a("v_cmp_gt_u32 vcc, 64, v0"); a("s_and_saveexec_b64 s[64:65], vcc"); a("s_cbranch_execz L_h_g2_done")
    a("v_lshrrev_b32 v4, 1, v0"); a("v_lshlrev_b32 v4, 4, v4"); a("v_and_b32 v5, 1, v0"); a("v_lshl_add_u32 v4, v5, 2, v4")
    for k in range(8):
        a(f"ds_read_b32 v{16+k}, v4 offset:{512*k}"); a(f"ds_read_b32 v{24+k}, v4 offset:{512*k+8}")
    a("s_waitcnt lgkmcnt(0)")
    for k in range(1, 8):
        a(f"v_add_f32 v16, v16, v{16+k}"); a(f"v_add_f32 v24, v24, v{24+k}")
    stats_pack(a, 16, 24, 32, 34)
    a("v_and_b32 v33, 0xffff0000, v32"); a("v_lshlrev_b32 v32, 16, v32"); a("v_rcp_f32 v33, v33")
    a("s_lshl_b32 s66, s70, 9"); a(f"s_add_u32 s66, s66, {WS_G2}"); a("v_lshl_add_u32 v4, v0, 3, s66")
    a(f"buffer_store_dwordx2 v[32:33], v4, {W}, 0 offen sc1")
    a.label("L_h_g2_done")
    a("s_mov_b64 exec, s[64:65]")
    a("s_waitcnt vmcnt(0)"); a("s_barrier")
    a("s_lshl_b32 s64, s70, 6"); a(f"s_add_u32 s64, s64, {WS_FLAG3}")
    publish_flag(a, 64)
    stamp(a, 2)

def st2(a, i):
    if "convdiag" not in OPT: stamp(a, i)
def st3(a, i):
    if "convdiag" in OPT: stamp(a, i)
def phaseA(a, hooks):
    a(f"s_lshr_b32 s34, s{S_WAVE}, 2"); a(f"s_and_b32 s35, s{S_WAVE}, 3")
    srd(a, 40, 6, D * N * 2); srd(a, 44, 8, D * N * 2); srd(a, 48, 10, D * N * 2); srd(a, 52, 12, D * N * 2)
    a("s_and_b32 s64, s2, 7"); a("s_mul_i32 s64, s64, 28"); a("s_lshr_b32 s65, s2, 3"); a("s_add_u32 s75, s64, s65")
    a("s_lshl_b32 s64, s75, 2")
    a("s_load_dword s68, s[14:15], s64"); a("s_load_dword s69, s[16:17], s64")
    a("s_lshl_b32 s70, s75, 1"); a("s_add_u32 s70, s70, s34")
    a("s_lshl_b32 s65, s70, 9"); a("s_lshl_b32 s66, s35, 7"); a("s_add_u32 s65, s65, s66")
    a("v_lshl_add_u32 v3, v1, 1, s65")
    a("buffer_load_ushort v10, v3, s[40:43], 0 offen"); a("buffer_load_ushort v11, v3, s[44:47], 0 offen")
    a("buffer_load_ushort v12, v3, s[48:51], 0 offen"); a("buffer_load_ushort v13, v3, s[52:55], 0 offen")
    xp_issue(a)
    a("v_lshlrev_b32 v7, 4, v0"); a(f"v_add_u32 v7, {SB}, v7")
    a("v_mov_b32 v20, 0\nv_mov_b32 v21, 0\nv_mov_b32 v22, 0\nv_mov_b32 v23, 0")
    a("v_cmp_gt_u32 vcc, 30, v0"); a("s_and_saveexec_b64 s[66:67], vcc")
    a(f"ds_write_b128 v7, v[20:23] offset:{UA0-SB}"); a(f"ds_write_b128 v7, v[20:23] offset:{UA0-SB+UA_CH}")
    a("s_mov_b64 exec, s[66:67]")
    a("v_and_b32 v8, 255, v0"); a("v_lshlrev_b32 v9, 3, v8"); a("v_sub_u32 v9, 2047, v9")
    for e in range(11): a(f"v_subrev_u32 v{30+e}, {e}, v9")
    for e in range(0, 12, 2):
        a(f"v_cvt_f32_i32 v{44+e}, v{30+e}")
        if e + 1 < 11: a(f"v_cvt_f32_i32 v{45+e}, v{31+e}")
        a(f"v_cvt_pk_bf16_f32 v{58+e//2}, v{44+e}, v{45+e if e+1 < 11 else 44+e}")
    for e in range(11):
        p = 58 + e // 2; r = 226 + e
        a(f"v_and_b32 v{r}, 0xffff, v{p}" if e % 2 == 0 else f"v_lshrrev_b32 v{r}, 16, v{p}")
        a(f"v_subrev_u32 v{r}, 17024, v{r}"); a(f"v_min_i32 v{30+e}, 128, v{30+e}"); a(f"v_max_i32 v{r}, v{r}, v{30+e}")
    a("v_mov_b32 v64, 641")
    for e in range(8, 11):
        a(f"v_cmp_gt_i32 vcc, {e}, v9"); a(f"v_cndmask_b32 v{226+e}, v{226+e}, v64, vcc")
    a(f"s_mul_i32 s66, s34, {TB_CH}"); a(f"s_add_u32 s72, s66, {TB0}")
    a("v_mov_b32 v65, s72")
    for e in range(11): a(f"v_lshl_add_u32 v{226+e}, v{226+e}, 1, v65")
    a(f"s_mul_i32 s66, s34, {KC_CH}"); a("s_add_u32 s66, s66, 32"); a("v_lshl_add_u32 v237, v8, 4, s66")
    a("v_and_b32 v9, 15, v1"); a("v_lshrrev_b32 v8, 4, v1")
    a(f"s_and_b32 s73, s{S_WAVE}, 1"); a(f"s_bfe_u32 s74, s{S_WAVE}, 0x10001")
    a("s_lshl_b32 s65, s73, 4"); a("v_add_u32 v30, s65, v9")
    a("v_lshlrev_b32 v31, 4, v30"); a("v_lshl_add_u32 v31, v8, 3, v31")
    a("v_lshlrev_b32 v32, 3, v30"); a("v_add_u32 v32, 512, v32")
    a("v_cmp_eq_u32 vcc, 2, v8"); a("v_cndmask_b32 v31, v31, v32, vcc")
    a("v_lshlrev_b32 v32, 2, v30"); a("v_add_u32 v32, 768, v32")
    a("v_add_u32 v33, 4, v31"); a("v_add_u32 v34, 128, v32")
    a("v_cmp_eq_u32 vcc, 3, v8"); a("v_cndmask_b32 v31, v31, v32, vcc"); a("v_cndmask_b32 v33, v33, v34, vcc")
    a("v_lshlrev_b32 v32, 1, v30"); a("v_add_u32 v32, 1024, v32"); a("v_mov_b32 v34, 1288")
    a("v_cmp_eq_u32 vcc, 0, v8")
    for r in range(4):
        a(f"v_add_u32 v35, {64*r}, v32"); a(f"v_cndmask_b32 v{238+r}, v34, v35, vcc")
    a("v_lshl_add_u32 v35, v8, 8, v30"); a("v_mov_b32 v36, 1280")
    a("v_cmp_eq_u32 vcc, 0x100, v35"); a("v_cndmask_b32 v238, v238, v36, vcc")
    a("s_cmp_eq_u32 s74, 0"); a("s_cbranch_scc0 L_tb_rt1")
    a("v_mov_b32 v238, v31"); a("v_mov_b32 v239, v33")
    a.label("L_tb_rt1")
    for r in range(4): a(f"v_add_u32 v{238+r}, s72, v{238+r}")
    a("v_mov_b32 v36, s72"); a("ds_write_b16 v36, v20 offset:1282")
    a(f"s_movk_i32 s65, {OPS}"); a("v_mul_lo_u32 v248, v9, s65"); a("v_lshl_add_u32 v248, v8, 4, v248")
    a(f"s_mul_i32 s66, s34, {OP_CH}"); a("v_add_u32 v248, s66, v248")
    a(f"s_mul_i32 s67, s73, {16*OPS}"); a(f"s_add_u32 s67, s67, {21*OPS}"); a("v_add_u32 v249, s67, v248")
    a(f"s_mul_i32 s67, s74, {16*OPS}"); a("v_add_u32 v248, s67, v248")
    a("v_sub_u32 v30, 3, v9"); a("v_and_b32 v30, 3, v30")
    a(f"s_movk_i32 s65, {KC_CP}"); a("v_mul_lo_u32 v31, v30, s65")
    a("v_lshlrev_b32 v32, 3, v8"); a("v_sub_u32 v32, v32, v9"); a("v_sub_u32 v32, v32, v30"); a("v_add_u32 v32, 2047, v32")
    a("v_lshl_add_u32 v31, v32, 1, v31")
    a(f"s_mul_i32 s66, s34, {KC_CH}"); a(f"s_sub_u32 s66, s66, {64*63}"); a("v_add_u32 v244, s66, v31")
    a(f"s_mul_i32 s66, s34, {UA_CH}"); a(f"s_add_u32 s66, s66, {UA0}")
    a("v_lshlrev_b32 v31, 5, v9"); a("v_lshl_add_u32 v31, v8, 4, v31"); a("v_add_u32 v245, s66, v31")
    a(f"s_mul_i32 s66, s34, {RA_CH}"); a(f"s_add_u32 s66, s66, {RA0}")
    a("v_lshlrev_b32 v31, 6, v9"); a("v_lshl_add_u32 v31, v8, 4, v31"); a("v_add_u32 v246, s66, v31")
    a(f"s_mul_i32 s66, s70, {HTS}"); a(f"s_add_u32 s66, s66, {WS_HT}")
    a("v_lshlrev_b32 v31, 5, v9"); a("v_lshl_add_u32 v31, v8, 3, v31"); a("v_add_u32 v247, s66, v31")
    a(f"s_mul_i32 s71, s34, {OP_CH}"); a("s_lshl_b32 s66, s35, 8"); a("s_add_u32 s71, s71, s66")
    a("s_waitcnt lgkmcnt(0)")
    a("s_lshl_b32 s65, s34, 4"); a("s_lshr_b32 s66, s68, s65"); a("s_lshl_b32 s66, s66, 16")
    a(f"v_mov_b32 v14, {LOG2E:#x}"); a("v_mul_f32 v15, s66, v14"); a("v_exp_f32 v15, v15")
    a("v_cvt_pk_bf16_f32 v15, v15, v15"); a("v_lshlrev_b32 v15, 16, v15")
    a("s_mov_b32 m0, s71")
    st2(a, 1)
    a("s_waitcnt vmcnt(1)")
    xp_mid(a, "m")
    a("s_mov_b32 m0, s71")
    st2(a, 2)
    a("v_lshlrev_b32 v16, 16, v10"); a("v_lshlrev_b32 v24, 16, v11"); a("v_mul_f32 v16, v14, v16"); a("v_mul_f32 v24, v24, v15")
    a("v_exp_f32 v16, v16"); a(f"v_mul_f32 v24, {INV2PI:#x}, v24")
    a("v_lshlrev_b32 v30, 16, v12"); a("v_lshlrev_b32 v31, 16, v13")
    a("v_cvt_pk_bf16_f32 v16, v16, v16"); a("v_add_f32 v26, v15, v15")
    a("v_lshlrev_b32 v18, 16, v16")
    a("v_mul_f32 v30, v30, v26"); a("v_mul_f32_e64 v31, -v31, v26")
    a("v_mul_f32 v18, v18, v15"); a("v_mul_f32_e64 v18, -v18, v14")
    P, Q = 18, 24
    X, Xb = 30, 34
    Z = {1: 40, 8: 44, 256: 48, 2: 52, 4: 56}
    for k, t in enumerate((8, 1, 256)):
        tm = 60 + 2 * k
        if t == 1:
            a(f"v_exp_f32 v{tm}, v{P}"); a(f"v_fract_f32 v{tm+1}, v{Q}")
        else:
            c = {8: 0x41000000, 256: 0x43800000}[t]
            a(f"v_mul_f32 v{tm}, {c:#x}, v{P}"); a(f"v_mul_f32 v{tm+1}, {c:#x}, v{Q}")
            a(f"v_exp_f32 v{tm}, v{tm}"); a(f"v_fract_f32 v{tm+1}, v{tm+1}")
    for k, t in enumerate((8, 1, 256)):
        tm = 60 + 2 * k; z = Z[t]
        a(f"v_cos_f32 v{z}, v{tm+1}"); a(f"v_sin_f32 v{z+1}, v{tm+1}")
    for k, t in enumerate((8, 1, 256)):
        tm = 60 + 2 * k; z = Z[t]
        a(f"v_mul_f32 v{z}, v{z}, v{tm}"); a(f"v_mul_f32 v{z+1}, v{z+1}, v{tm}")
    T, T2 = 72, 76
    pk = [80, 81, 82, 83, 84, 85]; pki = [0]
    def put(row, src):
        r = pk[pki[0] % 6]; pki[0] += 1
        a(f"v_cvt_pk_bf16_f32 v{r}, v{src}, v{src+1}")
        a(f"ds_write_addtid_b32 v{r} offset:{row*OPS}")
    Y, X256, X512, X768, XW = 88, 92, 96, 100, 104
    put(0, X); put(22, Z[8])
    a("v_mov_b32 v108, 0x3f80"); a(f"ds_write_addtid_b32 v108 offset:{21*OPS}")
    a(cmul1(0, Z[1], Z[1], T)); a(cmul2(Z[2], Z[1], Z[1], T, False))
    a(cmul1(0, Z[2], Z[2], T)); a(cmul2(Z[4], Z[2], Z[2], T, False))
    xs = [(c, Xb, X if c == 1 else Xb, Z[1]) for c in range(1, 8)]
    xs += [(8, X256, X, Z[256]), (9, XW, X256, Z[2]), (10, XW, XW, Z[2]), (11, XW, XW, Z[2]), (12, X512, X256, Z[256]),
           (13, XW, X512, Z[4]), (14, X768, X512, Z[256]), (15, XW, X768, Z[4]), (16, XW, X768, Z[256])]
    for r in range(17, 21): xs.append((r, XW, XW, Z[256]))
    def s1_issue():
        a(f"buffer_load_dword v223, v3, {W}, 0 offen sc1")
    for k, b in enumerate(range(2, 32)):
        src = Z[8] if b == 2 else Y
        x = xs[k] if k < len(xs) else None
        a(cmul1(0, src, Z[8], T))
        if x: a(cmul1(0, x[2], x[3], T2))
        a(cmul2(Y, src, Z[8], T, False))
        if x: a(cmul2(x[1], x[2], x[3], T2, True))
        put(21 + b, Y)
        if x: put(x[0], x[1])
        if k == 11:
            xp_pub(a, "m")
    st2(a, 3)
    a("s_waitcnt lgkmcnt(0)"); a("s_barrier")
    st2(a, 4)
    a("v_and_b32 v3, 255, v0"); a("v_lshlrev_b32 v3, 6, v3"); a(f"v_add_u32 v3, {WS_FLAG1}, v3")
    s1_issue()
    for r in range(4): a(f"v_mov_b32 v{16+r}, 0")
    NR = 6
    def rd(s):
        b = 32 + 8 * (s % NR)
        a(f"ds_read_b128 v[{b}:{b+3}], v248 offset:{64*s}"); a(f"ds_read_b128 v[{b+4}:{b+7}], v249 offset:{64*s}")
    for s in range(NR - 1): rd(s)
    for s in range(16):
        if s + NR - 1 < 16: rd(s + NR - 1)
        a(f"s_waitcnt lgkmcnt({2*min(15-s, NR-1)})")
        b = 32 + 8 * (s % NR)
        a(f"v_mfma_f32_16x16x32_bf16 v[16:19], v[{b}:{b+3}], v[{b+4}:{b+7}], v[16:19]")
        if s == 9:
            a("s_mov_b32 s66, 0")
            a.label("L_s1_chk")
            a("s_waitcnt vmcnt(0)")
            a(f"v_cmp_ne_u32 vcc, s{S_NONCE}, v223")
            a("s_cbranch_vccz L_s1_ok")
            a("s_add_u32 s66, s66, 1"); a(f"s_cmp_gt_u32 s66, {SPIN_MAX}"); a("s_cbranch_scc1 L_s1_ok")
            s1_issue()
            a("s_branch L_s1_chk")
            a.label("L_s1_ok")
            a("v_and_b32 v8, 255, v0")
            a(f"v_mul_u32_u24 v3, {X8S}, v8"); a("s_lshl_b32 s66, s70, 4"); a(f"s_add_u32 s66, s66, {WS_XT}"); a("v_add_u32 v3, s66, v3")
            a(f"buffer_load_dwordx4 v[200:203], v3, {W}, 0 offen")
            a(f"s_cmp_lt_u32 s{S_WAVE}, 4"); a("s_cbranch_scc0 L_s1_nost")
            a(f"s_lshl_b32 s66, s{S_WAVE}, 12"); a("v_lshl_add_u32 v3, v1, 4, s66")
            for i in range(4):
                a(f"s_add_u32 m0, s66, {RED0}"); a(f"buffer_load_dwordx4 v3, {W}, 0 offen offset:{1024*i} lds")
            a.label("L_s1_nost")
    a("v_cvt_pk_bf16_f32 v16, v16, v17"); a("v_cvt_pk_bf16_f32 v17, v18, v19")
    a("s_cmp_eq_u32 s74, 0"); a("s_cbranch_scc0 L_tw_rt1")
    a("ds_write_b32 v238, v16"); a("ds_write_b32 v239, v17"); a("s_branch L_tw_done")
    a.label("L_tw_rt1")
    a("ds_write_b16 v238, v16"); a("ds_write_b16_d16_hi v239, v16"); a("ds_write_b16 v240, v17"); a("ds_write_b16_d16_hi v241, v17")
    a.label("L_tw_done")
    a("s_waitcnt lgkmcnt(0)"); a("s_barrier")
    stamp(a, 5)
    hooks["setup"](a)
    stamp(a, 6)
    for e in range(11): a(f"ds_read_u16 v{70+e}, v{226+e}")
    a("v_mov_b32 v20, 0\nv_mov_b32 v21, 0\nv_mov_b32 v22, 0\nv_mov_b32 v23, 0")
    a("v_lshrrev_b32 v16, 1, v0"); a(f"s_movk_i32 s65, {KC_CP}"); a("v_mul_lo_u32 v16, v16, s65")
    a("v_and_b32 v17, 1, v0"); a("v_lshl_add_u32 v16, v17, 4, v16")
    a("s_waitcnt lgkmcnt(0)")
    for c in range(4):
        o = 110 + 4 * c
        for k in range(4):
            lo = 70 + c + 2 * k
            a(f"v_lshl_or_b32 v{o+k}, v{lo+1}, 16, v{lo}")
        a(f"ds_write_b128 v237, v[{o}:{o+3}] offset:{KC_CP*c}")
    a("v_cmp_gt_u32 vcc, 16, v0"); a("s_and_saveexec_b64 s[66:67], vcc")
    a("ds_write_b128 v16, v[20:23] offset:4128"); a("s_mov_b64 exec, s[66:67]")
    stamp(a, 7)
    a("s_lshl_b32 s65, s34, 4"); a("s_lshr_b32 s64, s69, s65"); a("s_lshl_b32 s64, s64, 16")
    a("s_waitcnt vmcnt(0)"); a("s_barrier")
    a("v_and_b32 v8, 255, v0"); a(f"v_lshlrev_b32 v9, 6, v8"); a(f"v_add_u32 v9, {RED0}, v9")
    for i in range(4): a(f"ds_read_b128 v[{204+4*i}:{207+4*i}], v9 offset:{16*i}")
    a("s_waitcnt lgkmcnt(0)")
    for i in range(8):
        x = 200 + i // 2; st = 204 + 2 * i
        a(f"v_lshlrev_b32 v{30+i}, 16, v{x}" if i % 2 == 0 else f"v_and_b32 v{30+i}, 0xffff0000, v{x}")
        a(f"v_fma_f32 v{40+i}, v{30+i}, v{st}, v{st+1}")
        a(f"v_fma_f32 v{48+i}, v{40+i}, s64, v{30+i}")
    for k in range(4): a(f"v_cvt_pk_bf16_f32 v{56+k}, v{40+2*k}, v{41+2*k}")
    a("v_and_b32 v8, 255, v0")
    a(f"s_mul_i32 s66, s34, {UA_CH}"); a(f"s_add_u32 s66, s66, {UA0+480}"); a("v_lshl_add_u32 v9, v8, 4, s66")
    a("ds_write_b128 v9, v[56:59]")
    a(f"s_mul_i32 s66, s34, {RA_CH}"); a(f"s_add_u32 s66, s66, {RA0}"); a("v_lshl_add_u32 v9, v8, 5, s66")
    a("ds_write_b128 v9, v[48:51]"); a("ds_write_b128 v9, v[52:55] offset:16")
    a("s_waitcnt lgkmcnt(0)"); a("s_barrier")
    stamp(a, 8)
    for v in range(3):
        a(f"s_cmp_eq_u32 s35, {v}"); a(f"s_cbranch_scc1 L_conv{v}")
    a("s_branch L_conv3")
    for v in range(4):
        a.label(f"L_conv{v}")
        conv(a, v, hooks["dma"])
        if v < 3: a("s_branch L_conv_done")
    a.label("L_conv_done")
    stamp(a, 9)
    a("s_waitcnt vmcnt(0)")
    stamp(a, 10)
    a("s_barrier")
    a("s_lshl_b32 s64, s2, 6"); a(f"s_add_u32 s64, s64, {WS_FLAG2}")
    publish_flag(a, 64)
    stamp(a, 11)

def conv(a, p, dma):
    S = [s for s in range(64) if s % 4 == p]
    steps = {s: [(t, 8 * t - s) for t in range(7, -1, -1) if s <= 8 * t + 7] for s in S}
    betas = sorted({b for s in S for t, b in steps[s]}, reverse=True)
    assert len(betas) == 16
    breg = {b: 48 + 4 * i for i, b in enumerate(betas)}
    NAR = 4; PFD = 3
    issued = []
    def ldA(k):
        sa = S[k]; r = 112 + 4 * (k % NAR)
        a(f"ds_read_b64 v[{r}:{r+1}], v244 offset:{64*(63-sa)}"); a(f"ds_read_b64 v[{r+2}:{r+3}], v244 offset:{64*(63-sa)+8}")
        issued.extend([("A", k)] * 2)
    first = {}
    for k, s in enumerate(S):
        for t, b in steps[s]: first.setdefault(b, k)
    def ldB(b):
        a(f"ds_read_b128 v[{breg[b]}:{breg[b]+3}], v245 offset:{64*(b+7)}"); issued.append(("B", b))
    a("v_lshlrev_b32 v2, 4, v1")
    for q in range(4):
        if q == p: continue
        src = [x for x in range(4) if x != q].index(p)
        a(f"s_lshl_b32 s64, s34, 2"); a(f"s_add_u32 s64, s64, {q}"); a("s_mul_i32 s64, s64, 6144"); a(f"s_add_u32 s64, s64, {SB + 2048*src}")
        a(f"v_add_u32 v{4+q}, s64, v2")
    sendq = [q for q in range(4) if q != p]
    def send(q):
        sendq.remove(q)
        a(f"ds_write_b128 v{4+q}, v[{16+8*q}:{19+8*q}]"); a(f"ds_write_b128 v{4+q}, v[{20+8*q}:{23+8*q}] offset:1024")
        issued.extend([("W", q)] * 2)
    st3(a, 1)
    ldA(0)
    for t, b in steps[S[0]]: ldB(b)
    ldA(1)
    if p == 0:
        for t in range(8):
            a(f"ds_read_b128 v[{16+4*t}:{19+4*t}], v246 offset:{1024*t}"); issued.append(("R", t))
    else:
        for r in range(32): a(f"v_mov_b32 v{16+r}, 0")
    for b in betas:
        if first[b] >= 1: ldB(b)
    ldA(2)
    for k, s in enumerate(S):
        if k + PFD < len(S): ldA(k + PFD)
        need = max(i for i, x in enumerate(issued) if x == ("A", k))
        for t, b in steps[s]:
            need = max(need, max(i for i, x in enumerate(issued) if x == ("B", b)))
        if k == 0 and p == 0: need = max(need, max(i for i, x in enumerate(issued) if x[0] == "R"))
        n = len(issued) - 1 - need
        a(f"s_waitcnt lgkmcnt({min(n, 15)})")
        if k == 0: st3(a, 2)
        if k == 1: a("s_barrier")
        ra = 112 + 4 * (k % NAR)
        for j, (t, b) in enumerate(steps[s]):
            a(f"v_mfma_f32_16x16x32_bf16 v[{16+4*t}:{19+4*t}], v[{ra}:{ra+3}], v[{breg[b]}:{breg[b]+3}], v[{16+4*t}:{19+4*t}]")
        for q in list(sendq):
            if k >= 3 and S[k - 2] + 4 > 16 * q + 15 and k - 2 >= 0: send(q)
        if "convnodma" not in OPT and 1 + 2 * p <= k <= 9 + 2 * p: dma(a, k - 1 - 2 * p, 5 + k - 1 - 2 * p)
    st3(a, 3)
    for q in list(sendq): send(q)
    a(f"s_mul_i32 s64, s{S_WAVE}, 6144"); a(f"s_add_u32 s64, s64, {SB}"); a("v_add_u32 v3, s64, v2")
    a("s_waitcnt lgkmcnt(0)"); a("s_barrier")
    st3(a, 4)
    for j in range(3):
        a(f"ds_read_b128 v[{48+8*j}:{51+8*j}], v3 offset:{2048*j}"); a(f"ds_read_b128 v[{52+8*j}:{55+8*j}], v3 offset:{2048*j+1024}")
    a("s_waitcnt lgkmcnt(0)")
    A = 16 + 8 * p
    for j in range(3):
        for r in range(8): a(f"v_add_f32 v{A+r}, v{A+r}, v{48+8*j+r}")
    for i in range(2):
        t = 2 * p + i; o = 80 + 2 * i
        a(f"v_cvt_pk_bf16_f32 v{o}, v{A+4*i}, v{A+4*i+1}"); a(f"v_cvt_pk_bf16_f32 v{o+1}, v{A+4*i+2}, v{A+4*i+3}")
        a(f"buffer_store_dwordx2 v[{o}:{o+1}], v247, {W}, 0 offen offset:{512*t} sc1")
```

```python
from asm import *
from p8a import *

class VM:
    def __init__(self): self.q = []
    def issue(self, tag): self.q.append(tag)
    def wait_for(self, a, pred):
        last = max((i for i, t in enumerate(self.q) if pred(t)), default=-1)
        n = len(self.q) - 1 - last
        a(f"s_waitcnt vmcnt({min(n,63)})")

def tr_lane_decode(a):
    a("v_lshrrev_b32 v8, 4, v1"); a("v_and_b32 v9, 1, v8"); a("v_lshrrev_b32 v10, 1, v8")
    a("v_bfe_u32 v11, v1, 2, 2"); a("v_and_b32 v12, 3, v1")
    a("v_lshl_add_u32 v13, v10, 3, v11")

AW = 128
NEARLY = 9
def bw_setup(a):
    a("s_and_b32 s64, s2, 7"); a("s_lshr_b32 s65, s2, 3")
    a("s_lshr_b32 s41, s64, 1"); a("s_lshl_b32 s41, s41, 2"); a("s_and_b32 s66, s65, 3"); a("s_add_u32 s41, s41, s66")
    a("s_and_b32 s40, s64, 1"); a("s_mul_i32 s40, s40, 7"); a("s_lshr_b32 s66, s65, 2"); a("s_add_u32 s40, s40, s66")
    a(f"s_lshr_b32 s42, s{S_WAVE}, 2"); a(f"s_lshl_b32 s43, s{S_WAVE}, 10")
    a("s_cmp_eq_u32 s42, 0")
    a("s_cselect_b32 s52, s20, s22"); a("s_cselect_b32 s53, s21, s23")
    a(f"s_mov_b32 s54, {D*F*2}"); a("s_mov_b32 s55, 0x20000")
    a("v_lshrrev_b32 v2, 4, v1"); a("v_and_b32 v3, 15, v1")
    a("v_lshlrev_b32 v250, 1, v2"); a("v_add_u32 v250, s42, v250"); a("v_lshlrev_b32 v250, 1, v250"); a("v_xor_b32 v250, v250, v3"); a("v_lshlrev_b32 v250, 4, v250")
    a(f"s_and_b32 s64, s{S_WAVE}, 3"); a("s_lshl_b32 s64, s64, 2"); a("v_add_u32 v2, s64, v2")
    a("s_movk_i32 s65, 3584"); a("v_mul_lo_u32 v2, v2, s65"); a("v_add_u32 v250, v250, v2")
    a("s_lshl_b32 s65, s40, 8"); a("v_add_u32 v250, s65, v250")
def bw_dma(a, ks, slot, vreg=250):
    a(f"s_add_u32 m0, s43, {8192*slot}"); a(f"s_mov_b32 s67, {57344*ks}")
    a(f"buffer_load_dwordx4 v{vreg}, s[52:55], s67 offen lds")
def bw_tr_setup(a):
    tr_lane_decode(a)
    a("v_and_b32 v14, 1, v12"); a(f"s_lshl_b32 s64, s{S_WAVE}, 1"); a("v_add_u32 v14, s64, v14")
    a("v_lshlrev_b32 v15, 1, v11"); a("v_add_u32 v15, v15, v9"); a("v_lshlrev_b32 v15, 1, v15")
    a("v_xor_b32 v14, v14, v15"); a("v_lshlrev_b32 v14, 4, v14")
    a("v_lshrrev_b32 v15, 1, v12"); a("v_lshl_add_u32 v14, v15, 3, v14")
    a("v_lshl_add_u32 v14, v13, 8, v14"); a("v_lshl_add_u32 v14, v9, 12, v14")
    a("s_lshl_b32 s64, s42, 10"); a("v_add_u32 v240, s64, v14"); a("s_xor_b32 s64, s64, 1024"); a("v_add_u32 v241, s64, v14")
    a("v_add_u32 v242, 0x10000, v240"); a("v_add_u32 v243, 0x10000, v241")
def bw_tr1(a):
    bw_tr_setup(a)
    for ks in range(9):
        off = 8192 * (5 + ks); r = AW + 4 * ks; va = 240 + 2 * (off >> 16); o = off & 0xffff
        a(f"ds_read_b64_tr_b16 v[{r}:{r+1}], v{va} offset:{o}"); a(f"ds_read_b64_tr_b16 v[{r+2}:{r+3}], v{va+1} offset:{o}")
    a("s_waitcnt lgkmcnt(0)")

def cw_setup(a):
    a("s_and_b32 s64, s2, 7"); a("s_mul_i32 s64, s64, 28"); a("s_lshr_b32 s65, s2, 3"); a("s_add_u32 s64, s64, s65")
    a("s_mul_i32 s79, s64, 9363"); a("s_lshr_b32 s79, s79, 16"); a("s_mul_i32 s65, s79, 7"); a("s_sub_u32 s78, s64, s65")
    a(f"s_and_b32 s76, s{S_WAVE}, 3"); a(f"s_lshr_b32 s77, s{S_WAVE}, 2")
    srd(a, 44, 24, F * D * 2)
    a("v_lshrrev_b32 v3, 3, v1"); a("v_and_b32 v4, 7, v1")
    a("v_bfe_u32 v20, v3, 1, 1"); a("v_lshlrev_b32 v20, 2, v20"); a("v_xor_b32 v20, v20, v4"); a("v_lshlrev_b32 v20, 4, v20")
    a("s_mul_i32 s64, s76, 448"); a("s_lshl_b32 s65, s77, 3"); a("s_add_u32 s64, s64, s65"); a("v_add_u32 v3, s64, v3")
    a("s_movk_i32 s65, 896"); a("v_mul_lo_u32 v3, v3, s65"); a("v_add_u32 v20, v20, v3")
    a("s_lshl_b32 s65, s78, 7"); a("v_add_u32 v20, s65, v20")
    a("s_mul_i32 s48, s76, 10240"); a("s_lshl_b32 s64, s77, 10"); a("s_add_u32 s48, s48, s64"); a(f"s_add_u32 s48, s48, {SB}")
    a("s_lshl_b32 s49, s76, 11"); a("s_add_u32 s49, s49, s64")
def cw_dma(a, ksl, base, sl):
    step = 8192 if base == 49 else 2048
    a(f"s_add_u32 m0, s{base}, {step*sl}"); a(f"s_mov_b32 s67, {14336*ksl}")
    a("buffer_load_dwordx4 v20, s[44:47], s67 offen lds")

def phaseB(a):
    tr_lane_decode(a)
    a("v_and_b32 v14, 1, v12"); a(f"s_lshl_b32 s64, s{S_WAVE}, 1"); a("v_add_u32 v14, s64, v14")
    a("v_lshlrev_b32 v15, 1, v11"); a("v_add_u32 v15, v15, v9"); a("v_lshlrev_b32 v15, 1, v15")
    a("v_xor_b32 v14, v14, v15"); a("v_lshlrev_b32 v14, 4, v14")
    a("v_lshrrev_b32 v15, 1, v12"); a("v_lshl_add_u32 v14, v15, 3, v14")
    a("v_lshl_add_u32 v14, v13, 8, v14"); a("v_lshl_add_u32 v14, v9, 12, v14")
    a("s_lshl_b32 s64, s42, 10"); a("v_add_u32 v16, s64, v14"); a("s_xor_b32 s64, s64, 1024"); a("v_add_u32 v17, s64, v14")
    a("v_add_u32 v18, 0x10000, v16"); a("v_add_u32 v19, 0x10000, v17"); a("v_add_u32 v20, 0x20000, v16"); a("v_add_u32 v21, 0x20000, v17")
    def tr_w(ks, slot):
        off = 8192 * slot; r = AW + 4 * ks
        va = 16 + 2 * (off >> 16); o = off & 0xffff
        a(f"ds_read_b64_tr_b16 v[{r}:{r+1}], v{va} offset:{o}"); a(f"ds_read_b64_tr_b16 v[{r+2}:{r+3}], v{va+1} offset:{o}")
    for ks in range(9): tr_w(ks, 5 + ks)
    a("s_waitcnt lgkmcnt(0)"); a("s_barrier")
    for ks in range(9, 18): bw_dma(a, ks, ks - 9)
    stamp(a, 1)
    for jj in range(4):
        a(f"s_add_u32 s64, s{S_WAVE}, {jj}"); a("s_and_b32 s64, s64, 3")
        a(f"v_xor_b32 v{22+jj}, s64, v11"); a(f"v_lshlrev_b32 v{22+jj}, 6, v{22+jj}")
        a(f"v_lshl_add_u32 v{22+jj}, v13, 8, v{22+jj}")
        a(f"v_lshl_add_u32 v{22+jj}, v9, 5, v{22+jj}"); a(f"v_lshl_add_u32 v{22+jj}, v12, 3, v{22+jj}")
        a("s_lshl_b32 s64, s42, 10"); a(f"v_add_u32 v{22+jj}, s64, v{22+jj}")
        a("s_lshl_b32 s64, s42, 11"); a("s_sub_u32 s64, 1024, s64"); a(f"v_add_u32 v{26+jj}, s64, v{22+jj}")
    for r in range(64): a(f"v_mov_b32 v{64+r}, 0")
    a("s_waitcnt vmcnt(0)"); a("s_barrier")
    for ks in range(9, 18): tr_w(ks, ks - 9)
    a("v_add_u32 v18, 0x24000, v16"); a("v_add_u32 v19, 0x24000, v17")
    a("v_add_u32 v16, 0x14000, v16"); a("v_add_u32 v17, 0x14000, v17")
    a("s_waitcnt lgkmcnt(0)")
    cw_setup(a)
    a("v_lshrrev_b32 v3, 4, v1"); a("v_and_b32 v4, 15, v1")
    a("v_lshlrev_b32 v21, 2, v3"); a("v_xor_b32 v21, v21, v4"); a("v_lshlrev_b32 v21, 4, v21")
    a(f"v_mul_u32_u24 v6, {HTS}, v3"); a("v_add_u32 v21, v21, v6")
    a(f"s_mul_i32 s64, s{S_WAVE}, {4*HTS}"); a("s_lshl_b32 s65, s41, 8"); a("s_add_u32 s64, s64, s65"); a(f"s_add_u32 s64, s64, {WS_HT}")
    a("v_add_u32 v21, s64, v21")
    stamp(a, 2)
    a(f"s_mov_b32 s64, {WS_FLAG2}")
    wait_flags(a, "s2", 64, 256, 4)
    stamp(a, 3)
    a("v_mov_b32 v14, v250")
    vm = VM()
    def dma_h(g):
        a(f"s_add_u32 m0, s43, {8192*g}"); a(f"s_mov_b32 s67, {32*HTS*g}")
        a(f"buffer_load_dwordx4 v21, {W}, s67 offen lds"); vm.issue(("H", g))
    HPRE = 4
    for g in range(HPRE): dma_h(g)
    FR = [32, 48, 240]
    hi = [False]
    def reads(ks):
        fb = FR[ks % 3]
        pre = []
        if ks >= 16 and not hi[0]:
            hi[0] = True
            pre = [f"v_add_u32 v{22+jj}, 0x10000, v{22+jj}" for jj in range(8)]
        ho = 4096 * (ks - 16 if ks >= 16 else ks)
        return pre, [f"ds_read_b64_tr_b16 v[{fb+4*jj+2*h}:{fb+4*jj+2*h+1}], v{22+4*h+jj} offset:{ho}" for jj in range(4) for h in range(2)]
    NK = 28; G = 4
    def need(ks_hi):
        vm.wait_for(a, lambda t: t[0] == "H" and t[1] <= ks_hi // 2)
        a("s_barrier")
    need(3)
    stamp(a, 4); cstamp(a, 9)
    for ks in (0, 1):
        pre, rd = reads(ks)
        for x in pre + rd: a(x)
    ready = 3
    hq = [(0 if g < 10 else 14, g) for g in range(HPRE, 14)]
    lq = list(range(18, 28))
    bars = [2, 6, 10, 14, 18, 22]
    wq = [(min(b for b in bars if b >= 2 * i + 1), 5 + i, 49, i) for i in range(11)] + [(14, k, 48, k) for k in range(5)]
    wq.sort()
    for ks in range(NK):
        a(f"s_waitcnt lgkmcnt({(8 if ks + 1 < NK else 0) if ks not in (12, 13) else 0})")
        rd = []; pre = []
        if ks + 2 < NK:
            if ks == 10: vm.wait_for(a, lambda t: t[0] == "L")
            if ks + 2 > ready:
                need(ks + 2 + G - 1 if ks + 2 + G - 1 < NK else NK - 1); ready = min(ks + 2 + G - 1, NK - 1)
            pre, rd = reads(ks + 2)
        for x in pre: a(x)
        late = []
        if ks in (11, 12):
            for kk in (range(18, 23) if ks == 11 else range(23, 28)):
                r = AW + 4 * kk; sl = kk - 18
                va, off = (16, 8192 * sl) if sl < 8 else (18, 8192 * (sl - 8))
                late += [f"ds_read_b64_tr_b16 v[{r}:{r+1}], v{va} offset:{off}", f"ds_read_b64_tr_b16 v[{r+2}:{r+3}], v{va+1} offset:{off}"]
        fb = FR[ks % 3]; ar = AW + 4 * ks
        for jj in range(4):
            acc = 64 + 16 * jj
            a(f"v_mfma_f32_32x32x16_bf16 v[{acc}:{acc+15}], v[{ar}:{ar+3}], v[{fb+4*jj}:{fb+4*jj+3}], v[{acc}:{acc+15}]")
            for x in rd[2*jj:2*jj+2]: a(x)
            for x in late[3*jj:3*jj+3]: a(x)
            if jj == 0 and ks == 19:
                a("s_lshl_b32 s64, s41, 7"); a(f"s_add_u32 s64, s64, {WS_FLAG3}"); a("v_and_b32 v30, 1, v1"); a("v_lshl_add_u32 v30, v30, 6, s64")
                a(f"buffer_load_dword v31, v30, {W}, 0 offen sc1"); vm.issue(("F", 0))
            if jj == 0 and ks == 23:
                vm.wait_for(a, lambda t: t[0] == "F")
                a("s_mov_b32 s66, 0")
                a.label("L_f3_chk")
                a(f"v_cmp_ne_u32 vcc, s{S_NONCE}, v31"); a("s_cbranch_vccz L_f3_ok")
                a("s_add_u32 s66, s66, 1"); a(f"s_cmp_gt_u32 s66, {SPIN_MAX}"); a("s_cbranch_scc1 L_f3_ok")
                a(f"buffer_load_dword v31, v30, {W}, 0 offen sc1"); a("s_waitcnt vmcnt(0)"); a("s_branch L_f3_chk")
                a.label("L_f3_ok")
                a("v_and_b32 v30, 31, v1"); a("v_lshlrev_b32 v30, 3, v30")
                for j2 in range(4):
                    a(f"s_add_u32 s64, s{S_WAVE}, {j2}"); a("s_and_b32 s64, s64, 3"); a("s_lshl_b32 s65, s41, 2"); a("s_add_u32 s64, s64, s65")
                    a("s_lshl_b32 s64, s64, 8"); a(f"s_add_u32 s64, s64, {WS_G2}")
                    a(f"buffer_load_dwordx2 v[{4+2*j2}:{5+2*j2}], v30, {W}, s64 offen"); vm.issue(("G", j2))
            if jj == 2 and ks == 26:
                a("v_lshrrev_b32 v2, 5, v1"); a("v_lshlrev_b32 v2, 5, v2")
                a("s_lshl_b32 s64, s40, 9"); a(f"s_lshl_b32 s65, s{S_WAVE}, 6"); a("s_add_u32 s64, s64, s65"); a(f"s_add_u32 s64, s64, {WS_CS}")
                a("v_add_u32 v2, s64, v2"); a("v_add_u32 v3, 7168, v2")
                for k in range(2):
                    a(f"buffer_load_dwordx4 v[{48+4*k}:{51+4*k}], v2, {W}, 0 offen offset:{16*k}"); vm.issue(("C", 0))
                    a(f"buffer_load_dwordx4 v[{56+4*k}:{59+4*k}], v3, {W}, 0 offen offset:{16*k}"); vm.issue(("C", 0))
            if jj in (1, 3) or (jj == 2 and ks < 6):
                if hq and hq[0][0] <= ks:
                    dma_h(hq.pop(0)[1])
                elif lq:
                    kk = lq.pop(0); bw_dma(a, kk, kk - 8, 14); vm.issue(("L", kk))
                elif wq and wq[0][0] <= ks:
                    _, k, base, sl = wq.pop(0); cw_dma(a, k, base, sl); vm.issue(("W2", k))
    assert not hq and not wq and not lq, (hq, wq, lq)
    stamp(a, 5); cstamp(a, 10)
    vm.wait_for(a, lambda t: t[0] in ("G", "C"))
    for jj in range(4):
        b = 32 + 4 * jj
        a(f"v_mov_b32 v{b}, v{4+2*jj}"); a(f"v_mul_f32 v{b+2}, {NLOG2E:#x}, v{5+2*jj}"); a(f"v_mul_f32 v{b+3}, v{5+2*jj}, v{5+2*jj}")
    epilogue_marker = True
    def tr_w2(ksl, va, sl):
        r = AW + 4 * ksl
        if va == 14:
            off = 8192 * sl; reg = 14 if off < 65536 else 18; off &= 0xffff
        else:
            off = 2048 * sl; reg = va
        a(f"ds_read_b64_tr_b16 v[{r}:{r+1}], v{reg} offset:{off}"); a(f"ds_read_b64_tr_b16 v[{r+2}:{r+3}], v{reg} offset:{off+512}")
    pend = [(k, 49, k - 5) for k in range(16, 19)] + [(k, 48, k - 19) for k in range(19, 24)]
    def w2_next():
        if pend:
            k, base, sl = pend.pop(0); cw_dma(a, k, base, sl); vm.issue(("W2", k))
    def epilogue(vm):
        a("v_lshlrev_b32 v6, 4, v1"); a(f"v_add_u32 v6, {WS_HF}, v6")
        for jj in range(4):
            a(f"s_add_u32 s64, s{S_WAVE}, {jj}"); a("s_and_b32 s64, s64, 3")
            a("s_lshl_b32 s65, s41, 2"); a("s_add_u32 s64, s64, s65"); a("s_mul_i32 s64, s64, 112")
            a("s_lshl_b32 s65, s40, 3"); a("s_add_u32 s64, s64, s65"); a(f"s_add_u32 s64, s64, s{S_WAVE}")
            a(f"s_lshl_b32 s{72+jj}, s64, 10")
        for jj in range(4):
            b = 32 + 4 * jj; acc = 64 + 16 * jj; t = 240 + 8 * (jj % 2); o = 24 + 4 * (jj % 2)
            for e in range(8):
                a(f"v_fma_f32 v{acc+e}, -v{b}, v{48+e}, v{acc+e}"); a(f"v_fma_f32 v{acc+8+e}, -v{b}, v{56+e}, v{acc+8+e}")
            for e in range(8):
                a(f"v_mul_f32 v{t+e}, v{acc+e}, v{b+2}"); a(f"v_mul_f32 v{acc+e}, v{acc+e}, v{acc+8+e}")
                a(f"v_exp_f32 v{t+e}, v{t+e}")
            for e in range(8):
                a(f"v_mul_f32 v{acc+e}, v{acc+e}, v{b+3}"); a(f"v_add_f32 v{t+e}, 1.0, v{t+e}"); a(f"v_rcp_f32 v{t+e}, v{t+e}")
            for k in range(4):
                a(f"v_mul_f32 v{acc+2*k}, v{acc+2*k}, v{t+2*k}"); a(f"v_mul_f32 v{acc+2*k+1}, v{acc+2*k+1}, v{t+2*k+1}")
                a(f"v_cvt_pk_bf16_f32 v{o+k}, v{acc+2*k}, v{acc+2*k+1}")
            a(f"buffer_store_dwordx4 v[{o}:{o+3}], v6, {W}, s{72+jj} offen sc1"); vm.issue(("S", jj))
    stamp(a, 6)
    epilogue(vm)
    vm.wait_for(a, lambda t: t[0] == "W2")
    a("s_barrier")
    tr_lane_decode(a)
    a("s_lshr_b32 s50, s76, 1"); a("v_xor_b32 v14, s50, v9"); a("v_lshlrev_b32 v14, 1, v14")
    a("v_and_b32 v15, 1, v12"); a("v_add_u32 v14, v14, v15"); a("s_lshl_b32 s64, s77, 2"); a("v_add_u32 v14, s64, v14")
    a("v_bfe_u32 v15, v11, 1, 1"); a("v_lshlrev_b32 v15, 2, v15"); a("v_xor_b32 v14, v14, v15"); a("v_lshlrev_b32 v14, 4, v14")
    a("v_lshrrev_b32 v15, 1, v12"); a("v_lshl_add_u32 v14, v15, 3, v14"); a("v_lshl_add_u32 v14, v13, 7, v14")
    a("s_mul_i32 s64, s76, 10240"); a(f"s_add_u32 s64, s64, {SB}"); a("v_add_u32 v15, s64, v14")
    a("v_mov_b32 v19, v14")
    a("s_lshl_b32 s64, s76, 11"); a("v_add_u32 v14, s64, v14"); a("v_add_u32 v18, 0x10000, v14")
    for k in range(5): tr_w2(k, 15, k)
    for k in range(5, 16): tr_w2(k, 14, k - 5)
    a("s_waitcnt vmcnt(0) lgkmcnt(0)")
    stamp(a, 7)
    a("s_barrier")
    a("s_mul_i32 s64, s41, 14"); a("s_add_u32 s64, s64, s40"); a("s_lshl_b32 s64, s64, 6"); a(f"s_add_u32 s64, s64, {WS_FLAG4}")
    publish_flag(a, 64)
    stamp(a, 8)
    while pend: w2_next()
    a("s_waitcnt vmcnt(0)"); a("s_barrier")
    return tr_w2

RED_C = 114688
def phaseC(a, tr_w2):
    for k in range(16, 19): tr_w2(k, 14, k - 5)
    for k in range(19, 24): tr_w2(k, 15, k - 19)
    a("s_waitcnt lgkmcnt(0)"); a("s_barrier")
    a("s_mul_i32 s40, s76, 40960"); a("s_lshl_b32 s64, s77, 10"); a("s_add_u32 s41, s40, s64")
    a("s_add_u32 s42, s41, 32768")
    for k in range(24, 28): cw_dma(a, k, 42, k - 24)
    a("s_add_u32 s64, s40, 32768"); a("v_add_u32 v15, s64, v19")
    srd(a, 52, 26, L * D * 2)
    a("v_and_b32 v23, 31, v1"); a("v_lshrrev_b32 v24, 5, v1")
    a("s_lshl_b32 s64, s78, 6"); a("s_lshl_b32 s65, s77, 5"); a("s_add_u32 s64, s64, s65"); a("s_lshl_b32 s65, s50, 4"); a("s_add_u32 s34, s64, s65")
    a("s_lshl_b32 s64, s79, 6"); a("s_and_b32 s65, s76, 1"); a("s_lshl_b32 s65, s65, 5"); a("s_add_u32 s35, s64, s65")
    a("v_lshlrev_b32 v25, 3, v24"); a("v_add_u32 v25, s34, v25"); a("v_add_u32 v26, s35, v23")
    a(f"v_mul_u32_u24 v27, {HTS}, v25"); a("v_lshl_add_u32 v27, v26, 1, v27"); a(f"v_add_u32 v27, {WS_HT}, v27")
    for e in range(8):
        a(f"s_mov_b32 s67, {e*HTS}"); a(f"buffer_load_ushort v{240+e}, v27, {W}, s67 offen")
    a("s_movk_i32 s64, 896"); a("v_mul_lo_u32 v28, v26, s64"); a("v_lshl_add_u32 v28, v25, 1, v28")
    a("v_lshlrev_b32 v5, 4, v1")
    a("s_lshl_b32 s64, s79, 1"); a("s_add_u32 s64, s64, s77"); a("s_mul_i32 s64, s64, 112"); a("s_mul_i32 s65, s76, 28"); a("s_add_u32 s64, s64, s65")
    a("s_lshl_b32 s64, s64, 10"); a(f"s_add_u32 s64, s64, {WS_HF}"); a("v_add_u32 v252, s64, v5")
    a("v_add_u32 v6, s40, v5")
    a("s_and_b32 s64, s76, 1"); a("s_lshl_b32 s64, s64, 10"); a("v_add_u32 v16, s64, v6"); a("s_xor_b32 s64, s64, 1024"); a("v_add_u32 v17, s64, v6")
    for r in range(32): a(f"v_mov_b32 v{64+r}, 0")
    stamp(a, 1)
    stamp(a, 2)
    a("s_lshr_b32 s64, s79, 1"); a("s_mul_i32 s64, s64, 896"); a(f"s_add_u32 s64, s64, {WS_FLAG4}")
    wait_flags(a, "s4", 64, 14, 1)
    stamp(a, 3)
    vm = VM()
    def dma_b(k):
        a(f"s_add_u32 m0, s41, {2048*(k % 16)}"); a(f"s_mov_b32 s67, {1024*k}")
        a(f"buffer_load_dwordx4 v252, {W}, s67 offen lds"); vm.issue(("B", k))
    PRE = 8
    for k in range(PRE): dma_b(k)
    NBUF = 4
    FR = [32, 40, 48, 56]
    def reads(k):
        fb = FR[k % NBUF]
        return [f"ds_read_b128 v[{fb+4*ns}:{fb+4*ns+3}], v{16+ns} offset:{2048*(k % 16)}" for ns in range(2)]
    NK = 28; G = 4; PD = 3
    def need(k_hi):
        vm.wait_for(a, lambda t: t[1] <= k_hi); a("s_barrier")
    need(3)
    stamp(a, 4)
    for k in range(PD):
        for x in reads(k): a(x)
    ready = 3; nxt = PRE; freed = -1
    for k in range(NK):
        a(f"s_waitcnt lgkmcnt({2*min(PD-1, NK-1-k)})")
        rd = []
        if k + PD < NK:
            if k + PD > ready:
                hi = min(k + PD + G - 1, NK - 1); need(hi); ready = hi; freed = k
            rd = reads(k + PD)
        fb = FR[k % NBUF]; ar = AW + 4 * k
        for ns in range(2):
            acc = 64 + 16 * ns
            a(f"v_mfma_f32_32x32x16_bf16 v[{acc}:{acc+15}], v[{ar}:{ar+3}], v[{fb+4*ns}:{fb+4*ns+3}], v[{acc}:{acc+15}]")
            if rd: a(rd[ns])
        for _ in range(2):
            if nxt < NK and (nxt < 16 or nxt - 16 <= freed):
                dma_b(nxt); nxt += 1
        if k == 13:
            for kk in range(24, 28): tr_w2(kk, 15, kk - 24)
    assert nxt == NK
    stamp(a, 5)
    a("v_lshlrev_b32 v8, 4, v1")
    a("s_barrier")
    for x in range(1, 4):
        ns, hh = x & 1, x >> 1
        a(f"s_xor_b32 s64, s{S_WAVE}, {x}"); a("s_mul_i32 s64, s64, 6144"); a(f"s_add_u32 s64, s64, {RED_C + (x-1)*2048}")
        a("v_add_u32 v22, s64, v8")
        src = 64 + 16 * ns + 8 * hh
        a(f"ds_write_b128 v22, v[{src}:{src+3}]"); a(f"ds_write_b128 v22, v[{src+4}:{src+7}] offset:1024")
    a(f"s_mul_i32 s64, s{S_WAVE}, 6144"); a(f"s_add_u32 s64, s64, {RED_C}"); a("v_add_u32 v22, s64, v8")
    a("s_waitcnt lgkmcnt(0)"); a("s_barrier")
    for x in range(3):
        a(f"ds_read_b128 v[{96+8*x}:{99+8*x}], v22 offset:{2048*x}"); a(f"ds_read_b128 v[{100+8*x}:{103+8*x}], v22 offset:{2048*x+1024}")
    a("s_waitcnt lgkmcnt(0)")
    for x in range(3):
        for r in range(8): a(f"v_add_f32 v{64+r}, v{64+r}, v{96+8*x+r}")
    stamp(a, 6)
    for k in range(4):
        r = 2 * k
        a(f"v_cvt_pk_bf16_f32 v30, v{64+r}, v{65+r}")
        a("v_lshlrev_b32 v31, 16, v30"); a("v_and_b32 v30, 0xffff0000, v30")
        a(f"v_lshlrev_b32 v32, 16, v{240+r}"); a(f"v_lshlrev_b32 v33, 16, v{241+r}")
        a("v_add_f32 v31, v31, v32"); a("v_add_f32 v30, v30, v33")
        a(f"v_cvt_pk_bf16_f32 v{120+k}, v31, v30")
    a("buffer_store_dwordx4 v[120:123], v28, s[52:55], 0 offen")
    a("s_waitcnt vmcnt(0)")
    stamp(a, 7)
```

```python
from asm import *

L, D, N, F = 2048, 448, 256, 1792
LOG2E = 0x3FB8AA3B
NLOG2E = 0xBFB8AA3B
INV2PI = 0x3E22F983
WS_GRAN = 0x0
WS_CS = 0x8000
WS_FLAG2 = 0x10000
WS_FLAG4 = 0x14000
WS_FLAG3 = 0x1C000
WS_G2 = 0x3C8000
WS_FLAG1 = 0x18000
WS_XT = 0x200000
WS_HT = 0x20000
HTS = 4352
WS_HF = 0x400000
WS_SIZE = 0x1000000
S_WAVE, S_NONCE, S_CH, S_HALF = 32, 33, 34, 35
SRD_WS, SRD_DBG = 56, 60
SPIN_MAX = 30000
OPS = 1056
OP_CH = 53 * OPS
KC_CH, KC_CP = 16640, 4160
SB = 114688
TB0, TB_CH = SB, 1312
UA0, UA_CH = SB + 2624, 4576
RA0, RA_CH = SB + 2624 + 9152, 8192
LDS_TOTAL = 163840

def cmul1(dst, x, z, tmp): return f"v_pk_mul_f32 v[{tmp}:{tmp+1}], v[{x}:{x+1}], v[{z}:{z+1}] op_sel:[0,0] op_sel_hi:[1,0]"
def cmul2(dst, x, z, tmp, conj):
    neg = "neg_hi:[1,0,0]" if conj else "neg_lo:[1,0,0]"
    return f"v_pk_fma_f32 v[{dst}:{dst+1}], v[{x}:{x+1}], v[{z}:{z+1}], v[{tmp}:{tmp+1}] op_sel:[1,1,0] op_sel_hi:[0,1,1] {neg}"

def reduce8(a, r):
    a(f"v_add_f32_dpp v{r}, v{r}, v{r} quad_perm:[1,0,3,2] row_mask:0xf bank_mask:0xf")
    a(f"v_add_f32_dpp v{r}, v{r}, v{r} quad_perm:[2,3,0,1] row_mask:0xf bank_mask:0xf")
    a(f"v_add_f32_dpp v{r}, v{r}, v{r} row_half_mirror row_mask:0xf bank_mask:0xf")

def stats_pack(a, vs, vq, vd, t):
    inv = 0x3B124925
    a(f"v_mul_f32 v{vs}, {inv:#x}, v{vs}")
    a(f"v_mul_f32 v{vq}, {inv:#x}, v{vq}")
    a(f"v_fma_f32 v{vq}, -v{vs}, v{vs}, v{vq}")
    a(f"v_max_f32 v{vq}, 0, v{vq}")
    a(f"v_cvt_pk_bf16_f32 v{t}, v{vq}, v{vs}")
    a(f"v_lshlrev_b32 v{t+1}, 16, v{t}")
    a(f"v_add_f32 v{t+1}, 0x3727c5ac, v{t+1}")
    a(f"v_cvt_pk_bf16_f32 v{t+1}, v{t+1}, v{t+1}")
    a(f"v_lshlrev_b32 v{t+1}, 16, v{t+1}")
    a(f"v_sqrt_f32 v{t+1}, v{t+1}")
    a(f"v_cvt_pk_bf16_f32 v{t+1}, v{t+1}, v{t+1}")
    a(f"v_lshrrev_b32 v{t}, 16, v{t}")
    a(f"v_and_b32 v{t+1}, 0xffff0000, v{t+1}")
    a(f"v_or_b32 v{vd}, v{t}, v{t+1}")

def prologue(a):
    a("s_memrealtime s[64:65]")
    a("s_load_dwordx16 s[4:19], s[0:1], 0")
    a("s_load_dwordx8 s[20:27], s[0:1], 64")
    a("s_load_dwordx4 s[28:31], s[0:1], 96")
    a("v_and_b32 v1, 63, v0"); a("v_lshrrev_b32 v2, 6, v0"); a("s_nop 0")
    a(f"v_readfirstlane_b32 s{S_WAVE}, v2")
    a(f"s_lshr_b32 s{S_CH}, s{S_WAVE}, 1"); a(f"s_and_b32 s{S_HALF}, s{S_WAVE}, 1")
    a("s_waitcnt lgkmcnt(0)")
    srd(a, SRD_WS, 30, WS_SIZE); srd(a, SRD_DBG, 28, 256)
    a(f"s_or_b32 s64, s2, s{S_WAVE}"); a("s_cmp_eq_u32 s64, 0"); a("s_cbranch_scc0 L_nopub")
    a("s_memrealtime s[64:65]"); a("s_waitcnt lgkmcnt(0)"); a("s_or_b32 s64, s64, 1")
    a("v_mov_b32 v3, s64"); a("v_mov_b32 v4, 0")
    a(f"buffer_store_dword v3, v4, s[{SRD_DBG}:{SRD_DBG+3}], 0 offen sc1")
    a.label("L_nopub")

def get_nonce(a, tag, vt):
    a(f"v_mov_b32 v{vt+1}, 0"); a("s_mov_b32 s66, 0")
    a.label(f"L_nonce_{tag}")
    a(f"buffer_load_dword v{vt}, v{vt+1}, s[{SRD_DBG}:{SRD_DBG+3}], 0 offen sc1")
    a("s_waitcnt vmcnt(0)")
    a(f"v_readfirstlane_b32 s{S_NONCE}, v{vt}")
    a("s_add_u32 s66, s66, 1"); a(f"s_cmp_gt_u32 s66, {SPIN_MAX}"); a(f"s_cbranch_scc1 L_nonce_{tag}_ok")
    a(f"s_cmp_eq_u32 s{S_NONCE}, 0"); a(f"s_cbranch_scc1 L_nonce_{tag}")
    a.label(f"L_nonce_{tag}_ok")

def helper_stats1(a):
    srd(a, 36, 4, L * D * 2)
    a("s_sub_u32 s64, s2, 224"); a("s_lshl_b32 s64, s64, 6"); a(f"s_lshl_b32 s65, s{S_WAVE}, 4"); a("s_add_u32 s64, s64, s65")
    a("v_lshrrev_b32 v3, 3, v1"); a("v_add_u32 v3, s64, v3")
    a("v_and_b32 v2, 7, v1")
    a("s_movk_i32 s65, 896"); a("v_mul_lo_u32 v4, v3, s65"); a("v_lshl_add_u32 v4, v2, 4, v4")
    a("v_add_u32 v5, 7168, v4")
    for p in range(2):
        for i in range(7):
            r = 8 + 28 * p + 4 * i
            a(f"buffer_load_dwordx4 v[{r}:{r+3}], v{4+p}, s[36:39], 0 offen offset:{128*i}")
    a("v_mov_b32 v70, 0x3f803f80")
    for p in range(2):
        a(f"v_mov_b32 v{72+2*p}, 0"); a(f"v_mov_b32 v{73+2*p}, 0")
    for p in range(2):
        for i in range(7):
            a(f"s_waitcnt vmcnt({13-7*p-i})")
            for j in range(4):
                r = 8 + 28 * p + 4 * i + j
                a(f"v_dot2_f32_bf16 v{72+2*p}, v{r}, v70, v{72+2*p}")
                a(f"v_dot2_f32_bf16 v{73+2*p}, v{r}, v{r}, v{73+2*p}")
    for p in range(2):
        reduce8(a, 72 + 2 * p); reduce8(a, 73 + 2 * p)
        stats_pack(a, 72 + 2 * p, 73 + 2 * p, 76 + 2 * p, 80)
    get_nonce(a, "h1", 82)
    a(f"v_mov_b32 v77, s{S_NONCE}"); a(f"v_mov_b32 v79, s{S_NONCE}")
    a("v_lshlrev_b32 v6, 3, v3")
    a("v_cmp_eq_u32 vcc, 0, v2"); a("s_and_saveexec_b64 s[64:65], vcc")
    a(f"buffer_store_dwordx2 v[76:77], v6, s[{SRD_WS}:{SRD_WS+3}], 0 offen offset:{WS_GRAN} sc1")
    a(f"buffer_store_dwordx2 v[78:79], v6, s[{SRD_WS}:{SRD_WS+3}], 0 offen offset:{WS_GRAN+64} sc1")
    a("s_mov_b64 exec, s[64:65]")

OPT = set()
def phaseA(a):
    W = f"s[{SRD_WS}:{SRD_WS+3}]"
    srd(a, 36, 4, L * D * 2)
    srd(a, 40, 6, D * N * 2); srd(a, 44, 8, D * N * 2); srd(a, 48, 10, D * N * 2); srd(a, 52, 12, D * N * 2)
    a("s_lshl_b32 s64, s2, 2")
    a("s_load_dword s68, s[14:15], s64"); a("s_load_dword s69, s[16:17], s64")
    a(f"s_lshl_b32 s70, s2, 1"); a(f"s_add_u32 s70, s70, s{S_CH}")
    a("s_lshl_b32 s65, s70, 9"); a(f"s_lshl_b32 s66, s{S_HALF}, 8"); a("s_add_u32 s65, s65, s66")
    a("v_lshl_add_u32 v3, v1, 2, s65")
    a("buffer_load_dword v10, v3, s[40:43], 0 offen"); a("buffer_load_dword v11, v3, s[44:47], 0 offen")
    a("buffer_load_dword v12, v3, s[48:51], 0 offen"); a("buffer_load_dword v13, v3, s[52:55], 0 offen")
    a("s_movk_i32 s65, 7168"); a("v_mul_lo_u32 v4, v0, s65"); a("v_add_u32 v4, s64, v4"); a("v_add_u32 v5, 4480, v4")
    def gather(i):
        return f"buffer_load_dword v{200+i}, v{4 if i < 5 else 5}, s[36:39], 0 offen offset:{896*(i if i < 5 else i-5)}"
    nvm = [4]
    for i in range(2): a(gather(i))
    a("v_lshlrev_b32 v7, 4, v0"); a(f"v_add_u32 v7, {SB}, v7")
    a("v_mov_b32 v20, 0\nv_mov_b32 v21, 0\nv_mov_b32 v22, 0\nv_mov_b32 v23, 0")
    a("v_cmp_gt_u32 vcc, 30, v0"); a("s_and_saveexec_b64 s[66:67], vcc")
    a(f"ds_write_b128 v7, v[20:23] offset:{UA0-SB}"); a(f"ds_write_b128 v7, v[20:23] offset:{UA0-SB+UA_CH}")
    a("s_mov_b64 exec, s[66:67]")
    a("v_lshlrev_b32 v9, 3, v0"); a("v_sub_u32 v9, 2047, v9")
    for e in range(11): a(f"v_subrev_u32 v{30+e}, {e}, v9")
    for e in range(0, 12, 2):
        a(f"v_cvt_f32_i32 v{44+e}, v{30+e}")
        if e + 1 < 11: a(f"v_cvt_f32_i32 v{45+e}, v{31+e}")
        a(f"v_cvt_pk_bf16_f32 v{58+e//2}, v{44+e}, v{45+e if e+1 < 11 else 44+e}")
    for e in range(11):
        p = 58 + e // 2; r = 226 + e
        a(f"v_and_b32 v{r}, 0xffff, v{p}" if e % 2 == 0 else f"v_lshrrev_b32 v{r}, 16, v{p}")
        a(f"v_subrev_u32 v{r}, 17024, v{r}")
        a(f"v_min_i32 v{30+e}, 128, v{30+e}")
        a(f"v_max_i32 v{r}, v{r}, v{30+e}")
    a("v_mov_b32 v64, 641")
    for e in range(8, 11):
        a(f"v_cmp_gt_i32 vcc, {e}, v9"); a(f"v_cndmask_b32 v{226+e}, v{226+e}, v64, vcc")
    a(f"v_mov_b32 v65, {TB0}")
    for e in range(11): a(f"v_lshl_add_u32 v{226+e}, v{226+e}, 1, v65")
    a("v_and_b32 v9, 15, v1"); a("v_lshrrev_b32 v8, 4, v1")
    a(f"s_lshl_b32 s65, s{S_HALF}, 4"); a("v_add_u32 v30, s65, v9")
    a(f"s_mul_i32 s66, s{S_CH}, {TB_CH}"); a(f"s_add_u32 s66, s66, {TB0}")
    a("v_lshlrev_b32 v31, 4, v30"); a("v_lshl_add_u32 v31, v8, 3, v31")
    a("v_lshlrev_b32 v32, 3, v30"); a("v_add_u32 v32, 512, v32")
    a("v_cmp_eq_u32 vcc, 2, v8"); a("v_cndmask_b32 v31, v31, v32, vcc")
    a("v_lshlrev_b32 v32, 2, v30"); a("v_add_u32 v32, 768, v32")
    a("v_add_u32 v33, 4, v31"); a("v_add_u32 v34, 128, v32")
    a("v_cmp_eq_u32 vcc, 3, v8"); a("v_cndmask_b32 v31, v31, v32, vcc"); a("v_cndmask_b32 v33, v33, v34, vcc")
    a("v_add_u32 v238, s66, v31"); a("v_add_u32 v239, s66, v33")
    a("v_lshlrev_b32 v32, 1, v30"); a("v_add_u32 v32, 1024, v32"); a("v_mov_b32 v34, 1288")
    a("v_cmp_eq_u32 vcc, 0, v8")
    for r in range(4):
        a(f"v_add_u32 v35, {64*r}, v32"); a(f"v_cndmask_b32 v{240+r}, v34, v35, vcc")
    a("v_lshl_add_u32 v35, v8, 8, v30"); a("v_mov_b32 v36, 1280")
    a("v_cmp_eq_u32 vcc, 0x100, v35"); a("v_cndmask_b32 v240, v240, v36, vcc")
    for r in range(4): a(f"v_add_u32 v{240+r}, s66, v{240+r}")
    a("v_mov_b32 v36, s66"); a("ds_write_b16 v36, v20 offset:1282")
    a(f"s_movk_i32 s65, {OPS}"); a("v_mul_lo_u32 v248, v9, s65"); a("v_lshl_add_u32 v248, v8, 4, v248")
    a(f"s_mul_i32 s66, s{S_CH}, {OP_CH}"); a("v_add_u32 v248, s66, v248")
    a(f"s_mul_i32 s67, s{S_HALF}, {16*OPS}"); a(f"s_add_u32 s67, s67, {21*OPS}"); a("v_add_u32 v249, s67, v248")
    a("v_sub_u32 v30, 3, v9"); a("v_and_b32 v30, 3, v30")
    a(f"s_movk_i32 s65, {KC_CP}"); a("v_mul_lo_u32 v31, v30, s65")
    a("v_lshlrev_b32 v32, 3, v8"); a("v_sub_u32 v32, v32, v9"); a("v_sub_u32 v32, v32, v30"); a("v_add_u32 v32, 2047, v32")
    a("v_lshl_add_u32 v31, v32, 1, v31")
    a(f"s_mul_i32 s66, s{S_CH}, {KC_CH}"); a(f"s_sub_u32 s66, s66, {64*63}"); a("v_add_u32 v244, s66, v31")
    a(f"s_mul_i32 s66, s{S_CH}, {UA_CH}"); a(f"s_add_u32 s66, s66, {UA0}")
    a("v_lshlrev_b32 v31, 5, v9"); a("v_lshl_add_u32 v31, v8, 4, v31"); a("v_add_u32 v245, s66, v31")
    a(f"s_mul_i32 s66, s{S_CH}, {RA_CH}"); a(f"s_add_u32 s66, s66, {RA0}")
    a("v_lshlrev_b32 v31, 6, v9"); a("v_lshl_add_u32 v31, v8, 4, v31"); a("v_add_u32 v246, s66, v31")
    a("s_lshl_b32 s66, s70, 12"); a(f"s_add_u32 s66, s66, {WS_HT}")
    a("v_lshlrev_b32 v31, 5, v9"); a("v_lshl_add_u32 v31, v8, 3, v31"); a("v_add_u32 v247, s66, v31")
    a(f"s_mul_i32 s65, s{S_CH}, {OP_CH}"); a(f"s_lshl_b32 s66, s{S_HALF}, 9"); a("s_add_u32 s65, s65, s66")
    a("v_lshl_add_u32 v6, v1, 3, s65"); a("s_mov_b32 s71, s65")
    a("s_waitcnt lgkmcnt(0)")
    a(f"s_lshl_b32 s65, s{S_CH}, 4")
    a("s_lshr_b32 s66, s68, s65"); a("s_lshl_b32 s66, s66, 16")
    a(f"v_mov_b32 v14, {LOG2E:#x}"); a("v_mul_f32 v15, s66, v14"); a("v_exp_f32 v15, v15")
    a("v_cvt_pk_bf16_f32 v15, v15, v15"); a("v_lshlrev_b32 v15, 16, v15")
    stamp(a, 1)
    a("s_waitcnt vmcnt(2)")
    stamp(a, 2)
    a("v_lshlrev_b32 v16, 16, v10"); a("v_and_b32 v17, 0xffff0000, v10")
    a("v_mul_f32 v16, v14, v16"); a("v_mul_f32 v17, v14, v17")
    a("v_exp_f32 v16, v16"); a("v_exp_f32 v17, v17")
    a("v_lshlrev_b32 v24, 16, v11"); a("v_and_b32 v25, 0xffff0000, v11")
    a("v_cvt_pk_bf16_f32 v16, v16, v17")
    a("v_mul_f32 v24, v24, v15"); a("v_mul_f32 v25, v25, v15")
    a("v_lshlrev_b32 v18, 16, v16"); a("v_and_b32 v19, 0xffff0000, v16")
    a(f"v_mul_f32 v24, {INV2PI:#x}, v24"); a(f"v_mul_f32 v25, {INV2PI:#x}, v25")
    a("v_mul_f32 v18, v18, v15"); a("v_mul_f32 v19, v19, v15")
    a("v_mul_f32_e64 v18, -v18, v14"); a("v_mul_f32_e64 v19, -v19, v14")
    P = [18, 19]; Q = [24, 25]
    X = [30, 32]; Xb = [34, 36]
    a("v_add_f32 v26, v15, v15")
    a("v_lshlrev_b32 v30, 16, v12"); a("v_and_b32 v32, 0xffff0000, v12")
    a("v_lshlrev_b32 v31, 16, v13"); a("v_and_b32 v33, 0xffff0000, v13")
    a("v_mul_f32 v30, v30, v26"); a("v_mul_f32 v32, v32, v26")
    a("v_mul_f32_e64 v31, -v31, v26"); a("v_mul_f32_e64 v33, -v33, v26")
    Z = {1: [40, 42], 8: [44, 46], 256: [48, 50], 2: [52, 54], 4: [56, 58]}
    k = 0
    for t in (8, 1, 256):
        for m in range(2):
            tm = 60 + 2 * k; k += 1
            if t == 1:
                a(f"v_exp_f32 v{tm}, v{P[m]}"); a(f"v_fract_f32 v{tm+1}, v{Q[m]}")
            else:
                c = {8: 0x41000000, 256: 0x43800000}[t]
                a(f"v_mul_f32 v{tm}, {c:#x}, v{P[m]}"); a(f"v_mul_f32 v{tm+1}, {c:#x}, v{Q[m]}")
                a(f"v_exp_f32 v{tm}, v{tm}"); a(f"v_fract_f32 v{tm+1}, v{tm+1}")
    k = 0
    for t in (8, 1, 256):
        for m in range(2):
            tm = 60 + 2 * k; k += 1; z = Z[t][m]
            a(f"v_cos_f32 v{z}, v{tm+1}"); a(f"v_sin_f32 v{z+1}, v{tm+1}")
    k = 0
    for t in (8, 1, 256):
        for m in range(2):
            tm = 60 + 2 * k; k += 1; z = Z[t][m]
            a(f"v_mul_f32 v{z}, v{z}, v{tm}"); a(f"v_mul_f32 v{z+1}, v{z+1}, v{tm}")
    T = [72, 74]; T2 = [76, 78]
    pk = [80, 82, 84, 86]; pki = [0]
    def put(row, src):
        r = pk[pki[0] % 4]; pki[0] += 1
        a(f"v_cvt_pk_bf16_f32 v{r}, v{src[0]}, v{src[0]+1}"); a(f"v_cvt_pk_bf16_f32 v{r+1}, v{src[1]}, v{src[1]+1}")
        if "nowr" in OPT: return
        if "addtid" in OPT:
            a(f"ds_write_addtid_b32 v{r} offset:{row*OPS}"); a(f"ds_write_addtid_b32 v{r+1} offset:{row*OPS+256}")
        else:
            a(f"ds_write_b64 v6, v[{r}:{r+1}] offset:{row*OPS}")
    if "addtid" in OPT: a("s_mov_b32 m0, s71")
    Y = [88, 90]; X256 = [92, 94]; X512 = [96, 98]; X768 = [100, 102]; XW = [104, 106]
    put(0, X); put(22, Z[8])
    a("v_mov_b32 v108, 0x3f80\nv_mov_b32 v109, 0x3f80")
    if "addtid" in OPT:
        a(f"ds_write_addtid_b32 v108 offset:{21*OPS}"); a(f"ds_write_addtid_b32 v109 offset:{21*OPS+256}")
    else:
        a(f"ds_write_b64 v6, v[108:109] offset:{21*OPS}")
    for m in range(2): a(cmul1(0, Z[1][m], Z[1][m], T[m]))
    for m in range(2): a(cmul2(Z[2][m], Z[1][m], Z[1][m], T[m], False))
    for m in range(2): a(cmul1(0, Z[2][m], Z[2][m], T[m]))
    for m in range(2): a(cmul2(Z[4][m], Z[2][m], Z[2][m], T[m], False))
    xs = []
    for c in range(1, 8): xs.append((c, Xb, X if c == 1 else Xb, Z[1]))
    xs += [(8, X256, X, Z[256]), (9, XW, X256, Z[2]), (10, XW, XW, Z[2]), (11, XW, XW, Z[2]), (12, X512, X256, Z[256]),
           (13, XW, X512, Z[4]), (14, X768, X512, Z[256]), (15, XW, X768, Z[4]), (16, XW, X768, Z[256])]
    for r in range(17, 21): xs.append((r, XW, XW, Z[256]))
    gq = list(range(2, 8))
    for k, b in enumerate(range(2, 32)):
        src = Z[8] if b == 2 else Y
        x = xs[k] if k < len(xs) else None
        for m in range(2): a(cmul1(0, src[m], Z[8][m], T[m]))
        if x:
            for m in range(2): a(cmul1(0, x[2][m], x[3][m], T2[m]))
        for m in range(2): a(cmul2(Y[m], src[m], Z[8][m], T[m], False))
        if x:
            for m in range(2): a(cmul2(x[1][m], x[2][m], x[3][m], T2[m], True))
        put(21 + b, Y)
        if x: put(x[0], x[1])
        if k % 4 == 1 and gq:
            g_ = gq.pop(0)
            if "nogather" not in OPT: a(gather(g_))
    assert not gq
    a("v_lshlrev_b32 v3, 6, v0"); a("v_mov_b32 v225, 0")
    def s1_issue():
        a(f"buffer_load_dword v224, v225, s[{SRD_DBG}:{SRD_DBG+3}], 0 offen sc1")
        for i in range(4): a(f"buffer_load_dwordx4 v[{208+4*i}:{211+4*i}], v3, {W}, 0 offen offset:{WS_GRAN+16*i} sc1")
    s1_issue()
    stamp(a, 3)
    a("s_waitcnt lgkmcnt(0)"); a("s_barrier")
    stamp(a, 4)
    for r in range(8): a(f"v_mov_b32 v{16+r}, 0")
    def rd(s):
        b = 32 + 12 * (s % 4)
        a(f"ds_read_b128 v[{b}:{b+3}], v248 offset:{64*s}")
        a(f"ds_read_b128 v[{b+8}:{b+11}], v249 offset:{64*s}")
        a(f"ds_read_b128 v[{b+4}:{b+7}], v248 offset:{16*OPS+64*s}")
    for s in range(3): rd(s)
    for s in range(16):
        if s + 3 < 16: rd(s + 3)
        a(f"s_waitcnt lgkmcnt({3*min(15-s, 3)})")
        b = 32 + 12 * (s % 4)
        a(f"v_mfma_f32_16x16x32_bf16 v[16:19], v[{b}:{b+3}], v[{b+8}:{b+11}], v[16:19]")
        a(f"v_mfma_f32_16x16x32_bf16 v[20:23], v[{b+4}:{b+7}], v[{b+8}:{b+11}], v[20:23]")
    a("v_cvt_pk_bf16_f32 v16, v16, v17"); a("v_cvt_pk_bf16_f32 v17, v18, v19")
    a("v_cvt_pk_bf16_f32 v20, v20, v21"); a("v_cvt_pk_bf16_f32 v22, v22, v23")
    a("ds_write_b32 v238, v16"); a("ds_write_b32 v239, v17")
    a("ds_write_b16 v240, v20"); a("ds_write_b16_d16_hi v241, v20"); a("ds_write_b16 v242, v22"); a("ds_write_b16_d16_hi v243, v22")
    a("s_waitcnt lgkmcnt(0)"); a("s_barrier")
    stamp(a, 5)
    for ch in range(2):
        for e in range(11): a(f"ds_read_u16 v{70+16*ch+e}, v{226+e} offset:{TB_CH*ch}")
    a("v_lshlrev_b32 v9, 4, v0")
    for ch in range(2):
        a("s_waitcnt lgkmcnt(11)" if ch == 0 else "s_waitcnt lgkmcnt(4)")
        for c in range(4):
            o = 110 + 16 * ch + 4 * c
            for k in range(4):
                lo = 70 + 16 * ch + c + 2 * k
                a(f"v_lshl_or_b32 v{o+k}, v{lo+1}, 16, v{lo}")
            a(f"ds_write_b128 v9, v[{o}:{o+3}] offset:{KC_CH*ch+KC_CP*c+32}")
    a("v_mov_b32 v20, 0\nv_mov_b32 v21, 0\nv_mov_b32 v22, 0\nv_mov_b32 v23, 0")
    a("v_lshrrev_b32 v16, 1, v0"); a(f"s_movk_i32 s65, {KC_CP}"); a("v_mul_lo_u32 v16, v16, s65")
    a("v_and_b32 v17, 1, v0"); a("v_lshl_add_u32 v16, v17, 4, v16")
    a("v_cmp_gt_u32 vcc, 16, v0"); a("s_and_saveexec_b64 s[66:67], vcc")
    a("ds_write_b128 v16, v[20:23] offset:4128"); a("s_mov_b64 exec, s[66:67]")
    stamp(a, 6)
    a("s_mov_b32 s66, 0")
    a.label("L_s1_chk")
    a("s_waitcnt vmcnt(0)")
    a(f"v_readfirstlane_b32 s{S_NONCE}, v224")
    a(f"v_xor_b32 v16, s{S_NONCE}, v209")
    for i in range(1, 8):
        a(f"v_xor_b32 v17, s{S_NONCE}, v{209+2*i}"); a("v_or_b32 v16, v16, v17")
    a("v_cmp_ne_u32 vcc, 0, v16")
    a(f"s_cmp_eq_u32 s{S_NONCE}, 0"); a("s_cbranch_scc1 L_s1_retry")
    a("s_cbranch_vccz L_s1_ok")
    a.label("L_s1_retry")
    a("s_add_u32 s66, s66, 1"); a(f"s_cmp_gt_u32 s66, {SPIN_MAX}"); a("s_cbranch_scc1 L_s1_ok")
    s1_issue()
    a("s_branch L_s1_chk")
    a.label("L_s1_ok")
    stamp(a, 7)
    a("s_lshl_b32 s64, s69, 16"); a("s_and_b32 s65, s69, 0xffff0000")
    for i in range(8):
        st = 208 + 2 * i; x = 200 + i; o = 30 + 6 * (i % 2)
        a(f"v_and_b32 v{o+1}, 0xffff0000, v{st}"); a(f"v_lshlrev_b32 v{o}, 16, v{st}")
        a(f"v_rcp_f32 v{o+1}, v{o+1}")
        a(f"v_lshlrev_b32 v{o+2}, 16, v{x}"); a(f"v_and_b32 v{o+3}, 0xffff0000, v{x}")
        a(f"v_sub_f32 v{o+4}, v{o+2}, v{o}"); a(f"v_sub_f32 v{o+5}, v{o+3}, v{o}")
        a(f"v_mul_f32 v{130+i}, v{o+4}, v{o+1}"); a(f"v_mul_f32 v{138+i}, v{o+5}, v{o+1}")
        a(f"v_fma_f32 v{146+i}, v{130+i}, s64, v{o+2}"); a(f"v_fma_f32 v{154+i}, v{138+i}, s65, v{o+3}")
    for k in range(4):
        a(f"v_cvt_pk_bf16_f32 v{164+k}, v{130+2*k}, v{131+2*k}"); a(f"v_cvt_pk_bf16_f32 v{168+k}, v{138+2*k}, v{139+2*k}")
    a(f"ds_write_b128 v7, v[164:167] offset:{UA0-SB+480}"); a(f"ds_write_b128 v7, v[168:171] offset:{UA0-SB+UA_CH+480}")
    a("v_lshlrev_b32 v9, 5, v0"); a(f"v_add_u32 v9, {RA0}, v9")
    a("ds_write_b128 v9, v[146:149]"); a("ds_write_b128 v9, v[150:153] offset:16")
    a(f"ds_write_b128 v9, v[154:157] offset:{RA_CH}"); a(f"ds_write_b128 v9, v[158:161] offset:{RA_CH+16}")
    a("s_waitcnt lgkmcnt(0)"); a("s_barrier")
    stamp(a, 8)
    a(f"s_cmp_eq_u32 s{S_HALF}, 0"); a("s_cbranch_scc0 L_conv_x")
    conv(a, [7, 6, 1, 0]); a("s_branch L_conv_done")
    a.label("L_conv_x")
    conv(a, [5, 4, 3, 2])
    a.label("L_conv_done")
    stamp(a, 10)
    a("s_waitcnt vmcnt(0)"); a("s_barrier")
    stamp(a, 11)

def conv(a, tiles):
    W = f"s[{SRD_WS}:{SRD_WS+3}]"
    acc = {t: 16 + 4 * i for i, t in enumerate(tiles)}
    smax = 8 * max(tiles) + 7
    steps = [[(t, 8 * t - s) for t in tiles if s <= 8 * t + 7] for s in range(smax + 1)]
    NBR = 32; NAR = 8; PFD = 3
    uses = {}
    for s, ms in enumerate(steps):
        for t, b in ms: uses.setdefault(b, []).append(s)
    order = sorted(uses, key=lambda b: (uses[b][0], -b))
    slot_end = [-10**9] * NBR; slot = {}
    plan = {s: [] for s in range(-PFD, smax + 1)}
    for b in order:
        tau = uses[b][0] - PFD
        cand = [k for k in range(NBR) if slot_end[k] < tau]
        assert cand, "B ring too small"
        k = max(cand, key=lambda k: slot_end[k])
        slot[b] = k; slot_end[k] = uses[b][-1]
        plan[tau].append(("B", b))
    for s in range(smax + 1): plan[s - PFD].append(("A", s))
    for i, t in enumerate(tiles):
        a(f"ds_read_b128 v[{acc[t]}:{acc[t]+3}], v246 offset:{1024*t}")
    issued = []
    def do_loads(s):
        for ld in plan.get(s, []):
            if ld[0] == "A" and "convnoA" in OPT and ld[1] > 4:
                issued.append(ld); issued.pop(); continue
            if ld[0] == "A":
                sa = ld[1]; r = 32 + 4 * (sa % NAR)
                a(f"ds_read_b64 v[{r}:{r+1}], v244 offset:{64*(63-sa)}"); issued.append(ld)
                a(f"ds_read_b64 v[{r+2}:{r+3}], v244 offset:{64*(63-sa)+8}"); issued.append(ld)
            else:
                r = 64 + 4 * slot[ld[1]]
                a(f"ds_read_b128 v[{r}:{r+3}], v245 offset:{64*(ld[1]+7)}"); issued.append(ld)
    for s in range(-PFD, 0): do_loads(s)
    for s in range(smax + 1):
        do_loads(s)
        need = max([i for i, x in enumerate(issued) if x == ("A", s)] + [0])
        for t, b in steps[s]:
            need = max(need, max(i for i, x in enumerate(issued) if x == ("B", b)))
        n = len(issued) - 1 - need
        a(f"s_waitcnt lgkmcnt({min(n, 15)})")
        ra = 32 + 4 * (s % NAR)
        for t, b in steps[s]:
            rb = 64 + 4 * slot[b]
            a(f"v_mfma_f32_16x16x32_bf16 v[{acc[t]}:{acc[t]+3}], v[{ra}:{ra+3}], v[{rb}:{rb+3}], v[{acc[t]}:{acc[t]+3}]")
    stamp(a, 9)
    for i, t in enumerate(tiles):
        A = acc[t]; o = 192 + 2 * i
        a(f"v_cvt_pk_bf16_f32 v{o}, v{A}, v{A+1}"); a(f"v_cvt_pk_bf16_f32 v{o+1}, v{A+2}, v{A+3}")
        a(f"buffer_store_dwordx2 v[{o}:{o+1}], v247, {W}, 0 offen offset:{512*t} sc1")
```

```python
from asm import *
from pA import (L, D, N, F, LOG2E, NLOG2E, INV2PI, WS_GRAN, WS_CS, WS_FLAG1, WS_FLAG3, WS_G2, WS_XT, WS_FLAG2, WS_FLAG4, WS_HT, HTS, WS_HF, WS_SIZE, SRD_WS, SRD_DBG, SPIN_MAX,
                OPS, OP_CH, KC_CH, KC_CP, SB, TB0, TB_CH, UA0, UA_CH, RA0, RA_CH, LDS_TOTAL, cmul1, cmul2, reduce8, stats_pack)
S_WAVE, S_NONCE = 32, 33
W = f"s[{SRD_WS}:{SRD_WS+3}]"
DBG = f"s[{SRD_DBG}:{SRD_DBG+3}]"
OPT = set()
RED0 = RA0 + 2 * RA_CH

def prologue(a):
    a("s_load_dwordx16 s[4:19], s[0:1], 0")
    a("s_load_dwordx8 s[20:27], s[0:1], 64")
    a("s_load_dwordx4 s[28:31], s[0:1], 96")
    a("v_and_b32 v1, 63, v0"); a("v_lshrrev_b32 v2, 6, v0"); a("s_nop 0")
    a(f"v_readfirstlane_b32 s{S_WAVE}, v2")
    a("s_waitcnt lgkmcnt(0)")
    srd(a, SRD_WS, 30, WS_SIZE); srd(a, SRD_DBG, 28, 256)
    a(f"s_or_b32 s64, s2, s{S_WAVE}"); a("s_cmp_eq_u32 s64, 0"); a("s_cbranch_scc0 L_nopub")
    a("s_memrealtime s[64:65]"); a("s_waitcnt lgkmcnt(0)"); a("s_or_b32 s64, s64, 1")
    a("v_mov_b32 v3, s64"); a("v_mov_b32 v4, 0")
    a(f"buffer_store_dword v3, v4, {DBG}, 0 offen sc1")
    a.label("L_nopub")

def get_nonce(a, tag, vt):
    a(f"v_mov_b32 v{vt+1}, 0"); a("s_mov_b32 s66, 0")
    a.label(f"L_nonce_{tag}")
    a(f"buffer_load_dword v{vt}, v{vt+1}, {DBG}, 0 offen sc1")
    a("s_waitcnt vmcnt(0)")
    a(f"v_readfirstlane_b32 s{S_NONCE}, v{vt}")
    a("s_add_u32 s66, s66, 1"); a(f"s_cmp_gt_u32 s66, {SPIN_MAX}"); a(f"s_cbranch_scc1 L_nonce_{tag}_ok")
    a(f"s_cmp_eq_u32 s{S_NONCE}, 0"); a(f"s_cbranch_scc1 L_nonce_{tag}")
    a.label(f"L_nonce_{tag}_ok")

def publish_flag(a, off_sgpr, vt=2):
    lab = f"L_pub_{len(a.lines)}"
    a(f"s_cmp_eq_u32 s{S_WAVE}, 0"); a(f"s_cbranch_scc0 {lab}")
    a(f"v_mov_b32 v{vt}, s{S_NONCE}"); a(f"v_mov_b32 v{vt+1}, s{off_sgpr}")
    a("s_mov_b64 exec, 1")
    a(f"buffer_store_dword v{vt}, v{vt+1}, {W}, 0 offen sc1")
    a("s_mov_b64 exec, -1")
    a.label(lab)

def wait_flags(a, tag, base_sgpr, count, per_lane, vt=32):
    a(f"s_cmp_eq_u32 s{S_WAVE}, 0"); a(f"s_cbranch_scc0 L_wf_{tag}_bar")
    a(f"v_lshlrev_b32 v{vt}, 6, v1"); a(f"v_add_u32 v{vt}, s{base_sgpr}, v{vt}")
    a("s_mov_b32 s66, 0")
    if count < 64:
        a(f"v_cmp_gt_u32 vcc, {count}, v1"); a("s_and_saveexec_b64 s[68:69], vcc")
    a.label(f"L_wf_{tag}")
    for i in range(per_lane):
        if i == 0: a(f"buffer_load_dword v{vt+1}, v{vt}, {W}, 0 offen sc1")
        else:
            a(f"s_mov_b32 s67, {4096*i}"); a(f"buffer_load_dword v{vt+1+i}, v{vt}, {W}, s67 offen sc1")
    a("s_waitcnt vmcnt(0)")
    a(f"v_xor_b32 v{vt+1}, s{S_NONCE}, v{vt+1}")
    for i in range(1, per_lane):
        a(f"v_xor_b32 v{vt+1+i}, s{S_NONCE}, v{vt+1+i}"); a(f"v_or_b32 v{vt+1}, v{vt+1}, v{vt+1+i}")
    a(f"v_cmp_ne_u32 vcc, 0, v{vt+1}")
    a("s_add_u32 s66, s66, 1"); a(f"s_cmp_gt_u32 s66, {SPIN_MAX}"); a(f"s_cbranch_scc1 L_wf_{tag}_ok")
    a(f"s_cbranch_vccnz L_wf_{tag}")
    a.label(f"L_wf_{tag}_ok")
    a("s_mov_b64 exec, -1")
    a.label(f"L_wf_{tag}_bar")
    a("s_barrier")


X8S = 7168
XS0 = RED0
def xp_issue(a):
    srd(a, 36, 4, L * D * 2)
    a(f"s_lshl_b32 s64, s2, 3"); a(f"s_add_u32 s64, s64, s{S_WAVE}"); a("s_mul_i32 s64, s64, 896")
    a("v_lshl_add_u32 v194, v1, 4, s64")
    for r in range(4): a(f"v_mov_b32 v{196+r}, 0")
    a("v_cmp_gt_u32 vcc, 56, v1"); a("s_and_saveexec_b64 s[66:67], vcc")
    a("buffer_load_dwordx4 v[196:199], v194, s[36:39], 0 offen")
    a("s_mov_b64 exec, s[66:67]")
    a("v_mov_b32 v193, 0"); a(f"buffer_load_dword v195, v193, {DBG}, 0 offen sc1")
def xp_mid(a, tag):
    a(f"s_mul_i32 s64, s{S_WAVE}, 912"); a(f"s_add_u32 s64, s64, {XS0}"); a("v_lshl_add_u32 v194, v1, 4, s64")
    a("v_cmp_gt_u32 vcc, 56, v1"); a("s_and_saveexec_b64 s[66:67], vcc")
    a("ds_write_b128 v194, v[196:199]"); a("s_mov_b64 exec, s[66:67]")
    a("v_bfe_u32 v184, v1, 2, 2"); a("v_mul_u32_u24 v184, 912, v184")
    a("v_lshrrev_b32 v185, 4, v1"); a("v_lshl_add_u32 v184, v185, 5, v184"); a("v_and_b32 v185, 3, v1"); a("v_lshl_add_u32 v184, v185, 3, v184")
    a(f"s_lshl_b32 s64, s{S_WAVE}, 7"); a(f"s_add_u32 s64, s64, {XS0}"); a("v_add_u32 v184, s64, v184")
    a(f"s_mul_i32 s64, s2, {X8S}"); a(f"s_lshl_b32 s65, s{S_WAVE}, 10"); a("s_add_u32 s64, s64, s65"); a(f"s_add_u32 s64, s64, {WS_XT}")
    a("v_lshl_add_u32 v185, v1, 4, s64")
    a("s_waitcnt lgkmcnt(0)"); a("s_barrier")
    a(f"s_cmp_ge_u32 s{S_WAVE}, 7"); a(f"s_cbranch_scc1 L_xp_notr_{tag}")
    a("ds_read_b64_tr_b16 v[180:181], v184"); a(f"ds_read_b64_tr_b16 v[182:183], v184 offset:{4*912}")
    a("s_waitcnt lgkmcnt(0)")
    a(f"buffer_store_dwordx4 v[180:183], v185, {W}, 0 offen sc1")
    a.label(f"L_xp_notr_{tag}")
    a("v_mov_b32 v190, 0x3f803f80"); a("v_mov_b32 v188, 0"); a("v_mov_b32 v189, 0")
    for j in range(4):
        a(f"v_dot2_f32_bf16 v188, v{196+j}, v190, v188"); a(f"v_dot2_f32_bf16 v189, v{196+j}, v{196+j}, v189")
    for mod in ("quad_perm:[1,0,3,2]", "quad_perm:[2,3,0,1]", "row_half_mirror", "row_mirror"):
        for r in (188, 189): a(f"v_add_f32_dpp v{r}, v{r}, v{r} {mod} row_mask:0xf bank_mask:0xf")
    for sw in ("v_permlane16_swap_b32", "v_permlane32_swap_b32"):
        a("v_mov_b32 v186, v188"); a("v_mov_b32 v187, v189")
        a(f"{sw} v188, v186"); a(f"{sw} v189, v187")
        a("v_add_f32 v188, v188, v186"); a("v_add_f32 v189, v189, v187")
    stats_pack(a, 188, 189, 186, 184)
    a("v_and_b32 v187, 0xffff0000, v186"); a("v_lshlrev_b32 v186, 16, v186"); a("v_rcp_f32 v188, v187")
    a("v_mul_f32_e64 v189, -v186, v188")
    a(f"s_lshl_b32 s64, s2, 6"); a(f"s_lshl_b32 s65, s{S_WAVE}, 3"); a("s_add_u32 s64, s64, s65"); a("v_mov_b32 v187, s64")
    a("s_mov_b64 exec, 1")
    a(f"buffer_store_dwordx2 v[188:189], v187, {W}, 0 offen offset:{WS_GRAN} sc1")
    a("s_mov_b64 exec, -1")
def xg_mid(a, tag):
    a("v_mov_b32 v190, 0x3f803f80"); a("v_mov_b32 v188, 0"); a("v_mov_b32 v189, 0")
    for j in range(4):
        a(f"v_dot2_f32_bf16 v188, v{196+j}, v190, v188"); a(f"v_dot2_f32_bf16 v189, v{196+j}, v{196+j}, v189")
    for mod in ("quad_perm:[1,0,3,2]", "quad_perm:[2,3,0,1]", "row_half_mirror", "row_mirror"):
        for r in (188, 189): a(f"v_add_f32_dpp v{r}, v{r}, v{r} {mod} row_mask:0xf bank_mask:0xf")
    for sw in ("v_permlane16_swap_b32", "v_permlane32_swap_b32"):
        a("v_mov_b32 v186, v188"); a("v_mov_b32 v187, v189")
        a(f"{sw} v188, v186"); a(f"{sw} v189, v187")
        a("v_add_f32 v188, v188, v186"); a("v_add_f32 v189, v189, v187")
    stats_pack(a, 188, 189, 186, 184)
    a(f"v_readfirstlane_b32 s{S_NONCE}, v195")
    a(f"s_cmp_eq_u32 s{S_NONCE}, 0"); a(f"s_cbranch_scc0 L_xg_have_{tag}")
    get_nonce(a, "xg" + tag, 192)
    a.label(f"L_xg_have_{tag}")
    a(f"v_mov_b32 v187, s{S_NONCE}")
    a(f"s_lshl_b32 s64, s2, 6"); a(f"s_lshl_b32 s65, s{S_WAVE}, 3"); a("s_add_u32 s64, s64, s65"); a("v_mov_b32 v188, s64")
    a("s_mov_b64 exec, 1")
    a(f"buffer_store_dwordx2 v[186:187], v188, {W}, 0 offen offset:{WS_GRAN} sc1")
    a("s_mov_b64 exec, -1")
def xp_pub(a, tag):
    a("s_waitcnt vmcnt(0)")
    a(f"v_readfirstlane_b32 s{S_NONCE}, v195")
    a(f"s_cmp_eq_u32 s{S_NONCE}, 0"); a(f"s_cbranch_scc0 L_xp_have_{tag}")
    get_nonce(a, "xp" + tag, 194)
    a.label(f"L_xp_have_{tag}")
    a("s_barrier")
    a("s_lshl_b32 s64, s2, 6"); a(f"s_add_u32 s64, s64, {WS_FLAG1}")
    publish_flag(a, 64, 194)

def touch_w13(a):
    a("s_and_b32 s64, s2, 7"); a("s_lshr_b32 s65, s2, 3")
    a("s_and_b32 s66, s64, 1"); a("s_mul_i32 s66, s66, 7"); a("s_lshr_b32 s67, s65, 2"); a("s_add_u32 s66, s66, s67")
    a("s_and_b32 s65, s65, 3")
    a("s_cmp_lt_u32 s65, 2"); a("s_cselect_b32 s76, s20, s22"); a("s_cselect_b32 s77, s21, s23")
    a(f"s_mov_b32 s78, {D*F*2}"); a("s_mov_b32 s79, 0x20000")
    a("s_and_b32 s65, s65, 1"); a("s_mul_i32 s65, s65, 448"); a(f"s_min_u32 s67, s{S_WAVE}, 6"); a("s_lshl_b32 s67, s67, 6"); a("s_add_u32 s65, s65, s67")
    a("v_add_u32 v192, s65, v1")
    a("v_lshrrev_b32 v191, 1, v192"); a("v_mul_u32_u24 v191, 3584, v191"); a("v_and_b32 v192, 1, v192"); a("v_lshl_add_u32 v191, v192, 7, v191")
    a("s_lshl_b32 s66, s66, 8"); a("v_add_u32 v191, s66, v191")
    a("buffer_load_dword v192, v191, s[76:79], 0 offen")

def touch_weights(a, tag):
    a(f"s_cmp_ge_u32 s{S_WAVE}, 3"); a(f"s_cbranch_scc1 L_touch_skip_{tag}")
    a(f"s_lshl_b32 s64, s{S_WAVE}, 1"); a("s_cmp_eq_u32 s64, 0"); a("s_cselect_b32 s76, s20, s22"); a("s_cselect_b32 s77, s21, s23")
    a("s_cmp_eq_u32 s64, 4"); a("s_cselect_b32 s76, s24, s76"); a("s_cselect_b32 s77, s25, s77")
    a(f"s_mov_b32 s78, {D*F*2}"); a("s_mov_b32 s79, 0x20000")
    a("s_mul_i32 s64, s2, 49"); a("v_add_u32 v191, s64, v1"); a("v_lshlrev_b32 v191, 7, v191")
    a("v_cmp_gt_u32 vcc, 49, v1"); a("s_and_saveexec_b64 s[66:67], vcc")
    a("buffer_load_dword v192, v191, s[76:79], 0 offen")
    a("s_mov_b64 exec, s[66:67]")
    a.label(f"L_touch_skip_{tag}")

def poll_issue(a, tag, base_sgpr, count, per_lane, vt):
    a(f"s_cmp_eq_u32 s{S_WAVE}, 0"); a(f"s_cbranch_scc0 L_pi_{tag}")
    a(f"v_lshlrev_b32 v{vt}, 6, v1"); a(f"v_add_u32 v{vt}, s{base_sgpr}, v{vt}")
    if count < 64:
        a(f"v_min_u32 v{vt+1}, {count-1}, v1"); a(f"v_lshlrev_b32 v{vt}, 6, v{vt+1}"); a(f"v_add_u32 v{vt}, s{base_sgpr}, v{vt}")
    for i in range(per_lane):
        if i == 0: a(f"buffer_load_dword v{vt+1}, v{vt}, {W}, 0 offen sc1")
        else:
            a(f"s_mov_b32 s67, {4096*i}"); a(f"buffer_load_dword v{vt+1+i}, v{vt}, {W}, s67 offen sc1")
    a.label(f"L_pi_{tag}")
def poll_check(a, tag, per_lane, vt):
    a(f"s_cmp_eq_u32 s{S_WAVE}, 0"); a(f"s_cbranch_scc0 L_pc_{tag}_bar")
    a("s_mov_b32 s66, 0")
    a.label(f"L_pc_{tag}")
    a(f"v_xor_b32 v{vt+1}, s{S_NONCE}, v{vt+1}")
    for i in range(1, per_lane):
        a(f"v_xor_b32 v{vt+1+i}, s{S_NONCE}, v{vt+1+i}"); a(f"v_or_b32 v{vt+1}, v{vt+1}, v{vt+1+i}")
    a(f"v_cmp_ne_u32 vcc, 0, v{vt+1}")
    a(f"s_cbranch_vccz L_pc_{tag}_bar")
    a("s_add_u32 s66, s66, 1"); a(f"s_cmp_gt_u32 s66, {SPIN_MAX}"); a(f"s_cbranch_scc1 L_pc_{tag}_bar")
    for i in range(per_lane):
        if i == 0: a(f"buffer_load_dword v{vt+1}, v{vt}, {W}, 0 offen sc1")
        else:
            a(f"s_mov_b32 s67, {4096*i}"); a(f"buffer_load_dword v{vt+1+i}, v{vt}, {W}, s67 offen sc1")
    a("s_waitcnt vmcnt(0)")
    a(f"s_branch L_pc_{tag}")
    a.label(f"L_pc_{tag}_bar")
    a("s_barrier")

def code_prefetch(a):
    if "nopf" in OPT: return
    a("s_getpc_b64 s[78:79]")
    lab = f"L_pc_{len(a.lines)}"
    a.label(lab)
    a(f"s_sub_u32 s78, s78, {lab}-KERNEL_START"); a("s_subb_u32 s79, s79, 0")
    a(f"s_lshl_b32 s64, s{S_WAVE}, 12"); a("v_and_b32 v178, 31, v1"); a("v_lshlrev_b32 v178, 7, v178"); a("v_add_u32 v178, s64, v178")
    a(f"v_min_u32 v178, KERNEL_END-KERNEL_START-4, v178")
    a("global_load_dword v177, v178, s[78:79]")

def helper(a):
    a("s_sub_u32 s70, s2, 224")
    xp_issue(a)
    if "G" in OPT:
        a("s_waitcnt vmcnt(0)")
        xg_mid(a, "h")
    else:
        a("s_waitcnt vmcnt(1)")
        xp_mid(a, "h")
        xp_pub(a, "h")
    if "notouch" not in OPT: touch_weights(a, "h")
    stamp(a, 1)
    a("s_cmp_lt_u32 s70, 16")
    a("s_cselect_b32 s36, s20, s22"); a("s_cselect_b32 s37, s21, s23")
    a(f"s_mov_b32 s38, {D*F*2}"); a("s_mov_b32 s39, 0x20000")
    a("s_and_b32 s64, s70, 15"); a("s_mul_i32 s64, s64, 224")
    a("v_lshrrev_b32 v2, 4, v1"); a("v_and_b32 v3, 15, v1")
    a(f"s_mul_i32 s65, s{S_WAVE}, 56"); a("v_add_u32 v4, s65, v2")
    a("s_movk_i32 s65, 3584"); a("v_mul_lo_u32 v4, v4, s65"); a("v_lshl_add_u32 v4, v3, 4, v4"); a("v_add_u32 v4, s64, v4")
    for i in range(14):
        a(f"s_mov_b32 s67, {4*3584*i}")
        a(f"buffer_load_dwordx4 v[{8+4*i}:{11+4*i}], v4, s[36:39], s67 offen")
    for e in range(8): a(f"v_mov_b32 v{72+e}, 0")
    for i in range(14):
        a(f"s_waitcnt vmcnt({13-i})")
        for j in range(4):
            r = 8 + 4 * i + j
            a(f"v_lshlrev_b32 v80, 16, v{r}"); a(f"v_and_b32 v81, 0xffff0000, v{r}")
            a(f"v_add_f32 v{72+2*j}, v{72+2*j}, v80"); a(f"v_add_f32 v{73+2*j}, v{73+2*j}, v81")
    a(f"s_lshl_b32 s65, s{S_WAVE}, 2"); a("v_add_u32 v5, s65, v2"); a("v_lshlrev_b32 v5, 9, v5"); a("v_lshl_add_u32 v5, v3, 5, v5")
    a("ds_write_b128 v5, v[72:75]"); a("ds_write_b128 v5, v[76:79] offset:16")
    a("s_waitcnt lgkmcnt(0)"); a("s_barrier")
    a("v_lshlrev_b32 v5, 2, v0")
    a("v_cmp_gt_u32 vcc, 112, v0"); a("s_and_saveexec_b64 s[64:65], vcc"); a("s_cbranch_execz L_h_cs_done")
    for k in range(32): a(f"ds_read_b32 v{8+k}, v5 offset:{512*k}")
    a("s_waitcnt lgkmcnt(0)")
    for k in range(1, 32): a(f"v_add_f32 v8, v8, v{8+k}")
    a("s_mul_i32 s66, s70, 448"); a(f"s_add_u32 s66, s66, {WS_CS}"); a("v_add_u32 v5, s66, v5")
    a(f"buffer_store_dword v8, v5, {W}, 0 offen sc1")
    a.label("L_h_cs_done")
    a("s_mov_b64 exec, s[64:65]")
    a("s_waitcnt vmcnt(0)"); a("s_barrier")
    a("s_lshl_b32 s64, s2, 6"); a(f"s_add_u32 s64, s64, {WS_FLAG2}")
    publish_flag(a, 64)
    a(f"s_mov_b32 s64, {WS_FLAG2}")
    wait_flags(a, "hs2", 64, 256, 4)
    a("v_and_b32 v2, 31, v1"); a("v_lshrrev_b32 v3, 5, v1"); a(f"s_lshl_b32 s64, s{S_WAVE}, 1"); a("v_add_u32 v3, s64, v3")
    a(f"v_mul_u32_u24 v3, {HTS}, v3"); a("v_lshl_add_u32 v3, v2, 2, v3"); a("s_lshl_b32 s64, s70, 7"); a(f"s_add_u32 s64, s64, {WS_HT}"); a("v_add_u32 v3, s64, v3")
    for i in range(28):
        a(f"s_mov_b32 s67, {16*HTS*i}"); a(f"buffer_load_dword v{40+i}, v3, {W}, s67 offen")
    for r in range(4): a(f"v_mov_b32 v{8+r}, 0")
    for i in range(28):
        a(f"s_waitcnt vmcnt({27-i})")
        a(f"v_lshlrev_b32 v12, 16, v{40+i}"); a(f"v_and_b32 v13, 0xffff0000, v{40+i}")
        a("v_add_f32 v8, v8, v12"); a("v_add_f32 v9, v9, v13"); a("v_fma_f32 v10, v12, v12, v10"); a("v_fma_f32 v11, v13, v13, v11")
    for r in range(8, 12):
        a(f"v_mov_b32 v12, v{r}"); a(f"v_permlane32_swap_b32 v{r}, v12"); a(f"v_add_f32 v{r}, v{r}, v12")
    a(f"s_lshl_b32 s64, s{S_WAVE}, 9"); a("v_lshl_add_u32 v4, v2, 4, s64")
    a("ds_write_b128 v4, v[8:11]")
    a("s_waitcnt lgkmcnt(0)"); a("s_barrier")
    a("v_cmp_gt_u32 vcc, 64, v0"); a("s_and_saveexec_b64 s[64:65], vcc"); a("s_cbranch_execz L_h_g2_done")
    a("v_lshrrev_b32 v4, 1, v0"); a("v_lshlrev_b32 v4, 4, v4"); a("v_and_b32 v5, 1, v0"); a("v_lshl_add_u32 v4, v5, 2, v4")
    for k in range(8):
        a(f"ds_read_b32 v{16+k}, v4 offset:{512*k}"); a(f"ds_read_b32 v{24+k}, v4 offset:{512*k+8}")
    a("s_waitcnt lgkmcnt(0)")
    for k in range(1, 8):
        a(f"v_add_f32 v16, v16, v{16+k}"); a(f"v_add_f32 v24, v24, v{24+k}")
    stats_pack(a, 16, 24, 32, 34)
    a("v_and_b32 v33, 0xffff0000, v32"); a("v_lshlrev_b32 v32, 16, v32"); a("v_rcp_f32 v33, v33")
    a("s_lshl_b32 s66, s70, 9"); a(f"s_add_u32 s66, s66, {WS_G2}"); a("v_lshl_add_u32 v4, v0, 3, s66")
    a(f"buffer_store_dwordx2 v[32:33], v4, {W}, 0 offen sc1")
    a.label("L_h_g2_done")
    a("s_mov_b64 exec, s[64:65]")
    a("s_waitcnt vmcnt(0)"); a("s_barrier")
    a("s_lshl_b32 s64, s70, 6"); a(f"s_add_u32 s64, s64, {WS_FLAG3}")
    publish_flag(a, 64)
    stamp(a, 2)

def st2(a, i):
    if "convdiag" not in OPT: stamp(a, i)
def st3(a, i):
    if "convdiag" in OPT: stamp(a, i)
def phaseA(a, hooks):
    XPK = next((int(o[3:]) for o in OPT if o.startswith("xpk")), 8)
    a(f"s_lshr_b32 s34, s{S_WAVE}, 2"); a(f"s_and_b32 s35, s{S_WAVE}, 3")
    xp_issue(a)
    srd(a, 40, 6, D * N * 2); srd(a, 44, 8, D * N * 2); srd(a, 48, 10, D * N * 2); srd(a, 52, 12, D * N * 2)
    a("s_and_b32 s64, s2, 7"); a("s_mul_i32 s64, s64, 28"); a("s_lshr_b32 s65, s2, 3"); a("s_add_u32 s75, s64, s65")
    a("s_lshl_b32 s64, s75, 2")
    a("s_load_dword s68, s[14:15], s64"); a("s_load_dword s69, s[16:17], s64")
    a("s_lshl_b32 s70, s75, 1"); a("s_add_u32 s70, s70, s34")
    a("s_lshl_b32 s65, s70, 9"); a("s_lshl_b32 s66, s35, 7"); a("s_add_u32 s65, s65, s66")
    a("v_lshl_add_u32 v3, v1, 1, s65")
    a("buffer_load_ushort v10, v3, s[40:43], 0 offen"); a("buffer_load_ushort v11, v3, s[44:47], 0 offen")
    a("buffer_load_ushort v12, v3, s[48:51], 0 offen"); a("buffer_load_ushort v13, v3, s[52:55], 0 offen")
    code_prefetch(a)
    if "G" in OPT:
        a("v_mul_u32_u24 v179, 896, v1"); a("s_lshl_b32 s65, s75, 2"); a("v_add_u32 v179, s65, v179")
        GW = next((int(o[2:]) for o in OPT if o.startswith("gw")), 1)
        for i in range(GW):
            a(f"s_mul_i32 s65, s{S_WAVE}, {GW}"); a(f"s_add_u32 s65, s65, {i}"); a("s_lshl_b32 s66, s65, 8"); a(f"s_add_u32 m0, s66, {RED0}")
            a(f"s_mul_i32 s67, s65, {64*896}"); a("buffer_load_dword v179, s[36:39], s67 offen lds")
        a(f"s_cmp_eq_u32 s{S_WAVE}, 7"); a("s_cbranch_scc0 L_g_skip")
        for i in range(8 * GW, 32):
            a(f"s_mov_b32 m0, {RED0 + 256*i}"); a(f"s_mov_b32 s67, {64*896*i}")
            a("buffer_load_dword v179, s[36:39], s67 offen lds")
        a.label("L_g_skip")
    a("v_lshlrev_b32 v7, 4, v0"); a(f"v_add_u32 v7, {SB}, v7")
    a("v_mov_b32 v20, 0\nv_mov_b32 v21, 0\nv_mov_b32 v22, 0\nv_mov_b32 v23, 0")
    a("v_cmp_gt_u32 vcc, 30, v0"); a("s_and_saveexec_b64 s[66:67], vcc")
    a(f"ds_write_b128 v7, v[20:23] offset:{UA0-SB}"); a(f"ds_write_b128 v7, v[20:23] offset:{UA0-SB+UA_CH}")
    a("s_mov_b64 exec, s[66:67]")
    a("v_and_b32 v8, 255, v0"); a("v_lshlrev_b32 v9, 3, v8"); a("v_sub_u32 v9, 2047, v9")
    for e in range(11): a(f"v_subrev_u32 v{30+e}, {e}, v9")
    for e in range(0, 12, 2):
        a(f"v_cvt_f32_i32 v{44+e}, v{30+e}")
        if e + 1 < 11: a(f"v_cvt_f32_i32 v{45+e}, v{31+e}")
        a(f"v_cvt_pk_bf16_f32 v{58+e//2}, v{44+e}, v{45+e if e+1 < 11 else 44+e}")
    for e in range(11):
        p = 58 + e // 2; r = 226 + e
        a(f"v_and_b32 v{r}, 0xffff, v{p}" if e % 2 == 0 else f"v_lshrrev_b32 v{r}, 16, v{p}")
        a(f"v_subrev_u32 v{r}, 17024, v{r}"); a(f"v_min_i32 v{30+e}, 128, v{30+e}"); a(f"v_max_i32 v{r}, v{r}, v{30+e}")
    a("v_mov_b32 v64, 641")
    for e in range(8, 11):
        a(f"v_cmp_gt_i32 vcc, {e}, v9"); a(f"v_cndmask_b32 v{226+e}, v{226+e}, v64, vcc")
    a(f"s_mul_i32 s66, s34, {TB_CH}"); a(f"s_add_u32 s72, s66, {TB0}")
    a("v_mov_b32 v65, s72")
    for e in range(11): a(f"v_lshl_add_u32 v{226+e}, v{226+e}, 1, v65")
    a(f"s_mul_i32 s66, s34, {KC_CH}"); a("s_add_u32 s66, s66, 32"); a("v_lshl_add_u32 v237, v8, 4, s66")
    a("v_and_b32 v9, 15, v1"); a("v_lshrrev_b32 v8, 4, v1")
    a(f"s_and_b32 s73, s{S_WAVE}, 1"); a(f"s_bfe_u32 s74, s{S_WAVE}, 0x10001")
    a("s_lshl_b32 s65, s73, 4"); a("v_add_u32 v30, s65, v9")
    a("v_lshlrev_b32 v31, 4, v30"); a("v_lshl_add_u32 v31, v8, 3, v31")
    a("v_lshlrev_b32 v32, 3, v30"); a("v_add_u32 v32, 512, v32")
    a("v_cmp_eq_u32 vcc, 2, v8"); a("v_cndmask_b32 v31, v31, v32, vcc")
    a("v_lshlrev_b32 v32, 2, v30"); a("v_add_u32 v32, 768, v32")
    a("v_add_u32 v33, 4, v31"); a("v_add_u32 v34, 128, v32")
    a("v_cmp_eq_u32 vcc, 3, v8"); a("v_cndmask_b32 v31, v31, v32, vcc"); a("v_cndmask_b32 v33, v33, v34, vcc")
    a("v_lshlrev_b32 v32, 1, v30"); a("v_add_u32 v32, 1024, v32"); a("v_mov_b32 v34, 1288")
    a("v_cmp_eq_u32 vcc, 0, v8")
    for r in range(4):
        a(f"v_add_u32 v35, {64*r}, v32"); a(f"v_cndmask_b32 v{238+r}, v34, v35, vcc")
    a("v_lshl_add_u32 v35, v8, 8, v30"); a("v_mov_b32 v36, 1280")
    a("v_cmp_eq_u32 vcc, 0x100, v35"); a("v_cndmask_b32 v238, v238, v36, vcc")
    a("s_cmp_eq_u32 s74, 0"); a("s_cbranch_scc0 L_tb_rt1")
    a("v_mov_b32 v238, v31"); a("v_mov_b32 v239, v33")
    a.label("L_tb_rt1")
    for r in range(4): a(f"v_add_u32 v{238+r}, s72, v{238+r}")
    a("v_mov_b32 v36, s72"); a("ds_write_b16 v36, v20 offset:1282")
    a(f"s_movk_i32 s65, {OPS}"); a("v_mul_lo_u32 v248, v9, s65"); a("v_lshl_add_u32 v248, v8, 4, v248")
    a(f"s_mul_i32 s66, s34, {OP_CH}"); a("v_add_u32 v248, s66, v248")
    a(f"s_mul_i32 s67, s73, {16*OPS}"); a(f"s_add_u32 s67, s67, {21*OPS}"); a("v_add_u32 v249, s67, v248")
    a(f"s_mul_i32 s67, s74, {16*OPS}"); a("v_add_u32 v248, s67, v248")
    a("v_sub_u32 v30, 3, v9"); a("v_and_b32 v30, 3, v30")
    a(f"s_movk_i32 s65, {KC_CP}"); a("v_mul_lo_u32 v31, v30, s65")
    a("v_lshlrev_b32 v32, 3, v8"); a("v_sub_u32 v32, v32, v9"); a("v_sub_u32 v32, v32, v30"); a("v_add_u32 v32, 2047, v32")
    a("v_lshl_add_u32 v31, v32, 1, v31")
    a(f"s_mul_i32 s66, s34, {KC_CH}"); a(f"s_sub_u32 s66, s66, {64*63}"); a("v_add_u32 v244, s66, v31")
    a(f"s_mul_i32 s66, s34, {UA_CH}"); a(f"s_add_u32 s66, s66, {UA0}")
    a("v_lshlrev_b32 v31, 5, v9"); a("v_lshl_add_u32 v31, v8, 4, v31"); a("v_add_u32 v245, s66, v31")
    a(f"s_mul_i32 s66, s34, {RA_CH}"); a(f"s_add_u32 s66, s66, {RA0}")
    a("v_lshlrev_b32 v31, 6, v9"); a("v_lshl_add_u32 v31, v8, 4, v31"); a("v_add_u32 v246, s66, v31")
    a(f"s_mul_i32 s66, s70, {HTS}"); a(f"s_add_u32 s66, s66, {WS_HT}")
    a("v_lshlrev_b32 v31, 5, v9"); a("v_lshl_add_u32 v31, v8, 3, v31"); a("v_add_u32 v247, s66, v31")
    a(f"s_mul_i32 s71, s34, {OP_CH}"); a("s_lshl_b32 s66, s35, 8"); a("s_add_u32 s71, s71, s66")
    a("s_waitcnt lgkmcnt(0)")
    a("s_lshl_b32 s65, s34, 4"); a("s_lshr_b32 s66, s68, s65"); a("s_lshl_b32 s66, s66, 16")
    a(f"v_mov_b32 v14, {LOG2E:#x}"); a("v_mul_f32 v15, s66, v14"); a("v_exp_f32 v15, v15")
    a("v_cvt_pk_bf16_f32 v15, v15, v15"); a("v_lshlrev_b32 v15, 16, v15")
    a("s_mov_b32 m0, s71")
    st2(a, 1)
    if "G" in OPT:
        GW = next((int(o[2:]) for o in OPT if o.startswith("gw")), 1)
        a(f"s_cmp_eq_u32 s{S_WAVE}, 7"); a("s_cbranch_scc1 L_g_w7")
        a(f"s_waitcnt vmcnt({GW})"); a("s_branch L_g_wd")
        a.label("L_g_w7"); a(f"s_waitcnt vmcnt({32 - 7*GW})")
        a.label("L_g_wd")
        xg_mid(a, "m")
    else:
        npf = 0 if "nopf" in OPT else 1
        a(f"s_waitcnt vmcnt({5+npf})")
        xp_mid(a, "m")
        a(f"s_waitcnt vmcnt({1+npf})")
    a("s_mov_b32 m0, s71")
    st2(a, 2)
    a("v_lshlrev_b32 v16, 16, v10"); a("v_lshlrev_b32 v24, 16, v11"); a("v_mul_f32 v16, v14, v16"); a("v_mul_f32 v24, v24, v15")
    a("v_exp_f32 v16, v16"); a(f"v_mul_f32 v24, {INV2PI:#x}, v24")
    a("v_lshlrev_b32 v30, 16, v12"); a("v_lshlrev_b32 v31, 16, v13")
    a("v_cvt_pk_bf16_f32 v16, v16, v16"); a("v_add_f32 v26, v15, v15")
    a("v_lshlrev_b32 v18, 16, v16")
    a("v_mul_f32 v30, v30, v26"); a("v_mul_f32_e64 v31, -v31, v26")
    a("v_mul_f32 v18, v18, v15"); a("v_mul_f32_e64 v18, -v18, v14")
    P, Q = 18, 24
    X, Xb = 30, 34
    Z = {1: 40, 8: 44, 256: 48, 2: 52, 4: 56}
    for k, t in enumerate((8, 1, 256)):
        tm = 60 + 2 * k
        if t == 1:
            a(f"v_exp_f32 v{tm}, v{P}"); a(f"v_fract_f32 v{tm+1}, v{Q}")
        else:
            c = {8: 0x41000000, 256: 0x43800000}[t]
            a(f"v_mul_f32 v{tm}, {c:#x}, v{P}"); a(f"v_mul_f32 v{tm+1}, {c:#x}, v{Q}")
            a(f"v_exp_f32 v{tm}, v{tm}"); a(f"v_fract_f32 v{tm+1}, v{tm+1}")
    for k, t in enumerate((8, 1, 256)):
        tm = 60 + 2 * k; z = Z[t]
        a(f"v_cos_f32 v{z}, v{tm+1}"); a(f"v_sin_f32 v{z+1}, v{tm+1}")
    for k, t in enumerate((8, 1, 256)):
        tm = 60 + 2 * k; z = Z[t]
        a(f"v_mul_f32 v{z}, v{z}, v{tm}"); a(f"v_mul_f32 v{z+1}, v{z+1}, v{tm}")
    T, T2 = 72, 76
    pk = [80, 81, 82, 83, 84, 85]; pki = [0]
    def put(row, src):
        r = pk[pki[0] % 6]; pki[0] += 1
        a(f"v_cvt_pk_bf16_f32 v{r}, v{src}, v{src+1}")
        a(f"ds_write_addtid_b32 v{r} offset:{row*OPS}")
    Y, X256, X512, X768, XW = 88, 92, 96, 100, 104
    put(0, X); put(22, Z[8])
    a("v_mov_b32 v108, 0x3f80"); a(f"ds_write_addtid_b32 v108 offset:{21*OPS}")
    a(cmul1(0, Z[1], Z[1], T)); a(cmul2(Z[2], Z[1], Z[1], T, False))
    a(cmul1(0, Z[2], Z[2], T)); a(cmul2(Z[4], Z[2], Z[2], T, False))
    xs = [(c, Xb, X if c == 1 else Xb, Z[1]) for c in range(1, 8)]
    xs += [(8, X256, X, Z[256]), (9, XW, X256, Z[2]), (10, XW, XW, Z[2]), (11, XW, XW, Z[2]), (12, X512, X256, Z[256]),
           (13, XW, X512, Z[4]), (14, X768, X512, Z[256]), (15, XW, X768, Z[4]), (16, XW, X768, Z[256])]
    for r in range(17, 21): xs.append((r, XW, XW, Z[256]))
    def s1_issue():
        a(f"buffer_load_dword v223, v3, {W}, 0 offen sc1")
    for k, b in enumerate(range(2, 32)):
        src = Z[8] if b == 2 else Y
        x = xs[k] if k < len(xs) else None
        a(cmul1(0, src, Z[8], T))
        if x: a(cmul1(0, x[2], x[3], T2))
        a(cmul2(Y, src, Z[8], T, False))
        if x: a(cmul2(x[1], x[2], x[3], T2, True))
        put(21 + b, Y)
        if x: put(x[0], x[1])
        if k == XPK and "G" not in OPT:
            xp_pub(a, "m")
        if k == XPK + 1 and "notouch" not in OPT:
            touch_weights(a, "m")
    st2(a, 3)
    a("s_waitcnt lgkmcnt(0)"); a("s_barrier")
    st2(a, 4)
    if "G" in OPT:
        a("v_and_b32 v221, 255, v0"); a("v_lshlrev_b32 v221, 6, v221")
        def g_issue():
            for i in range(4): a(f"buffer_load_dwordx4 v[{204+4*i}:{207+4*i}], v221, {W}, 0 offen offset:{WS_GRAN+16*i} sc1")
        g_issue()
    else:
        a("v_and_b32 v3, 255, v0"); a("v_lshlrev_b32 v3, 6, v3"); a(f"v_add_u32 v3, {WS_FLAG1}, v3")
        s1_issue()
    for r in range(4): a(f"v_mov_b32 v{16+r}, 0")
    NR = 6
    def rd(s):
        b = 32 + 8 * (s % NR)
        a(f"ds_read_b128 v[{b}:{b+3}], v248 offset:{64*s}"); a(f"ds_read_b128 v[{b+4}:{b+7}], v249 offset:{64*s}")
    for s in range(NR - 1): rd(s)
    for s in range(16):
        if s + NR - 1 < 16: rd(s + NR - 1)
        a(f"s_waitcnt lgkmcnt({2*min(15-s, NR-1)})")
        b = 32 + 8 * (s % NR)
        a(f"v_mfma_f32_16x16x32_bf16 v[16:19], v[{b}:{b+3}], v[{b+4}:{b+7}], v[16:19]")
        if s == 9 and "G" not in OPT:
            a("s_mov_b32 s66, 0")
            a.label("L_s1_chk")
            a("s_waitcnt vmcnt(0)")
            a(f"v_cmp_ne_u32 vcc, s{S_NONCE}, v223")
            a("s_cbranch_vccz L_s1_ok")
            a("s_add_u32 s66, s66, 1"); a(f"s_cmp_gt_u32 s66, {SPIN_MAX}"); a("s_cbranch_scc1 L_s1_ok")
            s1_issue()
            a("s_branch L_s1_chk")
            a.label("L_s1_ok")
            a("v_and_b32 v8, 255, v0")
            a(f"v_mul_u32_u24 v3, {X8S}, v8"); a("s_lshl_b32 s66, s70, 4"); a(f"s_add_u32 s66, s66, {WS_XT}"); a("v_add_u32 v3, s66, v3")
            a(f"buffer_load_dwordx4 v[200:203], v3, {W}, 0 offen")
            a(f"s_cmp_lt_u32 s{S_WAVE}, 4"); a("s_cbranch_scc0 L_s1_nost")
            a(f"s_lshl_b32 s66, s{S_WAVE}, 12"); a("v_lshl_add_u32 v3, v1, 4, s66")
            for i in range(4):
                a(f"s_add_u32 m0, s66, {RED0}"); a(f"buffer_load_dwordx4 v3, {W}, 0 offen offset:{1024*i} lds")
            a.label("L_s1_nost")
    a("v_cvt_pk_bf16_f32 v16, v16, v17"); a("v_cvt_pk_bf16_f32 v17, v18, v19")
    a("s_cmp_eq_u32 s74, 0"); a("s_cbranch_scc0 L_tw_rt1")
    a("ds_write_b32 v238, v16"); a("ds_write_b32 v239, v17"); a("s_branch L_tw_done")
    a.label("L_tw_rt1")
    a("ds_write_b16 v238, v16"); a("ds_write_b16_d16_hi v239, v16"); a("ds_write_b16 v240, v17"); a("ds_write_b16_d16_hi v241, v17")
    a.label("L_tw_done")
    a("s_waitcnt lgkmcnt(0)"); a("s_barrier")
    stamp(a, 5)
    hooks["setup"](a)
    stamp(a, 6)
    for e in range(11): a(f"ds_read_u16 v{70+e}, v{226+e}")
    a("v_mov_b32 v20, 0\nv_mov_b32 v21, 0\nv_mov_b32 v22, 0\nv_mov_b32 v23, 0")
    a("v_lshrrev_b32 v16, 1, v0"); a(f"s_movk_i32 s65, {KC_CP}"); a("v_mul_lo_u32 v16, v16, s65")
    a("v_and_b32 v17, 1, v0"); a("v_lshl_add_u32 v16, v17, 4, v16")
    a("s_waitcnt lgkmcnt(0)")
    for c in range(4):
        o = 110 + 4 * c
        for k in range(4):
            lo = 70 + c + 2 * k
            a(f"v_lshl_or_b32 v{o+k}, v{lo+1}, 16, v{lo}")
        a(f"ds_write_b128 v237, v[{o}:{o+3}] offset:{KC_CP*c}")
    a("v_cmp_gt_u32 vcc, 16, v0"); a("s_and_saveexec_b64 s[66:67], vcc")
    a("ds_write_b128 v16, v[20:23] offset:4128"); a("s_mov_b64 exec, s[66:67]")
    if "two" in OPT:
        for k in range(9): hooks["dma"](a, k, 5 + k)
    stamp(a, 7)
    a("s_lshl_b32 s65, s34, 4"); a("s_lshr_b32 s64, s69, s65"); a("s_lshl_b32 s64, s64, 16")
    if "G" in OPT:
        a("s_mov_b32 s66, 0")
        a.label("L_s1_chk")
        a("s_waitcnt vmcnt(0)")
        a(f"v_xor_b32 v16, s{S_NONCE}, v205")
        for i in range(1, 8):
            a(f"v_xor_b32 v17, s{S_NONCE}, v{205+2*i}"); a("v_or_b32 v16, v16, v17")
        a("v_cmp_ne_u32 vcc, 0, v16"); a("s_cbranch_vccz L_s1_ok")
        a("s_add_u32 s66, s66, 1"); a(f"s_cmp_gt_u32 s66, {SPIN_MAX}"); a("s_cbranch_scc1 L_s1_ok")
        g_issue()
        a("s_branch L_s1_chk")
        a.label("L_s1_ok")
        a("s_barrier")
        a("v_and_b32 v8, 255, v0"); a(f"v_lshlrev_b32 v9, 5, v8"); a(f"v_add_u32 v9, {RED0}, v9")
        a("ds_read_b128 v[192:195], v9"); a("ds_read_b128 v[196:199], v9 offset:16")
        a("s_xor_b32 s65, s34, 1"); a("s_lshl_b32 s65, s65, 4")
        for i in range(8):
            st = 204 + 2 * i
            a(f"v_and_b32 v{60+i}, 0xffff0000, v{st}"); a(f"v_rcp_f32 v{60+i}, v{60+i}"); a(f"v_lshlrev_b32 v{68+i}, 16, v{st}")
        a("s_waitcnt lgkmcnt(0)")
        for i in range(8):
            a(f"v_lshlrev_b32 v{30+i}, s65, v{192+i}"); a(f"v_and_b32 v{30+i}, 0xffff0000, v{30+i}")
            a(f"v_sub_f32 v{40+i}, v{30+i}, v{68+i}"); a(f"v_mul_f32 v{40+i}, v{40+i}, v{60+i}")
            a(f"v_fma_f32 v{48+i}, v{40+i}, s64, v{30+i}")
    else:
        a("s_waitcnt vmcnt(9)" if "two" in OPT else "s_waitcnt vmcnt(0)"); a("s_barrier")
        a("v_and_b32 v8, 255, v0"); a(f"v_lshlrev_b32 v9, 6, v8"); a(f"v_add_u32 v9, {RED0}, v9")
        for i in range(4): a(f"ds_read_b128 v[{204+4*i}:{207+4*i}], v9 offset:{16*i}")
        a("s_waitcnt lgkmcnt(0)")
        for i in range(8):
            x = 200 + i // 2; st = 204 + 2 * i
            a(f"v_lshlrev_b32 v{30+i}, 16, v{x}" if i % 2 == 0 else f"v_and_b32 v{30+i}, 0xffff0000, v{x}")
            a(f"v_fma_f32 v{40+i}, v{30+i}, v{st}, v{st+1}")
            a(f"v_fma_f32 v{48+i}, v{40+i}, s64, v{30+i}")
    for k in range(4): a(f"v_cvt_pk_bf16_f32 v{56+k}, v{40+2*k}, v{41+2*k}")
    a("v_and_b32 v8, 255, v0")
    a(f"s_mul_i32 s66, s34, {UA_CH}"); a(f"s_add_u32 s66, s66, {UA0+480}"); a("v_lshl_add_u32 v9, v8, 4, s66")
    a("ds_write_b128 v9, v[56:59]")
    a(f"s_mul_i32 s66, s34, {RA_CH}"); a(f"s_add_u32 s66, s66, {RA0}"); a("v_lshl_add_u32 v9, v8, 5, s66")
    a("ds_write_b128 v9, v[48:51]"); a("ds_write_b128 v9, v[52:55] offset:16")
    a("s_waitcnt vmcnt(0) lgkmcnt(0)"); a("s_barrier")
    stamp(a, 8)
    if "two" in OPT: hooks["tr1"](a)
    for v in range(3):
        a(f"s_cmp_eq_u32 s35, {v}"); a(f"s_cbranch_scc1 L_conv{v}")
    a("s_branch L_conv3")
    for v in range(4):
        a.label(f"L_conv{v}")
        conv(a, v, hooks["dma"])
        if v < 3: a("s_branch L_conv_done")
    a.label("L_conv_done")
    stamp(a, 9)
    a("s_waitcnt vmcnt(0)")
    stamp(a, 10)
    a("s_barrier")
    a("s_lshl_b32 s64, s2, 6"); a(f"s_add_u32 s64, s64, {WS_FLAG2}")
    publish_flag(a, 64)
    stamp(a, 11)

def conv(a, p, dma):
    S = [s for s in range(64) if s % 4 == p]
    steps = {s: [(t, 8 * t - s) for t in range(7, -1, -1) if s <= 8 * t + 7] for s in S}
    betas = sorted({b for s in S for t, b in steps[s]}, reverse=True)
    assert len(betas) == 16
    breg = {b: 48 + 4 * i for i, b in enumerate(betas)}
    NAR = 4; PFD = 3
    issued = []
    def ldA(k):
        sa = S[k]; r = 112 + 4 * (k % NAR)
        a(f"ds_read_b64 v[{r}:{r+1}], v244 offset:{64*(63-sa)}"); a(f"ds_read_b64 v[{r+2}:{r+3}], v244 offset:{64*(63-sa)+8}")
        issued.extend([("A", k)] * 2)
    first = {}
    for k, s in enumerate(S):
        for t, b in steps[s]: first.setdefault(b, k)
    def ldB(b):
        a(f"ds_read_b128 v[{breg[b]}:{breg[b]+3}], v245 offset:{64*(b+7)}"); issued.append(("B", b))
    a("v_lshlrev_b32 v2, 4, v1")
    for q in range(4):
        if q == p: continue
        src = [x for x in range(4) if x != q].index(p)
        a(f"s_lshl_b32 s64, s34, 2"); a(f"s_add_u32 s64, s64, {q}"); a("s_mul_i32 s64, s64, 6144"); a(f"s_add_u32 s64, s64, {SB + 2048*src}")
        a(f"v_add_u32 v{4+q}, s64, v2")
    sendq = [q for q in range(4) if q != p]
    def send(q):
        sendq.remove(q)
        a(f"ds_write_b128 v{4+q}, v[{16+8*q}:{19+8*q}]"); a(f"ds_write_b128 v{4+q}, v[{20+8*q}:{23+8*q}] offset:1024")
        issued.extend([("W", q)] * 2)
    st3(a, 1)
    ldA(0)
    for t, b in steps[S[0]]: ldB(b)
    ldA(1)
    if p == 0:
        for t in range(8):
            a(f"ds_read_b128 v[{16+4*t}:{19+4*t}], v246 offset:{1024*t}"); issued.append(("R", t))
    else:
        for r in range(32): a(f"v_mov_b32 v{16+r}, 0")
    for b in betas:
        if first[b] >= 1: ldB(b)
    ldA(2)
    for k, s in enumerate(S):
        if k + PFD < len(S): ldA(k + PFD)
        need = max(i for i, x in enumerate(issued) if x == ("A", k))
        for t, b in steps[s]:
            need = max(need, max(i for i, x in enumerate(issued) if x == ("B", b)))
        if k == 0 and p == 0: need = max(need, max(i for i, x in enumerate(issued) if x[0] == "R"))
        n = len(issued) - 1 - need
        a(f"s_waitcnt lgkmcnt({min(n, 15)})")
        if k == 0: st3(a, 2)
        if k == 1: a("s_barrier")
        ra = 112 + 4 * (k % NAR)
        for j, (t, b) in enumerate(steps[s]):
            a(f"v_mfma_f32_16x16x32_bf16 v[{16+4*t}:{19+4*t}], v[{ra}:{ra+3}], v[{breg[b]}:{breg[b]+3}], v[{16+4*t}:{19+4*t}]")
        for q in list(sendq):
            if k >= 3 and S[k - 2] + 4 > 16 * q + 15 and k - 2 >= 0: send(q)
        if "two" in OPT:
            if 2 + p <= k <= 10 + p: dma(a, 9 + k - 2 - p, 5 + k - 2 - p)
        elif 1 + 2 * p <= k <= 9 + 2 * p: dma(a, k - 1 - 2 * p, 5 + k - 1 - 2 * p)
    st3(a, 3)
    for q in list(sendq): send(q)
    a(f"s_mul_i32 s64, s{S_WAVE}, 6144"); a(f"s_add_u32 s64, s64, {SB}"); a("v_add_u32 v3, s64, v2")
    a("s_waitcnt lgkmcnt(0)"); a("s_barrier")
    st3(a, 4)
    for j in range(3):
        a(f"ds_read_b128 v[{48+8*j}:{51+8*j}], v3 offset:{2048*j}"); a(f"ds_read_b128 v[{52+8*j}:{55+8*j}], v3 offset:{2048*j+1024}")
    a("s_waitcnt lgkmcnt(0)")
    A = 16 + 8 * p
    for j in range(3):
        for r in range(8): a(f"v_add_f32 v{A+r}, v{A+r}, v{48+8*j+r}")
    for i in range(2):
        t = 2 * p + i; o = 80 + 2 * i
        a(f"v_cvt_pk_bf16_f32 v{o}, v{A+4*i}, v{A+4*i+1}"); a(f"v_cvt_pk_bf16_f32 v{o+1}, v{A+4*i+2}, v{A+4*i+3}")
        a(f"buffer_store_dwordx2 v[{o}:{o+1}], v247, {W}, 0 offen offset:{512*t} sc1")
```

```python
from asm import *
from p8a import *

class VM:
    def __init__(self): self.q = []
    def issue(self, tag): self.q.append(tag)
    def wait_for(self, a, pred):
        last = max((i for i, t in enumerate(self.q) if pred(t)), default=-1)
        n = len(self.q) - 1 - last
        a(f"s_waitcnt vmcnt({min(n,63)})")

def tr_lane_decode(a):
    a("v_lshrrev_b32 v8, 4, v1"); a("v_and_b32 v9, 1, v8"); a("v_lshrrev_b32 v10, 1, v8")
    a("v_bfe_u32 v11, v1, 2, 2"); a("v_and_b32 v12, 3, v1")
    a("v_lshl_add_u32 v13, v10, 3, v11")

AW = 128
S_RB, S_RC = 51, 48
def rot_off(a, r, rho, stride, mod=28):
    if "norot" in OPT:
        a(f"s_mov_b32 s67, {stride*r}"); return
    a(f"s_add_u32 s67, s{rho}, {r}"); a(f"s_sub_u32 s65, s67, {mod}"); a(f"s_cmp_ge_u32 s67, {mod}"); a("s_cselect_b32 s67, s65, s67")
    a(f"s_mul_i32 s67, s67, {stride}")
NEARLY = 9
def bw_setup(a):
    a("s_and_b32 s64, s2, 7"); a("s_lshr_b32 s65, s2, 3")
    a("s_lshr_b32 s41, s64, 1"); a("s_lshl_b32 s41, s41, 2"); a("s_and_b32 s66, s65, 3"); a("s_add_u32 s41, s41, s66")
    a("s_and_b32 s40, s64, 1"); a("s_mul_i32 s40, s40, 7"); a("s_lshr_b32 s66, s65, 2"); a("s_add_u32 s40, s40, s66")
    a("s_and_b32 s64, s65, 3"); a("s_mul_i32 s64, s64, 3"); a("s_lshr_b32 s66, s65, 2"); a("s_lshl_b32 s66, s66, 1"); a("s_add_u32 s64, s64, s66")
    a("s_sub_u32 s66, s64, 14"); a("s_cmp_ge_u32 s64, 14"); a("s_cselect_b32 s64, s66, s64"); a("s_sub_u32 s66, s64, 14"); a("s_cmp_ge_u32 s64, 14"); a("s_cselect_b32 s64, s66, s64")
    a(f"s_lshl_b32 s{S_RB}, s64, 1")
    a(f"s_lshr_b32 s42, s{S_WAVE}, 2"); a(f"s_lshl_b32 s43, s{S_WAVE}, 10")
    a("s_cmp_eq_u32 s42, 0")
    a("s_cselect_b32 s52, s20, s22"); a("s_cselect_b32 s53, s21, s23")
    a(f"s_mov_b32 s54, {D*F*2}"); a("s_mov_b32 s55, 0x20000")
    a("v_lshrrev_b32 v2, 4, v1"); a("v_and_b32 v3, 15, v1")
    a("v_lshlrev_b32 v250, 1, v2"); a("v_add_u32 v250, s42, v250"); a("v_lshlrev_b32 v250, 1, v250"); a("v_xor_b32 v250, v250, v3"); a("v_lshlrev_b32 v250, 4, v250")
    a(f"s_and_b32 s64, s{S_WAVE}, 3"); a("s_lshl_b32 s64, s64, 2"); a("v_add_u32 v2, s64, v2")
    a("s_movk_i32 s65, 3584"); a("v_mul_lo_u32 v2, v2, s65"); a("v_add_u32 v250, v250, v2")
    a("s_lshl_b32 s65, s40, 8"); a("v_add_u32 v250, s65, v250")
def bw_dma(a, ks, slot, vreg=250):
    a(f"s_add_u32 m0, s43, {8192*slot}"); rot_off(a, ks, S_RB, 57344)
    a(f"buffer_load_dwordx4 v{vreg}, s[52:55], s67 offen lds")
def bw_tr_setup(a):
    tr_lane_decode(a)
    a("v_and_b32 v14, 1, v12"); a(f"s_lshl_b32 s64, s{S_WAVE}, 1"); a("v_add_u32 v14, s64, v14")
    a("v_lshlrev_b32 v15, 1, v11"); a("v_add_u32 v15, v15, v9"); a("v_lshlrev_b32 v15, 1, v15")
    a("v_xor_b32 v14, v14, v15"); a("v_lshlrev_b32 v14, 4, v14")
    a("v_lshrrev_b32 v15, 1, v12"); a("v_lshl_add_u32 v14, v15, 3, v14")
    a("v_lshl_add_u32 v14, v13, 8, v14"); a("v_lshl_add_u32 v14, v9, 12, v14")
    a("s_lshl_b32 s64, s42, 10"); a("v_add_u32 v240, s64, v14"); a("s_xor_b32 s64, s64, 1024"); a("v_add_u32 v241, s64, v14")
    a("v_add_u32 v242, 0x10000, v240"); a("v_add_u32 v243, 0x10000, v241")
def bw_tr1(a):
    bw_tr_setup(a)
    for ks in range(9):
        off = 8192 * (5 + ks); r = AW + 4 * ks; va = 240 + 2 * (off >> 16); o = off & 0xffff
        a(f"ds_read_b64_tr_b16 v[{r}:{r+1}], v{va} offset:{o}"); a(f"ds_read_b64_tr_b16 v[{r+2}:{r+3}], v{va+1} offset:{o}")
    a("s_waitcnt lgkmcnt(0)")

def cw_setup(a):
    a("s_and_b32 s64, s2, 7"); a("s_mul_i32 s64, s64, 28"); a("s_lshr_b32 s65, s2, 3"); a("s_add_u32 s64, s64, s65")
    a("s_mul_i32 s79, s64, 9363"); a("s_lshr_b32 s79, s79, 16"); a("s_mul_i32 s65, s79, 7"); a("s_sub_u32 s78, s64, s65")
    a(f"s_and_b32 s76, s{S_WAVE}, 3"); a(f"s_lshr_b32 s77, s{S_WAVE}, 2"); a("s_lshr_b32 s50, s76, 1")
    srd(a, 44, 24, F * D * 2)
    a("s_and_b32 s64, s79, 3"); a("s_mul_i32 s64, s64, 7"); a("s_lshl_b32 s65, s78, 2"); a("s_add_u32 s64, s64, s65")
    a("s_sub_u32 s65, s64, 28"); a("s_cmp_ge_u32 s64, 28"); a(f"s_cselect_b32 s{S_RC}, s65, s64")
    a("v_lshrrev_b32 v3, 3, v1"); a("v_and_b32 v4, 7, v1")
    a("v_bfe_u32 v20, v3, 1, 1"); a("v_lshlrev_b32 v20, 2, v20"); a("v_xor_b32 v20, v20, v4"); a("v_lshlrev_b32 v20, 4, v20")
    a("s_mul_i32 s64, s76, 448"); a("s_lshl_b32 s65, s77, 3"); a("s_add_u32 s64, s64, s65"); a("v_add_u32 v3, s64, v3")
    a("s_movk_i32 s65, 896"); a("v_mul_lo_u32 v3, v3, s65"); a("v_add_u32 v20, v20, v3")
    a("s_lshl_b32 s65, s78, 7"); a("v_add_u32 v20, s65, v20")
    a("s_lshl_b32 s49, s76, 11"); a("s_lshl_b32 s64, s77, 10"); a("s_add_u32 s49, s49, s64")
    a("v_xor_b32 v14, s50, v9"); a("v_lshlrev_b32 v14, 1, v14")
    a("v_and_b32 v15, 1, v12"); a("v_add_u32 v14, v14, v15"); a("s_lshl_b32 s64, s77, 2"); a("v_add_u32 v14, s64, v14")
    a("v_bfe_u32 v15, v11, 1, 1"); a("v_lshlrev_b32 v15, 2, v15"); a("v_xor_b32 v14, v14, v15"); a("v_lshlrev_b32 v14, 4, v14")
    a("v_lshrrev_b32 v15, 1, v12"); a("v_lshl_add_u32 v14, v15, 3, v14"); a("v_lshl_add_u32 v14, v13, 7, v14")
    a("s_lshl_b32 s64, s76, 11"); a("v_add_u32 v14, s64, v14"); a("v_add_u32 v15, 0x10000, v14"); a("v_add_u32 v18, 0x20000, v14")
def cw_dma(a, ksl, unit):
    a(f"s_add_u32 m0, s49, {8192*unit}"); rot_off(a, ksl, S_RC, 14336)
    a("buffer_load_dwordx4 v20, s[44:47], s67 offen lds")
def cw_tr(ksl, unit):
    r = AW + 4 * ksl; off = 8192 * unit; reg = [14, 15, 18][off >> 16]; off &= 0xffff
    return [f"ds_read_b64_tr_b16 v[{r}:{r+1}], v{reg} offset:{off}", f"ds_read_b64_tr_b16 v[{r+2}:{r+3}], v{reg} offset:{off+512}"]

class LG:
    def __init__(self): self.q = []
    def issue(self, tag): self.q.append(tag)
    def wait_for(self, a, pred):
        last = max((i for i, t in enumerate(self.q) if pred(t)), default=-1)
        a(f"s_waitcnt lgkmcnt({min(len(self.q) - 1 - last, 15)})")

def phaseB(a):
    tr_lane_decode(a)
    a("v_and_b32 v14, 1, v12"); a(f"s_lshl_b32 s64, s{S_WAVE}, 1"); a("v_add_u32 v14, s64, v14")
    a("v_lshlrev_b32 v15, 1, v11"); a("v_add_u32 v15, v15, v9"); a("v_lshlrev_b32 v15, 1, v15")
    a("v_xor_b32 v14, v14, v15"); a("v_lshlrev_b32 v14, 4, v14")
    a("v_lshrrev_b32 v15, 1, v12"); a("v_lshl_add_u32 v14, v15, 3, v14")
    a("v_lshl_add_u32 v14, v13, 8, v14"); a("v_lshl_add_u32 v14, v9, 12, v14")
    a("s_lshl_b32 s64, s42, 10"); a("v_add_u32 v16, s64, v14"); a("s_xor_b32 s64, s64, 1024"); a("v_add_u32 v17, s64, v14")
    a("v_add_u32 v18, 0x10000, v16"); a("v_add_u32 v19, 0x10000, v17")
    def tr_w(ks, slot):
        off = 8192 * slot; r = AW + 4 * ks
        va = 16 + 2 * (off >> 16); o = off & 0xffff
        a(f"ds_read_b64_tr_b16 v[{r}:{r+1}], v{va} offset:{o}"); a(f"ds_read_b64_tr_b16 v[{r+2}:{r+3}], v{va+1} offset:{o}")
    TWO = "two" in OPT
    if TWO:
        for ks in range(9, 18): tr_w(ks, ks - 4)
        a("s_waitcnt lgkmcnt(0)"); a("s_barrier")
        for ks in range(18, 28): bw_dma(a, ks, ks - 18)
    else:
        for ks in range(9): tr_w(ks, 5 + ks)
        a("s_waitcnt lgkmcnt(0)"); a("s_barrier")
        for ks in range(9, 18): bw_dma(a, ks, ks - 9)
    stamp(a, 1)
    for jj in range(4):
        a(f"s_add_u32 s64, s{S_WAVE}, {jj}"); a("s_and_b32 s64, s64, 3")
        a(f"v_xor_b32 v{22+jj}, s64, v11"); a(f"v_lshlrev_b32 v{22+jj}, 6, v{22+jj}")
        a(f"v_lshl_add_u32 v{22+jj}, v13, 8, v{22+jj}")
        a(f"v_lshl_add_u32 v{22+jj}, v9, 5, v{22+jj}"); a(f"v_lshl_add_u32 v{22+jj}, v12, 3, v{22+jj}")
        a("s_lshl_b32 s64, s42, 10"); a(f"v_add_u32 v{22+jj}, s64, v{22+jj}")
        a("s_lshl_b32 s64, s42, 11"); a("s_sub_u32 s64, 1024, s64"); a(f"v_add_u32 v{26+jj}, s64, v{22+jj}")
    for r in range(64): a(f"v_mov_b32 v{64+r}, 0")
    a("v_lshrrev_b32 v3, 4, v1"); a("v_and_b32 v4, 15, v1")
    a("v_lshlrev_b32 v21, 2, v3"); a("v_xor_b32 v21, v21, v4"); a("v_lshlrev_b32 v21, 4, v21")
    a(f"v_mul_u32_u24 v6, {HTS}, v3"); a("v_add_u32 v21, v21, v6")
    a(f"s_mul_i32 s64, s{S_WAVE}, {4*HTS}"); a("s_lshl_b32 s65, s41, 8"); a("s_add_u32 s64, s64, s65"); a(f"s_add_u32 s64, s64, {WS_HT}")
    a("v_add_u32 v21, s64, v21")
    a("s_waitcnt vmcnt(0)"); a("s_barrier")
    a(f"s_mov_b32 s64, {WS_FLAG2}")
    poll_issue(a, "s2", 64, 256, 4, 32)
    if TWO:
        for ks in range(18, 28): tr_w(ks, ks - 18)
        a("s_waitcnt lgkmcnt(0)"); cw_setup(a)
    else:
        for ks in range(9, 18): tr_w(ks, ks - 9)
        a("v_mov_b32 v5, v16"); a("v_mov_b32 v6, v17")
        a("s_waitcnt lgkmcnt(0)"); cw_setup(a)
        a("v_mov_b32 v16, v5"); a("v_mov_b32 v17, v6")
        a("v_add_u32 v19, 0x24000, v17"); a("v_add_u32 v13, 0x24000, v16")
        a("v_add_u32 v16, 0x14000, v16"); a("v_add_u32 v17, 0x14000, v17")
        a("v_mov_b32 v12, v250")

    stamp(a, 2)
    a("s_waitcnt vmcnt(0)")
    poll_check(a, "s2", 4, 32)
    stamp(a, 3)
    vm = VM(); lg = LG()
    def dma_h(g):
        a(f"s_add_u32 m0, s43, {8192*g}"); rot_off(a, 2 * g, S_RB, 16 * HTS)
        a(f"buffer_load_dwordx4 v21, {W}, s67 offen lds"); vm.issue(("H", g))
    HPRE = 4
    for g in range(HPRE): dma_h(g)
    FR = [32, 48, 240]
    hi = [False]
    def reads(ks):
        fb = FR[ks % 3]
        pre = []
        if ks >= 16 and not hi[0]:
            hi[0] = True
            pre = [f"v_add_u32 v{22+jj}, 0x10000, v{22+jj}" for jj in range(8)]
        ho = 4096 * (ks - 16 if ks >= 16 else ks)
        return pre, [f"ds_read_b64_tr_b16 v[{fb+4*jj+2*h}:{fb+4*jj+2*h+1}], v{22+4*h+jj} offset:{ho}" for jj in range(4) for h in range(2)]
    NK = 28
    bars = {2: 7, 6: 15, 10: 19, 14: 19, 18: 23, 22: 27} if "two" not in OPT else {2: 7, 6: 15, 10: 19, 14: 23, 18: 27, 22: 27}
    blist = sorted(bars)
    vm.wait_for(a, lambda t: t[0] == "H" and t[1] <= 1); a("s_barrier")
    stamp(a, 4); cstamp(a, 9)
    for ks in (0, 1):
        pre, rd = reads(ks)
        for x in pre + rd: a(x); lg.issue(("F", ks))
    W2N = next((int(o[3:]) for o in OPT if o.startswith("w2n")), 16)
    free_from = {u: min([b for b in blist if b >= 2 * u + 1], default=99) for u in range(14)}
    plan_dma = {k: [] for k in range(NK)}; plan_tr = {k: [] for k in range(NK)}; post_tr = []
    if TWO:
        hq = [(0, g) for g in range(HPRE, 14)]; lq = []
        for u in range(14, 20): free_from[u] = 0
    else:
        hq = [(0 if g < 10 else 14, g) for g in range(HPRE, 14)]; lq = list(range(18, 28))
        for u in range(14, 20): free_from[u] = 14
        for u in range(10, 14): free_from[u] = 99
    late_tr = {11: list(range(18, 23)), 12: list(range(23, 28))} if not TWO else {}
    nxt = 0
    for k in range(NK):
        cap = 3 if ((hq and hq[0][0] <= k) or lq) and k < 6 else 2
        while len(plan_dma[k]) < cap and hq and hq[0][0] <= k: plan_dma[k].append(("H", hq.pop(0)[1]))
        while len(plan_dma[k]) < cap and lq: plan_dma[k].append(("L", lq.pop(0)))
        while len(plan_dma[k]) < cap and nxt < W2N:
            cand = [u for u in free_from if free_from[u] <= k]
            if not cand: break
            u = min(cand)
            free_from[u] = 99
            plan_dma[k].append(("W2", nxt, u))
            lb = min([b for b in blist if b >= k + 3], default=None)
            if "notrin" not in OPT and lb is not None and max(lb, nxt + 1) <= NK - 3:
                t = max(lb, nxt + 1)
                while len(plan_tr[t]) >= 3 or t in late_tr: t += 1
                if t <= NK - 3:
                    plan_tr[t].append((nxt, u)); free_from[u] = min([b for b in blist if b >= t + 3], default=99)
                else: post_tr.append((nxt, u))
            else:
                post_tr.append((nxt, u))
            nxt += 1
    assert not hq and not lq
    rest = list(range(nxt, 28))
    busy = {u for _, u in post_tr}
    NPRE = next((int(o[3:]) for o in OPT if o.startswith("pre")), 0)
    fr = [u for u in range(20) if u not in busy]
    assert NPRE <= len(fr)
    rest_units = fr[:NPRE] + [u for u in range(20) if u not in fr[:NPRE]][:len(rest) - NPRE] if len(rest) > NPRE else fr[:len(rest)]
    assert len(rest_units) == len(rest)
    if "verbose" in OPT: print("dma", plan_dma, "\ntr", plan_tr, "\npost", post_tr, "rest", rest, rest_units)
    issued_at = {}
    for ks in range(NK):
        lg.wait_for(a, lambda t: t == ("F", ks) or (ks == 13 and t[0] == "T"))
        rd = []; pre = []
        if ks in bars:
            vm.wait_for(a, lambda t: (t[0] == "H" and t[1] <= bars[ks] // 2) or (t[0] == "W2" and issued_at[t[1]] <= ks - 3) or (t[0] == "L" and ks >= 10))
            a("s_barrier")
        if ks + 2 < NK: pre, rd = reads(ks + 2)
        for x in pre: a(x)
        extra = [x for (k2, u) in plan_tr[ks] for x in cw_tr(k2, u)]
        for kk in late_tr.get(ks, []):
            r = AW + 4 * kk; sl = kk - 18
            (va, vb), off = ((16, 17), 8192 * sl) if sl < 8 else ((13, 19), 8192 * (sl - 8))
            extra += [f"ds_read_b64_tr_b16 v[{r}:{r+1}], v{va} offset:{off}", f"ds_read_b64_tr_b16 v[{r+2}:{r+3}], v{vb} offset:{off}"]
        dmas = list(plan_dma[ks])
        fb = FR[ks % 3]; ar = AW + 4 * ks
        for jj in range(4):
            acc = 64 + 16 * jj
            a(f"v_mfma_f32_32x32x16_bf16 v[{acc}:{acc+15}], v[{ar}:{ar+3}], v[{fb+4*jj}:{fb+4*jj+3}], v[{acc}:{acc+15}]")
            for x in rd[2*jj:2*jj+2]: a(x); lg.issue(("F", ks + 2))
            for x in extra[3*jj:3*jj+3]: a(x); lg.issue(("T", ks))
            if jj >= 1 and dmas:
                d = dmas.pop(0)
                if d[0] == "H": dma_h(d[1])
                elif d[0] == "L":
                    bw_dma(a, d[1], d[1] - 8, 12); vm.issue(("L", d[1]))
                else:
                    cw_dma(a, d[1], d[2]); vm.issue(("W2", d[1])); issued_at[d[1]] = ks
            if jj == 0 and ks == 19:
                a("s_lshl_b32 s64, s41, 7"); a(f"s_add_u32 s64, s64, {WS_FLAG3}"); a("v_and_b32 v30, 1, v1"); a("v_lshl_add_u32 v30, v30, 6, s64")
                a(f"buffer_load_dword v31, v30, {W}, 0 offen sc1"); vm.issue(("F", 0))
            if jj == 0 and ks == 23:
                vm.wait_for(a, lambda t: t[0] == "F")
                a("s_mov_b32 s66, 0")
                a.label("L_f3_chk")
                a(f"v_cmp_ne_u32 vcc, s{S_NONCE}, v31"); a("s_cbranch_vccz L_f3_ok")
                a("s_add_u32 s66, s66, 1"); a(f"s_cmp_gt_u32 s66, {SPIN_MAX}"); a("s_cbranch_scc1 L_f3_ok")
                a(f"buffer_load_dword v31, v30, {W}, 0 offen sc1"); a("s_waitcnt vmcnt(0)"); a("s_branch L_f3_chk")
                a.label("L_f3_ok")
                a("v_and_b32 v30, 31, v1"); a("v_lshlrev_b32 v30, 3, v30")
                for j2 in range(4):
                    a(f"s_add_u32 s64, s{S_WAVE}, {j2}"); a("s_and_b32 s64, s64, 3"); a("s_lshl_b32 s65, s41, 2"); a("s_add_u32 s64, s64, s65")
                    a("s_lshl_b32 s64, s64, 8"); a(f"s_add_u32 s64, s64, {WS_G2}")
                    a(f"buffer_load_dwordx2 v[{4+2*j2}:{5+2*j2}], v30, {W}, s64 offen"); vm.issue(("G", j2))
            if jj == 2 and ks == 26:
                a("v_lshrrev_b32 v2, 5, v1"); a("v_lshlrev_b32 v2, 5, v2")
                a("s_lshl_b32 s64, s40, 9"); a(f"s_lshl_b32 s65, s{S_WAVE}, 6"); a("s_add_u32 s64, s64, s65"); a(f"s_add_u32 s64, s64, {WS_CS}")
                a("v_add_u32 v2, s64, v2"); a("v_add_u32 v3, 7168, v2")
                for k in range(2):
                    a(f"buffer_load_dwordx4 v[{48+4*k}:{51+4*k}], v2, {W}, 0 offen offset:{16*k}"); vm.issue(("C", 0))
                    a(f"buffer_load_dwordx4 v[{56+4*k}:{59+4*k}], v3, {W}, 0 offen offset:{16*k}"); vm.issue(("C", 0))
        assert not dmas
    stamp(a, 5); cstamp(a, 10)
    vm.wait_for(a, lambda t: t[0] in ("G", "C"))
    for jj in range(4):
        b = 32 + 4 * jj
        a(f"v_mov_b32 v{b}, v{4+2*jj}"); a(f"v_mul_f32 v{b+2}, {NLOG2E:#x}, v{5+2*jj}"); a(f"v_mul_f32 v{b+3}, v{5+2*jj}, v{5+2*jj}")
    stamp(a, 6)
    a("v_lshlrev_b32 v6, 4, v1"); a(f"v_add_u32 v6, {WS_HF}, v6")
    for jj in range(4):
        a(f"s_add_u32 s64, s{S_WAVE}, {jj}"); a("s_and_b32 s64, s64, 3")
        a("s_lshl_b32 s65, s41, 2"); a("s_add_u32 s64, s64, s65"); a("s_mul_i32 s64, s64, 112")
        a("s_lshl_b32 s65, s40, 3"); a("s_add_u32 s64, s64, s65"); a(f"s_add_u32 s64, s64, s{S_WAVE}")
        a(f"s_lshl_b32 s{72+jj}, s64, 10")
    for jj in range(4):
        b = 32 + 4 * jj; acc = 64 + 16 * jj; t = 240 + 8 * (jj % 2); o = 24 + 4 * (jj % 2)
        for e in range(8):
            a(f"v_fma_f32 v{acc+e}, -v{b}, v{48+e}, v{acc+e}"); a(f"v_fma_f32 v{acc+8+e}, -v{b}, v{56+e}, v{acc+8+e}")
        for e in range(8):
            a(f"v_mul_f32 v{t+e}, v{acc+e}, v{b+2}"); a(f"v_mul_f32 v{acc+e}, v{acc+e}, v{acc+8+e}")
            a(f"v_exp_f32 v{t+e}, v{t+e}")
        for e in range(8):
            a(f"v_mul_f32 v{acc+e}, v{acc+e}, v{b+3}"); a(f"v_add_f32 v{t+e}, 1.0, v{t+e}"); a(f"v_rcp_f32 v{t+e}, v{t+e}")
        for k in range(4):
            a(f"v_mul_f32 v{acc+2*k}, v{acc+2*k}, v{t+2*k}"); a(f"v_mul_f32 v{acc+2*k+1}, v{acc+2*k+1}, v{t+2*k+1}")
            a(f"v_cvt_pk_bf16_f32 v{o+k}, v{acc+2*k}, v{acc+2*k+1}")
        a(f"buffer_store_dwordx4 v[{o}:{o+3}], v6, {W}, s{72+jj} offen sc1"); vm.issue(("S", jj))
    vm.wait_for(a, lambda t: t[0] == "W2")
    a("s_barrier")
    for (k2, u) in post_tr:
        for x in cw_tr(k2, u): a(x)
    for k2, u in list(zip(rest, rest_units))[:NPRE]:
        cw_dma(a, k2, u); vm.issue(("W2", k2))
    vm.wait_for(a, lambda t: t[0] == "S")
    a("s_waitcnt lgkmcnt(0)")
    stamp(a, 7)
    a("s_barrier")
    a("s_mul_i32 s64, s41, 14"); a("s_add_u32 s64, s64, s40"); a("s_lshl_b32 s64, s64, 6"); a(f"s_add_u32 s64, s64, {WS_FLAG4}")
    publish_flag(a, 64)
    for k2, u in list(zip(rest, rest_units))[NPRE:]:
        cw_dma(a, k2, u)
    phaseC_setup(a)
    a("s_lshr_b32 s64, s79, 1"); a("s_mul_i32 s64, s64, 896"); a(f"s_add_u32 s64, s64, {WS_FLAG4}")
    if rest:
        a("s_waitcnt vmcnt(0)"); a("s_barrier")
        poll_issue(a, "s4", 64, 14, 1, 32)
        for k2, u in zip(rest, rest_units):
            for x in cw_tr(k2, u): a(x)
        a("s_waitcnt lgkmcnt(0)")
    else:
        poll_issue(a, "s4", 64, 14, 1, 32)
    stamp(a, 8)

RED_C = 114688
def phaseC_setup(a):
    srd(a, 52, 26, L * D * 2)
    a("s_mul_i32 s40, s76, 40960"); a("s_lshl_b32 s64, s77, 10"); a("s_add_u32 s41, s40, s64")
    a("v_and_b32 v23, 31, v1"); a("v_lshrrev_b32 v24, 5, v1")
    a("s_lshl_b32 s64, s78, 6"); a("s_lshl_b32 s65, s77, 5"); a("s_add_u32 s64, s64, s65"); a("s_lshl_b32 s65, s50, 4"); a("s_add_u32 s34, s64, s65")
    a("s_lshl_b32 s64, s79, 6"); a("s_and_b32 s65, s76, 1"); a("s_lshl_b32 s65, s65, 5"); a("s_add_u32 s35, s64, s65")
    a("v_lshlrev_b32 v25, 3, v24"); a("v_add_u32 v25, s34, v25"); a("v_add_u32 v26, s35, v23")
    a(f"v_mul_u32_u24 v27, {HTS}, v25"); a("v_lshl_add_u32 v27, v26, 1, v27"); a(f"v_add_u32 v27, {WS_HT}, v27")
    for e in range(8):
        a(f"s_mov_b32 s67, {e*HTS}"); a(f"buffer_load_ushort v{240+e}, v27, {W}, s67 offen")
    a("s_movk_i32 s64, 896"); a("v_mul_lo_u32 v28, v26, s64"); a("v_lshl_add_u32 v28, v25, 1, v28")
    a("v_lshlrev_b32 v5, 4, v1")
    a("s_lshl_b32 s64, s79, 1"); a("s_add_u32 s64, s64, s77"); a("s_mul_i32 s64, s64, 112"); a("s_mul_i32 s65, s76, 28"); a("s_add_u32 s64, s64, s65")
    a("s_lshl_b32 s64, s64, 10"); a(f"s_add_u32 s64, s64, {WS_HF}"); a("v_add_u32 v252, s64, v5")
    a("v_add_u32 v6, s40, v5")
    a("s_and_b32 s64, s76, 1"); a("s_lshl_b32 s64, s64, 10"); a("v_add_u32 v16, s64, v6"); a("s_xor_b32 s64, s64, 1024"); a("v_add_u32 v17, s64, v6")
    for r in range(32): a(f"v_mov_b32 v{64+r}, 0")

def phaseC(a):
    stamp(a, 1)
    stamp(a, 2)
    a("s_waitcnt vmcnt(0)")
    poll_check(a, "s4", 1, 32)
    stamp(a, 3)
    vm = VM()
    NS = 20
    def dma_b(k):
        a(f"s_add_u32 m0, s41, {2048*(k % NS)}"); rot_off(a, k, S_RC, 1024)
        a(f"buffer_load_dwordx4 v252, {W}, s67 offen lds"); vm.issue(("B", k))
    PRE = 8
    for k in range(PRE): dma_b(k)
    NBUF = 4
    FR = [32, 40, 48, 56]
    def reads(k):
        fb = FR[k % NBUF]
        return [f"ds_read_b128 v[{fb+4*ns}:{fb+4*ns+3}], v{16+ns} offset:{2048*(k % NS)}" for ns in range(2)]
    NK = 28; G = 4; PD = 3
    def need(k_hi):
        vm.wait_for(a, lambda t: t[1] <= k_hi); a("s_barrier")
    need(3)
    stamp(a, 4)
    for k in range(PD):
        for x in reads(k): a(x)
    ready = 3; nxt = PRE; freed = -1
    for k in range(NK):
        a(f"s_waitcnt lgkmcnt({2*min(PD-1, NK-1-k)})")
        rd = []
        if k + PD < NK:
            if k + PD > ready:
                hi = min(k + PD + G - 1, NK - 1); need(hi); ready = hi; freed = k
            rd = reads(k + PD)
        fb = FR[k % NBUF]; ar = AW + 4 * k
        for ns in range(2):
            acc = 64 + 16 * ns
            a(f"v_mfma_f32_32x32x16_bf16 v[{acc}:{acc+15}], v[{ar}:{ar+3}], v[{fb+4*ns}:{fb+4*ns+3}], v[{acc}:{acc+15}]")
            if rd: a(rd[ns])
        for _ in range(2):
            if nxt < NK and (nxt < NS or nxt - NS <= freed):
                dma_b(nxt); nxt += 1
    assert nxt == NK
    stamp(a, 5)
    a("v_lshlrev_b32 v8, 4, v1")
    a("s_barrier")
    for x in range(1, 4):
        ns, hh = x & 1, x >> 1
        a(f"s_xor_b32 s64, s{S_WAVE}, {x}"); a("s_mul_i32 s64, s64, 6144"); a(f"s_add_u32 s64, s64, {RED_C + (x-1)*2048}")
        a("v_add_u32 v22, s64, v8")
        src = 64 + 16 * ns + 8 * hh
        a(f"ds_write_b128 v22, v[{src}:{src+3}]"); a(f"ds_write_b128 v22, v[{src+4}:{src+7}] offset:1024")
    a(f"s_mul_i32 s64, s{S_WAVE}, 6144"); a(f"s_add_u32 s64, s64, {RED_C}"); a("v_add_u32 v22, s64, v8")
    a("s_waitcnt lgkmcnt(0)"); a("s_barrier")
    for x in range(3):
        a(f"ds_read_b128 v[{96+8*x}:{99+8*x}], v22 offset:{2048*x}"); a(f"ds_read_b128 v[{100+8*x}:{103+8*x}], v22 offset:{2048*x+1024}")
    a("s_waitcnt lgkmcnt(0)")
    for x in range(3):
        for r in range(8): a(f"v_add_f32 v{64+r}, v{64+r}, v{96+8*x+r}")
    stamp(a, 6)
    for k in range(4):
        r = 2 * k
        a(f"v_cvt_pk_bf16_f32 v30, v{64+r}, v{65+r}")
        a("v_lshlrev_b32 v31, 16, v30"); a("v_and_b32 v30, 0xffff0000, v30")
        a(f"v_lshlrev_b32 v32, 16, v{240+r}"); a(f"v_lshlrev_b32 v33, 16, v{241+r}")
        a("v_add_f32 v31, v31, v32"); a("v_add_f32 v30, v30, v33")
        a(f"v_cvt_pk_bf16_f32 v{120+k}, v31, v30")
    a("buffer_store_dwordx4 v[120:123], v28, s[52:55], 0 offen")
    a("s_waitcnt vmcnt(0)")
    stamp(a, 7)
```

```python
import sys
from asm import *
from p8a import *
from p8bc import *
NAME = "sequential_preLN__ssm_conv_s4d__glu_gated_swiglu__prompt_kernel"
STAMPS["on"] = len(sys.argv) > 2 and sys.argv[2] in ("t", "c")
STAMPS["clk"] = len(sys.argv) > 2 and sys.argv[2] == "c"
import p8a
p8a.OPT.update(sys.argv[3:])
import asm
def flush(kidx, n):
    if not STAMPS["on"]: return
    a(f"s_add_u32 s96, s30, {WS_STAMP}"); a("s_addc_u32 s97, s31, 0")
    a("s_mov_b32 s92, s96\ns_mov_b32 s93, s97\ns_mov_b32 s94, 0x100000\ns_mov_b32 s95, 0x20000")
    a("s_mov_b64 exec, 1")
    a("s_lshl_b32 s96, s2, 3"); a(f"s_add_u32 s96, s96, s{S_WAVE}")
    a(f"s_lshl_b32 s96, s96, 6"); a(f"s_add_u32 s96, s96, {kidx*131072}")
    for i in range(n):
        a(f"v_mov_b32 v2, s{80+i}"); a("v_mov_b32 v3, s96")
        a(f"buffer_store_dword v2, v3, s[92:95], 0 offen offset:{4*i}")
    a("s_mov_b64 exec, -1")
a = Asm()
a(f".globl {NAME}\n.p2align 8\n.type {NAME},@function"); a.label(NAME)
a.label("KERNEL_START")
a("s_cmp_ge_u32 s2, 256"); a("s_cbranch_scc1 L_end")
stamp(a, 0)
prologue(a)
a("s_cmp_ge_u32 s2, 224"); a("s_cbranch_scc1 L_helper")
phaseA(a, {"setup": bw_setup, "dma": bw_dma, "tr1": bw_tr1}); flush(0, 12)
stamp(a, 0)
phaseB(a); flush(1, 11)
stamp(a, 0)
phaseC(a); flush(2, 8)
if "noendwait" not in p8a.OPT: a("s_waitcnt vmcnt(0)")
a("s_endpgm")
a.label("L_helper")
helper(a); flush(3, 5)
a("s_waitcnt vmcnt(0)")
a.label("L_end")
a("s_endpgm")
a.label("KERNEL_END")
body = a.finish()
hdr = open("sequential_preLN__ssm_conv_s4d__glu_gated_swiglu__prompt.s.ref").read().split("\n")
comments = [l for l in hdr if l.startswith(";") and "@launch" not in l and "Override" not in l and "grid=ceil" not in l]
out = "\n".join(comments) + "\n"
out += f"; @launch grid=(256,1,1) block=(512,1,1) lds={LDS_TOTAL}\n"
DESCR = """
"""
out += DESCR.lstrip("\n")
out += '.amdgcn_target "amdgcn-amd-amdhsa--gfx950"\n.text\n' + body
out += '.section .rodata,"a"\n' + kd(NAME, 256, 102, 256)
open(sys.argv[1], "w").write(out)
print("nops inserted:", a.nops, "bytes:", len(out))
```

```python
from asm import *
from pA import (L, D, N, F, LOG2E, NLOG2E, INV2PI, WS_GRAN, WS_CS, WS_FLAG1, WS_FLAG3, WS_G2, WS_XT, WS_FLAG2, WS_FLAG4, WS_HT, HTS, WS_HF, WS_SIZE, SRD_WS, SRD_DBG, SPIN_MAX,
                OPS, OP_CH, KC_CH, KC_CP, SB, TB0, TB_CH, UA0, UA_CH, RA0, RA_CH, LDS_TOTAL, cmul1, cmul2, reduce8, stats_pack)
S_WAVE, S_NONCE = 32, 33
W = f"s[{SRD_WS}:{SRD_WS+3}]"
DBG = f"s[{SRD_DBG}:{SRD_DBG+3}]"
OPT = set()
RED0 = RA0 + 2 * RA_CH

def prologue(a):
    if "pf0" in OPT: code_prefetch(a)
    a("s_load_dwordx16 s[4:19], s[0:1], 0")
    a("s_load_dwordx8 s[20:27], s[0:1], 64")
    a("s_load_dwordx4 s[28:31], s[0:1], 96")
    a("v_and_b32 v1, 63, v0"); a("v_lshrrev_b32 v2, 6, v0"); a("s_nop 0")
    a(f"v_readfirstlane_b32 s{S_WAVE}, v2")
    a("s_waitcnt lgkmcnt(0)")
    srd(a, SRD_WS, 30, WS_SIZE); srd(a, SRD_DBG, 28, 256)
    a(f"s_or_b32 s64, s2, s{S_WAVE}"); a("s_cmp_eq_u32 s64, 0"); a("s_cbranch_scc0 L_nopub")
    a("s_memrealtime s[64:65]"); a("s_waitcnt lgkmcnt(0)"); a("s_or_b32 s64, s64, 1")
    a("v_mov_b32 v3, s64"); a("v_mov_b32 v4, 0")
    a(f"buffer_store_dword v3, v4, {DBG}, 0 offen sc1")
    a.label("L_nopub")

def get_nonce(a, tag, vt):
    a(f"v_mov_b32 v{vt+1}, 0"); a("s_mov_b32 s66, 0")
    a.label(f"L_nonce_{tag}")
    a(f"buffer_load_dword v{vt}, v{vt+1}, {DBG}, 0 offen sc1")
    a("s_waitcnt vmcnt(0)")
    a(f"v_readfirstlane_b32 s{S_NONCE}, v{vt}")
    a("s_add_u32 s66, s66, 1"); a(f"s_cmp_gt_u32 s66, {SPIN_MAX}"); a(f"s_cbranch_scc1 L_nonce_{tag}_ok")
    a(f"s_cmp_eq_u32 s{S_NONCE}, 0"); a(f"s_cbranch_scc1 L_nonce_{tag}")
    a.label(f"L_nonce_{tag}_ok")

def publish_flag(a, off_sgpr, vt=2):
    lab = f"L_pub_{len(a.lines)}"
    a(f"s_cmp_eq_u32 s{S_WAVE}, 0"); a(f"s_cbranch_scc0 {lab}")
    a(f"v_mov_b32 v{vt}, s{S_NONCE}"); a(f"v_mov_b32 v{vt+1}, s{off_sgpr}")
    a("s_mov_b64 exec, 1")
    a(f"buffer_store_dword v{vt}, v{vt+1}, {W}, 0 offen sc1")
    a("s_mov_b64 exec, -1")
    a.label(lab)

def wait_flags(a, tag, base_sgpr, count, per_lane, vt=32):
    a(f"s_cmp_eq_u32 s{S_WAVE}, 0"); a(f"s_cbranch_scc0 L_wf_{tag}_bar")
    a(f"v_lshlrev_b32 v{vt}, 6, v1"); a(f"v_add_u32 v{vt}, s{base_sgpr}, v{vt}")
    a("s_mov_b32 s66, 0")
    if count < 64:
        a(f"v_cmp_gt_u32 vcc, {count}, v1"); a("s_and_saveexec_b64 s[68:69], vcc")
    a.label(f"L_wf_{tag}")
    for i in range(per_lane):
        if i == 0: a(f"buffer_load_dword v{vt+1}, v{vt}, {W}, 0 offen sc1")
        else:
            a(f"s_mov_b32 s67, {4096*i}"); a(f"buffer_load_dword v{vt+1+i}, v{vt}, {W}, s67 offen sc1")
    a("s_waitcnt vmcnt(0)")
    a(f"v_xor_b32 v{vt+1}, s{S_NONCE}, v{vt+1}")
    for i in range(1, per_lane):
        a(f"v_xor_b32 v{vt+1+i}, s{S_NONCE}, v{vt+1+i}"); a(f"v_or_b32 v{vt+1}, v{vt+1}, v{vt+1+i}")
    a(f"v_cmp_ne_u32 vcc, 0, v{vt+1}")
    a("s_add_u32 s66, s66, 1"); a(f"s_cmp_gt_u32 s66, {SPIN_MAX}"); a(f"s_cbranch_scc1 L_wf_{tag}_ok")
    a(f"s_cbranch_vccnz L_wf_{tag}")
    a.label(f"L_wf_{tag}_ok")
    a("s_mov_b64 exec, -1")
    a.label(f"L_wf_{tag}_bar")
    a("s_barrier")


X8S = 7168
XS0 = RED0
def xp_issue(a):
    srd(a, 36, 4, L * D * 2)
    a(f"s_lshl_b32 s64, s2, 3"); a(f"s_add_u32 s64, s64, s{S_WAVE}"); a("s_mul_i32 s64, s64, 896")
    a("v_lshl_add_u32 v194, v1, 4, s64")
    for r in range(4): a(f"v_mov_b32 v{196+r}, 0")
    a("v_cmp_gt_u32 vcc, 56, v1"); a("s_and_saveexec_b64 s[66:67], vcc")
    a("buffer_load_dwordx4 v[196:199], v194, s[36:39], 0 offen")
    a("s_mov_b64 exec, s[66:67]")
    a("v_mov_b32 v193, 0"); a(f"buffer_load_dword v195, v193, {DBG}, 0 offen sc1")
def xp_mid(a, tag):
    a(f"s_mul_i32 s64, s{S_WAVE}, 912"); a(f"s_add_u32 s64, s64, {XS0}"); a("v_lshl_add_u32 v194, v1, 4, s64")
    a("v_cmp_gt_u32 vcc, 56, v1"); a("s_and_saveexec_b64 s[66:67], vcc")
    a("ds_write_b128 v194, v[196:199]"); a("s_mov_b64 exec, s[66:67]")
    a("v_bfe_u32 v184, v1, 2, 2"); a("v_mul_u32_u24 v184, 912, v184")
    a("v_lshrrev_b32 v185, 4, v1"); a("v_lshl_add_u32 v184, v185, 5, v184"); a("v_and_b32 v185, 3, v1"); a("v_lshl_add_u32 v184, v185, 3, v184")
    a(f"s_lshl_b32 s64, s{S_WAVE}, 7"); a(f"s_add_u32 s64, s64, {XS0}"); a("v_add_u32 v184, s64, v184")
    a(f"s_mul_i32 s64, s2, {X8S}"); a(f"s_lshl_b32 s65, s{S_WAVE}, 10"); a("s_add_u32 s64, s64, s65"); a(f"s_add_u32 s64, s64, {WS_XT}")
    a("v_lshl_add_u32 v185, v1, 4, s64")
    a("s_waitcnt lgkmcnt(0)"); a("s_barrier")
    a(f"s_cmp_ge_u32 s{S_WAVE}, 7"); a(f"s_cbranch_scc1 L_xp_notr_{tag}")
    a("ds_read_b64_tr_b16 v[180:181], v184"); a(f"ds_read_b64_tr_b16 v[182:183], v184 offset:{4*912}")
    a("s_waitcnt lgkmcnt(0)")
    a(f"buffer_store_dwordx4 v[180:183], v185, {W}, 0 offen sc1")
    a.label(f"L_xp_notr_{tag}")
    a("v_mov_b32 v190, 0x3f803f80"); a("v_mov_b32 v188, 0"); a("v_mov_b32 v189, 0")
    for j in range(4):
        a(f"v_dot2_f32_bf16 v188, v{196+j}, v190, v188"); a(f"v_dot2_f32_bf16 v189, v{196+j}, v{196+j}, v189")
    for mod in ("quad_perm:[1,0,3,2]", "quad_perm:[2,3,0,1]", "row_half_mirror", "row_mirror"):
        for r in (188, 189): a(f"v_add_f32_dpp v{r}, v{r}, v{r} {mod} row_mask:0xf bank_mask:0xf")
    for sw in ("v_permlane16_swap_b32", "v_permlane32_swap_b32"):
        a("v_mov_b32 v186, v188"); a("v_mov_b32 v187, v189")
        a(f"{sw} v188, v186"); a(f"{sw} v189, v187")
        a("v_add_f32 v188, v188, v186"); a("v_add_f32 v189, v189, v187")
    stats_pack(a, 188, 189, 186, 184)
    a("v_and_b32 v187, 0xffff0000, v186"); a("v_lshlrev_b32 v186, 16, v186"); a("v_rcp_f32 v188, v187")
    a("v_mul_f32_e64 v189, -v186, v188")
    a(f"s_lshl_b32 s64, s2, 6"); a(f"s_lshl_b32 s65, s{S_WAVE}, 3"); a("s_add_u32 s64, s64, s65"); a("v_mov_b32 v187, s64")
    a("s_mov_b64 exec, 1")
    a(f"buffer_store_dwordx2 v[188:189], v187, {W}, 0 offen offset:{WS_GRAN} sc1")
    a("s_mov_b64 exec, -1")
def xg_mid(a, tag):
    a("v_mov_b32 v190, 0x3f803f80"); a("v_mov_b32 v188, 0"); a("v_mov_b32 v189, 0")
    for j in range(4):
        a(f"v_dot2_f32_bf16 v188, v{196+j}, v190, v188"); a(f"v_dot2_f32_bf16 v189, v{196+j}, v{196+j}, v189")
    for mod in ("quad_perm:[1,0,3,2]", "quad_perm:[2,3,0,1]", "row_half_mirror", "row_mirror"):
        for r in (188, 189): a(f"v_add_f32_dpp v{r}, v{r}, v{r} {mod} row_mask:0xf bank_mask:0xf")
    for sw in ("v_permlane16_swap_b32", "v_permlane32_swap_b32"):
        a("v_mov_b32 v186, v188"); a("v_mov_b32 v187, v189")
        a(f"{sw} v188, v186"); a(f"{sw} v189, v187")
        a("v_add_f32 v188, v188, v186"); a("v_add_f32 v189, v189, v187")
    stats_pack(a, 188, 189, 186, 184)
    a(f"v_readfirstlane_b32 s{S_NONCE}, v195")
    a(f"s_cmp_eq_u32 s{S_NONCE}, 0"); a(f"s_cbranch_scc0 L_xg_have_{tag}")
    get_nonce(a, "xg" + tag, 192)
    a.label(f"L_xg_have_{tag}")
    a(f"v_mov_b32 v187, s{S_NONCE}")
    a(f"s_lshl_b32 s64, s2, 6"); a(f"s_lshl_b32 s65, s{S_WAVE}, 3"); a("s_add_u32 s64, s64, s65"); a("v_mov_b32 v188, s64")
    a("s_mov_b64 exec, 1")
    a(f"buffer_store_dwordx2 v[186:187], v188, {W}, 0 offen offset:{WS_GRAN} sc1")
    a("s_mov_b64 exec, -1")
def xp_pub(a, tag):
    a("s_waitcnt vmcnt(0)")
    a(f"v_readfirstlane_b32 s{S_NONCE}, v195")
    a(f"s_cmp_eq_u32 s{S_NONCE}, 0"); a(f"s_cbranch_scc0 L_xp_have_{tag}")
    get_nonce(a, "xp" + tag, 194)
    a.label(f"L_xp_have_{tag}")
    a("s_barrier")
    a("s_lshl_b32 s64, s2, 6"); a(f"s_add_u32 s64, s64, {WS_FLAG1}")
    publish_flag(a, 64, 194)

def touch_w13(a):
    a("s_and_b32 s64, s2, 7"); a("s_lshr_b32 s65, s2, 3")
    a("s_and_b32 s66, s64, 1"); a("s_mul_i32 s66, s66, 7"); a("s_lshr_b32 s67, s65, 2"); a("s_add_u32 s66, s66, s67")
    a("s_and_b32 s65, s65, 3")
    a("s_cmp_lt_u32 s65, 2"); a("s_cselect_b32 s76, s20, s22"); a("s_cselect_b32 s77, s21, s23")
    a(f"s_mov_b32 s78, {D*F*2}"); a("s_mov_b32 s79, 0x20000")
    a("s_and_b32 s65, s65, 1"); a("s_mul_i32 s65, s65, 448"); a(f"s_min_u32 s67, s{S_WAVE}, 6"); a("s_lshl_b32 s67, s67, 6"); a("s_add_u32 s65, s65, s67")
    a("v_add_u32 v192, s65, v1")
    a("v_lshrrev_b32 v191, 1, v192"); a("v_mul_u32_u24 v191, 3584, v191"); a("v_and_b32 v192, 1, v192"); a("v_lshl_add_u32 v191, v192, 7, v191")
    a("s_lshl_b32 s66, s66, 8"); a("v_add_u32 v191, s66, v191")
    a("buffer_load_dword v192, v191, s[76:79], 0 offen")

def touch_weights(a, tag):
    a(f"s_cmp_ge_u32 s{S_WAVE}, 3"); a(f"s_cbranch_scc1 L_touch_skip_{tag}")
    a(f"s_lshl_b32 s64, s{S_WAVE}, 1"); a("s_cmp_eq_u32 s64, 0"); a("s_cselect_b32 s76, s20, s22"); a("s_cselect_b32 s77, s21, s23")
    a("s_cmp_eq_u32 s64, 4"); a("s_cselect_b32 s76, s24, s76"); a("s_cselect_b32 s77, s25, s77")
    a(f"s_mov_b32 s78, {D*F*2}"); a("s_mov_b32 s79, 0x20000")
    a("s_mul_i32 s64, s2, 49"); a("v_add_u32 v191, s64, v1"); a("v_lshlrev_b32 v191, 7, v191")
    a("v_cmp_gt_u32 vcc, 49, v1"); a("s_and_saveexec_b64 s[66:67], vcc")
    a("buffer_load_dword v192, v191, s[76:79], 0 offen")
    a("s_mov_b64 exec, s[66:67]")
    a.label(f"L_touch_skip_{tag}")

def poll_issue(a, tag, base_sgpr, count, per_lane, vt):
    a(f"s_cmp_eq_u32 s{S_WAVE}, 0"); a(f"s_cbranch_scc0 L_pi_{tag}")
    a(f"v_lshlrev_b32 v{vt}, 6, v1"); a(f"v_add_u32 v{vt}, s{base_sgpr}, v{vt}")
    if count < 64:
        a(f"v_min_u32 v{vt+1}, {count-1}, v1"); a(f"v_lshlrev_b32 v{vt}, 6, v{vt+1}"); a(f"v_add_u32 v{vt}, s{base_sgpr}, v{vt}")
    for i in range(per_lane):
        if i == 0: a(f"buffer_load_dword v{vt+1}, v{vt}, {W}, 0 offen sc1")
        else:
            a(f"s_mov_b32 s67, {4096*i}"); a(f"buffer_load_dword v{vt+1+i}, v{vt}, {W}, s67 offen sc1")
    a.label(f"L_pi_{tag}")
def poll_check(a, tag, per_lane, vt):
    a(f"s_cmp_eq_u32 s{S_WAVE}, 0"); a(f"s_cbranch_scc0 L_pc_{tag}_bar")
    a("s_mov_b32 s66, 0")
    a.label(f"L_pc_{tag}")
    a(f"v_xor_b32 v{vt+1}, s{S_NONCE}, v{vt+1}")
    for i in range(1, per_lane):
        a(f"v_xor_b32 v{vt+1+i}, s{S_NONCE}, v{vt+1+i}"); a(f"v_or_b32 v{vt+1}, v{vt+1}, v{vt+1+i}")
    a(f"v_cmp_ne_u32 vcc, 0, v{vt+1}")
    a(f"s_cbranch_vccz L_pc_{tag}_bar")
    a("s_add_u32 s66, s66, 1"); a(f"s_cmp_gt_u32 s66, {SPIN_MAX}"); a(f"s_cbranch_scc1 L_pc_{tag}_bar")
    for i in range(per_lane):
        if i == 0: a(f"buffer_load_dword v{vt+1}, v{vt}, {W}, 0 offen sc1")
        else:
            a(f"s_mov_b32 s67, {4096*i}"); a(f"buffer_load_dword v{vt+1+i}, v{vt}, {W}, s67 offen sc1")
    a("s_waitcnt vmcnt(0)")
    a(f"s_branch L_pc_{tag}")
    a.label(f"L_pc_{tag}_bar")
    a("s_barrier")

def code_prefetch(a, wave_sgpr=None, vt=177):
    a("s_getpc_b64 s[78:79]")
    lab = f"L_pc_{len(a.lines)}"
    a.label(lab)
    a(f"s_sub_u32 s78, s78, {lab}-KERNEL_START"); a("s_subb_u32 s79, s79, 0")
    a(f"v_lshrrev_b32 v{vt+1}, 1, v0"); a(f"v_lshlrev_b32 v{vt+1}, 7, v{vt+1}")
    a(f"v_min_u32 v{vt+1}, KERNEL_END-KERNEL_START-4, v{vt+1}")
    a(f"global_load_dword v{vt}, v{vt+1}, s[78:79]")

def helper(a):
    a("s_sub_u32 s70, s2, 224")
    xp_issue(a)
    if "G" in OPT:
        a("s_waitcnt vmcnt(0)")
        xg_mid(a, "h")
    else:
        a("s_waitcnt vmcnt(1)")
        xp_mid(a, "h")
        xp_pub(a, "h")
    if "notouch" not in OPT: touch_weights(a, "h")
    stamp(a, 1)
    a("s_cmp_lt_u32 s70, 16")
    a("s_cselect_b32 s36, s20, s22"); a("s_cselect_b32 s37, s21, s23")
    a(f"s_mov_b32 s38, {D*F*2}"); a("s_mov_b32 s39, 0x20000")
    a("s_and_b32 s64, s70, 15"); a("s_mul_i32 s64, s64, 224")
    a("v_lshrrev_b32 v2, 4, v1"); a("v_and_b32 v3, 15, v1")
    a(f"s_mul_i32 s65, s{S_WAVE}, 56"); a("v_add_u32 v4, s65, v2")
    a("s_movk_i32 s65, 3584"); a("v_mul_lo_u32 v4, v4, s65"); a("v_lshl_add_u32 v4, v3, 4, v4"); a("v_add_u32 v4, s64, v4")
    for i in range(14):
        a(f"s_mov_b32 s67, {4*3584*i}")
        a(f"buffer_load_dwordx4 v[{8+4*i}:{11+4*i}], v4, s[36:39], s67 offen")
    for e in range(8): a(f"v_mov_b32 v{72+e}, 0")
    for i in range(14):
        a(f"s_waitcnt vmcnt({13-i})")
        for j in range(4):
            r = 8 + 4 * i + j
            a(f"v_lshlrev_b32 v80, 16, v{r}"); a(f"v_and_b32 v81, 0xffff0000, v{r}")
            a(f"v_add_f32 v{72+2*j}, v{72+2*j}, v80"); a(f"v_add_f32 v{73+2*j}, v{73+2*j}, v81")
    a(f"s_lshl_b32 s65, s{S_WAVE}, 2"); a("v_add_u32 v5, s65, v2"); a("v_lshlrev_b32 v5, 9, v5"); a("v_lshl_add_u32 v5, v3, 5, v5")
    a("ds_write_b128 v5, v[72:75]"); a("ds_write_b128 v5, v[76:79] offset:16")
    a("s_waitcnt lgkmcnt(0)"); a("s_barrier")
    a("v_lshlrev_b32 v5, 2, v0")
    a("v_cmp_gt_u32 vcc, 112, v0"); a("s_and_saveexec_b64 s[64:65], vcc"); a("s_cbranch_execz L_h_cs_done")
    for k in range(32): a(f"ds_read_b32 v{8+k}, v5 offset:{512*k}")
    a("s_waitcnt lgkmcnt(0)")
    for k in range(1, 32): a(f"v_add_f32 v8, v8, v{8+k}")
    a("s_mul_i32 s66, s70, 448"); a(f"s_add_u32 s66, s66, {WS_CS}"); a("v_add_u32 v5, s66, v5")
    a(f"buffer_store_dword v8, v5, {W}, 0 offen sc1")
    a.label("L_h_cs_done")
    a("s_mov_b64 exec, s[64:65]")
    a("s_waitcnt vmcnt(0)"); a("s_barrier")
    a("s_lshl_b32 s64, s2, 6"); a(f"s_add_u32 s64, s64, {WS_FLAG2}")
    publish_flag(a, 64)
    a(f"s_mov_b32 s64, {WS_FLAG2}")
    wait_flags(a, "hs2", 64, 256, 4)
    a("v_and_b32 v2, 31, v1"); a("v_lshrrev_b32 v3, 5, v1"); a(f"s_lshl_b32 s64, s{S_WAVE}, 1"); a("v_add_u32 v3, s64, v3")
    a(f"v_mul_u32_u24 v3, {HTS}, v3"); a("v_lshl_add_u32 v3, v2, 2, v3"); a("s_lshl_b32 s64, s70, 7"); a(f"s_add_u32 s64, s64, {WS_HT}"); a("v_add_u32 v3, s64, v3")
    for i in range(28):
        a(f"s_mov_b32 s67, {16*HTS*i}"); a(f"buffer_load_dword v{40+i}, v3, {W}, s67 offen")
    for r in range(4): a(f"v_mov_b32 v{8+r}, 0")
    for i in range(28):
        a(f"s_waitcnt vmcnt({27-i})")
        a(f"v_lshlrev_b32 v12, 16, v{40+i}"); a(f"v_and_b32 v13, 0xffff0000, v{40+i}")
        a("v_add_f32 v8, v8, v12"); a("v_add_f32 v9, v9, v13"); a("v_fma_f32 v10, v12, v12, v10"); a("v_fma_f32 v11, v13, v13, v11")
    for r in range(8, 12):
        a(f"v_mov_b32 v12, v{r}"); a(f"v_permlane32_swap_b32 v{r}, v12"); a(f"v_add_f32 v{r}, v{r}, v12")
    a(f"s_lshl_b32 s64, s{S_WAVE}, 9"); a("v_lshl_add_u32 v4, v2, 4, s64")
    a("ds_write_b128 v4, v[8:11]")
    a("s_waitcnt lgkmcnt(0)"); a("s_barrier")
    a("v_cmp_gt_u32 vcc, 64, v0"); a("s_and_saveexec_b64 s[64:65], vcc"); a("s_cbranch_execz L_h_g2_done")
    a("v_lshrrev_b32 v4, 1, v0"); a("v_lshlrev_b32 v4, 4, v4"); a("v_and_b32 v5, 1, v0"); a("v_lshl_add_u32 v4, v5, 2, v4")
    for k in range(8):
        a(f"ds_read_b32 v{16+k}, v4 offset:{512*k}"); a(f"ds_read_b32 v{24+k}, v4 offset:{512*k+8}")
    a("s_waitcnt lgkmcnt(0)")
    for k in range(1, 8):
        a(f"v_add_f32 v16, v16, v{16+k}"); a(f"v_add_f32 v24, v24, v{24+k}")
    stats_pack(a, 16, 24, 32, 34)
    a("v_and_b32 v33, 0xffff0000, v32"); a("v_lshlrev_b32 v32, 16, v32"); a("v_rcp_f32 v33, v33")
    a("s_lshl_b32 s66, s70, 9"); a(f"s_add_u32 s66, s66, {WS_G2}"); a("v_lshl_add_u32 v4, v0, 3, s66")
    a(f"buffer_store_dwordx2 v[32:33], v4, {W}, 0 offen sc1")
    a.label("L_h_g2_done")
    a("s_mov_b64 exec, s[64:65]")
    a("s_waitcnt vmcnt(0)"); a("s_barrier")
    a("s_lshl_b32 s64, s70, 6"); a(f"s_add_u32 s64, s64, {WS_FLAG3}")
    publish_flag(a, 64)
    stamp(a, 2)

def st2(a, i):
    if "convdiag" not in OPT: stamp(a, i)
def st3(a, i):
    if "convdiag" in OPT: stamp(a, i)
def phaseA(a, hooks):
    XPK = next((int(o[3:]) for o in OPT if o.startswith("xpk")), 8)
    a(f"s_lshr_b32 s34, s{S_WAVE}, 2"); a(f"s_and_b32 s35, s{S_WAVE}, 3")
    xp_issue(a)
    srd(a, 40, 6, D * N * 2); srd(a, 44, 8, D * N * 2); srd(a, 48, 10, D * N * 2); srd(a, 52, 12, D * N * 2)
    a("s_and_b32 s64, s2, 7"); a("s_mul_i32 s64, s64, 28"); a("s_lshr_b32 s65, s2, 3"); a("s_add_u32 s75, s64, s65")
    a("s_lshl_b32 s64, s75, 2")
    a("s_load_dword s68, s[14:15], s64"); a("s_load_dword s69, s[16:17], s64")
    a("s_lshl_b32 s70, s75, 1"); a("s_add_u32 s70, s70, s34")
    a("s_lshl_b32 s65, s70, 9"); a("s_lshl_b32 s66, s35, 7"); a("s_add_u32 s65, s65, s66")
    a("v_lshl_add_u32 v3, v1, 1, s65")
    a("buffer_load_ushort v10, v3, s[40:43], 0 offen"); a("buffer_load_ushort v11, v3, s[44:47], 0 offen")
    a("buffer_load_ushort v12, v3, s[48:51], 0 offen"); a("buffer_load_ushort v13, v3, s[52:55], 0 offen")
    if "nopf" not in OPT and "pf0" not in OPT: code_prefetch(a)
    if "G" in OPT:
        a("v_mul_u32_u24 v179, 896, v1"); a("s_lshl_b32 s65, s75, 2"); a("v_add_u32 v179, s65, v179")
        GW = next((int(o[2:]) for o in OPT if o.startswith("gw")), 1)
        for i in range(GW):
            a(f"s_mul_i32 s65, s{S_WAVE}, {GW}"); a(f"s_add_u32 s65, s65, {i}"); a("s_lshl_b32 s66, s65, 8"); a(f"s_add_u32 m0, s66, {RED0}")
            a(f"s_mul_i32 s67, s65, {64*896}"); a("buffer_load_dword v179, s[36:39], s67 offen lds")
        a(f"s_cmp_eq_u32 s{S_WAVE}, 7"); a("s_cbranch_scc0 L_g_skip")
        for i in range(8 * GW, 32):
            a(f"s_mov_b32 m0, {RED0 + 256*i}"); a(f"s_mov_b32 s67, {64*896*i}")
            a("buffer_load_dword v179, s[36:39], s67 offen lds")
        a.label("L_g_skip")
    a("v_lshlrev_b32 v7, 4, v0"); a(f"v_add_u32 v7, {SB}, v7")
    a("v_mov_b32 v20, 0\nv_mov_b32 v21, 0\nv_mov_b32 v22, 0\nv_mov_b32 v23, 0")
    a("v_cmp_gt_u32 vcc, 30, v0"); a("s_and_saveexec_b64 s[66:67], vcc")
    a(f"ds_write_b128 v7, v[20:23] offset:{UA0-SB}"); a(f"ds_write_b128 v7, v[20:23] offset:{UA0-SB+UA_CH}")
    a("s_mov_b64 exec, s[66:67]")
    a("v_and_b32 v8, 255, v0"); a("v_lshlrev_b32 v9, 3, v8"); a("v_sub_u32 v9, 2047, v9")
    for e in range(11): a(f"v_subrev_u32 v{30+e}, {e}, v9")
    for e in range(0, 12, 2):
        a(f"v_cvt_f32_i32 v{44+e}, v{30+e}")
        if e + 1 < 11: a(f"v_cvt_f32_i32 v{45+e}, v{31+e}")
        a(f"v_cvt_pk_bf16_f32 v{58+e//2}, v{44+e}, v{45+e if e+1 < 11 else 44+e}")
    for e in range(11):
        p = 58 + e // 2; r = 226 + e
        a(f"v_and_b32 v{r}, 0xffff, v{p}" if e % 2 == 0 else f"v_lshrrev_b32 v{r}, 16, v{p}")
        a(f"v_subrev_u32 v{r}, 17024, v{r}"); a(f"v_min_i32 v{30+e}, 128, v{30+e}"); a(f"v_max_i32 v{r}, v{r}, v{30+e}")
    a("v_mov_b32 v64, 641")
    for e in range(8, 11):
        a(f"v_cmp_gt_i32 vcc, {e}, v9"); a(f"v_cndmask_b32 v{226+e}, v{226+e}, v64, vcc")
    a(f"s_mul_i32 s66, s34, {TB_CH}"); a(f"s_add_u32 s72, s66, {TB0}")
    a("v_mov_b32 v65, s72")
    for e in range(11): a(f"v_lshl_add_u32 v{226+e}, v{226+e}, 1, v65")
    a(f"s_mul_i32 s66, s34, {KC_CH}"); a("s_add_u32 s66, s66, 32"); a("v_lshl_add_u32 v237, v8, 4, s66")
    a("v_and_b32 v9, 15, v1"); a("v_lshrrev_b32 v8, 4, v1")
    a(f"s_and_b32 s73, s{S_WAVE}, 1"); a(f"s_bfe_u32 s74, s{S_WAVE}, 0x10001")
    a("s_lshl_b32 s65, s73, 4"); a("v_add_u32 v30, s65, v9")
    a("v_lshlrev_b32 v31, 4, v30"); a("v_lshl_add_u32 v31, v8, 3, v31")
    a("v_lshlrev_b32 v32, 3, v30"); a("v_add_u32 v32, 512, v32")
    a("v_cmp_eq_u32 vcc, 2, v8"); a("v_cndmask_b32 v31, v31, v32, vcc")
    a("v_lshlrev_b32 v32, 2, v30"); a("v_add_u32 v32, 768, v32")
    a("v_add_u32 v33, 4, v31"); a("v_add_u32 v34, 128, v32")
    a("v_cmp_eq_u32 vcc, 3, v8"); a("v_cndmask_b32 v31, v31, v32, vcc"); a("v_cndmask_b32 v33, v33, v34, vcc")
    a("v_lshlrev_b32 v32, 1, v30"); a("v_add_u32 v32, 1024, v32"); a("v_mov_b32 v34, 1288")
    a("v_cmp_eq_u32 vcc, 0, v8")
    for r in range(4):
        a(f"v_add_u32 v35, {64*r}, v32"); a(f"v_cndmask_b32 v{238+r}, v34, v35, vcc")
    a("v_lshl_add_u32 v35, v8, 8, v30"); a("v_mov_b32 v36, 1280")
    a("v_cmp_eq_u32 vcc, 0x100, v35"); a("v_cndmask_b32 v238, v238, v36, vcc")
    a("s_cmp_eq_u32 s74, 0"); a("s_cbranch_scc0 L_tb_rt1")
    a("v_mov_b32 v238, v31"); a("v_mov_b32 v239, v33")
    a.label("L_tb_rt1")
    for r in range(4): a(f"v_add_u32 v{238+r}, s72, v{238+r}")
    a("v_mov_b32 v36, s72"); a("ds_write_b16 v36, v20 offset:1282")
    a(f"s_movk_i32 s65, {OPS}"); a("v_mul_lo_u32 v248, v9, s65"); a("v_lshl_add_u32 v248, v8, 4, v248")
    a(f"s_mul_i32 s66, s34, {OP_CH}"); a("v_add_u32 v248, s66, v248")
    a(f"s_mul_i32 s67, s73, {16*OPS}"); a(f"s_add_u32 s67, s67, {21*OPS}"); a("v_add_u32 v249, s67, v248")
    a(f"s_mul_i32 s67, s74, {16*OPS}"); a("v_add_u32 v248, s67, v248")
    a("v_sub_u32 v30, 3, v9"); a("v_and_b32 v30, 3, v30")
    a(f"s_movk_i32 s65, {KC_CP}"); a("v_mul_lo_u32 v31, v30, s65")
    a("v_lshlrev_b32 v32, 3, v8"); a("v_sub_u32 v32, v32, v9"); a("v_sub_u32 v32, v32, v30"); a("v_add_u32 v32, 2047, v32")
    a("v_lshl_add_u32 v31, v32, 1, v31")
    a(f"s_mul_i32 s66, s34, {KC_CH}"); a(f"s_sub_u32 s66, s66, {64*63}"); a("v_add_u32 v244, s66, v31")
    a(f"s_mul_i32 s66, s34, {UA_CH}"); a(f"s_add_u32 s66, s66, {UA0}")
    a("v_lshlrev_b32 v31, 5, v9"); a("v_lshl_add_u32 v31, v8, 4, v31"); a("v_add_u32 v245, s66, v31")
    a(f"s_mul_i32 s66, s34, {RA_CH}"); a(f"s_add_u32 s66, s66, {RA0}")
    a("v_lshlrev_b32 v31, 6, v9"); a("v_lshl_add_u32 v31, v8, 4, v31"); a("v_add_u32 v246, s66, v31")
    a(f"s_mul_i32 s66, s70, {HTS}"); a(f"s_add_u32 s66, s66, {WS_HT}")
    a("v_lshlrev_b32 v31, 5, v9"); a("v_lshl_add_u32 v31, v8, 3, v31"); a("v_add_u32 v247, s66, v31")
    a(f"s_mul_i32 s71, s34, {OP_CH}"); a("s_lshl_b32 s66, s35, 8"); a("s_add_u32 s71, s71, s66")
    a("s_waitcnt lgkmcnt(0)")
    a("s_lshl_b32 s65, s34, 4"); a("s_lshr_b32 s66, s68, s65"); a("s_lshl_b32 s66, s66, 16")
    a(f"v_mov_b32 v14, {LOG2E:#x}"); a("v_mul_f32 v15, s66, v14"); a("v_exp_f32 v15, v15")
    a("v_cvt_pk_bf16_f32 v15, v15, v15"); a("v_lshlrev_b32 v15, 16, v15")
    a("s_mov_b32 m0, s71")
    st2(a, 1)
    if "G" in OPT:
        GW = next((int(o[2:]) for o in OPT if o.startswith("gw")), 1)
        a(f"s_cmp_eq_u32 s{S_WAVE}, 7"); a("s_cbranch_scc1 L_g_w7")
        a(f"s_waitcnt vmcnt({GW})"); a("s_branch L_g_wd")
        a.label("L_g_w7"); a(f"s_waitcnt vmcnt({32 - 7*GW})")
        a.label("L_g_wd")
        xg_mid(a, "m")
    else:
        npf = 0 if ("nopf" in OPT or "pf0" in OPT) else 1
        a(f"s_waitcnt vmcnt({5+npf})")
        xp_mid(a, "m")
        a(f"s_waitcnt vmcnt({1+npf})")
    a("s_mov_b32 m0, s71")
    st2(a, 2)
    a("v_lshlrev_b32 v16, 16, v10"); a("v_lshlrev_b32 v24, 16, v11"); a("v_mul_f32 v16, v14, v16"); a("v_mul_f32 v24, v24, v15")
    a("v_exp_f32 v16, v16"); a(f"v_mul_f32 v24, {INV2PI:#x}, v24")
    a("v_lshlrev_b32 v30, 16, v12"); a("v_lshlrev_b32 v31, 16, v13")
    a("v_cvt_pk_bf16_f32 v16, v16, v16"); a("v_add_f32 v26, v15, v15")
    a("v_lshlrev_b32 v18, 16, v16")
    a("v_mul_f32 v30, v30, v26"); a("v_mul_f32_e64 v31, -v31, v26")
    a("v_mul_f32 v18, v18, v15"); a("v_mul_f32_e64 v18, -v18, v14")
    P, Q = 18, 24
    X, Xb = 30, 34
    Z = {1: 40, 8: 44, 256: 48, 2: 52, 4: 56}
    for k, t in enumerate((8, 1, 256)):
        tm = 60 + 2 * k
        if t == 1:
            a(f"v_exp_f32 v{tm}, v{P}"); a(f"v_fract_f32 v{tm+1}, v{Q}")
        else:
            c = {8: 0x41000000, 256: 0x43800000}[t]
            a(f"v_mul_f32 v{tm}, {c:#x}, v{P}"); a(f"v_mul_f32 v{tm+1}, {c:#x}, v{Q}")
            a(f"v_exp_f32 v{tm}, v{tm}"); a(f"v_fract_f32 v{tm+1}, v{tm+1}")
    for k, t in enumerate((8, 1, 256)):
        tm = 60 + 2 * k; z = Z[t]
        a(f"v_cos_f32 v{z}, v{tm+1}"); a(f"v_sin_f32 v{z+1}, v{tm+1}")
    for k, t in enumerate((8, 1, 256)):
        tm = 60 + 2 * k; z = Z[t]
        a(f"v_mul_f32 v{z}, v{z}, v{tm}"); a(f"v_mul_f32 v{z+1}, v{z+1}, v{tm}")
    T, T2 = 72, 76
    pk = [80, 81, 82, 83, 84, 85]; pki = [0]
    def put(row, src):
        r = pk[pki[0] % 6]; pki[0] += 1
        a(f"v_cvt_pk_bf16_f32 v{r}, v{src}, v{src+1}")
        a(f"ds_write_addtid_b32 v{r} offset:{row*OPS}")
    Y, X256, X512, X768, XW = 88, 92, 96, 100, 104
    put(0, X); put(22, Z[8])
    a("v_mov_b32 v108, 0x3f80"); a(f"ds_write_addtid_b32 v108 offset:{21*OPS}")
    a(cmul1(0, Z[1], Z[1], T)); a(cmul2(Z[2], Z[1], Z[1], T, False))
    a(cmul1(0, Z[2], Z[2], T)); a(cmul2(Z[4], Z[2], Z[2], T, False))
    xs = [(c, Xb, X if c == 1 else Xb, Z[1]) for c in range(1, 8)]
    xs += [(8, X256, X, Z[256]), (9, XW, X256, Z[2]), (10, XW, XW, Z[2]), (11, XW, XW, Z[2]), (12, X512, X256, Z[256]),
           (13, XW, X512, Z[4]), (14, X768, X512, Z[256]), (15, XW, X768, Z[4]), (16, XW, X768, Z[256])]
    for r in range(17, 21): xs.append((r, XW, XW, Z[256]))
    def s1_issue():
        a(f"buffer_load_dword v223, v3, {W}, 0 offen sc1")
    for k, b in enumerate(range(2, 32)):
        src = Z[8] if b == 2 else Y
        x = xs[k] if k < len(xs) else None
        a(cmul1(0, src, Z[8], T))
        if x: a(cmul1(0, x[2], x[3], T2))
        a(cmul2(Y, src, Z[8], T, False))
        if x: a(cmul2(x[1], x[2], x[3], T2, True))
        put(21 + b, Y)
        if x: put(x[0], x[1])
        if k == XPK and "G" not in OPT:
            xp_pub(a, "m")
        if k == XPK + 1 and "notouch" not in OPT:
            touch_weights(a, "m")
    st2(a, 3)
    a("s_waitcnt lgkmcnt(0)"); a("s_barrier")
    st2(a, 4)
    if "G" in OPT:
        a("v_and_b32 v221, 255, v0"); a("v_lshlrev_b32 v221, 6, v221")
        def g_issue():
            for i in range(4): a(f"buffer_load_dwordx4 v[{204+4*i}:{207+4*i}], v221, {W}, 0 offen offset:{WS_GRAN+16*i} sc1")
        g_issue()
    else:
        a("v_and_b32 v3, 255, v0"); a("v_lshlrev_b32 v3, 6, v3"); a(f"v_add_u32 v3, {WS_FLAG1}, v3")
        s1_issue()
    for r in range(4): a(f"v_mov_b32 v{16+r}, 0")
    NR = 6
    def rd(s):
        b = 32 + 8 * (s % NR)
        a(f"ds_read_b128 v[{b}:{b+3}], v248 offset:{64*s}"); a(f"ds_read_b128 v[{b+4}:{b+7}], v249 offset:{64*s}")
    for s in range(NR - 1): rd(s)
    for s in range(16):
        if s + NR - 1 < 16: rd(s + NR - 1)
        a(f"s_waitcnt lgkmcnt({2*min(15-s, NR-1)})")
        b = 32 + 8 * (s % NR)
        a(f"v_mfma_f32_16x16x32_bf16 v[16:19], v[{b}:{b+3}], v[{b+4}:{b+7}], v[16:19]")
        if s == 9 and "G" not in OPT:
            a("s_mov_b32 s66, 0")
            a.label("L_s1_chk")
            a("s_waitcnt vmcnt(0)")
            a(f"v_cmp_ne_u32 vcc, s{S_NONCE}, v223")
            a("s_cbranch_vccz L_s1_ok")
            a("s_add_u32 s66, s66, 1"); a(f"s_cmp_gt_u32 s66, {SPIN_MAX}"); a("s_cbranch_scc1 L_s1_ok")
            s1_issue()
            a("s_branch L_s1_chk")
            a.label("L_s1_ok")
            a("v_and_b32 v8, 255, v0")
            a(f"v_mul_u32_u24 v3, {X8S}, v8"); a("s_lshl_b32 s66, s70, 4"); a(f"s_add_u32 s66, s66, {WS_XT}"); a("v_add_u32 v3, s66, v3")
            a(f"buffer_load_dwordx4 v[200:203], v3, {W}, 0 offen")
            a(f"s_cmp_lt_u32 s{S_WAVE}, 4"); a("s_cbranch_scc0 L_s1_nost")
            a(f"s_lshl_b32 s66, s{S_WAVE}, 12"); a("v_lshl_add_u32 v3, v1, 4, s66")
            for i in range(4):
                a(f"s_add_u32 m0, s66, {RED0}"); a(f"buffer_load_dwordx4 v3, {W}, 0 offen offset:{1024*i} lds")
            a.label("L_s1_nost")
    a("v_cvt_pk_bf16_f32 v16, v16, v17"); a("v_cvt_pk_bf16_f32 v17, v18, v19")
    a("s_cmp_eq_u32 s74, 0"); a("s_cbranch_scc0 L_tw_rt1")
    a("ds_write_b32 v238, v16"); a("ds_write_b32 v239, v17"); a("s_branch L_tw_done")
    a.label("L_tw_rt1")
    a("ds_write_b16 v238, v16"); a("ds_write_b16_d16_hi v239, v16"); a("ds_write_b16 v240, v17"); a("ds_write_b16_d16_hi v241, v17")
    a.label("L_tw_done")
    a("s_waitcnt lgkmcnt(0)"); a("s_barrier")
    stamp(a, 5)
    hooks["setup"](a)
    stamp(a, 6)
    for e in range(11): a(f"ds_read_u16 v{70+e}, v{226+e}")
    a("v_mov_b32 v20, 0\nv_mov_b32 v21, 0\nv_mov_b32 v22, 0\nv_mov_b32 v23, 0")
    a("v_lshrrev_b32 v16, 1, v0"); a(f"s_movk_i32 s65, {KC_CP}"); a("v_mul_lo_u32 v16, v16, s65")
    a("v_and_b32 v17, 1, v0"); a("v_lshl_add_u32 v16, v17, 4, v16")
    a("s_waitcnt lgkmcnt(0)")
    for c in range(4):
        o = 110 + 4 * c
        for k in range(4):
            lo = 70 + c + 2 * k
            a(f"v_lshl_or_b32 v{o+k}, v{lo+1}, 16, v{lo}")
        a(f"ds_write_b128 v237, v[{o}:{o+3}] offset:{KC_CP*c}")
    a("v_cmp_gt_u32 vcc, 16, v0"); a("s_and_saveexec_b64 s[66:67], vcc")
    a("ds_write_b128 v16, v[20:23] offset:4128"); a("s_mov_b64 exec, s[66:67]")
    if "two" in OPT:
        for k in range(9): hooks["dma"](a, k, 5 + k)
    stamp(a, 7)
    a("s_lshl_b32 s65, s34, 4"); a("s_lshr_b32 s64, s69, s65"); a("s_lshl_b32 s64, s64, 16")
    if "G" in OPT:
        a("s_mov_b32 s66, 0")
        a.label("L_s1_chk")
        a("s_waitcnt vmcnt(0)")
        a(f"v_xor_b32 v16, s{S_NONCE}, v205")
        for i in range(1, 8):
            a(f"v_xor_b32 v17, s{S_NONCE}, v{205+2*i}"); a("v_or_b32 v16, v16, v17")
        a("v_cmp_ne_u32 vcc, 0, v16"); a("s_cbranch_vccz L_s1_ok")
        a("s_add_u32 s66, s66, 1"); a(f"s_cmp_gt_u32 s66, {SPIN_MAX}"); a("s_cbranch_scc1 L_s1_ok")
        g_issue()
        a("s_branch L_s1_chk")
        a.label("L_s1_ok")
        a("s_barrier")
        a("v_and_b32 v8, 255, v0"); a(f"v_lshlrev_b32 v9, 5, v8"); a(f"v_add_u32 v9, {RED0}, v9")
        a("ds_read_b128 v[192:195], v9"); a("ds_read_b128 v[196:199], v9 offset:16")
        a("s_xor_b32 s65, s34, 1"); a("s_lshl_b32 s65, s65, 4")
        for i in range(8):
            st = 204 + 2 * i
            a(f"v_and_b32 v{60+i}, 0xffff0000, v{st}"); a(f"v_rcp_f32 v{60+i}, v{60+i}"); a(f"v_lshlrev_b32 v{68+i}, 16, v{st}")
        a("s_waitcnt lgkmcnt(0)")
        for i in range(8):
            a(f"v_lshlrev_b32 v{30+i}, s65, v{192+i}"); a(f"v_and_b32 v{30+i}, 0xffff0000, v{30+i}")
            a(f"v_sub_f32 v{40+i}, v{30+i}, v{68+i}"); a(f"v_mul_f32 v{40+i}, v{40+i}, v{60+i}")
            a(f"v_fma_f32 v{48+i}, v{40+i}, s64, v{30+i}")
    else:
        a("s_waitcnt vmcnt(9)" if "two" in OPT else "s_waitcnt vmcnt(0)"); a("s_barrier")
        a("v_and_b32 v8, 255, v0"); a(f"v_lshlrev_b32 v9, 6, v8"); a(f"v_add_u32 v9, {RED0}, v9")
        for i in range(4): a(f"ds_read_b128 v[{204+4*i}:{207+4*i}], v9 offset:{16*i}")
        a("s_waitcnt lgkmcnt(0)")
        for i in range(8):
            x = 200 + i // 2; st = 204 + 2 * i
            a(f"v_lshlrev_b32 v{30+i}, 16, v{x}" if i % 2 == 0 else f"v_and_b32 v{30+i}, 0xffff0000, v{x}")
            a(f"v_fma_f32 v{40+i}, v{30+i}, v{st}, v{st+1}")
            a(f"v_fma_f32 v{48+i}, v{40+i}, s64, v{30+i}")
    for k in range(4): a(f"v_cvt_pk_bf16_f32 v{56+k}, v{40+2*k}, v{41+2*k}")
    a("v_and_b32 v8, 255, v0")
    a(f"s_mul_i32 s66, s34, {UA_CH}"); a(f"s_add_u32 s66, s66, {UA0+480}"); a("v_lshl_add_u32 v9, v8, 4, s66")
    a("ds_write_b128 v9, v[56:59]")
    a(f"s_mul_i32 s66, s34, {RA_CH}"); a(f"s_add_u32 s66, s66, {RA0}"); a("v_lshl_add_u32 v9, v8, 5, s66")
    a("ds_write_b128 v9, v[48:51]"); a("ds_write_b128 v9, v[52:55] offset:16")
    a("s_waitcnt vmcnt(0) lgkmcnt(0)"); a("s_barrier")
    stamp(a, 8)
    if "two" in OPT: hooks["tr1"](a)
    for v in range(3):
        a(f"s_cmp_eq_u32 s35, {v}"); a(f"s_cbranch_scc1 L_conv{v}")
    a("s_branch L_conv3")
    for v in range(4):
        a.label(f"L_conv{v}")
        conv(a, v, hooks["dma"])
        if v < 3: a("s_branch L_conv_done")
    a.label("L_conv_done")
    stamp(a, 9)
    a("s_waitcnt vmcnt(0)")
    stamp(a, 10)
    a("s_barrier")
    a("s_lshl_b32 s64, s2, 6"); a(f"s_add_u32 s64, s64, {WS_FLAG2}")
    publish_flag(a, 64)
    stamp(a, 11)

def conv(a, p, dma):
    S = [s for s in range(64) if s % 4 == p]
    steps = {s: [(t, 8 * t - s) for t in range(7, -1, -1) if s <= 8 * t + 7] for s in S}
    betas = sorted({b for s in S for t, b in steps[s]}, reverse=True)
    assert len(betas) == 16
    breg = {b: 48 + 4 * i for i, b in enumerate(betas)}
    NAR = 4; PFD = 3
    issued = []
    def ldA(k):
        sa = S[k]; r = 112 + 4 * (k % NAR)
        a(f"ds_read_b64 v[{r}:{r+1}], v244 offset:{64*(63-sa)}"); a(f"ds_read_b64 v[{r+2}:{r+3}], v244 offset:{64*(63-sa)+8}")
        issued.extend([("A", k)] * 2)
    first = {}
    for k, s in enumerate(S):
        for t, b in steps[s]: first.setdefault(b, k)
    def ldB(b):
        a(f"ds_read_b128 v[{breg[b]}:{breg[b]+3}], v245 offset:{64*(b+7)}"); issued.append(("B", b))
    a("v_lshlrev_b32 v2, 4, v1")
    for q in range(4):
        if q == p: continue
        src = [x for x in range(4) if x != q].index(p)
        a(f"s_lshl_b32 s64, s34, 2"); a(f"s_add_u32 s64, s64, {q}"); a("s_mul_i32 s64, s64, 6144"); a(f"s_add_u32 s64, s64, {SB + 2048*src}")
        a(f"v_add_u32 v{4+q}, s64, v2")
    sendq = [q for q in range(4) if q != p]
    def send(q):
        sendq.remove(q)
        a(f"ds_write_b128 v{4+q}, v[{16+8*q}:{19+8*q}]"); a(f"ds_write_b128 v{4+q}, v[{20+8*q}:{23+8*q}] offset:1024")
        issued.extend([("W", q)] * 2)
    st3(a, 1)
    ldA(0)
    for t, b in steps[S[0]]: ldB(b)
    ldA(1)
    if p == 0:
        for t in range(8):
            a(f"ds_read_b128 v[{16+4*t}:{19+4*t}], v246 offset:{1024*t}"); issued.append(("R", t))
    else:
        for r in range(32): a(f"v_mov_b32 v{16+r}, 0")
    for b in betas:
        if first[b] >= 1: ldB(b)
    ldA(2)
    for k, s in enumerate(S):
        if k + PFD < len(S): ldA(k + PFD)
        need = max(i for i, x in enumerate(issued) if x == ("A", k))
        for t, b in steps[s]:
            need = max(need, max(i for i, x in enumerate(issued) if x == ("B", b)))
        if k == 0 and p == 0: need = max(need, max(i for i, x in enumerate(issued) if x[0] == "R"))
        n = len(issued) - 1 - need
        a(f"s_waitcnt lgkmcnt({min(n, 15)})")
        if k == 0: st3(a, 2)
        if k == 1: a("s_barrier")
        ra = 112 + 4 * (k % NAR)
        for j, (t, b) in enumerate(steps[s]):
            a(f"v_mfma_f32_16x16x32_bf16 v[{16+4*t}:{19+4*t}], v[{ra}:{ra+3}], v[{breg[b]}:{breg[b]+3}], v[{16+4*t}:{19+4*t}]")
        for q in list(sendq):
            if k >= 3 and S[k - 2] + 4 > 16 * q + 15 and k - 2 >= 0: send(q)
        if "two" in OPT:
            if 2 + p <= k <= 10 + p: dma(a, 9 + k - 2 - p, 5 + k - 2 - p)
        elif 1 + 2 * p <= k <= 9 + 2 * p: dma(a, k - 1 - 2 * p, 5 + k - 1 - 2 * p)
    st3(a, 3)
    for q in list(sendq): send(q)
    a(f"s_mul_i32 s64, s{S_WAVE}, 6144"); a(f"s_add_u32 s64, s64, {SB}"); a("v_add_u32 v3, s64, v2")
    a("s_waitcnt lgkmcnt(0)"); a("s_barrier")
    st3(a, 4)
    for j in range(3):
        a(f"ds_read_b128 v[{48+8*j}:{51+8*j}], v3 offset:{2048*j}"); a(f"ds_read_b128 v[{52+8*j}:{55+8*j}], v3 offset:{2048*j+1024}")
    a("s_waitcnt lgkmcnt(0)")
    A = 16 + 8 * p
    for j in range(3):
        for r in range(8): a(f"v_add_f32 v{A+r}, v{A+r}, v{48+8*j+r}")
    for i in range(2):
        t = 2 * p + i; o = 80 + 2 * i
        a(f"v_cvt_pk_bf16_f32 v{o}, v{A+4*i}, v{A+4*i+1}"); a(f"v_cvt_pk_bf16_f32 v{o+1}, v{A+4*i+2}, v{A+4*i+3}")
        a(f"buffer_store_dwordx2 v[{o}:{o+1}], v247, {W}, 0 offen offset:{512*t} sc1")
```

```python
from asm import *
from pA import (L, D, N, F, LOG2E, NLOG2E, INV2PI, WS_GRAN, WS_CS, WS_FLAG1, WS_FLAG3, WS_G2, WS_XT, WS_FLAG2, WS_FLAG4, WS_HT, HTS, WS_HF, WS_SIZE, SRD_WS, SRD_DBG, SPIN_MAX,
                OPS, OP_CH, KC_CH, KC_CP, SB, TB0, TB_CH, UA0, UA_CH, RA0, RA_CH, LDS_TOTAL, cmul1, cmul2, reduce8, stats_pack)
S_WAVE, S_NONCE = 32, 33
W = f"s[{SRD_WS}:{SRD_WS+3}]"
DBG = f"s[{SRD_DBG}:{SRD_DBG+3}]"
OPT = set()
RED0 = RA0 + 2 * RA_CH

def prologue(a):
    a("s_load_dwordx16 s[4:19], s[0:1], 0")
    a("s_load_dwordx8 s[20:27], s[0:1], 64")
    a("s_load_dwordx4 s[28:31], s[0:1], 96")
    if "pf0" in OPT: code_prefetch(a)
    a("v_and_b32 v1, 63, v0"); a("v_lshrrev_b32 v2, 6, v0"); a("s_nop 0")
    a(f"v_readfirstlane_b32 s{S_WAVE}, v2")
    a("s_waitcnt lgkmcnt(0)")
    srd(a, SRD_WS, 30, WS_SIZE); srd(a, SRD_DBG, 28, 256)
    a(f"s_or_b32 s64, s2, s{S_WAVE}"); a("s_cmp_eq_u32 s64, 0"); a("s_cbranch_scc0 L_nopub")
    a("s_memrealtime s[64:65]"); a("s_waitcnt lgkmcnt(0)"); a("s_or_b32 s64, s64, 1")
    a("v_mov_b32 v3, s64"); a("v_mov_b32 v4, 0")
    a(f"buffer_store_dword v3, v4, {DBG}, 0 offen sc1")
    a.label("L_nopub")

def get_nonce(a, tag, vt):
    a(f"v_mov_b32 v{vt+1}, 0"); a("s_mov_b32 s66, 0")
    a.label(f"L_nonce_{tag}")
    a(f"buffer_load_dword v{vt}, v{vt+1}, {DBG}, 0 offen sc1")
    a("s_waitcnt vmcnt(0)")
    a(f"v_readfirstlane_b32 s{S_NONCE}, v{vt}")
    a("s_add_u32 s66, s66, 1"); a(f"s_cmp_gt_u32 s66, {SPIN_MAX}"); a(f"s_cbranch_scc1 L_nonce_{tag}_ok")
    a(f"s_cmp_eq_u32 s{S_NONCE}, 0"); a(f"s_cbranch_scc1 L_nonce_{tag}")
    a.label(f"L_nonce_{tag}_ok")

def publish_flag(a, off_sgpr, vt=2):
    lab = f"L_pub_{len(a.lines)}"
    a(f"s_cmp_eq_u32 s{S_WAVE}, 0"); a(f"s_cbranch_scc0 {lab}")
    a(f"v_mov_b32 v{vt}, s{S_NONCE}"); a(f"v_mov_b32 v{vt+1}, s{off_sgpr}")
    a("s_mov_b64 exec, 1")
    a(f"buffer_store_dword v{vt}, v{vt+1}, {W}, 0 offen sc1")
    a("s_mov_b64 exec, -1")
    a.label(lab)

def wait_flags(a, tag, base_sgpr, count, per_lane, vt=32):
    a(f"s_cmp_eq_u32 s{S_WAVE}, 0"); a(f"s_cbranch_scc0 L_wf_{tag}_bar")
    a(f"v_lshlrev_b32 v{vt}, 6, v1"); a(f"v_add_u32 v{vt}, s{base_sgpr}, v{vt}")
    a("s_mov_b32 s66, 0")
    if count < 64:
        a(f"v_cmp_gt_u32 vcc, {count}, v1"); a("s_and_saveexec_b64 s[68:69], vcc")
    a.label(f"L_wf_{tag}")
    for i in range(per_lane):
        if i == 0: a(f"buffer_load_dword v{vt+1}, v{vt}, {W}, 0 offen sc1")
        else:
            a(f"s_mov_b32 s67, {4096*i}"); a(f"buffer_load_dword v{vt+1+i}, v{vt}, {W}, s67 offen sc1")
    a("s_waitcnt vmcnt(0)")
    a(f"v_xor_b32 v{vt+1}, s{S_NONCE}, v{vt+1}")
    for i in range(1, per_lane):
        a(f"v_xor_b32 v{vt+1+i}, s{S_NONCE}, v{vt+1+i}"); a(f"v_or_b32 v{vt+1}, v{vt+1}, v{vt+1+i}")
    a(f"v_cmp_ne_u32 vcc, 0, v{vt+1}")
    a("s_add_u32 s66, s66, 1"); a(f"s_cmp_gt_u32 s66, {SPIN_MAX}"); a(f"s_cbranch_scc1 L_wf_{tag}_ok")
    a(f"s_cbranch_vccnz L_wf_{tag}")
    a.label(f"L_wf_{tag}_ok")
    a("s_mov_b64 exec, -1")
    a.label(f"L_wf_{tag}_bar")
    a("s_barrier")


X8S = 7168
XS0 = RED0
def xp_issue(a):
    srd(a, 36, 4, L * D * 2)
    a(f"s_lshl_b32 s64, s2, 3"); a(f"s_add_u32 s64, s64, s{S_WAVE}"); a("s_mul_i32 s64, s64, 896")
    a("v_lshl_add_u32 v194, v1, 4, s64")
    for r in range(4): a(f"v_mov_b32 v{196+r}, 0")
    a("v_cmp_gt_u32 vcc, 56, v1"); a("s_and_saveexec_b64 s[66:67], vcc")
    a("buffer_load_dwordx4 v[196:199], v194, s[36:39], 0 offen")
    a("s_mov_b64 exec, s[66:67]")
    a("v_mov_b32 v193, 0"); a(f"buffer_load_dword v195, v193, {DBG}, 0 offen sc1")
def xp_mid(a, tag):
    a(f"s_mul_i32 s64, s{S_WAVE}, 912"); a(f"s_add_u32 s64, s64, {XS0}"); a("v_lshl_add_u32 v194, v1, 4, s64")
    a("v_cmp_gt_u32 vcc, 56, v1"); a("s_and_saveexec_b64 s[66:67], vcc")
    a("ds_write_b128 v194, v[196:199]"); a("s_mov_b64 exec, s[66:67]")
    a("v_bfe_u32 v184, v1, 2, 2"); a("v_mul_u32_u24 v184, 912, v184")
    a("v_lshrrev_b32 v185, 4, v1"); a("v_lshl_add_u32 v184, v185, 5, v184"); a("v_and_b32 v185, 3, v1"); a("v_lshl_add_u32 v184, v185, 3, v184")
    a(f"s_lshl_b32 s64, s{S_WAVE}, 7"); a(f"s_add_u32 s64, s64, {XS0}"); a("v_add_u32 v184, s64, v184")
    a(f"s_mul_i32 s64, s2, {X8S}"); a(f"s_lshl_b32 s65, s{S_WAVE}, 10"); a("s_add_u32 s64, s64, s65"); a(f"s_add_u32 s64, s64, {WS_XT}")
    a("v_lshl_add_u32 v185, v1, 4, s64")
    a("s_waitcnt lgkmcnt(0)"); a("s_barrier")
    a(f"s_cmp_ge_u32 s{S_WAVE}, 7"); a(f"s_cbranch_scc1 L_xp_notr_{tag}")
    a("ds_read_b64_tr_b16 v[180:181], v184"); a(f"ds_read_b64_tr_b16 v[182:183], v184 offset:{4*912}")
    a("s_waitcnt lgkmcnt(0)")
    a(f"buffer_store_dwordx4 v[180:183], v185, {W}, 0 offen sc1")
    a.label(f"L_xp_notr_{tag}")
    a("v_mov_b32 v190, 0x3f803f80"); a("v_mov_b32 v188, 0"); a("v_mov_b32 v189, 0")
    for j in range(4):
        a(f"v_dot2_f32_bf16 v188, v{196+j}, v190, v188"); a(f"v_dot2_f32_bf16 v189, v{196+j}, v{196+j}, v189")
    for mod in ("quad_perm:[1,0,3,2]", "quad_perm:[2,3,0,1]", "row_half_mirror", "row_mirror"):
        for r in (188, 189): a(f"v_add_f32_dpp v{r}, v{r}, v{r} {mod} row_mask:0xf bank_mask:0xf")
    for sw in ("v_permlane16_swap_b32", "v_permlane32_swap_b32"):
        a("v_mov_b32 v186, v188"); a("v_mov_b32 v187, v189")
        a(f"{sw} v188, v186"); a(f"{sw} v189, v187")
        a("v_add_f32 v188, v188, v186"); a("v_add_f32 v189, v189, v187")
    stats_pack(a, 188, 189, 186, 184)
    a("v_and_b32 v187, 0xffff0000, v186"); a("v_lshlrev_b32 v186, 16, v186"); a("v_rcp_f32 v188, v187")
    a("v_mul_f32_e64 v189, -v186, v188")
    a(f"s_lshl_b32 s64, s2, 6"); a(f"s_lshl_b32 s65, s{S_WAVE}, 3"); a("s_add_u32 s64, s64, s65"); a("v_mov_b32 v187, s64")
    a("s_mov_b64 exec, 1")
    a(f"buffer_store_dwordx2 v[188:189], v187, {W}, 0 offen offset:{WS_GRAN} sc1")
    a("s_mov_b64 exec, -1")
def xg_mid(a, tag):
    a("v_mov_b32 v190, 0x3f803f80"); a("v_mov_b32 v188, 0"); a("v_mov_b32 v189, 0")
    for j in range(4):
        a(f"v_dot2_f32_bf16 v188, v{196+j}, v190, v188"); a(f"v_dot2_f32_bf16 v189, v{196+j}, v{196+j}, v189")
    for mod in ("quad_perm:[1,0,3,2]", "quad_perm:[2,3,0,1]", "row_half_mirror", "row_mirror"):
        for r in (188, 189): a(f"v_add_f32_dpp v{r}, v{r}, v{r} {mod} row_mask:0xf bank_mask:0xf")
    for sw in ("v_permlane16_swap_b32", "v_permlane32_swap_b32"):
        a("v_mov_b32 v186, v188"); a("v_mov_b32 v187, v189")
        a(f"{sw} v188, v186"); a(f"{sw} v189, v187")
        a("v_add_f32 v188, v188, v186"); a("v_add_f32 v189, v189, v187")
    stats_pack(a, 188, 189, 186, 184)
    a(f"v_readfirstlane_b32 s{S_NONCE}, v195")
    a(f"s_cmp_eq_u32 s{S_NONCE}, 0"); a(f"s_cbranch_scc0 L_xg_have_{tag}")
    get_nonce(a, "xg" + tag, 192)
    a.label(f"L_xg_have_{tag}")
    a(f"v_mov_b32 v187, s{S_NONCE}")
    a(f"s_lshl_b32 s64, s2, 6"); a(f"s_lshl_b32 s65, s{S_WAVE}, 3"); a("s_add_u32 s64, s64, s65"); a("v_mov_b32 v188, s64")
    a("s_mov_b64 exec, 1")
    a(f"buffer_store_dwordx2 v[186:187], v188, {W}, 0 offen offset:{WS_GRAN} sc1")
    a("s_mov_b64 exec, -1")
def xp_pub(a, tag):
    a("s_waitcnt vmcnt(0)")
    a(f"v_readfirstlane_b32 s{S_NONCE}, v195")
    a(f"s_cmp_eq_u32 s{S_NONCE}, 0"); a(f"s_cbranch_scc0 L_xp_have_{tag}")
    get_nonce(a, "xp" + tag, 194)
    a.label(f"L_xp_have_{tag}")
    a("s_barrier")
    a("s_lshl_b32 s64, s2, 6"); a(f"s_add_u32 s64, s64, {WS_FLAG1}")
    publish_flag(a, 64, 194)

def touch_w13(a):
    a("s_and_b32 s64, s2, 7"); a("s_lshr_b32 s65, s2, 3")
    a("s_and_b32 s66, s64, 1"); a("s_mul_i32 s66, s66, 7"); a("s_lshr_b32 s67, s65, 2"); a("s_add_u32 s66, s66, s67")
    a("s_and_b32 s65, s65, 3")
    a("s_cmp_lt_u32 s65, 2"); a("s_cselect_b32 s76, s20, s22"); a("s_cselect_b32 s77, s21, s23")
    a(f"s_mov_b32 s78, {D*F*2}"); a("s_mov_b32 s79, 0x20000")
    a("s_and_b32 s65, s65, 1"); a("s_mul_i32 s65, s65, 448"); a(f"s_min_u32 s67, s{S_WAVE}, 6"); a("s_lshl_b32 s67, s67, 6"); a("s_add_u32 s65, s65, s67")
    a("v_add_u32 v192, s65, v1")
    a("v_lshrrev_b32 v191, 1, v192"); a("v_mul_u32_u24 v191, 3584, v191"); a("v_and_b32 v192, 1, v192"); a("v_lshl_add_u32 v191, v192, 7, v191")
    a("s_lshl_b32 s66, s66, 8"); a("v_add_u32 v191, s66, v191")
    a("buffer_load_dword v192, v191, s[76:79], 0 offen")

def touch_weights(a, tag):
    a(f"s_cmp_ge_u32 s{S_WAVE}, 3"); a(f"s_cbranch_scc1 L_touch_skip_{tag}")
    a(f"s_lshl_b32 s64, s{S_WAVE}, 1"); a("s_cmp_eq_u32 s64, 0"); a("s_cselect_b32 s76, s20, s22"); a("s_cselect_b32 s77, s21, s23")
    a("s_cmp_eq_u32 s64, 4"); a("s_cselect_b32 s76, s24, s76"); a("s_cselect_b32 s77, s25, s77")
    a(f"s_mov_b32 s78, {D*F*2}"); a("s_mov_b32 s79, 0x20000")
    a("s_mul_i32 s64, s2, 49"); a("v_add_u32 v191, s64, v1"); a("v_lshlrev_b32 v191, 7, v191")
    a("v_cmp_gt_u32 vcc, 49, v1"); a("s_and_saveexec_b64 s[66:67], vcc")
    a("buffer_load_dword v192, v191, s[76:79], 0 offen")
    a("s_mov_b64 exec, s[66:67]")
    a.label(f"L_touch_skip_{tag}")

def poll_issue(a, tag, base_sgpr, count, per_lane, vt):
    a(f"s_cmp_eq_u32 s{S_WAVE}, 0"); a(f"s_cbranch_scc0 L_pi_{tag}")
    a(f"v_lshlrev_b32 v{vt}, 6, v1"); a(f"v_add_u32 v{vt}, s{base_sgpr}, v{vt}")
    if count < 64:
        a(f"v_min_u32 v{vt+1}, {count-1}, v1"); a(f"v_lshlrev_b32 v{vt}, 6, v{vt+1}"); a(f"v_add_u32 v{vt}, s{base_sgpr}, v{vt}")
    for i in range(per_lane):
        if i == 0: a(f"buffer_load_dword v{vt+1}, v{vt}, {W}, 0 offen sc1")
        else:
            a(f"s_mov_b32 s67, {4096*i}"); a(f"buffer_load_dword v{vt+1+i}, v{vt}, {W}, s67 offen sc1")
    a.label(f"L_pi_{tag}")
def poll_check(a, tag, per_lane, vt):
    a(f"s_cmp_eq_u32 s{S_WAVE}, 0"); a(f"s_cbranch_scc0 L_pc_{tag}_bar")
    a("s_mov_b32 s66, 0")
    a.label(f"L_pc_{tag}")
    a(f"v_xor_b32 v{vt+1}, s{S_NONCE}, v{vt+1}")
    for i in range(1, per_lane):
        a(f"v_xor_b32 v{vt+1+i}, s{S_NONCE}, v{vt+1+i}"); a(f"v_or_b32 v{vt+1}, v{vt+1}, v{vt+1+i}")
    a(f"v_cmp_ne_u32 vcc, 0, v{vt+1}")
    a(f"s_cbranch_vccz L_pc_{tag}_bar")
    a("s_add_u32 s66, s66, 1"); a(f"s_cmp_gt_u32 s66, {SPIN_MAX}"); a(f"s_cbranch_scc1 L_pc_{tag}_bar")
    for i in range(per_lane):
        if i == 0: a(f"buffer_load_dword v{vt+1}, v{vt}, {W}, 0 offen sc1")
        else:
            a(f"s_mov_b32 s67, {4096*i}"); a(f"buffer_load_dword v{vt+1+i}, v{vt}, {W}, s67 offen sc1")
    a("s_waitcnt vmcnt(0)")
    a(f"s_branch L_pc_{tag}")
    a.label(f"L_pc_{tag}_bar")
    a("s_barrier")

def tlb_touch(a):
    a("v_and_b32 v175, 31, v1"); a("v_lshlrev_b32 v175, 19, v175")
    a(f"buffer_load_dword v176, v175, {W}, 0 offen")
    srd(a, 76, 26, L * D * 2)
    a("buffer_load_dword v174, v175, s[76:79], 0 offen")

def code_prefetch(a, wave_sgpr=None, vt=177):
    a("s_getpc_b64 s[78:79]")
    lab = f"L_pc_{len(a.lines)}"
    a.label(lab)
    a(f"s_sub_u32 s78, s78, {lab}-KERNEL_START"); a("s_subb_u32 s79, s79, 0")
    a(f"v_lshrrev_b32 v{vt+1}, 1, v0"); a(f"v_lshlrev_b32 v{vt+1}, 7, v{vt+1}")
    a(f"v_min_u32 v{vt+1}, KERNEL_END-KERNEL_START-4, v{vt+1}")
    a(f"global_load_dword v{vt}, v{vt+1}, s[78:79]")

def helper(a):
    a("s_sub_u32 s70, s2, 224")
    xp_issue(a)
    if "G" in OPT:
        a("s_waitcnt vmcnt(0)")
        xg_mid(a, "h")
    else:
        a("s_waitcnt vmcnt(1)")
        xp_mid(a, "h")
        xp_pub(a, "h")
    if "notouch" not in OPT: touch_weights(a, "h")
    stamp(a, 1)
    a("s_cmp_lt_u32 s70, 16")
    a("s_cselect_b32 s36, s20, s22"); a("s_cselect_b32 s37, s21, s23")
    a(f"s_mov_b32 s38, {D*F*2}"); a("s_mov_b32 s39, 0x20000")
    a("s_and_b32 s64, s70, 15"); a("s_mul_i32 s64, s64, 224")
    a("v_lshrrev_b32 v2, 4, v1"); a("v_and_b32 v3, 15, v1")
    a(f"s_mul_i32 s65, s{S_WAVE}, 56"); a("v_add_u32 v4, s65, v2")
    a("s_movk_i32 s65, 3584"); a("v_mul_lo_u32 v4, v4, s65"); a("v_lshl_add_u32 v4, v3, 4, v4"); a("v_add_u32 v4, s64, v4")
    for i in range(14):
        a(f"s_mov_b32 s67, {4*3584*i}")
        a(f"buffer_load_dwordx4 v[{8+4*i}:{11+4*i}], v4, s[36:39], s67 offen")
    for e in range(8): a(f"v_mov_b32 v{72+e}, 0")
    for i in range(14):
        a(f"s_waitcnt vmcnt({13-i})")
        for j in range(4):
            r = 8 + 4 * i + j
            a(f"v_lshlrev_b32 v80, 16, v{r}"); a(f"v_and_b32 v81, 0xffff0000, v{r}")
            a(f"v_add_f32 v{72+2*j}, v{72+2*j}, v80"); a(f"v_add_f32 v{73+2*j}, v{73+2*j}, v81")
    a(f"s_lshl_b32 s65, s{S_WAVE}, 2"); a("v_add_u32 v5, s65, v2"); a("v_lshlrev_b32 v5, 9, v5"); a("v_lshl_add_u32 v5, v3, 5, v5")
    a("ds_write_b128 v5, v[72:75]"); a("ds_write_b128 v5, v[76:79] offset:16")
    a("s_waitcnt lgkmcnt(0)"); a("s_barrier")
    a("v_lshlrev_b32 v5, 2, v0")
    a("v_cmp_gt_u32 vcc, 112, v0"); a("s_and_saveexec_b64 s[64:65], vcc"); a("s_cbranch_execz L_h_cs_done")
    for k in range(32): a(f"ds_read_b32 v{8+k}, v5 offset:{512*k}")
    a("s_waitcnt lgkmcnt(0)")
    for k in range(1, 32): a(f"v_add_f32 v8, v8, v{8+k}")
    a("s_mul_i32 s66, s70, 448"); a(f"s_add_u32 s66, s66, {WS_CS}"); a("v_add_u32 v5, s66, v5")
    a(f"buffer_store_dword v8, v5, {W}, 0 offen sc1")
    a.label("L_h_cs_done")
    a("s_mov_b64 exec, s[64:65]")
    a("s_waitcnt vmcnt(0)"); a("s_barrier")
    a("s_lshl_b32 s64, s2, 6"); a(f"s_add_u32 s64, s64, {WS_FLAG2}")
    publish_flag(a, 64)
    a(f"s_mov_b32 s64, {WS_FLAG2}")
    wait_flags(a, "hs2", 64, 256, 4)
    a("v_and_b32 v2, 31, v1"); a("v_lshrrev_b32 v3, 5, v1"); a(f"s_lshl_b32 s64, s{S_WAVE}, 1"); a("v_add_u32 v3, s64, v3")
    a(f"v_mul_u32_u24 v3, {HTS}, v3"); a("v_lshl_add_u32 v3, v2, 2, v3"); a("s_lshl_b32 s64, s70, 7"); a(f"s_add_u32 s64, s64, {WS_HT}"); a("v_add_u32 v3, s64, v3")
    for i in range(28):
        a(f"s_mov_b32 s67, {16*HTS*i}"); a(f"buffer_load_dword v{40+i}, v3, {W}, s67 offen")
    for r in range(4): a(f"v_mov_b32 v{8+r}, 0")
    for i in range(28):
        a(f"s_waitcnt vmcnt({27-i})")
        a(f"v_lshlrev_b32 v12, 16, v{40+i}"); a(f"v_and_b32 v13, 0xffff0000, v{40+i}")
        a("v_add_f32 v8, v8, v12"); a("v_add_f32 v9, v9, v13"); a("v_fma_f32 v10, v12, v12, v10"); a("v_fma_f32 v11, v13, v13, v11")
    for r in range(8, 12):
        a(f"v_mov_b32 v12, v{r}"); a(f"v_permlane32_swap_b32 v{r}, v12"); a(f"v_add_f32 v{r}, v{r}, v12")
    a(f"s_lshl_b32 s64, s{S_WAVE}, 9"); a("v_lshl_add_u32 v4, v2, 4, s64")
    a("ds_write_b128 v4, v[8:11]")
    a("s_waitcnt lgkmcnt(0)"); a("s_barrier")
    a("v_cmp_gt_u32 vcc, 64, v0"); a("s_and_saveexec_b64 s[64:65], vcc"); a("s_cbranch_execz L_h_g2_done")
    a("v_lshrrev_b32 v4, 1, v0"); a("v_lshlrev_b32 v4, 4, v4"); a("v_and_b32 v5, 1, v0"); a("v_lshl_add_u32 v4, v5, 2, v4")
    for k in range(8):
        a(f"ds_read_b32 v{16+k}, v4 offset:{512*k}"); a(f"ds_read_b32 v{24+k}, v4 offset:{512*k+8}")
    a("s_waitcnt lgkmcnt(0)")
    for k in range(1, 8):
        a(f"v_add_f32 v16, v16, v{16+k}"); a(f"v_add_f32 v24, v24, v{24+k}")
    stats_pack(a, 16, 24, 32, 34)
    a("v_and_b32 v33, 0xffff0000, v32"); a("v_lshlrev_b32 v32, 16, v32"); a("v_rcp_f32 v33, v33")
    a("s_lshl_b32 s66, s70, 9"); a(f"s_add_u32 s66, s66, {WS_G2}"); a("v_lshl_add_u32 v4, v0, 3, s66")
    a(f"buffer_store_dwordx2 v[32:33], v4, {W}, 0 offen sc1")
    a.label("L_h_g2_done")
    a("s_mov_b64 exec, s[64:65]")
    a("s_waitcnt vmcnt(0)"); a("s_barrier")
    a("s_lshl_b32 s64, s70, 6"); a(f"s_add_u32 s64, s64, {WS_FLAG3}")
    publish_flag(a, 64)
    stamp(a, 2)

def st2(a, i):
    if "convdiag" not in OPT: stamp(a, i)
def st3(a, i):
    if "convdiag" in OPT: stamp(a, i)
def phaseA(a, hooks):
    XPK = next((int(o[3:]) for o in OPT if o.startswith("xpk")), 8)
    TK = next((int(o[2:]) for o in OPT if o.startswith("tk")), 9)
    a(f"s_lshr_b32 s34, s{S_WAVE}, 2"); a(f"s_and_b32 s35, s{S_WAVE}, 3")
    xp_issue(a)
    srd(a, 40, 6, D * N * 2); srd(a, 44, 8, D * N * 2); srd(a, 48, 10, D * N * 2); srd(a, 52, 12, D * N * 2)
    a("s_and_b32 s64, s2, 7"); a("s_mul_i32 s64, s64, 28"); a("s_lshr_b32 s65, s2, 3"); a("s_add_u32 s75, s64, s65")
    a("s_lshl_b32 s64, s75, 2")
    a("s_load_dword s68, s[14:15], s64"); a("s_load_dword s69, s[16:17], s64")
    a("s_lshl_b32 s70, s75, 1"); a("s_add_u32 s70, s70, s34")
    a("s_lshl_b32 s65, s70, 9"); a("s_lshl_b32 s66, s35, 7"); a("s_add_u32 s65, s65, s66")
    a("v_lshl_add_u32 v3, v1, 1, s65")
    a("buffer_load_ushort v10, v3, s[40:43], 0 offen"); a("buffer_load_ushort v11, v3, s[44:47], 0 offen")
    a("buffer_load_ushort v12, v3, s[48:51], 0 offen"); a("buffer_load_ushort v13, v3, s[52:55], 0 offen")
    if "nopf" not in OPT and "pf0" not in OPT: code_prefetch(a)
    if "tlb" in OPT: tlb_touch(a)
    if "tearly" in OPT: touch_weights(a, "m")
    if "G" in OPT:
        a("v_mul_u32_u24 v179, 896, v1"); a("s_lshl_b32 s65, s75, 2"); a("v_add_u32 v179, s65, v179")
        GW = next((int(o[2:]) for o in OPT if o.startswith("gw")), 1)
        for i in range(GW):
            a(f"s_mul_i32 s65, s{S_WAVE}, {GW}"); a(f"s_add_u32 s65, s65, {i}"); a("s_lshl_b32 s66, s65, 8"); a(f"s_add_u32 m0, s66, {RED0}")
            a(f"s_mul_i32 s67, s65, {64*896}"); a("buffer_load_dword v179, s[36:39], s67 offen lds")
        a(f"s_cmp_eq_u32 s{S_WAVE}, 7"); a("s_cbranch_scc0 L_g_skip")
        for i in range(8 * GW, 32):
            a(f"s_mov_b32 m0, {RED0 + 256*i}"); a(f"s_mov_b32 s67, {64*896*i}")
            a("buffer_load_dword v179, s[36:39], s67 offen lds")
        a.label("L_g_skip")
    a("v_lshlrev_b32 v7, 4, v0"); a(f"v_add_u32 v7, {SB}, v7")
    a("v_mov_b32 v20, 0\nv_mov_b32 v21, 0\nv_mov_b32 v22, 0\nv_mov_b32 v23, 0")
    a("v_cmp_gt_u32 vcc, 30, v0"); a("s_and_saveexec_b64 s[66:67], vcc")
    a(f"ds_write_b128 v7, v[20:23] offset:{UA0-SB}"); a(f"ds_write_b128 v7, v[20:23] offset:{UA0-SB+UA_CH}")
    a("s_mov_b64 exec, s[66:67]")
    a("v_and_b32 v8, 255, v0"); a("v_lshlrev_b32 v9, 3, v8"); a("v_sub_u32 v9, 2047, v9")
    for e in range(11): a(f"v_subrev_u32 v{30+e}, {e}, v9")
    for e in range(0, 12, 2):
        a(f"v_cvt_f32_i32 v{44+e}, v{30+e}")
        if e + 1 < 11: a(f"v_cvt_f32_i32 v{45+e}, v{31+e}")
        a(f"v_cvt_pk_bf16_f32 v{58+e//2}, v{44+e}, v{45+e if e+1 < 11 else 44+e}")
    for e in range(11):
        p = 58 + e // 2; r = 226 + e
        a(f"v_and_b32 v{r}, 0xffff, v{p}" if e % 2 == 0 else f"v_lshrrev_b32 v{r}, 16, v{p}")
        a(f"v_subrev_u32 v{r}, 17024, v{r}"); a(f"v_min_i32 v{30+e}, 128, v{30+e}"); a(f"v_max_i32 v{r}, v{r}, v{30+e}")
    a("v_mov_b32 v64, 641")
    for e in range(8, 11):
        a(f"v_cmp_gt_i32 vcc, {e}, v9"); a(f"v_cndmask_b32 v{226+e}, v{226+e}, v64, vcc")
    a(f"s_mul_i32 s66, s34, {TB_CH}"); a(f"s_add_u32 s72, s66, {TB0}")
    a("v_mov_b32 v65, s72")
    for e in range(11): a(f"v_lshl_add_u32 v{226+e}, v{226+e}, 1, v65")
    a(f"s_mul_i32 s66, s34, {KC_CH}"); a("s_add_u32 s66, s66, 32"); a("v_lshl_add_u32 v237, v8, 4, s66")
    a("v_and_b32 v9, 15, v1"); a("v_lshrrev_b32 v8, 4, v1")
    a(f"s_and_b32 s73, s{S_WAVE}, 1"); a(f"s_bfe_u32 s74, s{S_WAVE}, 0x10001")
    a("s_lshl_b32 s65, s73, 4"); a("v_add_u32 v30, s65, v9")
    a("v_lshlrev_b32 v31, 4, v30"); a("v_lshl_add_u32 v31, v8, 3, v31")
    a("v_lshlrev_b32 v32, 3, v30"); a("v_add_u32 v32, 512, v32")
    a("v_cmp_eq_u32 vcc, 2, v8"); a("v_cndmask_b32 v31, v31, v32, vcc")
    a("v_lshlrev_b32 v32, 2, v30"); a("v_add_u32 v32, 768, v32")
    a("v_add_u32 v33, 4, v31"); a("v_add_u32 v34, 128, v32")
    a("v_cmp_eq_u32 vcc, 3, v8"); a("v_cndmask_b32 v31, v31, v32, vcc"); a("v_cndmask_b32 v33, v33, v34, vcc")
    a("v_lshlrev_b32 v32, 1, v30"); a("v_add_u32 v32, 1024, v32"); a("v_mov_b32 v34, 1288")
    a("v_cmp_eq_u32 vcc, 0, v8")
    for r in range(4):
        a(f"v_add_u32 v35, {64*r}, v32"); a(f"v_cndmask_b32 v{238+r}, v34, v35, vcc")
    a("v_lshl_add_u32 v35, v8, 8, v30"); a("v_mov_b32 v36, 1280")
    a("v_cmp_eq_u32 vcc, 0x100, v35"); a("v_cndmask_b32 v238, v238, v36, vcc")
    a("s_cmp_eq_u32 s74, 0"); a("s_cbranch_scc0 L_tb_rt1")
    a("v_mov_b32 v238, v31"); a("v_mov_b32 v239, v33")
    a.label("L_tb_rt1")
    for r in range(4): a(f"v_add_u32 v{238+r}, s72, v{238+r}")
    a("v_mov_b32 v36, s72"); a("ds_write_b16 v36, v20 offset:1282")
    a(f"s_movk_i32 s65, {OPS}"); a("v_mul_lo_u32 v248, v9, s65"); a("v_lshl_add_u32 v248, v8, 4, v248")
    a(f"s_mul_i32 s66, s34, {OP_CH}"); a("v_add_u32 v248, s66, v248")
    a(f"s_mul_i32 s67, s73, {16*OPS}"); a(f"s_add_u32 s67, s67, {21*OPS}"); a("v_add_u32 v249, s67, v248")
    a(f"s_mul_i32 s67, s74, {16*OPS}"); a("v_add_u32 v248, s67, v248")
    a("v_sub_u32 v30, 3, v9"); a("v_and_b32 v30, 3, v30")
    a(f"s_movk_i32 s65, {KC_CP}"); a("v_mul_lo_u32 v31, v30, s65")
    a("v_lshlrev_b32 v32, 3, v8"); a("v_sub_u32 v32, v32, v9"); a("v_sub_u32 v32, v32, v30"); a("v_add_u32 v32, 2047, v32")
    a("v_lshl_add_u32 v31, v32, 1, v31")
    a(f"s_mul_i32 s66, s34, {KC_CH}"); a(f"s_sub_u32 s66, s66, {64*63}"); a("v_add_u32 v244, s66, v31")
    a(f"s_mul_i32 s66, s34, {UA_CH}"); a(f"s_add_u32 s66, s66, {UA0}")
    a("v_lshlrev_b32 v31, 5, v9"); a("v_lshl_add_u32 v31, v8, 4, v31"); a("v_add_u32 v245, s66, v31")
    a(f"s_mul_i32 s66, s34, {RA_CH}"); a(f"s_add_u32 s66, s66, {RA0}")
    a("v_lshlrev_b32 v31, 6, v9"); a("v_lshl_add_u32 v31, v8, 4, v31"); a("v_add_u32 v246, s66, v31")
    a(f"s_mul_i32 s66, s70, {HTS}"); a(f"s_add_u32 s66, s66, {WS_HT}")
    a("v_lshlrev_b32 v31, 5, v9"); a("v_lshl_add_u32 v31, v8, 3, v31"); a("v_add_u32 v247, s66, v31")
    a(f"s_mul_i32 s71, s34, {OP_CH}"); a("s_lshl_b32 s66, s35, 8"); a("s_add_u32 s71, s71, s66")
    a("s_waitcnt lgkmcnt(0)")
    a("s_lshl_b32 s65, s34, 4"); a("s_lshr_b32 s66, s68, s65"); a("s_lshl_b32 s66, s66, 16")
    a(f"v_mov_b32 v14, {LOG2E:#x}"); a("v_mul_f32 v15, s66, v14"); a("v_exp_f32 v15, v15")
    a("v_cvt_pk_bf16_f32 v15, v15, v15"); a("v_lshlrev_b32 v15, 16, v15")
    a("s_mov_b32 m0, s71")
    st2(a, 1)
    if "G" in OPT:
        GW = next((int(o[2:]) for o in OPT if o.startswith("gw")), 1)
        a(f"s_cmp_eq_u32 s{S_WAVE}, 7"); a("s_cbranch_scc1 L_g_w7")
        a(f"s_waitcnt vmcnt({GW})"); a("s_branch L_g_wd")
        a.label("L_g_w7"); a(f"s_waitcnt vmcnt({32 - 7*GW})")
        a.label("L_g_wd")
        xg_mid(a, "m")
    else:
        npf = (0 if ("nopf" in OPT or "pf0" in OPT) else 1) + (2 if "tlb" in OPT else 0)
        a(f"s_waitcnt vmcnt({5+npf})")
        xp_mid(a, "m")
        a(f"s_waitcnt vmcnt({1+npf})")
    a("s_mov_b32 m0, s71")
    st2(a, 2)
    a("v_lshlrev_b32 v16, 16, v10"); a("v_lshlrev_b32 v24, 16, v11"); a("v_mul_f32 v16, v14, v16"); a("v_mul_f32 v24, v24, v15")
    a("v_exp_f32 v16, v16"); a(f"v_mul_f32 v24, {INV2PI:#x}, v24")
    a("v_lshlrev_b32 v30, 16, v12"); a("v_lshlrev_b32 v31, 16, v13")
    a("v_cvt_pk_bf16_f32 v16, v16, v16"); a("v_add_f32 v26, v15, v15")
    a("v_lshlrev_b32 v18, 16, v16")
    a("v_mul_f32 v30, v30, v26"); a("v_mul_f32_e64 v31, -v31, v26")
    a("v_mul_f32 v18, v18, v15"); a("v_mul_f32_e64 v18, -v18, v14")
    P, Q = 18, 24
    X, Xb = 30, 34
    Z = {1: 40, 8: 44, 256: 48, 2: 52, 4: 56}
    for k, t in enumerate((8, 1, 256)):
        tm = 60 + 2 * k
        if t == 1:
            a(f"v_exp_f32 v{tm}, v{P}"); a(f"v_fract_f32 v{tm+1}, v{Q}")
        else:
            c = {8: 0x41000000, 256: 0x43800000}[t]
            a(f"v_mul_f32 v{tm}, {c:#x}, v{P}"); a(f"v_mul_f32 v{tm+1}, {c:#x}, v{Q}")
            a(f"v_exp_f32 v{tm}, v{tm}"); a(f"v_fract_f32 v{tm+1}, v{tm+1}")
    for k, t in enumerate((8, 1, 256)):
        tm = 60 + 2 * k; z = Z[t]
        a(f"v_cos_f32 v{z}, v{tm+1}"); a(f"v_sin_f32 v{z+1}, v{tm+1}")
    for k, t in enumerate((8, 1, 256)):
        tm = 60 + 2 * k; z = Z[t]
        a(f"v_mul_f32 v{z}, v{z}, v{tm}"); a(f"v_mul_f32 v{z+1}, v{z+1}, v{tm}")
    T, T2 = 72, 76
    pk = [80, 81, 82, 83, 84, 85]; pki = [0]
    def put(row, src):
        r = pk[pki[0] % 6]; pki[0] += 1
        a(f"v_cvt_pk_bf16_f32 v{r}, v{src}, v{src+1}")
        a(f"ds_write_addtid_b32 v{r} offset:{row*OPS}")
    Y, X256, X512, X768, XW = 88, 92, 96, 100, 104
    put(0, X); put(22, Z[8])
    a("v_mov_b32 v108, 0x3f80"); a(f"ds_write_addtid_b32 v108 offset:{21*OPS}")
    a(cmul1(0, Z[1], Z[1], T)); a(cmul2(Z[2], Z[1], Z[1], T, False))
    a(cmul1(0, Z[2], Z[2], T)); a(cmul2(Z[4], Z[2], Z[2], T, False))
    xs = [(c, Xb, X if c == 1 else Xb, Z[1]) for c in range(1, 8)]
    xs += [(8, X256, X, Z[256]), (9, XW, X256, Z[2]), (10, XW, XW, Z[2]), (11, XW, XW, Z[2]), (12, X512, X256, Z[256]),
           (13, XW, X512, Z[4]), (14, X768, X512, Z[256]), (15, XW, X768, Z[4]), (16, XW, X768, Z[256])]
    for r in range(17, 21): xs.append((r, XW, XW, Z[256]))
    def s1_issue():
        a(f"buffer_load_dword v223, v3, {W}, 0 offen sc1")
    for k, b in enumerate(range(2, 32)):
        src = Z[8] if b == 2 else Y
        x = xs[k] if k < len(xs) else None
        a(cmul1(0, src, Z[8], T))
        if x: a(cmul1(0, x[2], x[3], T2))
        a(cmul2(Y, src, Z[8], T, False))
        if x: a(cmul2(x[1], x[2], x[3], T2, True))
        put(21 + b, Y)
        if x: put(x[0], x[1])
        if k == XPK and "G" not in OPT:
            xp_pub(a, "m")
        if k == TK and "notouch" not in OPT:
            touch_weights(a, "m")
    st2(a, 3)
    a("s_waitcnt lgkmcnt(0)"); a("s_barrier")
    st2(a, 4)
    if "G" in OPT:
        a("v_and_b32 v221, 255, v0"); a("v_lshlrev_b32 v221, 6, v221")
        def g_issue():
            for i in range(4): a(f"buffer_load_dwordx4 v[{204+4*i}:{207+4*i}], v221, {W}, 0 offen offset:{WS_GRAN+16*i} sc1")
        g_issue()
    else:
        a("v_and_b32 v3, 255, v0"); a("v_lshlrev_b32 v3, 6, v3"); a(f"v_add_u32 v3, {WS_FLAG1}, v3")
        s1_issue()
    for r in range(4): a(f"v_mov_b32 v{16+r}, 0")
    NR = 6
    def rd(s):
        b = 32 + 8 * (s % NR)
        a(f"ds_read_b128 v[{b}:{b+3}], v248 offset:{64*s}"); a(f"ds_read_b128 v[{b+4}:{b+7}], v249 offset:{64*s}")
    for s in range(NR - 1): rd(s)
    for s in range(16):
        if s + NR - 1 < 16: rd(s + NR - 1)
        a(f"s_waitcnt lgkmcnt({2*min(15-s, NR-1)})")
        b = 32 + 8 * (s % NR)
        a(f"v_mfma_f32_16x16x32_bf16 v[16:19], v[{b}:{b+3}], v[{b+4}:{b+7}], v[16:19]")
        if s == 9 and "G" not in OPT:
            a("s_mov_b32 s66, 0")
            a.label("L_s1_chk")
            a("s_waitcnt vmcnt(0)")
            a(f"v_cmp_ne_u32 vcc, s{S_NONCE}, v223")
            a("s_cbranch_vccz L_s1_ok")
            a("s_add_u32 s66, s66, 1"); a(f"s_cmp_gt_u32 s66, {SPIN_MAX}"); a("s_cbranch_scc1 L_s1_ok")
            s1_issue()
            a("s_branch L_s1_chk")
            a.label("L_s1_ok")
            a("v_and_b32 v8, 255, v0")
            a(f"v_mul_u32_u24 v3, {X8S}, v8"); a("s_lshl_b32 s66, s70, 4"); a(f"s_add_u32 s66, s66, {WS_XT}"); a("v_add_u32 v3, s66, v3")
            a(f"buffer_load_dwordx4 v[200:203], v3, {W}, 0 offen")
            a(f"s_cmp_lt_u32 s{S_WAVE}, 4"); a("s_cbranch_scc0 L_s1_nost")
            a(f"s_lshl_b32 s66, s{S_WAVE}, 12"); a("v_lshl_add_u32 v3, v1, 4, s66")
            for i in range(4):
                a(f"s_add_u32 m0, s66, {RED0}"); a(f"buffer_load_dwordx4 v3, {W}, 0 offen offset:{1024*i} lds")
            a.label("L_s1_nost")
    a("v_cvt_pk_bf16_f32 v16, v16, v17"); a("v_cvt_pk_bf16_f32 v17, v18, v19")
    a("s_cmp_eq_u32 s74, 0"); a("s_cbranch_scc0 L_tw_rt1")
    a("ds_write_b32 v238, v16"); a("ds_write_b32 v239, v17"); a("s_branch L_tw_done")
    a.label("L_tw_rt1")
    a("ds_write_b16 v238, v16"); a("ds_write_b16_d16_hi v239, v16"); a("ds_write_b16 v240, v17"); a("ds_write_b16_d16_hi v241, v17")
    a.label("L_tw_done")
    a("s_waitcnt lgkmcnt(0)"); a("s_barrier")
    stamp(a, 5)
    hooks["setup"](a)
    stamp(a, 6)
    for e in range(11): a(f"ds_read_u16 v{70+e}, v{226+e}")
    a("v_mov_b32 v20, 0\nv_mov_b32 v21, 0\nv_mov_b32 v22, 0\nv_mov_b32 v23, 0")
    a("v_lshrrev_b32 v16, 1, v0"); a(f"s_movk_i32 s65, {KC_CP}"); a("v_mul_lo_u32 v16, v16, s65")
    a("v_and_b32 v17, 1, v0"); a("v_lshl_add_u32 v16, v17, 4, v16")
    a("s_waitcnt lgkmcnt(0)")
    for c in range(4):
        o = 110 + 4 * c
        for k in range(4):
            lo = 70 + c + 2 * k
            a(f"v_lshl_or_b32 v{o+k}, v{lo+1}, 16, v{lo}")
        a(f"ds_write_b128 v237, v[{o}:{o+3}] offset:{KC_CP*c}")
    a("v_cmp_gt_u32 vcc, 16, v0"); a("s_and_saveexec_b64 s[66:67], vcc")
    a("ds_write_b128 v16, v[20:23] offset:4128"); a("s_mov_b64 exec, s[66:67]")
    if "two" in OPT:
        for k in range(9): hooks["dma"](a, k, 5 + k)
    stamp(a, 7)
    a("s_lshl_b32 s65, s34, 4"); a("s_lshr_b32 s64, s69, s65"); a("s_lshl_b32 s64, s64, 16")
    if "G" in OPT:
        a("s_mov_b32 s66, 0")
        a.label("L_s1_chk")
        a("s_waitcnt vmcnt(0)")
        a(f"v_xor_b32 v16, s{S_NONCE}, v205")
        for i in range(1, 8):
            a(f"v_xor_b32 v17, s{S_NONCE}, v{205+2*i}"); a("v_or_b32 v16, v16, v17")
        a("v_cmp_ne_u32 vcc, 0, v16"); a("s_cbranch_vccz L_s1_ok")
        a("s_add_u32 s66, s66, 1"); a(f"s_cmp_gt_u32 s66, {SPIN_MAX}"); a("s_cbranch_scc1 L_s1_ok")
        g_issue()
        a("s_branch L_s1_chk")
        a.label("L_s1_ok")
        a("s_barrier")
        a("v_and_b32 v8, 255, v0"); a(f"v_lshlrev_b32 v9, 5, v8"); a(f"v_add_u32 v9, {RED0}, v9")
        a("ds_read_b128 v[192:195], v9"); a("ds_read_b128 v[196:199], v9 offset:16")
        a("s_xor_b32 s65, s34, 1"); a("s_lshl_b32 s65, s65, 4")
        for i in range(8):
            st = 204 + 2 * i
            a(f"v_and_b32 v{60+i}, 0xffff0000, v{st}"); a(f"v_rcp_f32 v{60+i}, v{60+i}"); a(f"v_lshlrev_b32 v{68+i}, 16, v{st}")
        a("s_waitcnt lgkmcnt(0)")
        for i in range(8):
            a(f"v_lshlrev_b32 v{30+i}, s65, v{192+i}"); a(f"v_and_b32 v{30+i}, 0xffff0000, v{30+i}")
            a(f"v_sub_f32 v{40+i}, v{30+i}, v{68+i}"); a(f"v_mul_f32 v{40+i}, v{40+i}, v{60+i}")
            a(f"v_fma_f32 v{48+i}, v{40+i}, s64, v{30+i}")
    else:
        a("s_waitcnt vmcnt(9)" if "two" in OPT else "s_waitcnt vmcnt(0)"); a("s_barrier")
        a("v_and_b32 v8, 255, v0"); a(f"v_lshlrev_b32 v9, 6, v8"); a(f"v_add_u32 v9, {RED0}, v9")
        for i in range(4): a(f"ds_read_b128 v[{204+4*i}:{207+4*i}], v9 offset:{16*i}")
        a("s_waitcnt lgkmcnt(0)")
        for i in range(8):
            x = 200 + i // 2; st = 204 + 2 * i
            a(f"v_lshlrev_b32 v{30+i}, 16, v{x}" if i % 2 == 0 else f"v_and_b32 v{30+i}, 0xffff0000, v{x}")
            a(f"v_fma_f32 v{40+i}, v{30+i}, v{st}, v{st+1}")
            a(f"v_fma_f32 v{48+i}, v{40+i}, s64, v{30+i}")
    for k in range(4): a(f"v_cvt_pk_bf16_f32 v{56+k}, v{40+2*k}, v{41+2*k}")
    a("v_and_b32 v8, 255, v0")
    a(f"s_mul_i32 s66, s34, {UA_CH}"); a(f"s_add_u32 s66, s66, {UA0+480}"); a("v_lshl_add_u32 v9, v8, 4, s66")
    a("ds_write_b128 v9, v[56:59]")
    a(f"s_mul_i32 s66, s34, {RA_CH}"); a(f"s_add_u32 s66, s66, {RA0}"); a("v_lshl_add_u32 v9, v8, 5, s66")
    a("ds_write_b128 v9, v[48:51]"); a("ds_write_b128 v9, v[52:55] offset:16")
    a("s_waitcnt vmcnt(0) lgkmcnt(0)"); a("s_barrier")
    stamp(a, 8)
    if "two" in OPT: hooks["tr1"](a)
    for v in range(3):
        a(f"s_cmp_eq_u32 s35, {v}"); a(f"s_cbranch_scc1 L_conv{v}")
    a("s_branch L_conv3")
    for v in range(4):
        a.label(f"L_conv{v}")
        conv(a, v, hooks["dma"])
        if v < 3: a("s_branch L_conv_done")
    a.label("L_conv_done")
    stamp(a, 9)
    a("s_waitcnt vmcnt(0)")
    stamp(a, 10)
    a("s_barrier")
    a("s_lshl_b32 s64, s2, 6"); a(f"s_add_u32 s64, s64, {WS_FLAG2}")
    publish_flag(a, 64)
    stamp(a, 11)

def conv(a, p, dma):
    S = [s for s in range(64) if s % 4 == p]
    steps = {s: [(t, 8 * t - s) for t in range(7, -1, -1) if s <= 8 * t + 7] for s in S}
    betas = sorted({b for s in S for t, b in steps[s]}, reverse=True)
    assert len(betas) == 16
    breg = {b: 48 + 4 * i for i, b in enumerate(betas)}
    NAR = 4; PFD = 3
    issued = []
    def ldA(k):
        sa = S[k]; r = 112 + 4 * (k % NAR)
        a(f"ds_read_b64 v[{r}:{r+1}], v244 offset:{64*(63-sa)}"); a(f"ds_read_b64 v[{r+2}:{r+3}], v244 offset:{64*(63-sa)+8}")
        issued.extend([("A", k)] * 2)
    first = {}
    for k, s in enumerate(S):
        for t, b in steps[s]: first.setdefault(b, k)
    def ldB(b):
        a(f"ds_read_b128 v[{breg[b]}:{breg[b]+3}], v245 offset:{64*(b+7)}"); issued.append(("B", b))
    a("v_lshlrev_b32 v2, 4, v1")
    for q in range(4):
        if q == p: continue
        src = [x for x in range(4) if x != q].index(p)
        a(f"s_lshl_b32 s64, s34, 2"); a(f"s_add_u32 s64, s64, {q}"); a("s_mul_i32 s64, s64, 6144"); a(f"s_add_u32 s64, s64, {SB + 2048*src}")
        a(f"v_add_u32 v{4+q}, s64, v2")
    sendq = [q for q in range(4) if q != p]
    def send(q):
        sendq.remove(q)
        a(f"ds_write_b128 v{4+q}, v[{16+8*q}:{19+8*q}]"); a(f"ds_write_b128 v{4+q}, v[{20+8*q}:{23+8*q}] offset:1024")
        issued.extend([("W", q)] * 2)
    st3(a, 1)
    ldA(0)
    for t, b in steps[S[0]]: ldB(b)
    ldA(1)
    if p == 0:
        for t in range(8):
            a(f"ds_read_b128 v[{16+4*t}:{19+4*t}], v246 offset:{1024*t}"); issued.append(("R", t))
    else:
        for r in range(32): a(f"v_mov_b32 v{16+r}, 0")
    for b in betas:
        if first[b] >= 1: ldB(b)
    ldA(2)
    for k, s in enumerate(S):
        if k + PFD < len(S): ldA(k + PFD)
        need = max(i for i, x in enumerate(issued) if x == ("A", k))
        for t, b in steps[s]:
            need = max(need, max(i for i, x in enumerate(issued) if x == ("B", b)))
        if k == 0 and p == 0: need = max(need, max(i for i, x in enumerate(issued) if x[0] == "R"))
        n = len(issued) - 1 - need
        a(f"s_waitcnt lgkmcnt({min(n, 15)})")
        if k == 0: st3(a, 2)
        if k == 1: a("s_barrier")
        ra = 112 + 4 * (k % NAR)
        for j, (t, b) in enumerate(steps[s]):
            a(f"v_mfma_f32_16x16x32_bf16 v[{16+4*t}:{19+4*t}], v[{ra}:{ra+3}], v[{breg[b]}:{breg[b]+3}], v[{16+4*t}:{19+4*t}]")
        for q in list(sendq):
            if k >= 3 and S[k - 2] + 4 > 16 * q + 15 and k - 2 >= 0: send(q)
        if "two" in OPT:
            if 2 + p <= k <= 10 + p: dma(a, 9 + k - 2 - p, 5 + k - 2 - p)
        elif 1 + 2 * p <= k <= 9 + 2 * p: dma(a, k - 1 - 2 * p, 5 + k - 1 - 2 * p)
    st3(a, 3)
    for q in list(sendq): send(q)
    a(f"s_mul_i32 s64, s{S_WAVE}, 6144"); a(f"s_add_u32 s64, s64, {SB}"); a("v_add_u32 v3, s64, v2")
    a("s_waitcnt lgkmcnt(0)"); a("s_barrier")
    st3(a, 4)
    for j in range(3):
        a(f"ds_read_b128 v[{48+8*j}:{51+8*j}], v3 offset:{2048*j}"); a(f"ds_read_b128 v[{52+8*j}:{55+8*j}], v3 offset:{2048*j+1024}")
    a("s_waitcnt lgkmcnt(0)")
    A = 16 + 8 * p
    for j in range(3):
        for r in range(8): a(f"v_add_f32 v{A+r}, v{A+r}, v{48+8*j+r}")
    for i in range(2):
        t = 2 * p + i; o = 80 + 2 * i
        a(f"v_cvt_pk_bf16_f32 v{o}, v{A+4*i}, v{A+4*i+1}"); a(f"v_cvt_pk_bf16_f32 v{o+1}, v{A+4*i+2}, v{A+4*i+3}")
        a(f"buffer_store_dwordx2 v[{o}:{o+1}], v247, {W}, 0 offen offset:{512*t} sc1")
```

```python
from asm import *
from pA import (L, D, N, F, LOG2E, NLOG2E, INV2PI, WS_GRAN, WS_CS, WS_FLAG1, WS_FLAG3, WS_G2, WS_XT, WS_FLAG2, WS_FLAG4, WS_HT, HTS, WS_HF, WS_SIZE, SRD_WS, SRD_DBG, SPIN_MAX,
                OPS, OP_CH, KC_CH, KC_CP, SB, TB0, TB_CH, UA0, UA_CH, RA0, RA_CH, LDS_TOTAL, cmul1, cmul2, reduce8, stats_pack)
S_WAVE, S_NONCE = 32, 33
W = f"s[{SRD_WS}:{SRD_WS+3}]"
DBG = f"s[{SRD_DBG}:{SRD_DBG+3}]"
OPT = set()
RED0 = RA0 + 2 * RA_CH

def prologue(a):
    a("s_load_dwordx16 s[4:19], s[0:1], 0")
    a("s_load_dwordx8 s[20:27], s[0:1], 64")
    a("s_load_dwordx4 s[28:31], s[0:1], 96")
    if "pf0" in OPT: code_prefetch(a)
    a("v_and_b32 v1, 63, v0"); a("v_lshrrev_b32 v2, 6, v0"); a("s_nop 0")
    a(f"v_readfirstlane_b32 s{S_WAVE}, v2")
    a("s_waitcnt lgkmcnt(0)")
    srd(a, SRD_WS, 30, WS_SIZE); srd(a, SRD_DBG, 28, 256)
    a(f"s_or_b32 s64, s2, s{S_WAVE}"); a("s_cmp_eq_u32 s64, 0"); a("s_cbranch_scc0 L_nopub")
    a("s_memrealtime s[64:65]"); a("s_waitcnt lgkmcnt(0)"); a("s_or_b32 s64, s64, 1")
    a("v_mov_b32 v3, s64"); a("v_mov_b32 v4, 0")
    a(f"buffer_store_dword v3, v4, {DBG}, 0 offen sc1")
    a.label("L_nopub")

def get_nonce(a, tag, vt):
    a(f"v_mov_b32 v{vt+1}, 0"); a("s_mov_b32 s66, 0")
    a.label(f"L_nonce_{tag}")
    a(f"buffer_load_dword v{vt}, v{vt+1}, {DBG}, 0 offen sc1")
    a("s_waitcnt vmcnt(0)")
    a(f"v_readfirstlane_b32 s{S_NONCE}, v{vt}")
    a("s_add_u32 s66, s66, 1"); a(f"s_cmp_gt_u32 s66, {SPIN_MAX}"); a(f"s_cbranch_scc1 L_nonce_{tag}_ok")
    a(f"s_cmp_eq_u32 s{S_NONCE}, 0"); a(f"s_cbranch_scc1 L_nonce_{tag}")
    a.label(f"L_nonce_{tag}_ok")

def publish_flag(a, off_sgpr, vt=2):
    lab = f"L_pub_{len(a.lines)}"
    a(f"s_cmp_eq_u32 s{S_WAVE}, 0"); a(f"s_cbranch_scc0 {lab}")
    a(f"v_mov_b32 v{vt}, s{S_NONCE}"); a(f"v_mov_b32 v{vt+1}, s{off_sgpr}")
    a("s_mov_b64 exec, 1")
    a(f"buffer_store_dword v{vt}, v{vt+1}, {W}, 0 offen sc1")
    a("s_mov_b64 exec, -1")
    a.label(lab)

def wait_flags(a, tag, base_sgpr, count, per_lane, vt=32):
    a(f"s_cmp_eq_u32 s{S_WAVE}, 0"); a(f"s_cbranch_scc0 L_wf_{tag}_bar")
    a(f"v_lshlrev_b32 v{vt}, 6, v1"); a(f"v_add_u32 v{vt}, s{base_sgpr}, v{vt}")
    a("s_mov_b32 s66, 0")
    if count < 64:
        a(f"v_cmp_gt_u32 vcc, {count}, v1"); a("s_and_saveexec_b64 s[68:69], vcc")
    a.label(f"L_wf_{tag}")
    for i in range(per_lane):
        if i == 0: a(f"buffer_load_dword v{vt+1}, v{vt}, {W}, 0 offen sc1")
        else:
            a(f"s_mov_b32 s67, {4096*i}"); a(f"buffer_load_dword v{vt+1+i}, v{vt}, {W}, s67 offen sc1")
    a("s_waitcnt vmcnt(0)")
    a(f"v_xor_b32 v{vt+1}, s{S_NONCE}, v{vt+1}")
    for i in range(1, per_lane):
        a(f"v_xor_b32 v{vt+1+i}, s{S_NONCE}, v{vt+1+i}"); a(f"v_or_b32 v{vt+1}, v{vt+1}, v{vt+1+i}")
    a(f"v_cmp_ne_u32 vcc, 0, v{vt+1}")
    a("s_add_u32 s66, s66, 1"); a(f"s_cmp_gt_u32 s66, {SPIN_MAX}"); a(f"s_cbranch_scc1 L_wf_{tag}_ok")
    a(f"s_cbranch_vccnz L_wf_{tag}")
    a.label(f"L_wf_{tag}_ok")
    a("s_mov_b64 exec, -1")
    a.label(f"L_wf_{tag}_bar")
    a("s_barrier")


X8S = 7168
XS0 = RED0
def xp_issue(a):
    srd(a, 36, 4, L * D * 2)
    a(f"s_lshl_b32 s64, s2, 3"); a(f"s_add_u32 s64, s64, s{S_WAVE}"); a("s_mul_i32 s64, s64, 896")
    a("v_lshl_add_u32 v194, v1, 4, s64")
    for r in range(4): a(f"v_mov_b32 v{196+r}, 0")
    a("v_cmp_gt_u32 vcc, 56, v1"); a("s_and_saveexec_b64 s[66:67], vcc")
    a("buffer_load_dwordx4 v[196:199], v194, s[36:39], 0 offen")
    a("s_mov_b64 exec, s[66:67]")
    a("v_mov_b32 v193, 0"); a(f"buffer_load_dword v195, v193, {DBG}, 0 offen sc1")
def xp_mid(a, tag):
    a(f"s_mul_i32 s64, s{S_WAVE}, 912"); a(f"s_add_u32 s64, s64, {XS0}"); a("v_lshl_add_u32 v194, v1, 4, s64")
    a("v_cmp_gt_u32 vcc, 56, v1"); a("s_and_saveexec_b64 s[66:67], vcc")
    a("ds_write_b128 v194, v[196:199]"); a("s_mov_b64 exec, s[66:67]")
    a("v_bfe_u32 v184, v1, 2, 2"); a("v_mul_u32_u24 v184, 912, v184")
    a("v_lshrrev_b32 v185, 4, v1"); a("v_lshl_add_u32 v184, v185, 5, v184"); a("v_and_b32 v185, 3, v1"); a("v_lshl_add_u32 v184, v185, 3, v184")
    a(f"s_lshl_b32 s64, s{S_WAVE}, 7"); a(f"s_add_u32 s64, s64, {XS0}"); a("v_add_u32 v184, s64, v184")
    a(f"s_mul_i32 s64, s2, {X8S}"); a(f"s_lshl_b32 s65, s{S_WAVE}, 10"); a("s_add_u32 s64, s64, s65"); a(f"s_add_u32 s64, s64, {WS_XT}")
    a("v_lshl_add_u32 v185, v1, 4, s64")
    a("s_waitcnt lgkmcnt(0)"); a("s_barrier")
    a(f"s_cmp_ge_u32 s{S_WAVE}, 7"); a(f"s_cbranch_scc1 L_xp_notr_{tag}")
    a("ds_read_b64_tr_b16 v[180:181], v184"); a(f"ds_read_b64_tr_b16 v[182:183], v184 offset:{4*912}")
    a("s_waitcnt lgkmcnt(0)")
    a(f"buffer_store_dwordx4 v[180:183], v185, {W}, 0 offen sc1")
    a.label(f"L_xp_notr_{tag}")
    a("v_mov_b32 v190, 0x3f803f80"); a("v_mov_b32 v188, 0"); a("v_mov_b32 v189, 0")
    for j in range(4):
        a(f"v_dot2_f32_bf16 v188, v{196+j}, v190, v188"); a(f"v_dot2_f32_bf16 v189, v{196+j}, v{196+j}, v189")
    for mod in ("quad_perm:[1,0,3,2]", "quad_perm:[2,3,0,1]", "row_half_mirror", "row_mirror"):
        for r in (188, 189): a(f"v_add_f32_dpp v{r}, v{r}, v{r} {mod} row_mask:0xf bank_mask:0xf")
    for sw in ("v_permlane16_swap_b32", "v_permlane32_swap_b32"):
        a("v_mov_b32 v186, v188"); a("v_mov_b32 v187, v189")
        a(f"{sw} v188, v186"); a(f"{sw} v189, v187")
        a("v_add_f32 v188, v188, v186"); a("v_add_f32 v189, v189, v187")
    stats_pack(a, 188, 189, 186, 184)
    a("v_and_b32 v187, 0xffff0000, v186"); a("v_lshlrev_b32 v186, 16, v186"); a("v_rcp_f32 v188, v187")
    a("v_mul_f32_e64 v189, -v186, v188")
    a(f"s_lshl_b32 s64, s2, 6"); a(f"s_lshl_b32 s65, s{S_WAVE}, 3"); a("s_add_u32 s64, s64, s65"); a("v_mov_b32 v187, s64")
    a("s_mov_b64 exec, 1")
    a(f"buffer_store_dwordx2 v[188:189], v187, {W}, 0 offen offset:{WS_GRAN} sc1")
    a("s_mov_b64 exec, -1")
def xg_mid(a, tag):
    a("v_mov_b32 v190, 0x3f803f80"); a("v_mov_b32 v188, 0"); a("v_mov_b32 v189, 0")
    for j in range(4):
        a(f"v_dot2_f32_bf16 v188, v{196+j}, v190, v188"); a(f"v_dot2_f32_bf16 v189, v{196+j}, v{196+j}, v189")
    for mod in ("quad_perm:[1,0,3,2]", "quad_perm:[2,3,0,1]", "row_half_mirror", "row_mirror"):
        for r in (188, 189): a(f"v_add_f32_dpp v{r}, v{r}, v{r} {mod} row_mask:0xf bank_mask:0xf")
    for sw in ("v_permlane16_swap_b32", "v_permlane32_swap_b32"):
        a("v_mov_b32 v186, v188"); a("v_mov_b32 v187, v189")
        a(f"{sw} v188, v186"); a(f"{sw} v189, v187")
        a("v_add_f32 v188, v188, v186"); a("v_add_f32 v189, v189, v187")
    stats_pack(a, 188, 189, 186, 184)
    a(f"v_readfirstlane_b32 s{S_NONCE}, v195")
    a(f"s_cmp_eq_u32 s{S_NONCE}, 0"); a(f"s_cbranch_scc0 L_xg_have_{tag}")
    get_nonce(a, "xg" + tag, 192)
    a.label(f"L_xg_have_{tag}")
    a(f"v_mov_b32 v187, s{S_NONCE}")
    a(f"s_lshl_b32 s64, s2, 6"); a(f"s_lshl_b32 s65, s{S_WAVE}, 3"); a("s_add_u32 s64, s64, s65"); a("v_mov_b32 v188, s64")
    a("s_mov_b64 exec, 1")
    a(f"buffer_store_dwordx2 v[186:187], v188, {W}, 0 offen offset:{WS_GRAN} sc1")
    a("s_mov_b64 exec, -1")
def xp_pub(a, tag):
    a("s_waitcnt vmcnt(0)")
    a(f"v_readfirstlane_b32 s{S_NONCE}, v195")
    a(f"s_cmp_eq_u32 s{S_NONCE}, 0"); a(f"s_cbranch_scc0 L_xp_have_{tag}")
    get_nonce(a, "xp" + tag, 194)
    a.label(f"L_xp_have_{tag}")
    a("s_barrier")
    a("s_lshl_b32 s64, s2, 6"); a(f"s_add_u32 s64, s64, {WS_FLAG1}")
    publish_flag(a, 64, 194)

def touch_w13(a):
    a("s_and_b32 s64, s2, 7"); a("s_lshr_b32 s65, s2, 3")
    a("s_and_b32 s66, s64, 1"); a("s_mul_i32 s66, s66, 7"); a("s_lshr_b32 s67, s65, 2"); a("s_add_u32 s66, s66, s67")
    a("s_and_b32 s65, s65, 3")
    a("s_cmp_lt_u32 s65, 2"); a("s_cselect_b32 s76, s20, s22"); a("s_cselect_b32 s77, s21, s23")
    a(f"s_mov_b32 s78, {D*F*2}"); a("s_mov_b32 s79, 0x20000")
    a("s_and_b32 s65, s65, 1"); a("s_mul_i32 s65, s65, 448"); a(f"s_min_u32 s67, s{S_WAVE}, 6"); a("s_lshl_b32 s67, s67, 6"); a("s_add_u32 s65, s65, s67")
    a("v_add_u32 v192, s65, v1")
    a("v_lshrrev_b32 v191, 1, v192"); a("v_mul_u32_u24 v191, 3584, v191"); a("v_and_b32 v192, 1, v192"); a("v_lshl_add_u32 v191, v192, 7, v191")
    a("s_lshl_b32 s66, s66, 8"); a("v_add_u32 v191, s66, v191")
    a("buffer_load_dword v192, v191, s[76:79], 0 offen")

def touch_weights(a, tag):
    a(f"s_cmp_ge_u32 s{S_WAVE}, 3"); a(f"s_cbranch_scc1 L_touch_skip_{tag}")
    a(f"s_lshl_b32 s64, s{S_WAVE}, 1"); a("s_cmp_eq_u32 s64, 0"); a("s_cselect_b32 s76, s20, s22"); a("s_cselect_b32 s77, s21, s23")
    a("s_cmp_eq_u32 s64, 4"); a("s_cselect_b32 s76, s24, s76"); a("s_cselect_b32 s77, s25, s77")
    a(f"s_mov_b32 s78, {D*F*2}"); a("s_mov_b32 s79, 0x20000")
    a("s_mul_i32 s64, s2, 49"); a("v_add_u32 v191, s64, v1"); a("v_lshlrev_b32 v191, 7, v191")
    a("v_cmp_gt_u32 vcc, 49, v1"); a("s_and_saveexec_b64 s[66:67], vcc")
    a("buffer_load_dword v192, v191, s[76:79], 0 offen")
    a("s_mov_b64 exec, s[66:67]")
    a.label(f"L_touch_skip_{tag}")

def poll_issue(a, tag, base_sgpr, count, per_lane, vt):
    a(f"s_cmp_eq_u32 s{S_WAVE}, 0"); a(f"s_cbranch_scc0 L_pi_{tag}")
    a(f"v_lshlrev_b32 v{vt}, 6, v1"); a(f"v_add_u32 v{vt}, s{base_sgpr}, v{vt}")
    if count < 64:
        a(f"v_min_u32 v{vt+1}, {count-1}, v1"); a(f"v_lshlrev_b32 v{vt}, 6, v{vt+1}"); a(f"v_add_u32 v{vt}, s{base_sgpr}, v{vt}")
    for i in range(per_lane):
        if i == 0: a(f"buffer_load_dword v{vt+1}, v{vt}, {W}, 0 offen sc1")
        else:
            a(f"s_mov_b32 s67, {4096*i}"); a(f"buffer_load_dword v{vt+1+i}, v{vt}, {W}, s67 offen sc1")
    a.label(f"L_pi_{tag}")
def poll_check(a, tag, per_lane, vt):
    a(f"s_cmp_eq_u32 s{S_WAVE}, 0"); a(f"s_cbranch_scc0 L_pc_{tag}_bar")
    a("s_mov_b32 s66, 0")
    a.label(f"L_pc_{tag}")
    a(f"v_xor_b32 v{vt+1}, s{S_NONCE}, v{vt+1}")
    for i in range(1, per_lane):
        a(f"v_xor_b32 v{vt+1+i}, s{S_NONCE}, v{vt+1+i}"); a(f"v_or_b32 v{vt+1}, v{vt+1}, v{vt+1+i}")
    a(f"v_cmp_ne_u32 vcc, 0, v{vt+1}")
    a(f"s_cbranch_vccz L_pc_{tag}_bar")
    a("s_add_u32 s66, s66, 1"); a(f"s_cmp_gt_u32 s66, {SPIN_MAX}"); a(f"s_cbranch_scc1 L_pc_{tag}_bar")
    for i in range(per_lane):
        if i == 0: a(f"buffer_load_dword v{vt+1}, v{vt}, {W}, 0 offen sc1")
        else:
            a(f"s_mov_b32 s67, {4096*i}"); a(f"buffer_load_dword v{vt+1+i}, v{vt}, {W}, s67 offen sc1")
    a("s_waitcnt vmcnt(0)")
    a(f"s_branch L_pc_{tag}")
    a.label(f"L_pc_{tag}_bar")
    a("s_barrier")

def tlb_touch(a):
    a("v_and_b32 v175, 31, v1"); a("v_lshlrev_b32 v175, 19, v175")
    a(f"buffer_load_dword v176, v175, {W}, 0 offen")
    srd(a, 76, 26, L * D * 2)
    a("buffer_load_dword v174, v175, s[76:79], 0 offen")

def code_prefetch(a, vt=177, sreg=64):
    a(f"s_getpc_b64 s[{sreg}:{sreg+1}]")
    lab = f"L_pc_{len(a.lines)}"
    a.label(lab)
    a(f"s_sub_u32 s{sreg}, s{sreg}, {lab}-KERNEL_START"); a(f"s_subb_u32 s{sreg+1}, s{sreg+1}, 0")
    a(f"v_lshrrev_b32 v{vt+1}, 1, v0"); a(f"v_lshlrev_b32 v{vt+1}, 7, v{vt+1}")
    a(f"v_min_u32 v{vt+1}, KERNEL_END-KERNEL_START-4, v{vt+1}")
    a(f"global_load_dword v{vt}, v{vt+1}, s[{sreg}:{sreg+1}]")

def helper(a):
    a("s_sub_u32 s70, s2, 224")
    xp_issue(a)
    if "G" in OPT:
        a("s_waitcnt vmcnt(0)")
        xg_mid(a, "h")
    else:
        a("s_waitcnt vmcnt(1)")
        xp_mid(a, "h")
        xp_pub(a, "h")
    if "notouch" not in OPT: touch_weights(a, "h")
    stamp(a, 1)
    a("s_cmp_lt_u32 s70, 16")
    a("s_cselect_b32 s36, s20, s22"); a("s_cselect_b32 s37, s21, s23")
    a(f"s_mov_b32 s38, {D*F*2}"); a("s_mov_b32 s39, 0x20000")
    a("s_and_b32 s64, s70, 15"); a("s_mul_i32 s64, s64, 224")
    a("v_lshrrev_b32 v2, 4, v1"); a("v_and_b32 v3, 15, v1")
    a(f"s_mul_i32 s65, s{S_WAVE}, 56"); a("v_add_u32 v4, s65, v2")
    a("s_movk_i32 s65, 3584"); a("v_mul_lo_u32 v4, v4, s65"); a("v_lshl_add_u32 v4, v3, 4, v4"); a("v_add_u32 v4, s64, v4")
    for i in range(14):
        a(f"s_mov_b32 s67, {4*3584*i}")
        a(f"buffer_load_dwordx4 v[{8+4*i}:{11+4*i}], v4, s[36:39], s67 offen")
    for e in range(8): a(f"v_mov_b32 v{72+e}, 0")
    for i in range(14):
        a(f"s_waitcnt vmcnt({13-i})")
        for j in range(4):
            r = 8 + 4 * i + j
            a(f"v_lshlrev_b32 v80, 16, v{r}"); a(f"v_and_b32 v81, 0xffff0000, v{r}")
            a(f"v_add_f32 v{72+2*j}, v{72+2*j}, v80"); a(f"v_add_f32 v{73+2*j}, v{73+2*j}, v81")
    a(f"s_lshl_b32 s65, s{S_WAVE}, 2"); a("v_add_u32 v5, s65, v2"); a("v_lshlrev_b32 v5, 9, v5"); a("v_lshl_add_u32 v5, v3, 5, v5")
    a("ds_write_b128 v5, v[72:75]"); a("ds_write_b128 v5, v[76:79] offset:16")
    a("s_waitcnt lgkmcnt(0)"); a("s_barrier")
    a("v_lshlrev_b32 v5, 2, v0")
    a("v_cmp_gt_u32 vcc, 112, v0"); a("s_and_saveexec_b64 s[64:65], vcc"); a("s_cbranch_execz L_h_cs_done")
    for k in range(32): a(f"ds_read_b32 v{8+k}, v5 offset:{512*k}")
    a("s_waitcnt lgkmcnt(0)")
    for k in range(1, 32): a(f"v_add_f32 v8, v8, v{8+k}")
    a("s_mul_i32 s66, s70, 448"); a(f"s_add_u32 s66, s66, {WS_CS}"); a("v_add_u32 v5, s66, v5")
    a(f"buffer_store_dword v8, v5, {W}, 0 offen sc1")
    a.label("L_h_cs_done")
    a("s_mov_b64 exec, s[64:65]")
    a("s_waitcnt vmcnt(0)"); a("s_barrier")
    a("s_lshl_b32 s64, s2, 6"); a(f"s_add_u32 s64, s64, {WS_FLAG2}")
    publish_flag(a, 64)
    a(f"s_mov_b32 s64, {WS_FLAG2}")
    wait_flags(a, "hs2", 64, 256, 4)
    a("v_and_b32 v2, 31, v1"); a("v_lshrrev_b32 v3, 5, v1"); a(f"s_lshl_b32 s64, s{S_WAVE}, 1"); a("v_add_u32 v3, s64, v3")
    a(f"v_mul_u32_u24 v3, {HTS}, v3"); a("v_lshl_add_u32 v3, v2, 2, v3"); a("s_lshl_b32 s64, s70, 7"); a(f"s_add_u32 s64, s64, {WS_HT}"); a("v_add_u32 v3, s64, v3")
    for i in range(28):
        a(f"s_mov_b32 s67, {16*HTS*i}"); a(f"buffer_load_dword v{40+i}, v3, {W}, s67 offen")
    for r in range(4): a(f"v_mov_b32 v{8+r}, 0")
    for i in range(28):
        a(f"s_waitcnt vmcnt({27-i})")
        a(f"v_lshlrev_b32 v12, 16, v{40+i}"); a(f"v_and_b32 v13, 0xffff0000, v{40+i}")
        a("v_add_f32 v8, v8, v12"); a("v_add_f32 v9, v9, v13"); a("v_fma_f32 v10, v12, v12, v10"); a("v_fma_f32 v11, v13, v13, v11")
    for r in range(8, 12):
        a(f"v_mov_b32 v12, v{r}"); a(f"v_permlane32_swap_b32 v{r}, v12"); a(f"v_add_f32 v{r}, v{r}, v12")
    a(f"s_lshl_b32 s64, s{S_WAVE}, 9"); a("v_lshl_add_u32 v4, v2, 4, s64")
    a("ds_write_b128 v4, v[8:11]")
    a("s_waitcnt lgkmcnt(0)"); a("s_barrier")
    a("v_cmp_gt_u32 vcc, 64, v0"); a("s_and_saveexec_b64 s[64:65], vcc"); a("s_cbranch_execz L_h_g2_done")
    a("v_lshrrev_b32 v4, 1, v0"); a("v_lshlrev_b32 v4, 4, v4"); a("v_and_b32 v5, 1, v0"); a("v_lshl_add_u32 v4, v5, 2, v4")
    for k in range(8):
        a(f"ds_read_b32 v{16+k}, v4 offset:{512*k}"); a(f"ds_read_b32 v{24+k}, v4 offset:{512*k+8}")
    a("s_waitcnt lgkmcnt(0)")
    for k in range(1, 8):
        a(f"v_add_f32 v16, v16, v{16+k}"); a(f"v_add_f32 v24, v24, v{24+k}")
    stats_pack(a, 16, 24, 32, 34)
    a("v_and_b32 v33, 0xffff0000, v32"); a("v_lshlrev_b32 v32, 16, v32"); a("v_rcp_f32 v33, v33")
    a("s_lshl_b32 s66, s70, 9"); a(f"s_add_u32 s66, s66, {WS_G2}"); a("v_lshl_add_u32 v4, v0, 3, s66")
    a(f"buffer_store_dwordx2 v[32:33], v4, {W}, 0 offen sc1")
    a.label("L_h_g2_done")
    a("s_mov_b64 exec, s[64:65]")
    a("s_waitcnt vmcnt(0)"); a("s_barrier")
    a("s_lshl_b32 s64, s70, 6"); a(f"s_add_u32 s64, s64, {WS_FLAG3}")
    publish_flag(a, 64)
    stamp(a, 2)

def st2(a, i):
    if "convdiag" not in OPT: stamp(a, i)
def st3(a, i):
    if "convdiag" in OPT: stamp(a, i)
def phaseA(a, hooks):
    XPK = next((int(o[3:]) for o in OPT if o.startswith("xpk")), 8)
    TK = next((int(o[2:]) for o in OPT if o.startswith("tk")), 9)
    a(f"s_lshr_b32 s34, s{S_WAVE}, 2"); a(f"s_and_b32 s35, s{S_WAVE}, 3")
    xp_issue(a)
    srd(a, 40, 6, D * N * 2); srd(a, 44, 8, D * N * 2); srd(a, 48, 10, D * N * 2); srd(a, 52, 12, D * N * 2)
    a("s_and_b32 s64, s2, 7"); a("s_mul_i32 s64, s64, 28"); a("s_lshr_b32 s65, s2, 3"); a("s_add_u32 s75, s64, s65")
    a("s_lshl_b32 s64, s75, 2")
    a("s_load_dword s68, s[14:15], s64"); a("s_load_dword s69, s[16:17], s64")
    a("s_lshl_b32 s70, s75, 1"); a("s_add_u32 s70, s70, s34")
    a("s_lshl_b32 s65, s70, 9"); a("s_lshl_b32 s66, s35, 7"); a("s_add_u32 s65, s65, s66")
    a("v_lshl_add_u32 v3, v1, 1, s65")
    a("buffer_load_ushort v10, v3, s[40:43], 0 offen"); a("buffer_load_ushort v11, v3, s[44:47], 0 offen")
    a("buffer_load_ushort v12, v3, s[48:51], 0 offen"); a("buffer_load_ushort v13, v3, s[52:55], 0 offen")
    if "nopf" not in OPT and "pf0" not in OPT: code_prefetch(a)
    if "tlb" in OPT: tlb_touch(a)
    if "tearly" in OPT: touch_weights(a, "m")
    if "G" in OPT:
        a("v_mul_u32_u24 v179, 896, v1"); a("s_lshl_b32 s65, s75, 2"); a("v_add_u32 v179, s65, v179")
        GW = next((int(o[2:]) for o in OPT if o.startswith("gw")), 1)
        for i in range(GW):
            a(f"s_mul_i32 s65, s{S_WAVE}, {GW}"); a(f"s_add_u32 s65, s65, {i}"); a("s_lshl_b32 s66, s65, 8"); a(f"s_add_u32 m0, s66, {RED0}")
            a(f"s_mul_i32 s67, s65, {64*896}"); a("buffer_load_dword v179, s[36:39], s67 offen lds")
        a(f"s_cmp_eq_u32 s{S_WAVE}, 7"); a("s_cbranch_scc0 L_g_skip")
        for i in range(8 * GW, 32):
            a(f"s_mov_b32 m0, {RED0 + 256*i}"); a(f"s_mov_b32 s67, {64*896*i}")
            a("buffer_load_dword v179, s[36:39], s67 offen lds")
        a.label("L_g_skip")
    a("v_lshlrev_b32 v7, 4, v0"); a(f"v_add_u32 v7, {SB}, v7")
    a("v_mov_b32 v20, 0\nv_mov_b32 v21, 0\nv_mov_b32 v22, 0\nv_mov_b32 v23, 0")
    a("v_cmp_gt_u32 vcc, 30, v0"); a("s_and_saveexec_b64 s[66:67], vcc")
    a(f"ds_write_b128 v7, v[20:23] offset:{UA0-SB}"); a(f"ds_write_b128 v7, v[20:23] offset:{UA0-SB+UA_CH}")
    a("s_mov_b64 exec, s[66:67]")
    a("v_and_b32 v8, 255, v0"); a("v_lshlrev_b32 v9, 3, v8"); a("v_sub_u32 v9, 2047, v9")
    for e in range(11): a(f"v_subrev_u32 v{30+e}, {e}, v9")
    for e in range(0, 12, 2):
        a(f"v_cvt_f32_i32 v{44+e}, v{30+e}")
        if e + 1 < 11: a(f"v_cvt_f32_i32 v{45+e}, v{31+e}")
        a(f"v_cvt_pk_bf16_f32 v{58+e//2}, v{44+e}, v{45+e if e+1 < 11 else 44+e}")
    for e in range(11):
        p = 58 + e // 2; r = 226 + e
        a(f"v_and_b32 v{r}, 0xffff, v{p}" if e % 2 == 0 else f"v_lshrrev_b32 v{r}, 16, v{p}")
        a(f"v_subrev_u32 v{r}, 17024, v{r}"); a(f"v_min_i32 v{30+e}, 128, v{30+e}"); a(f"v_max_i32 v{r}, v{r}, v{30+e}")
    a("v_mov_b32 v64, 641")
    for e in range(8, 11):
        a(f"v_cmp_gt_i32 vcc, {e}, v9"); a(f"v_cndmask_b32 v{226+e}, v{226+e}, v64, vcc")
    a(f"s_mul_i32 s66, s34, {TB_CH}"); a(f"s_add_u32 s72, s66, {TB0}")
    a("v_mov_b32 v65, s72")
    for e in range(11): a(f"v_lshl_add_u32 v{226+e}, v{226+e}, 1, v65")
    a(f"s_mul_i32 s66, s34, {KC_CH}"); a("s_add_u32 s66, s66, 32"); a("v_lshl_add_u32 v237, v8, 4, s66")
    a("v_and_b32 v9, 15, v1"); a("v_lshrrev_b32 v8, 4, v1")
    a(f"s_and_b32 s73, s{S_WAVE}, 1"); a(f"s_bfe_u32 s74, s{S_WAVE}, 0x10001")
    a("s_lshl_b32 s65, s73, 4"); a("v_add_u32 v30, s65, v9")
    a("v_lshlrev_b32 v31, 4, v30"); a("v_lshl_add_u32 v31, v8, 3, v31")
    a("v_lshlrev_b32 v32, 3, v30"); a("v_add_u32 v32, 512, v32")
    a("v_cmp_eq_u32 vcc, 2, v8"); a("v_cndmask_b32 v31, v31, v32, vcc")
    a("v_lshlrev_b32 v32, 2, v30"); a("v_add_u32 v32, 768, v32")
    a("v_add_u32 v33, 4, v31"); a("v_add_u32 v34, 128, v32")
    a("v_cmp_eq_u32 vcc, 3, v8"); a("v_cndmask_b32 v31, v31, v32, vcc"); a("v_cndmask_b32 v33, v33, v34, vcc")
    a("v_lshlrev_b32 v32, 1, v30"); a("v_add_u32 v32, 1024, v32"); a("v_mov_b32 v34, 1288")
    a("v_cmp_eq_u32 vcc, 0, v8")
    for r in range(4):
        a(f"v_add_u32 v35, {64*r}, v32"); a(f"v_cndmask_b32 v{238+r}, v34, v35, vcc")
    a("v_lshl_add_u32 v35, v8, 8, v30"); a("v_mov_b32 v36, 1280")
    a("v_cmp_eq_u32 vcc, 0x100, v35"); a("v_cndmask_b32 v238, v238, v36, vcc")
    a("s_cmp_eq_u32 s74, 0"); a("s_cbranch_scc0 L_tb_rt1")
    a("v_mov_b32 v238, v31"); a("v_mov_b32 v239, v33")
    a.label("L_tb_rt1")
    for r in range(4): a(f"v_add_u32 v{238+r}, s72, v{238+r}")
    a("v_mov_b32 v36, s72"); a("ds_write_b16 v36, v20 offset:1282")
    a(f"s_movk_i32 s65, {OPS}"); a("v_mul_lo_u32 v248, v9, s65"); a("v_lshl_add_u32 v248, v8, 4, v248")
    a(f"s_mul_i32 s66, s34, {OP_CH}"); a("v_add_u32 v248, s66, v248")
    a(f"s_mul_i32 s67, s73, {16*OPS}"); a(f"s_add_u32 s67, s67, {21*OPS}"); a("v_add_u32 v249, s67, v248")
    a(f"s_mul_i32 s67, s74, {16*OPS}"); a("v_add_u32 v248, s67, v248")
    a("v_sub_u32 v30, 3, v9"); a("v_and_b32 v30, 3, v30")
    a(f"s_movk_i32 s65, {KC_CP}"); a("v_mul_lo_u32 v31, v30, s65")
    a("v_lshlrev_b32 v32, 3, v8"); a("v_sub_u32 v32, v32, v9"); a("v_sub_u32 v32, v32, v30"); a("v_add_u32 v32, 2047, v32")
    a("v_lshl_add_u32 v31, v32, 1, v31")
    a(f"s_mul_i32 s66, s34, {KC_CH}"); a(f"s_sub_u32 s66, s66, {64*63}"); a("v_add_u32 v244, s66, v31")
    a(f"s_mul_i32 s66, s34, {UA_CH}"); a(f"s_add_u32 s66, s66, {UA0}")
    a("v_lshlrev_b32 v31, 5, v9"); a("v_lshl_add_u32 v31, v8, 4, v31"); a("v_add_u32 v245, s66, v31")
    a(f"s_mul_i32 s66, s34, {RA_CH}"); a(f"s_add_u32 s66, s66, {RA0}")
    a("v_lshlrev_b32 v31, 6, v9"); a("v_lshl_add_u32 v31, v8, 4, v31"); a("v_add_u32 v246, s66, v31")
    a(f"s_mul_i32 s66, s70, {HTS}"); a(f"s_add_u32 s66, s66, {WS_HT}")
    a("v_lshlrev_b32 v31, 5, v9"); a("v_lshl_add_u32 v31, v8, 3, v31"); a("v_add_u32 v247, s66, v31")
    a(f"s_mul_i32 s71, s34, {OP_CH}"); a("s_lshl_b32 s66, s35, 8"); a("s_add_u32 s71, s71, s66")
    if "prioA" in OPT:
        a(f"s_cmp_ge_u32 s{S_WAVE}, 4"); a("s_cbranch_scc0 L_prioA"); a("s_setprio 1"); a.label("L_prioA")
    a("s_waitcnt lgkmcnt(0)")
    a("s_lshl_b32 s65, s34, 4"); a("s_lshr_b32 s66, s68, s65"); a("s_lshl_b32 s66, s66, 16")
    a(f"v_mov_b32 v14, {LOG2E:#x}"); a("v_mul_f32 v15, s66, v14"); a("v_exp_f32 v15, v15")
    a("v_cvt_pk_bf16_f32 v15, v15, v15"); a("v_lshlrev_b32 v15, 16, v15")
    a("s_mov_b32 m0, s71")
    st2(a, 1)
    if "G" in OPT:
        GW = next((int(o[2:]) for o in OPT if o.startswith("gw")), 1)
        a(f"s_cmp_eq_u32 s{S_WAVE}, 7"); a("s_cbranch_scc1 L_g_w7")
        a(f"s_waitcnt vmcnt({GW})"); a("s_branch L_g_wd")
        a.label("L_g_w7"); a(f"s_waitcnt vmcnt({32 - 7*GW})")
        a.label("L_g_wd")
        xg_mid(a, "m")
    else:
        npf = (0 if ("nopf" in OPT or "pf0" in OPT) else 1) + (2 if "tlb" in OPT else 0)
        a(f"s_waitcnt vmcnt({5+npf})")
        xp_mid(a, "m")
        a(f"s_waitcnt vmcnt({1+npf})")
    a("s_mov_b32 m0, s71")
    st2(a, 2)
    a("v_lshlrev_b32 v16, 16, v10"); a("v_lshlrev_b32 v24, 16, v11"); a("v_mul_f32 v16, v14, v16"); a("v_mul_f32 v24, v24, v15")
    a("v_exp_f32 v16, v16"); a(f"v_mul_f32 v24, {INV2PI:#x}, v24")
    a("v_lshlrev_b32 v30, 16, v12"); a("v_lshlrev_b32 v31, 16, v13")
    a("v_cvt_pk_bf16_f32 v16, v16, v16"); a("v_add_f32 v26, v15, v15")
    a("v_lshlrev_b32 v18, 16, v16")
    a("v_mul_f32 v30, v30, v26"); a("v_mul_f32_e64 v31, -v31, v26")
    a("v_mul_f32 v18, v18, v15"); a("v_mul_f32_e64 v18, -v18, v14")
    P, Q = 18, 24
    X, Xb = 30, 34
    Z = {1: 40, 8: 44, 256: 48, 2: 52, 4: 56}
    for k, t in enumerate((8, 1, 256)):
        tm = 60 + 2 * k
        if t == 1:
            a(f"v_exp_f32 v{tm}, v{P}"); a(f"v_fract_f32 v{tm+1}, v{Q}")
        else:
            c = {8: 0x41000000, 256: 0x43800000}[t]
            a(f"v_mul_f32 v{tm}, {c:#x}, v{P}"); a(f"v_mul_f32 v{tm+1}, {c:#x}, v{Q}")
            a(f"v_exp_f32 v{tm}, v{tm}"); a(f"v_fract_f32 v{tm+1}, v{tm+1}")
    for k, t in enumerate((8, 1, 256)):
        tm = 60 + 2 * k; z = Z[t]
        a(f"v_cos_f32 v{z}, v{tm+1}"); a(f"v_sin_f32 v{z+1}, v{tm+1}")
    for k, t in enumerate((8, 1, 256)):
        tm = 60 + 2 * k; z = Z[t]
        a(f"v_mul_f32 v{z}, v{z}, v{tm}"); a(f"v_mul_f32 v{z+1}, v{z+1}, v{tm}")
    T, T2 = 72, 76
    pk = [80, 81, 82, 83, 84, 85]; pki = [0]
    def put(row, src):
        r = pk[pki[0] % 6]; pki[0] += 1
        a(f"v_cvt_pk_bf16_f32 v{r}, v{src}, v{src+1}")
        a(f"ds_write_addtid_b32 v{r} offset:{row*OPS}")
    Y, X256, X512, X768, XW = 88, 92, 96, 100, 104
    put(0, X); put(22, Z[8])
    a("v_mov_b32 v108, 0x3f80"); a(f"ds_write_addtid_b32 v108 offset:{21*OPS}")
    a(cmul1(0, Z[1], Z[1], T)); a(cmul2(Z[2], Z[1], Z[1], T, False))
    a(cmul1(0, Z[2], Z[2], T)); a(cmul2(Z[4], Z[2], Z[2], T, False))
    xs = [(c, Xb, X if c == 1 else Xb, Z[1]) for c in range(1, 8)]
    xs += [(8, X256, X, Z[256]), (9, XW, X256, Z[2]), (10, XW, XW, Z[2]), (11, XW, XW, Z[2]), (12, X512, X256, Z[256]),
           (13, XW, X512, Z[4]), (14, X768, X512, Z[256]), (15, XW, X768, Z[4]), (16, XW, X768, Z[256])]
    for r in range(17, 21): xs.append((r, XW, XW, Z[256]))
    def s1_issue():
        a(f"buffer_load_dword v223, v3, {W}, 0 offen sc1")
    for k, b in enumerate(range(2, 32)):
        src = Z[8] if b == 2 else Y
        x = xs[k] if k < len(xs) else None
        a(cmul1(0, src, Z[8], T))
        if x: a(cmul1(0, x[2], x[3], T2))
        a(cmul2(Y, src, Z[8], T, False))
        if x: a(cmul2(x[1], x[2], x[3], T2, True))
        put(21 + b, Y)
        if x: put(x[0], x[1])
        if k == XPK and "G" not in OPT:
            xp_pub(a, "m")
        if k == TK and "notouch" not in OPT:
            touch_weights(a, "m")
    st2(a, 3)
    a("s_waitcnt lgkmcnt(0)"); a("s_barrier")
    st2(a, 4)
    if "G" in OPT:
        a("v_and_b32 v221, 255, v0"); a("v_lshlrev_b32 v221, 6, v221")
        def g_issue():
            for i in range(4): a(f"buffer_load_dwordx4 v[{204+4*i}:{207+4*i}], v221, {W}, 0 offen offset:{WS_GRAN+16*i} sc1")
        g_issue()
    else:
        a("v_and_b32 v3, 255, v0"); a("v_lshlrev_b32 v3, 6, v3"); a(f"v_add_u32 v3, {WS_FLAG1}, v3")
        s1_issue()
    for r in range(4): a(f"v_mov_b32 v{16+r}, 0")
    NR = 6
    def rd(s):
        b = 32 + 8 * (s % NR)
        a(f"ds_read_b128 v[{b}:{b+3}], v248 offset:{64*s}"); a(f"ds_read_b128 v[{b+4}:{b+7}], v249 offset:{64*s}")
    for s in range(NR - 1): rd(s)
    for s in range(16):
        if s + NR - 1 < 16: rd(s + NR - 1)
        a(f"s_waitcnt lgkmcnt({2*min(15-s, NR-1)})")
        b = 32 + 8 * (s % NR)
        a(f"v_mfma_f32_16x16x32_bf16 v[16:19], v[{b}:{b+3}], v[{b+4}:{b+7}], v[16:19]")
        if s == 9 and "G" not in OPT:
            a("s_mov_b32 s66, 0")
            a.label("L_s1_chk")
            a("s_waitcnt vmcnt(0)")
            a(f"v_cmp_ne_u32 vcc, s{S_NONCE}, v223")
            a("s_cbranch_vccz L_s1_ok")
            a("s_add_u32 s66, s66, 1"); a(f"s_cmp_gt_u32 s66, {SPIN_MAX}"); a("s_cbranch_scc1 L_s1_ok")
            s1_issue()
            a("s_branch L_s1_chk")
            a.label("L_s1_ok")
            a("v_and_b32 v8, 255, v0")
            a(f"v_mul_u32_u24 v3, {X8S}, v8"); a("s_lshl_b32 s66, s70, 4"); a(f"s_add_u32 s66, s66, {WS_XT}"); a("v_add_u32 v3, s66, v3")
            a(f"buffer_load_dwordx4 v[200:203], v3, {W}, 0 offen")
            a(f"s_cmp_lt_u32 s{S_WAVE}, 4"); a("s_cbranch_scc0 L_s1_nost")
            a(f"s_lshl_b32 s66, s{S_WAVE}, 12"); a("v_lshl_add_u32 v3, v1, 4, s66")
            for i in range(4):
                a(f"s_add_u32 m0, s66, {RED0}"); a(f"buffer_load_dwordx4 v3, {W}, 0 offen offset:{1024*i} lds")
            a.label("L_s1_nost")
    a("v_cvt_pk_bf16_f32 v16, v16, v17"); a("v_cvt_pk_bf16_f32 v17, v18, v19")
    a("s_cmp_eq_u32 s74, 0"); a("s_cbranch_scc0 L_tw_rt1")
    a("ds_write_b32 v238, v16"); a("ds_write_b32 v239, v17"); a("s_branch L_tw_done")
    a.label("L_tw_rt1")
    a("ds_write_b16 v238, v16"); a("ds_write_b16_d16_hi v239, v16"); a("ds_write_b16 v240, v17"); a("ds_write_b16_d16_hi v241, v17")
    a.label("L_tw_done")
    a("s_waitcnt lgkmcnt(0)"); a("s_barrier")
    stamp(a, 5)
    hooks["setup"](a)
    stamp(a, 6)
    for e in range(11): a(f"ds_read_u16 v{70+e}, v{226+e}")
    a("v_mov_b32 v20, 0\nv_mov_b32 v21, 0\nv_mov_b32 v22, 0\nv_mov_b32 v23, 0")
    a("v_lshrrev_b32 v16, 1, v0"); a(f"s_movk_i32 s65, {KC_CP}"); a("v_mul_lo_u32 v16, v16, s65")
    a("v_and_b32 v17, 1, v0"); a("v_lshl_add_u32 v16, v17, 4, v16")
    a("s_waitcnt lgkmcnt(0)")
    for c in range(4):
        o = 110 + 4 * c
        for k in range(4):
            lo = 70 + c + 2 * k
            a(f"v_lshl_or_b32 v{o+k}, v{lo+1}, 16, v{lo}")
        a(f"ds_write_b128 v237, v[{o}:{o+3}] offset:{KC_CP*c}")
    a("v_cmp_gt_u32 vcc, 16, v0"); a("s_and_saveexec_b64 s[66:67], vcc")
    a("ds_write_b128 v16, v[20:23] offset:4128"); a("s_mov_b64 exec, s[66:67]")
    if "two" in OPT:
        for k in range(9): hooks["dma"](a, k, 5 + k)
    stamp(a, 7)
    a("s_lshl_b32 s65, s34, 4"); a("s_lshr_b32 s64, s69, s65"); a("s_lshl_b32 s64, s64, 16")
    if "G" in OPT:
        a("s_mov_b32 s66, 0")
        a.label("L_s1_chk")
        a("s_waitcnt vmcnt(0)")
        a(f"v_xor_b32 v16, s{S_NONCE}, v205")
        for i in range(1, 8):
            a(f"v_xor_b32 v17, s{S_NONCE}, v{205+2*i}"); a("v_or_b32 v16, v16, v17")
        a("v_cmp_ne_u32 vcc, 0, v16"); a("s_cbranch_vccz L_s1_ok")
        a("s_add_u32 s66, s66, 1"); a(f"s_cmp_gt_u32 s66, {SPIN_MAX}"); a("s_cbranch_scc1 L_s1_ok")
        g_issue()
        a("s_branch L_s1_chk")
        a.label("L_s1_ok")
        a("s_barrier")
        a("v_and_b32 v8, 255, v0"); a(f"v_lshlrev_b32 v9, 5, v8"); a(f"v_add_u32 v9, {RED0}, v9")
        a("ds_read_b128 v[192:195], v9"); a("ds_read_b128 v[196:199], v9 offset:16")
        a("s_xor_b32 s65, s34, 1"); a("s_lshl_b32 s65, s65, 4")
        for i in range(8):
            st = 204 + 2 * i
            a(f"v_and_b32 v{60+i}, 0xffff0000, v{st}"); a(f"v_rcp_f32 v{60+i}, v{60+i}"); a(f"v_lshlrev_b32 v{68+i}, 16, v{st}")
        a("s_waitcnt lgkmcnt(0)")
        for i in range(8):
            a(f"v_lshlrev_b32 v{30+i}, s65, v{192+i}"); a(f"v_and_b32 v{30+i}, 0xffff0000, v{30+i}")
            a(f"v_sub_f32 v{40+i}, v{30+i}, v{68+i}"); a(f"v_mul_f32 v{40+i}, v{40+i}, v{60+i}")
            a(f"v_fma_f32 v{48+i}, v{40+i}, s64, v{30+i}")
    else:
        a("s_waitcnt vmcnt(9)" if "two" in OPT else "s_waitcnt vmcnt(0)"); a("s_barrier")
        a("v_and_b32 v8, 255, v0"); a(f"v_lshlrev_b32 v9, 6, v8"); a(f"v_add_u32 v9, {RED0}, v9")
        for i in range(4): a(f"ds_read_b128 v[{204+4*i}:{207+4*i}], v9 offset:{16*i}")
        a("s_waitcnt lgkmcnt(0)")
        for i in range(8):
            x = 200 + i // 2; st = 204 + 2 * i
            a(f"v_lshlrev_b32 v{30+i}, 16, v{x}" if i % 2 == 0 else f"v_and_b32 v{30+i}, 0xffff0000, v{x}")
            a(f"v_fma_f32 v{40+i}, v{30+i}, v{st}, v{st+1}")
            a(f"v_fma_f32 v{48+i}, v{40+i}, s64, v{30+i}")
    for k in range(4): a(f"v_cvt_pk_bf16_f32 v{56+k}, v{40+2*k}, v{41+2*k}")
    a("v_and_b32 v8, 255, v0")
    a(f"s_mul_i32 s66, s34, {UA_CH}"); a(f"s_add_u32 s66, s66, {UA0+480}"); a("v_lshl_add_u32 v9, v8, 4, s66")
    a("ds_write_b128 v9, v[56:59]")
    a(f"s_mul_i32 s66, s34, {RA_CH}"); a(f"s_add_u32 s66, s66, {RA0}"); a("v_lshl_add_u32 v9, v8, 5, s66")
    a("ds_write_b128 v9, v[48:51]"); a("ds_write_b128 v9, v[52:55] offset:16")
    a("s_waitcnt vmcnt(0) lgkmcnt(0)"); a("s_barrier")
    stamp(a, 8)
    if "two" in OPT: hooks["tr1"](a)
    for v in range(3):
        a(f"s_cmp_eq_u32 s35, {v}"); a(f"s_cbranch_scc1 L_conv{v}")
    a("s_branch L_conv3")
    for v in range(4):
        a.label(f"L_conv{v}")
        conv(a, v, hooks["dma"])
        if v < 3: a("s_branch L_conv_done")
    a.label("L_conv_done")
    stamp(a, 9)
    a("s_waitcnt vmcnt(0)")
    stamp(a, 10)
    a("s_barrier")
    a("s_lshl_b32 s64, s2, 6"); a(f"s_add_u32 s64, s64, {WS_FLAG2}")
    publish_flag(a, 64)
    stamp(a, 11)

def conv(a, p, dma):
    S = [s for s in range(64) if s % 4 == p]
    steps = {s: [(t, 8 * t - s) for t in range(7, -1, -1) if s <= 8 * t + 7] for s in S}
    betas = sorted({b for s in S for t, b in steps[s]}, reverse=True)
    assert len(betas) == 16
    breg = {b: 48 + 4 * i for i, b in enumerate(betas)}
    NAR = 4; PFD = 3
    issued = []
    def ldA(k):
        sa = S[k]; r = 112 + 4 * (k % NAR)
        a(f"ds_read_b64 v[{r}:{r+1}], v244 offset:{64*(63-sa)}"); a(f"ds_read_b64 v[{r+2}:{r+3}], v244 offset:{64*(63-sa)+8}")
        issued.extend([("A", k)] * 2)
    first = {}
    for k, s in enumerate(S):
        for t, b in steps[s]: first.setdefault(b, k)
    def ldB(b):
        a(f"ds_read_b128 v[{breg[b]}:{breg[b]+3}], v245 offset:{64*(b+7)}"); issued.append(("B", b))
    a("v_lshlrev_b32 v2, 4, v1")
    for q in range(4):
        if q == p: continue
        src = [x for x in range(4) if x != q].index(p)
        a(f"s_lshl_b32 s64, s34, 2"); a(f"s_add_u32 s64, s64, {q}"); a("s_mul_i32 s64, s64, 6144"); a(f"s_add_u32 s64, s64, {SB + 2048*src}")
        a(f"v_add_u32 v{4+q}, s64, v2")
    sendq = [q for q in range(4) if q != p]
    def send(q):
        sendq.remove(q)
        a(f"ds_write_b128 v{4+q}, v[{16+8*q}:{19+8*q}]"); a(f"ds_write_b128 v{4+q}, v[{20+8*q}:{23+8*q}] offset:1024")
        issued.extend([("W", q)] * 2)
    st3(a, 1)
    ldA(0)
    for t, b in steps[S[0]]: ldB(b)
    ldA(1)
    if p == 0:
        for t in range(8):
            a(f"ds_read_b128 v[{16+4*t}:{19+4*t}], v246 offset:{1024*t}"); issued.append(("R", t))
    else:
        for r in range(32): a(f"v_mov_b32 v{16+r}, 0")
    for b in betas:
        if first[b] >= 1: ldB(b)
    ldA(2)
    for k, s in enumerate(S):
        if k + PFD < len(S): ldA(k + PFD)
        need = max(i for i, x in enumerate(issued) if x == ("A", k))
        for t, b in steps[s]:
            need = max(need, max(i for i, x in enumerate(issued) if x == ("B", b)))
        if k == 0 and p == 0: need = max(need, max(i for i, x in enumerate(issued) if x[0] == "R"))
        n = len(issued) - 1 - need
        a(f"s_waitcnt lgkmcnt({min(n, 15)})")
        if k == 0: st3(a, 2)
        if k == 1: a("s_barrier")
        ra = 112 + 4 * (k % NAR)
        for j, (t, b) in enumerate(steps[s]):
            a(f"v_mfma_f32_16x16x32_bf16 v[{16+4*t}:{19+4*t}], v[{ra}:{ra+3}], v[{breg[b]}:{breg[b]+3}], v[{16+4*t}:{19+4*t}]")
        for q in list(sendq):
            if k >= 3 and S[k - 2] + 4 > 16 * q + 15 and k - 2 >= 0: send(q)
        if "two" in OPT:
            if 2 + p <= k <= 10 + p: dma(a, 9 + k - 2 - p, 5 + k - 2 - p)
        elif 1 + 2 * p <= k <= 9 + 2 * p: dma(a, k - 1 - 2 * p, 5 + k - 1 - 2 * p)
    st3(a, 3)
    for q in list(sendq): send(q)
    a(f"s_mul_i32 s64, s{S_WAVE}, 6144"); a(f"s_add_u32 s64, s64, {SB}"); a("v_add_u32 v3, s64, v2")
    a("s_waitcnt lgkmcnt(0)"); a("s_barrier")
    st3(a, 4)
    for j in range(3):
        a(f"ds_read_b128 v[{48+8*j}:{51+8*j}], v3 offset:{2048*j}"); a(f"ds_read_b128 v[{52+8*j}:{55+8*j}], v3 offset:{2048*j+1024}")
    a("s_waitcnt lgkmcnt(0)")
    A = 16 + 8 * p
    for j in range(3):
        for r in range(8): a(f"v_add_f32 v{A+r}, v{A+r}, v{48+8*j+r}")
    for i in range(2):
        t = 2 * p + i; o = 80 + 2 * i
        a(f"v_cvt_pk_bf16_f32 v{o}, v{A+4*i}, v{A+4*i+1}"); a(f"v_cvt_pk_bf16_f32 v{o+1}, v{A+4*i+2}, v{A+4*i+3}")
        a(f"buffer_store_dwordx2 v[{o}:{o+1}], v247, {W}, 0 offen offset:{512*t} sc1")
```

```python
from asm import *
from p8a import *

class VM:
    def __init__(self): self.q = []
    def issue(self, tag): self.q.append(tag)
    def wait_for(self, a, pred):
        last = max((i for i, t in enumerate(self.q) if pred(t)), default=-1)
        n = len(self.q) - 1 - last
        a(f"s_waitcnt vmcnt({min(n,63)})")

def tr_lane_decode(a):
    a("v_lshrrev_b32 v8, 4, v1"); a("v_and_b32 v9, 1, v8"); a("v_lshrrev_b32 v10, 1, v8")
    a("v_bfe_u32 v11, v1, 2, 2"); a("v_and_b32 v12, 3, v1")
    a("v_lshl_add_u32 v13, v10, 3, v11")

AW = 128
S_RB, S_RC = 51, 48
def rot_off(a, r, rho, stride, mod=28):
    if "norot" in OPT:
        a(f"s_mov_b32 s67, {stride*r}"); return
    a(f"s_add_u32 s67, s{rho}, {r}"); a(f"s_sub_u32 s65, s67, {mod}"); a(f"s_cmp_ge_u32 s67, {mod}"); a("s_cselect_b32 s67, s65, s67")
    a(f"s_mul_i32 s67, s67, {stride}")
NEARLY = 9
def bw_setup(a):
    a("s_and_b32 s64, s2, 7"); a("s_lshr_b32 s65, s2, 3")
    a("s_lshr_b32 s41, s64, 1"); a("s_lshl_b32 s41, s41, 2"); a("s_and_b32 s66, s65, 3"); a("s_add_u32 s41, s41, s66")
    a("s_and_b32 s40, s64, 1"); a("s_mul_i32 s40, s40, 7"); a("s_lshr_b32 s66, s65, 2"); a("s_add_u32 s40, s40, s66")
    a("s_and_b32 s64, s65, 3"); a("s_mul_i32 s64, s64, 3"); a("s_lshr_b32 s66, s65, 2"); a("s_lshl_b32 s66, s66, 1"); a("s_add_u32 s64, s64, s66")
    a("s_sub_u32 s66, s64, 14"); a("s_cmp_ge_u32 s64, 14"); a("s_cselect_b32 s64, s66, s64"); a("s_sub_u32 s66, s64, 14"); a("s_cmp_ge_u32 s64, 14"); a("s_cselect_b32 s64, s66, s64")
    a(f"s_lshl_b32 s{S_RB}, s64, 1")
    a(f"s_lshr_b32 s42, s{S_WAVE}, 2"); a(f"s_lshl_b32 s43, s{S_WAVE}, 10")
    a("s_cmp_eq_u32 s42, 0")
    a("s_cselect_b32 s52, s20, s22"); a("s_cselect_b32 s53, s21, s23")
    a(f"s_mov_b32 s54, {D*F*2}"); a("s_mov_b32 s55, 0x20000")
    a("v_lshrrev_b32 v2, 4, v1"); a("v_and_b32 v3, 15, v1")
    a("v_lshlrev_b32 v250, 1, v2"); a("v_add_u32 v250, s42, v250"); a("v_lshlrev_b32 v250, 1, v250"); a("v_xor_b32 v250, v250, v3"); a("v_lshlrev_b32 v250, 4, v250")
    a(f"s_and_b32 s64, s{S_WAVE}, 3"); a("s_lshl_b32 s64, s64, 2"); a("v_add_u32 v2, s64, v2")
    a("s_movk_i32 s65, 3584"); a("v_mul_lo_u32 v2, v2, s65"); a("v_add_u32 v250, v250, v2")
    a("s_lshl_b32 s65, s40, 8"); a("v_add_u32 v250, s65, v250")
def bw_dma(a, ks, slot, vreg=250):
    a(f"s_add_u32 m0, s43, {8192*slot}"); rot_off(a, ks, S_RB, 57344)
    a(f"buffer_load_dwordx4 v{vreg}, s[52:55], s67 offen lds")
def bw_tr_setup(a):
    tr_lane_decode(a)
    a("v_and_b32 v14, 1, v12"); a(f"s_lshl_b32 s64, s{S_WAVE}, 1"); a("v_add_u32 v14, s64, v14")
    a("v_lshlrev_b32 v15, 1, v11"); a("v_add_u32 v15, v15, v9"); a("v_lshlrev_b32 v15, 1, v15")
    a("v_xor_b32 v14, v14, v15"); a("v_lshlrev_b32 v14, 4, v14")
    a("v_lshrrev_b32 v15, 1, v12"); a("v_lshl_add_u32 v14, v15, 3, v14")
    a("v_lshl_add_u32 v14, v13, 8, v14"); a("v_lshl_add_u32 v14, v9, 12, v14")
    a("s_lshl_b32 s64, s42, 10"); a("v_add_u32 v240, s64, v14"); a("s_xor_b32 s64, s64, 1024"); a("v_add_u32 v241, s64, v14")
    a("v_add_u32 v242, 0x10000, v240"); a("v_add_u32 v243, 0x10000, v241")
def bw_tr1(a):
    bw_tr_setup(a)
    for ks in range(9):
        off = 8192 * (5 + ks); r = AW + 4 * ks; va = 240 + 2 * (off >> 16); o = off & 0xffff
        a(f"ds_read_b64_tr_b16 v[{r}:{r+1}], v{va} offset:{o}"); a(f"ds_read_b64_tr_b16 v[{r+2}:{r+3}], v{va+1} offset:{o}")
    a("s_waitcnt lgkmcnt(0)")

def cw_setup(a):
    a("s_and_b32 s64, s2, 7"); a("s_mul_i32 s64, s64, 28"); a("s_lshr_b32 s65, s2, 3"); a("s_add_u32 s64, s64, s65")
    a("s_mul_i32 s79, s64, 9363"); a("s_lshr_b32 s79, s79, 16"); a("s_mul_i32 s65, s79, 7"); a("s_sub_u32 s78, s64, s65")
    a(f"s_and_b32 s76, s{S_WAVE}, 3"); a(f"s_lshr_b32 s77, s{S_WAVE}, 2"); a("s_lshr_b32 s50, s76, 1")
    srd(a, 44, 24, F * D * 2)
    a("s_and_b32 s64, s79, 3"); a("s_mul_i32 s64, s64, 7"); a("s_lshl_b32 s65, s78, 2"); a("s_add_u32 s64, s64, s65")
    a("s_sub_u32 s65, s64, 28"); a("s_cmp_ge_u32 s64, 28"); a(f"s_cselect_b32 s{S_RC}, s65, s64")
    a("v_lshrrev_b32 v3, 3, v1"); a("v_and_b32 v4, 7, v1")
    a("v_bfe_u32 v20, v3, 1, 1"); a("v_lshlrev_b32 v20, 2, v20"); a("v_xor_b32 v20, v20, v4"); a("v_lshlrev_b32 v20, 4, v20")
    a("s_mul_i32 s64, s76, 448"); a("s_lshl_b32 s65, s77, 3"); a("s_add_u32 s64, s64, s65"); a("v_add_u32 v3, s64, v3")
    a("s_movk_i32 s65, 896"); a("v_mul_lo_u32 v3, v3, s65"); a("v_add_u32 v20, v20, v3")
    a("s_lshl_b32 s65, s78, 7"); a("v_add_u32 v20, s65, v20")
    a("s_lshl_b32 s49, s76, 11"); a("s_lshl_b32 s64, s77, 10"); a("s_add_u32 s49, s49, s64")
    a("v_xor_b32 v14, s50, v9"); a("v_lshlrev_b32 v14, 1, v14")
    a("v_and_b32 v15, 1, v12"); a("v_add_u32 v14, v14, v15"); a("s_lshl_b32 s64, s77, 2"); a("v_add_u32 v14, s64, v14")
    a("v_bfe_u32 v15, v11, 1, 1"); a("v_lshlrev_b32 v15, 2, v15"); a("v_xor_b32 v14, v14, v15"); a("v_lshlrev_b32 v14, 4, v14")
    a("v_lshrrev_b32 v15, 1, v12"); a("v_lshl_add_u32 v14, v15, 3, v14"); a("v_lshl_add_u32 v14, v13, 7, v14")
    a("s_lshl_b32 s64, s76, 11"); a("v_add_u32 v14, s64, v14"); a("v_add_u32 v15, 0x10000, v14"); a("v_add_u32 v18, 0x20000, v14")
def cw_dma(a, ksl, unit):
    a(f"s_add_u32 m0, s49, {8192*unit}"); rot_off(a, ksl, S_RC, 14336)
    a("buffer_load_dwordx4 v20, s[44:47], s67 offen lds")
def cw_tr(ksl, unit):
    r = AW + 4 * ksl; off = 8192 * unit; reg = [14, 15, 18][off >> 16]; off &= 0xffff
    return [f"ds_read_b64_tr_b16 v[{r}:{r+1}], v{reg} offset:{off}", f"ds_read_b64_tr_b16 v[{r+2}:{r+3}], v{reg} offset:{off+512}"]

class LG:
    def __init__(self): self.q = []
    def issue(self, tag): self.q.append(tag)
    def wait_for(self, a, pred):
        last = max((i for i, t in enumerate(self.q) if pred(t)), default=-1)
        a(f"s_waitcnt lgkmcnt({min(len(self.q) - 1 - last, 15)})")

def phaseB(a):
    tr_lane_decode(a)
    a("v_and_b32 v14, 1, v12"); a(f"s_lshl_b32 s64, s{S_WAVE}, 1"); a("v_add_u32 v14, s64, v14")
    a("v_lshlrev_b32 v15, 1, v11"); a("v_add_u32 v15, v15, v9"); a("v_lshlrev_b32 v15, 1, v15")
    a("v_xor_b32 v14, v14, v15"); a("v_lshlrev_b32 v14, 4, v14")
    a("v_lshrrev_b32 v15, 1, v12"); a("v_lshl_add_u32 v14, v15, 3, v14")
    a("v_lshl_add_u32 v14, v13, 8, v14"); a("v_lshl_add_u32 v14, v9, 12, v14")
    a("s_lshl_b32 s64, s42, 10"); a("v_add_u32 v16, s64, v14"); a("s_xor_b32 s64, s64, 1024"); a("v_add_u32 v17, s64, v14")
    a("v_add_u32 v18, 0x10000, v16"); a("v_add_u32 v19, 0x10000, v17")
    def tr_w(ks, slot):
        off = 8192 * slot; r = AW + 4 * ks
        va = 16 + 2 * (off >> 16); o = off & 0xffff
        a(f"ds_read_b64_tr_b16 v[{r}:{r+1}], v{va} offset:{o}"); a(f"ds_read_b64_tr_b16 v[{r+2}:{r+3}], v{va+1} offset:{o}")
    TWO = "two" in OPT
    if TWO:
        for ks in range(9, 18): tr_w(ks, ks - 4)
        a("s_waitcnt lgkmcnt(0)"); a("s_barrier")
        for ks in range(18, 28): bw_dma(a, ks, ks - 18)
    else:
        for ks in range(9): tr_w(ks, 5 + ks)
        a("s_waitcnt lgkmcnt(0)"); a("s_barrier")
        for ks in range(9, 18): bw_dma(a, ks, ks - 9)
    stamp(a, 1)
    for jj in range(4):
        a(f"s_add_u32 s64, s{S_WAVE}, {jj}"); a("s_and_b32 s64, s64, 3")
        a(f"v_xor_b32 v{22+jj}, s64, v11"); a(f"v_lshlrev_b32 v{22+jj}, 6, v{22+jj}")
        a(f"v_lshl_add_u32 v{22+jj}, v13, 8, v{22+jj}")
        a(f"v_lshl_add_u32 v{22+jj}, v9, 5, v{22+jj}"); a(f"v_lshl_add_u32 v{22+jj}, v12, 3, v{22+jj}")
        a("s_lshl_b32 s64, s42, 10"); a(f"v_add_u32 v{22+jj}, s64, v{22+jj}")
        a("s_lshl_b32 s64, s42, 11"); a("s_sub_u32 s64, 1024, s64"); a(f"v_add_u32 v{26+jj}, s64, v{22+jj}")
    for r in range(64): a(f"v_mov_b32 v{64+r}, 0")
    a("v_lshrrev_b32 v3, 4, v1"); a("v_and_b32 v4, 15, v1")
    a("v_lshlrev_b32 v21, 2, v3"); a("v_xor_b32 v21, v21, v4"); a("v_lshlrev_b32 v21, 4, v21")
    a(f"v_mul_u32_u24 v6, {HTS}, v3"); a("v_add_u32 v21, v21, v6")
    a(f"s_mul_i32 s64, s{S_WAVE}, {4*HTS}"); a("s_lshl_b32 s65, s41, 8"); a("s_add_u32 s64, s64, s65"); a(f"s_add_u32 s64, s64, {WS_HT}")
    a("v_add_u32 v21, s64, v21")
    a("s_waitcnt vmcnt(0)"); a("s_barrier")
    a(f"s_mov_b32 s64, {WS_FLAG2}")
    poll_issue(a, "s2", 64, 256, 4, 32)
    if TWO:
        for ks in range(18, 28): tr_w(ks, ks - 18)
        a("s_waitcnt lgkmcnt(0)"); cw_setup(a)
    else:
        for ks in range(9, 18): tr_w(ks, ks - 9)
        a("v_mov_b32 v5, v16"); a("v_mov_b32 v6, v17")
        a("s_waitcnt lgkmcnt(0)"); cw_setup(a)
        a("v_mov_b32 v16, v5"); a("v_mov_b32 v17, v6")
        a("v_add_u32 v19, 0x24000, v17"); a("v_add_u32 v13, 0x24000, v16")
        a("v_add_u32 v16, 0x14000, v16"); a("v_add_u32 v17, 0x14000, v17")
        a("v_mov_b32 v12, v250")

    stamp(a, 2)
    if "pf2" in OPT: code_prefetch(a, vt=2)
    a("s_waitcnt vmcnt(0)")
    poll_check(a, "s2", 4, 32)
    stamp(a, 3)
    vm = VM(); lg = LG()
    def dma_h(g):
        a(f"s_add_u32 m0, s43, {8192*g}"); rot_off(a, 2 * g, S_RB, 16 * HTS)
        a(f"buffer_load_dwordx4 v21, {W}, s67 offen lds"); vm.issue(("H", g))
    HPRE = next((int(o[4:]) for o in OPT if o.startswith("hpre")), 4)
    for g in range(HPRE): dma_h(g)
    FR = [32, 48, 240]
    hi = [False]
    def reads(ks):
        fb = FR[ks % 3]
        pre = []
        if ks >= 16 and not hi[0]:
            hi[0] = True
            pre = [f"v_add_u32 v{22+jj}, 0x10000, v{22+jj}" for jj in range(8)]
        ho = 4096 * (ks - 16 if ks >= 16 else ks)
        return pre, [f"ds_read_b64_tr_b16 v[{fb+4*jj+2*h}:{fb+4*jj+2*h+1}], v{22+4*h+jj} offset:{ho}" for jj in range(4) for h in range(2)]
    NK = 28
    bars = {2: 7, 6: 15, 10: 19, 14: 19, 18: 23, 22: 27} if "two" not in OPT else {2: 7, 6: 15, 10: 19, 14: 23, 18: 27, 22: 27}
    blist = sorted(bars)
    vm.wait_for(a, lambda t: t[0] == "H" and t[1] <= 1); a("s_barrier")
    stamp(a, 4); cstamp(a, 9)
    for ks in (0, 1):
        pre, rd = reads(ks)
        for x in pre + rd: a(x); lg.issue(("F", ks))
    W2N = next((int(o[3:]) for o in OPT if o.startswith("w2n")), 16)
    free_from = {u: min([b for b in blist if b >= 2 * u + 1], default=99) for u in range(14)}
    plan_dma = {k: [] for k in range(NK)}; plan_tr = {k: [] for k in range(NK)}; post_tr = []
    if TWO:
        hq = [(0, g) for g in range(HPRE, 14)]; lq = []
        for u in range(14, 20): free_from[u] = 0
    else:
        hq = [(0 if g < 10 else 14, g) for g in range(HPRE, 14)]; lq = list(range(18, 28))
        for u in range(14, 20): free_from[u] = 14
        for u in range(10, 14): free_from[u] = 99
    late_tr = {11: list(range(18, 23)), 12: list(range(23, 28))} if not TWO else {}
    nxt = 0
    for k in range(NK):
        cap = 3 if ((hq and hq[0][0] <= k) or lq) and k < 6 else 2
        while len(plan_dma[k]) < cap and hq and hq[0][0] <= k: plan_dma[k].append(("H", hq.pop(0)[1]))
        while len(plan_dma[k]) < cap and lq: plan_dma[k].append(("L", lq.pop(0)))
        while len(plan_dma[k]) < cap and nxt < W2N:
            cand = [u for u in free_from if free_from[u] <= k]
            if not cand: break
            u = min(cand)
            free_from[u] = 99
            plan_dma[k].append(("W2", nxt, u))
            lb = min([b for b in blist if b >= k + 3], default=None)
            if "notrin" not in OPT and lb is not None and max(lb, nxt + 1) <= NK - 3:
                t = max(lb, nxt + 1)
                while len(plan_tr[t]) >= 3 or t in late_tr: t += 1
                if t <= NK - 3:
                    plan_tr[t].append((nxt, u)); free_from[u] = min([b for b in blist if b >= t + 3], default=99)
                else: post_tr.append((nxt, u))
            else:
                post_tr.append((nxt, u))
            nxt += 1
    assert not hq and not lq
    rest = list(range(nxt, 28))
    busy = {u for _, u in post_tr}
    NPRE = next((int(o[3:]) for o in OPT if o.startswith("pre")), 0)
    fr = [u for u in range(20) if u not in busy]
    assert NPRE <= len(fr)
    rest_units = fr[:NPRE] + [u for u in range(20) if u not in fr[:NPRE]][:len(rest) - NPRE] if len(rest) > NPRE else fr[:len(rest)]
    assert len(rest_units) == len(rest)
    if "verbose" in OPT: print("dma", plan_dma, "\ntr", plan_tr, "\npost", post_tr, "rest", rest, rest_units)
    issued_at = {}
    for ks in range(NK):
        lg.wait_for(a, lambda t: t == ("F", ks) or (ks == 13 and t[0] == "T"))
        rd = []; pre = []
        if ks in bars:
            assert all(("H", g) in vm.q for g in range(bars[ks] // 2 + 1)), ks
            vm.wait_for(a, lambda t: (t[0] == "H" and t[1] <= bars[ks] // 2) or (t[0] == "W2" and issued_at[t[1]] <= ks - 3) or (t[0] == "L" and ks >= 10))
            a("s_barrier")
        if ks + 2 < NK: pre, rd = reads(ks + 2)
        for x in pre: a(x)
        extra = [x for (k2, u) in plan_tr[ks] for x in cw_tr(k2, u)]
        for kk in late_tr.get(ks, []):
            r = AW + 4 * kk; sl = kk - 18
            (va, vb), off = ((16, 17), 8192 * sl) if sl < 8 else ((13, 19), 8192 * (sl - 8))
            extra += [f"ds_read_b64_tr_b16 v[{r}:{r+1}], v{va} offset:{off}", f"ds_read_b64_tr_b16 v[{r+2}:{r+3}], v{vb} offset:{off}"]
        dmas = list(plan_dma[ks])
        fb = FR[ks % 3]; ar = AW + 4 * ks
        for jj in range(4):
            acc = 64 + 16 * jj
            a(f"v_mfma_f32_32x32x16_bf16 v[{acc}:{acc+15}], v[{ar}:{ar+3}], v[{fb+4*jj}:{fb+4*jj+3}], v[{acc}:{acc+15}]")
            for x in rd[2*jj:2*jj+2]: a(x); lg.issue(("F", ks + 2))
            for x in extra[3*jj:3*jj+3]: a(x); lg.issue(("T", ks))
            if jj >= 1 and dmas:
                d = dmas.pop(0)
                if d[0] == "H": dma_h(d[1])
                elif d[0] == "L":
                    bw_dma(a, d[1], d[1] - 8, 12); vm.issue(("L", d[1]))
                else:
                    cw_dma(a, d[1], d[2]); vm.issue(("W2", d[1])); issued_at[d[1]] = ks
            if jj == 0 and ks == 19:
                a("s_lshl_b32 s64, s41, 7"); a(f"s_add_u32 s64, s64, {WS_FLAG3}"); a("v_and_b32 v30, 1, v1"); a("v_lshl_add_u32 v30, v30, 6, s64")
                a(f"buffer_load_dword v31, v30, {W}, 0 offen sc1"); vm.issue(("F", 0))
            if jj == 0 and ks == 23:
                vm.wait_for(a, lambda t: t[0] == "F")
                a("s_mov_b32 s66, 0")
                a.label("L_f3_chk")
                a(f"v_cmp_ne_u32 vcc, s{S_NONCE}, v31"); a("s_cbranch_vccz L_f3_ok")
                a("s_add_u32 s66, s66, 1"); a(f"s_cmp_gt_u32 s66, {SPIN_MAX}"); a("s_cbranch_scc1 L_f3_ok")
                a(f"buffer_load_dword v31, v30, {W}, 0 offen sc1"); a("s_waitcnt vmcnt(0)"); a("s_branch L_f3_chk")
                a.label("L_f3_ok")
                a("v_and_b32 v30, 31, v1"); a("v_lshlrev_b32 v30, 3, v30")
                for j2 in range(4):
                    a(f"s_add_u32 s64, s{S_WAVE}, {j2}"); a("s_and_b32 s64, s64, 3"); a("s_lshl_b32 s65, s41, 2"); a("s_add_u32 s64, s64, s65")
                    a("s_lshl_b32 s64, s64, 8"); a(f"s_add_u32 s64, s64, {WS_G2}")
                    a(f"buffer_load_dwordx2 v[{4+2*j2}:{5+2*j2}], v30, {W}, s64 offen"); vm.issue(("G", j2))
            if jj == 2 and ks == 26:
                a("v_lshrrev_b32 v2, 5, v1"); a("v_lshlrev_b32 v2, 5, v2")
                a("s_lshl_b32 s64, s40, 9"); a(f"s_lshl_b32 s65, s{S_WAVE}, 6"); a("s_add_u32 s64, s64, s65"); a(f"s_add_u32 s64, s64, {WS_CS}")
                a("v_add_u32 v2, s64, v2"); a("v_add_u32 v3, 7168, v2")
                for k in range(2):
                    a(f"buffer_load_dwordx4 v[{48+4*k}:{51+4*k}], v2, {W}, 0 offen offset:{16*k}"); vm.issue(("C", 0))
                    a(f"buffer_load_dwordx4 v[{56+4*k}:{59+4*k}], v3, {W}, 0 offen offset:{16*k}"); vm.issue(("C", 0))
        assert not dmas
    stamp(a, 5); cstamp(a, 10)
    vm.wait_for(a, lambda t: t[0] in ("G", "C"))
    for jj in range(4):
        b = 32 + 4 * jj
        a(f"v_mov_b32 v{b}, v{4+2*jj}"); a(f"v_mul_f32 v{b+2}, {NLOG2E:#x}, v{5+2*jj}"); a(f"v_mul_f32 v{b+3}, v{5+2*jj}, v{5+2*jj}")
    stamp(a, 6)
    a("v_lshlrev_b32 v6, 4, v1"); a(f"v_add_u32 v6, {WS_HF}, v6")
    for jj in range(4):
        a(f"s_add_u32 s64, s{S_WAVE}, {jj}"); a("s_and_b32 s64, s64, 3")
        a("s_lshl_b32 s65, s41, 2"); a("s_add_u32 s64, s64, s65"); a("s_mul_i32 s64, s64, 112")
        a("s_lshl_b32 s65, s40, 3"); a("s_add_u32 s64, s64, s65"); a(f"s_add_u32 s64, s64, s{S_WAVE}")
        a(f"s_lshl_b32 s{72+jj}, s64, 10")
    for jj in range(4):
        b = 32 + 4 * jj; acc = 64 + 16 * jj; t = 240 + 8 * (jj % 2); o = 24 + 4 * (jj % 2)
        if "nopk" in OPT:
            for e in range(8):
                a(f"v_fma_f32 v{acc+e}, -v{b}, v{48+e}, v{acc+e}"); a(f"v_fma_f32 v{acc+8+e}, -v{b}, v{56+e}, v{acc+8+e}")
            for e in range(8):
                a(f"v_mul_f32 v{t+e}, v{acc+e}, v{b+2}"); a(f"v_mul_f32 v{acc+e}, v{acc+e}, v{acc+8+e}")
                a(f"v_exp_f32 v{t+e}, v{t+e}")
            for e in range(8):
                a(f"v_mul_f32 v{acc+e}, v{acc+e}, v{b+3}"); a(f"v_add_f32 v{t+e}, 1.0, v{t+e}"); a(f"v_rcp_f32 v{t+e}, v{t+e}")
            for k in range(4):
                a(f"v_mul_f32 v{acc+2*k}, v{acc+2*k}, v{t+2*k}"); a(f"v_mul_f32 v{acc+2*k+1}, v{acc+2*k+1}, v{t+2*k+1}")
                a(f"v_cvt_pk_bf16_f32 v{o+k}, v{acc+2*k}, v{acc+2*k+1}")
        else:
            P = lambda r: f"v[{r}:{r+1}]"
            for e in range(0, 8, 2):
                a(f"v_pk_fma_f32 {P(acc+e)}, {P(b)}, {P(48+e)}, {P(acc+e)} op_sel_hi:[0,1,1] neg_lo:[1,0,0] neg_hi:[1,0,0]")
                a(f"v_pk_fma_f32 {P(acc+8+e)}, {P(b)}, {P(56+e)}, {P(acc+8+e)} op_sel_hi:[0,1,1] neg_lo:[1,0,0] neg_hi:[1,0,0]")
            for e in range(0, 8, 2):
                a(f"v_pk_mul_f32 {P(t+e)}, {P(acc+e)}, {P(b+2)} op_sel_hi:[1,0]")
                a(f"v_pk_mul_f32 {P(acc+e)}, {P(acc+e)}, {P(acc+8+e)}")
                a(f"v_exp_f32 v{t+e}, v{t+e}"); a(f"v_exp_f32 v{t+e+1}, v{t+e+1}")
            for e in range(0, 8, 2):
                a(f"v_pk_mul_f32 {P(acc+e)}, {P(acc+e)}, {P(b+2)} op_sel:[0,1] op_sel_hi:[1,1]")
                a(f"v_pk_add_f32 {P(t+e)}, {P(t+e)}, 1.0 op_sel_hi:[1,0]")
                a(f"v_rcp_f32 v{t+e}, v{t+e}"); a(f"v_rcp_f32 v{t+e+1}, v{t+e+1}")
            for k in range(4):
                a(f"v_pk_mul_f32 {P(acc+2*k)}, {P(acc+2*k)}, {P(t+2*k)}")
                a(f"v_cvt_pk_bf16_f32 v{o+k}, v{acc+2*k}, v{acc+2*k+1}")
        a(f"buffer_store_dwordx4 v[{o}:{o+3}], v6, {W}, s{72+jj} offen sc1"); vm.issue(("S", jj))
    vm.wait_for(a, lambda t: t[0] == "W2")
    a("s_barrier")
    for (k2, u) in post_tr:
        for x in cw_tr(k2, u): a(x)
    for k2, u in list(zip(rest, rest_units))[:NPRE]:
        cw_dma(a, k2, u); vm.issue(("W2", k2))
    vm.wait_for(a, lambda t: t[0] == "S")
    a("s_waitcnt lgkmcnt(0)")
    stamp(a, 7)
    a("s_barrier")
    a("s_mul_i32 s64, s41, 14"); a("s_add_u32 s64, s64, s40"); a("s_lshl_b32 s64, s64, 6"); a(f"s_add_u32 s64, s64, {WS_FLAG4}")
    publish_flag(a, 64)
    for k2, u in list(zip(rest, rest_units))[NPRE:]:
        cw_dma(a, k2, u)
    if "pf3" in OPT: code_prefetch(a, vt=2, sreg=34)
    phaseC_setup(a)
    a("s_lshr_b32 s64, s79, 1"); a("s_mul_i32 s64, s64, 896"); a(f"s_add_u32 s64, s64, {WS_FLAG4}")
    if rest:
        a("s_waitcnt vmcnt(0)"); a("s_barrier")
        poll_issue(a, "s4", 64, 14, 1, 32)
        for k2, u in zip(rest, rest_units):
            for x in cw_tr(k2, u): a(x)
        a("s_waitcnt lgkmcnt(0)")
    else:
        poll_issue(a, "s4", 64, 14, 1, 32)
    stamp(a, 8)

RED_C = 114688
def phaseC_setup(a):
    srd(a, 52, 26, L * D * 2)
    a("s_mul_i32 s40, s76, 40960"); a("s_lshl_b32 s64, s77, 10"); a("s_add_u32 s41, s40, s64")
    a("v_and_b32 v23, 31, v1"); a("v_lshrrev_b32 v24, 5, v1")
    a("s_lshl_b32 s64, s78, 6"); a("s_lshl_b32 s65, s77, 5"); a("s_add_u32 s64, s64, s65"); a("s_lshl_b32 s65, s50, 4"); a("s_add_u32 s34, s64, s65")
    a("s_lshl_b32 s64, s79, 6"); a("s_and_b32 s65, s76, 1"); a("s_lshl_b32 s65, s65, 5"); a("s_add_u32 s35, s64, s65")
    a("v_lshlrev_b32 v25, 3, v24"); a("v_add_u32 v25, s34, v25"); a("v_add_u32 v26, s35, v23")
    a(f"v_mul_u32_u24 v27, {HTS}, v25"); a("v_lshl_add_u32 v27, v26, 1, v27"); a(f"v_add_u32 v27, {WS_HT}, v27")
    for e in range(8):
        a(f"s_mov_b32 s67, {e*HTS}"); a(f"buffer_load_ushort v{240+e}, v27, {W}, s67 offen")
    a("s_movk_i32 s64, 896"); a("v_mul_lo_u32 v28, v26, s64"); a("v_lshl_add_u32 v28, v25, 1, v28")
    a("v_lshlrev_b32 v5, 4, v1")
    a("s_lshl_b32 s64, s79, 1"); a("s_add_u32 s64, s64, s77"); a("s_mul_i32 s64, s64, 112"); a("s_mul_i32 s65, s76, 28"); a("s_add_u32 s64, s64, s65")
    a("s_lshl_b32 s64, s64, 10"); a(f"s_add_u32 s64, s64, {WS_HF}"); a("v_add_u32 v252, s64, v5")
    a("v_add_u32 v6, s40, v5")
    a("s_and_b32 s64, s76, 1"); a("s_lshl_b32 s64, s64, 10"); a("v_add_u32 v16, s64, v6"); a("s_xor_b32 s64, s64, 1024"); a("v_add_u32 v17, s64, v6")
    for r in range(32): a(f"v_mov_b32 v{64+r}, 0")

def phaseC(a):
    stamp(a, 1)
    stamp(a, 2)
    a("s_waitcnt vmcnt(0)")
    poll_check(a, "s4", 1, 32)
    stamp(a, 3)
    vm = VM()
    NS = 20
    def dma_b(k):
        a(f"s_add_u32 m0, s41, {2048*(k % NS)}"); rot_off(a, k, S_RC, 1024)
        a(f"buffer_load_dwordx4 v252, {W}, s67 offen lds"); vm.issue(("B", k))
    PRE = next((int(o[4:]) for o in OPT if o.startswith("cpre")), 8)
    for k in range(PRE): dma_b(k)
    NBUF = 4
    FR = [32, 40, 48, 56]
    def reads(k):
        fb = FR[k % NBUF]
        return [f"ds_read_b128 v[{fb+4*ns}:{fb+4*ns+3}], v{16+ns} offset:{2048*(k % NS)}" for ns in range(2)]
    NK = 28; G = 4; PD = 3
    def need(k_hi):
        assert all(("B", k) in vm.q for k in range(k_hi + 1)), k_hi
        vm.wait_for(a, lambda t: t[1] <= k_hi); a("s_barrier")
    need(3)
    stamp(a, 4)
    for k in range(PD):
        for x in reads(k): a(x)
    ready = 3; nxt = PRE; freed = -1
    for k in range(NK):
        a(f"s_waitcnt lgkmcnt({2*min(PD-1, NK-1-k)})")
        rd = []
        if k + PD < NK:
            if k + PD > ready:
                hi = min(k + PD + G - 1, NK - 1); need(hi); ready = hi; freed = k
            rd = reads(k + PD)
        fb = FR[k % NBUF]; ar = AW + 4 * k
        for ns in range(2):
            acc = 64 + 16 * ns
            a(f"v_mfma_f32_32x32x16_bf16 v[{acc}:{acc+15}], v[{ar}:{ar+3}], v[{fb+4*ns}:{fb+4*ns+3}], v[{acc}:{acc+15}]")
            if rd: a(rd[ns])
        for _ in range(4 if k == 0 else 3 if k < 4 else 2):
            if nxt < NK and (nxt < NS or nxt - NS <= freed):
                dma_b(nxt); nxt += 1
    assert nxt == NK
    stamp(a, 5)
    a("v_lshlrev_b32 v8, 4, v1")
    a("s_barrier")
    for x in range(1, 4):
        ns, hh = x & 1, x >> 1
        a(f"s_xor_b32 s64, s{S_WAVE}, {x}"); a("s_mul_i32 s64, s64, 6144"); a(f"s_add_u32 s64, s64, {RED_C + (x-1)*2048}")
        a("v_add_u32 v22, s64, v8")
        src = 64 + 16 * ns + 8 * hh
        a(f"ds_write_b128 v22, v[{src}:{src+3}]"); a(f"ds_write_b128 v22, v[{src+4}:{src+7}] offset:1024")
    a(f"s_mul_i32 s64, s{S_WAVE}, 6144"); a(f"s_add_u32 s64, s64, {RED_C}"); a("v_add_u32 v22, s64, v8")
    a("s_waitcnt lgkmcnt(0)"); a("s_barrier")
    for x in range(3):
        a(f"ds_read_b128 v[{96+8*x}:{99+8*x}], v22 offset:{2048*x}"); a(f"ds_read_b128 v[{100+8*x}:{103+8*x}], v22 offset:{2048*x+1024}")
    a("s_waitcnt lgkmcnt(0)")
    for x in range(3):
        for r in range(8): a(f"v_add_f32 v{64+r}, v{64+r}, v{96+8*x+r}")
    stamp(a, 6)
    for k in range(4):
        r = 2 * k
        a(f"v_cvt_pk_bf16_f32 v30, v{64+r}, v{65+r}")
        a("v_lshlrev_b32 v31, 16, v30"); a("v_and_b32 v30, 0xffff0000, v30")
        a(f"v_lshlrev_b32 v32, 16, v{240+r}"); a(f"v_lshlrev_b32 v33, 16, v{241+r}")
        a("v_add_f32 v31, v31, v32"); a("v_add_f32 v30, v30, v33")
        a(f"v_cvt_pk_bf16_f32 v{120+k}, v31, v30")
    a("buffer_store_dwordx4 v[120:123], v28, s[52:55], 0 offen")
    a("s_waitcnt vmcnt(0)")
    stamp(a, 7)
```

```python
from asm import *
from p8a import *

class VM:
    def __init__(self): self.q = []
    def issue(self, tag): self.q.append(tag)
    def wait_for(self, a, pred):
        last = max((i for i, t in enumerate(self.q) if pred(t)), default=-1)
        n = len(self.q) - 1 - last
        a(f"s_waitcnt vmcnt({min(n,63)})")

def tr_lane_decode(a):
    a("v_lshrrev_b32 v8, 4, v1"); a("v_and_b32 v9, 1, v8"); a("v_lshrrev_b32 v10, 1, v8")
    a("v_bfe_u32 v11, v1, 2, 2"); a("v_and_b32 v12, 3, v1")
    a("v_lshl_add_u32 v13, v10, 3, v11")

AW = 128
S_RB, S_RC = 51, 48
def rot_off(a, r, rho, stride, mod=28):
    if "norot" in OPT:
        a(f"s_mov_b32 s67, {stride*r}"); return
    a(f"s_add_u32 s67, s{rho}, {r}"); a(f"s_sub_u32 s65, s67, {mod}"); a(f"s_cmp_ge_u32 s67, {mod}"); a("s_cselect_b32 s67, s65, s67")
    a(f"s_mul_i32 s67, s67, {stride}")
NEARLY = 9
def bw_setup(a):
    a("s_and_b32 s64, s2, 7"); a("s_lshr_b32 s65, s2, 3")
    a("s_lshr_b32 s41, s64, 1"); a("s_lshl_b32 s41, s41, 2"); a("s_and_b32 s66, s65, 3"); a("s_add_u32 s41, s41, s66")
    a("s_and_b32 s40, s64, 1"); a("s_mul_i32 s40, s40, 7"); a("s_lshr_b32 s66, s65, 2"); a("s_add_u32 s40, s40, s66")
    a("s_and_b32 s64, s65, 3"); a("s_mul_i32 s64, s64, 3"); a("s_lshr_b32 s66, s65, 2"); a("s_lshl_b32 s66, s66, 1"); a("s_add_u32 s64, s64, s66")
    a("s_sub_u32 s66, s64, 14"); a("s_cmp_ge_u32 s64, 14"); a("s_cselect_b32 s64, s66, s64"); a("s_sub_u32 s66, s64, 14"); a("s_cmp_ge_u32 s64, 14"); a("s_cselect_b32 s64, s66, s64")
    a(f"s_lshl_b32 s{S_RB}, s64, 1")
    a(f"s_lshr_b32 s42, s{S_WAVE}, 2"); a(f"s_lshl_b32 s43, s{S_WAVE}, 10")
    a("s_cmp_eq_u32 s42, 0")
    a("s_cselect_b32 s52, s20, s22"); a("s_cselect_b32 s53, s21, s23")
    a(f"s_mov_b32 s54, {D*F*2}"); a("s_mov_b32 s55, 0x20000")
    a("v_lshrrev_b32 v2, 4, v1"); a("v_and_b32 v3, 15, v1")
    a("v_lshlrev_b32 v250, 1, v2"); a("v_add_u32 v250, s42, v250"); a("v_lshlrev_b32 v250, 1, v250"); a("v_xor_b32 v250, v250, v3"); a("v_lshlrev_b32 v250, 4, v250")
    a(f"s_and_b32 s64, s{S_WAVE}, 3"); a("s_lshl_b32 s64, s64, 2"); a("v_add_u32 v2, s64, v2")
    a("s_movk_i32 s65, 3584"); a("v_mul_lo_u32 v2, v2, s65"); a("v_add_u32 v250, v250, v2")
    a("s_lshl_b32 s65, s40, 8"); a("v_add_u32 v250, s65, v250")
def bw_dma(a, ks, slot, vreg=250):
    a(f"s_add_u32 m0, s43, {8192*slot}"); rot_off(a, ks, S_RB, 57344)
    a(f"buffer_load_dwordx4 v{vreg}, s[52:55], s67 offen lds")
def bw_tr_setup(a):
    tr_lane_decode(a)
    a("v_and_b32 v14, 1, v12"); a(f"s_lshl_b32 s64, s{S_WAVE}, 1"); a("v_add_u32 v14, s64, v14")
    a("v_lshlrev_b32 v15, 1, v11"); a("v_add_u32 v15, v15, v9"); a("v_lshlrev_b32 v15, 1, v15")
    a("v_xor_b32 v14, v14, v15"); a("v_lshlrev_b32 v14, 4, v14")
    a("v_lshrrev_b32 v15, 1, v12"); a("v_lshl_add_u32 v14, v15, 3, v14")
    a("v_lshl_add_u32 v14, v13, 8, v14"); a("v_lshl_add_u32 v14, v9, 12, v14")
    a("s_lshl_b32 s64, s42, 10"); a("v_add_u32 v240, s64, v14"); a("s_xor_b32 s64, s64, 1024"); a("v_add_u32 v241, s64, v14")
    a("v_add_u32 v242, 0x10000, v240"); a("v_add_u32 v243, 0x10000, v241")
def bw_tr1(a):
    bw_tr_setup(a)
    for ks in range(9):
        off = 8192 * (5 + ks); r = AW + 4 * ks; va = 240 + 2 * (off >> 16); o = off & 0xffff
        a(f"ds_read_b64_tr_b16 v[{r}:{r+1}], v{va} offset:{o}"); a(f"ds_read_b64_tr_b16 v[{r+2}:{r+3}], v{va+1} offset:{o}")
    a("s_waitcnt lgkmcnt(0)")

def cw_setup(a):
    a("s_and_b32 s64, s2, 7"); a("s_mul_i32 s64, s64, 28"); a("s_lshr_b32 s65, s2, 3"); a("s_add_u32 s64, s64, s65")
    a("s_mul_i32 s79, s64, 9363"); a("s_lshr_b32 s79, s79, 16"); a("s_mul_i32 s65, s79, 7"); a("s_sub_u32 s78, s64, s65")
    a(f"s_and_b32 s76, s{S_WAVE}, 3"); a(f"s_lshr_b32 s77, s{S_WAVE}, 2"); a("s_lshr_b32 s50, s76, 1")
    srd(a, 44, 24, F * D * 2)
    a("s_and_b32 s64, s79, 3"); a("s_mul_i32 s64, s64, 7"); a("s_lshl_b32 s65, s78, 2"); a("s_add_u32 s64, s64, s65")
    a("s_sub_u32 s65, s64, 28"); a("s_cmp_ge_u32 s64, 28"); a(f"s_cselect_b32 s{S_RC}, s65, s64")
    a("v_lshrrev_b32 v3, 3, v1"); a("v_and_b32 v4, 7, v1")
    a("v_bfe_u32 v20, v3, 1, 1"); a("v_lshlrev_b32 v20, 2, v20"); a("v_xor_b32 v20, v20, v4"); a("v_lshlrev_b32 v20, 4, v20")
    a("s_mul_i32 s64, s76, 448"); a("s_lshl_b32 s65, s77, 3"); a("s_add_u32 s64, s64, s65"); a("v_add_u32 v3, s64, v3")
    a("s_movk_i32 s65, 896"); a("v_mul_lo_u32 v3, v3, s65"); a("v_add_u32 v20, v20, v3")
    a("s_lshl_b32 s65, s78, 7"); a("v_add_u32 v20, s65, v20")
    a("s_lshl_b32 s49, s76, 11"); a("s_lshl_b32 s64, s77, 10"); a("s_add_u32 s49, s49, s64")
    a("v_xor_b32 v14, s50, v9"); a("v_lshlrev_b32 v14, 1, v14")
    a("v_and_b32 v15, 1, v12"); a("v_add_u32 v14, v14, v15"); a("s_lshl_b32 s64, s77, 2"); a("v_add_u32 v14, s64, v14")
    a("v_bfe_u32 v15, v11, 1, 1"); a("v_lshlrev_b32 v15, 2, v15"); a("v_xor_b32 v14, v14, v15"); a("v_lshlrev_b32 v14, 4, v14")
    a("v_lshrrev_b32 v15, 1, v12"); a("v_lshl_add_u32 v14, v15, 3, v14"); a("v_lshl_add_u32 v14, v13, 7, v14")
    a("s_lshl_b32 s64, s76, 11"); a("v_add_u32 v14, s64, v14"); a("v_add_u32 v15, 0x10000, v14"); a("v_add_u32 v18, 0x20000, v14")
def cw_dma(a, ksl, unit):
    a(f"s_add_u32 m0, s49, {8192*unit}"); rot_off(a, ksl, S_RC, 14336)
    a("buffer_load_dwordx4 v20, s[44:47], s67 offen lds")
def cw_tr(ksl, unit):
    r = AW + 4 * ksl; off = 8192 * unit; reg = [14, 15, 18][off >> 16]; off &= 0xffff
    return [f"ds_read_b64_tr_b16 v[{r}:{r+1}], v{reg} offset:{off}", f"ds_read_b64_tr_b16 v[{r+2}:{r+3}], v{reg} offset:{off+512}"]

class LG:
    def __init__(self): self.q = []
    def issue(self, tag): self.q.append(tag)
    def wait_for(self, a, pred):
        last = max((i for i, t in enumerate(self.q) if pred(t)), default=-1)
        a(f"s_waitcnt lgkmcnt({min(len(self.q) - 1 - last, 15)})")

def phaseB(a):
    tr_lane_decode(a)
    a("v_and_b32 v14, 1, v12"); a(f"s_lshl_b32 s64, s{S_WAVE}, 1"); a("v_add_u32 v14, s64, v14")
    a("v_lshlrev_b32 v15, 1, v11"); a("v_add_u32 v15, v15, v9"); a("v_lshlrev_b32 v15, 1, v15")
    a("v_xor_b32 v14, v14, v15"); a("v_lshlrev_b32 v14, 4, v14")
    a("v_lshrrev_b32 v15, 1, v12"); a("v_lshl_add_u32 v14, v15, 3, v14")
    a("v_lshl_add_u32 v14, v13, 8, v14"); a("v_lshl_add_u32 v14, v9, 12, v14")
    a("s_lshl_b32 s64, s42, 10"); a("v_add_u32 v16, s64, v14"); a("s_xor_b32 s64, s64, 1024"); a("v_add_u32 v17, s64, v14")
    a("v_add_u32 v18, 0x10000, v16"); a("v_add_u32 v19, 0x10000, v17")
    def tr_w(ks, slot):
        off = 8192 * slot; r = AW + 4 * ks
        va = 16 + 2 * (off >> 16); o = off & 0xffff
        a(f"ds_read_b64_tr_b16 v[{r}:{r+1}], v{va} offset:{o}"); a(f"ds_read_b64_tr_b16 v[{r+2}:{r+3}], v{va+1} offset:{o}")
    TWO = "two" in OPT
    if TWO:
        for ks in range(9, 18): tr_w(ks, ks - 4)
        a("s_waitcnt lgkmcnt(0)"); a("s_barrier")
        for ks in range(18, 28): bw_dma(a, ks, ks - 18)
    else:
        for ks in range(9): tr_w(ks, 5 + ks)
        a("s_waitcnt lgkmcnt(0)"); a("s_barrier")
        for ks in range(9, 18): bw_dma(a, ks, ks - 9)
    stamp(a, 1)
    for jj in range(4):
        a(f"s_add_u32 s64, s{S_WAVE}, {jj}"); a("s_and_b32 s64, s64, 3")
        a(f"v_xor_b32 v{22+jj}, s64, v11"); a(f"v_lshlrev_b32 v{22+jj}, 6, v{22+jj}")
        a(f"v_lshl_add_u32 v{22+jj}, v13, 8, v{22+jj}")
        a(f"v_lshl_add_u32 v{22+jj}, v9, 5, v{22+jj}"); a(f"v_lshl_add_u32 v{22+jj}, v12, 3, v{22+jj}")
        a("s_lshl_b32 s64, s42, 10"); a(f"v_add_u32 v{22+jj}, s64, v{22+jj}")
        a("s_lshl_b32 s64, s42, 11"); a("s_sub_u32 s64, 1024, s64"); a(f"v_add_u32 v{26+jj}, s64, v{22+jj}")
    for r in range(64): a(f"v_mov_b32 v{64+r}, 0")
    a("v_lshrrev_b32 v3, 4, v1"); a("v_and_b32 v4, 15, v1")
    a("v_lshlrev_b32 v21, 2, v3"); a("v_xor_b32 v21, v21, v4"); a("v_lshlrev_b32 v21, 4, v21")
    a(f"v_mul_u32_u24 v6, {HTS}, v3"); a("v_add_u32 v21, v21, v6")
    a(f"s_mul_i32 s64, s{S_WAVE}, {4*HTS}"); a("s_lshl_b32 s65, s41, 8"); a("s_add_u32 s64, s64, s65"); a(f"s_add_u32 s64, s64, {WS_HT}")
    a("v_add_u32 v21, s64, v21")
    a("s_waitcnt vmcnt(0)"); a("s_barrier")
    a(f"s_mov_b32 s64, {WS_FLAG2}")
    poll_issue(a, "s2", 64, 256, 4, 32)
    if TWO:
        for ks in range(18, 28): tr_w(ks, ks - 18)
        a("s_waitcnt lgkmcnt(0)"); cw_setup(a)
    else:
        for ks in range(9, 18): tr_w(ks, ks - 9)
        a("v_mov_b32 v5, v16"); a("v_mov_b32 v6, v17")
        a("s_waitcnt lgkmcnt(0)"); cw_setup(a)
        a("v_mov_b32 v16, v5"); a("v_mov_b32 v17, v6")
        a("v_add_u32 v19, 0x24000, v17"); a("v_add_u32 v13, 0x24000, v16")
        a("v_add_u32 v16, 0x14000, v16"); a("v_add_u32 v17, 0x14000, v17")
        a("v_mov_b32 v12, v250")

    stamp(a, 2)
    if "pf2" in OPT: code_prefetch(a, vt=2)
    a("s_waitcnt vmcnt(0)")
    poll_check(a, "s2", 4, 32)
    stamp(a, 3)
    vm = VM(); lg = LG()
    def dma_h(g):
        a(f"s_add_u32 m0, s43, {8192*g}"); rot_off(a, 2 * g, S_RB, 16 * HTS)
        a(f"buffer_load_dwordx4 v21, {W}, s67 offen lds"); vm.issue(("H", g))
    HPRE = next((int(o[4:]) for o in OPT if o.startswith("hpre")), 4)
    for g in range(HPRE): dma_h(g)
    FR = [32, 48, 240]
    hi = [False]
    def reads(ks):
        fb = FR[ks % 3]
        pre = []
        if ks >= 16 and not hi[0]:
            hi[0] = True
            pre = [f"v_add_u32 v{22+jj}, 0x10000, v{22+jj}" for jj in range(8)]
        ho = 4096 * (ks - 16 if ks >= 16 else ks)
        return pre, [f"ds_read_b64_tr_b16 v[{fb+4*jj+2*h}:{fb+4*jj+2*h+1}], v{22+4*h+jj} offset:{ho}" for jj in range(4) for h in range(2)]
    NK = 28
    bars = {2: 7, 6: 15, 10: 19, 14: 19, 18: 23, 22: 27} if "two" not in OPT else {2: 7, 6: 15, 10: 19, 14: 23, 18: 27, 22: 27}
    if "bar18" in OPT: bars = {2: 7, 6: 15, 10: 19, 14: 19, 18: 27}
    if "bar16" in OPT: bars = {2: 7, 6: 15, 10: 19, 14: 19, 17: 27}
    blist = sorted(bars)
    vm.wait_for(a, lambda t: t[0] == "H" and t[1] <= 1); a("s_barrier")
    if "prioB" in OPT:
        a(f"s_cmp_ge_u32 s{S_WAVE}, 4"); a("s_cbranch_scc0 L_prioB"); a("s_setprio 1"); a.label("L_prioB")
    stamp(a, 4); cstamp(a, 9)
    for ks in (0, 1):
        pre, rd = reads(ks)
        for x in pre + rd: a(x); lg.issue(("F", ks))
    W2N = next((int(o[3:]) for o in OPT if o.startswith("w2n")), 16)
    free_from = {u: min([b for b in blist if b >= 2 * u + 1], default=99) for u in range(14)}
    plan_dma = {k: [] for k in range(NK)}; plan_tr = {k: [] for k in range(NK)}; post_tr = []
    if TWO:
        hq = [(0, g) for g in range(HPRE, 14)]; lq = []
        for u in range(14, 20): free_from[u] = 0
    else:
        hq = [(0 if g < 10 else 14, g) for g in range(HPRE, 14)]; lq = list(range(18, 28))
        for u in range(14, 20): free_from[u] = 14
        for u in range(10, 14): free_from[u] = 99
    late_tr = {11: list(range(18, 23)), 12: list(range(23, 28))} if not TWO else {}
    nxt = 0
    for k in range(NK):
        cap = 3 if ((hq and hq[0][0] <= k) or lq) and k < 6 else 2
        while len(plan_dma[k]) < cap and hq and hq[0][0] <= k: plan_dma[k].append(("H", hq.pop(0)[1]))
        while len(plan_dma[k]) < cap and lq: plan_dma[k].append(("L", lq.pop(0)))
        while len(plan_dma[k]) < cap and nxt < W2N:
            cand = [u for u in free_from if free_from[u] <= k]
            if not cand: break
            u = min(cand)
            free_from[u] = 99
            plan_dma[k].append(("W2", nxt, u))
            lb = min([b for b in blist if b >= k + 3], default=None)
            if "notrin" not in OPT and lb is not None and max(lb, nxt + 1) <= NK - 3:
                t = max(lb, nxt + 1)
                while len(plan_tr[t]) >= 3 or t in late_tr: t += 1
                if t <= NK - 3:
                    plan_tr[t].append((nxt, u)); free_from[u] = min([b for b in blist if b >= t + 3], default=99)
                else: post_tr.append((nxt, u))
            else:
                post_tr.append((nxt, u))
            nxt += 1
    assert not hq and not lq
    rest = list(range(nxt, 28))
    busy = {u for _, u in post_tr}
    NPRE = next((int(o[3:]) for o in OPT if o.startswith("pre")), 0)
    fr = [u for u in range(20) if u not in busy]
    assert NPRE <= len(fr)
    rest_units = fr[:NPRE] + [u for u in range(20) if u not in fr[:NPRE]][:len(rest) - NPRE] if len(rest) > NPRE else fr[:len(rest)]
    assert len(rest_units) == len(rest)
    if "verbose" in OPT: print("dma", plan_dma, "\ntr", plan_tr, "\npost", post_tr, "rest", rest, rest_units)
    issued_at = {}
    for ks in range(NK):
        lg.wait_for(a, lambda t: t == ("F", ks) or (ks == 13 and t[0] == "T"))
        rd = []; pre = []
        if ks in bars:
            assert all(("H", g) in vm.q for g in range(bars[ks] // 2 + 1)), ks
            vm.wait_for(a, lambda t: (t[0] == "H" and t[1] <= bars[ks] // 2) or (t[0] == "W2" and issued_at[t[1]] <= ks - 3) or (t[0] == "L" and ks >= 10))
            if "vm0at18" in OPT and ks == 18: a("s_waitcnt vmcnt(0)")
            if "dg_nobar" not in OPT: a("s_barrier")
        if "prio18" in OPT and ks == 18:
            a(f"s_cmp_lt_u32 s{S_WAVE}, 4"); a("s_cbranch_scc0 L_prio18"); a("s_setprio 2"); a.label("L_prio18")
        if ks + 2 < NK: pre, rd = reads(ks + 2)
        for x in pre: a(x)
        extra = [x for (k2, u) in plan_tr[ks] for x in cw_tr(k2, u)]
        for kk in late_tr.get(ks, []):
            r = AW + 4 * kk; sl = kk - 18
            (va, vb), off = ((16, 17), 8192 * sl) if sl < 8 else ((13, 19), 8192 * (sl - 8))
            extra += [f"ds_read_b64_tr_b16 v[{r}:{r+1}], v{va} offset:{off}", f"ds_read_b64_tr_b16 v[{r+2}:{r+3}], v{vb} offset:{off}"]
        dmas = list(plan_dma[ks])
        fb = FR[ks % 3]; ar = AW + 4 * ks
        for jj in range(4):
            acc = 64 + 16 * jj
            a(f"v_mfma_f32_32x32x16_bf16 v[{acc}:{acc+15}], v[{ar}:{ar+3}], v[{fb+4*jj}:{fb+4*jj+3}], v[{acc}:{acc+15}]")
            for x in rd[2*jj:2*jj+2]:
                if "dg_noread" not in OPT: a(x)
                lg.issue(("F", ks + 2))
            for x in extra[3*jj:3*jj+3]: a(x); lg.issue(("T", ks))
            if jj >= 1 and dmas:
                d = dmas.pop(0)
                if "dg_nodma" in OPT and d[0] != "H":
                    vm.issue((d[0], d[1])); issued_at[d[1]] = ks if d[0] == "W2" else issued_at.get(d[1], ks)
                elif d[0] == "H": dma_h(d[1])
                elif d[0] == "L":
                    bw_dma(a, d[1], d[1] - 8, 12); vm.issue(("L", d[1]))
                else:
                    cw_dma(a, d[1], d[2]); vm.issue(("W2", d[1])); issued_at[d[1]] = ks
            if jj == 0 and ks == 19:
                a("s_lshl_b32 s64, s41, 7"); a(f"s_add_u32 s64, s64, {WS_FLAG3}"); a("v_and_b32 v30, 1, v1"); a("v_lshl_add_u32 v30, v30, 6, s64")
                a(f"buffer_load_dword v31, v30, {W}, 0 offen sc1"); vm.issue(("F", 0))
            if jj == 0 and ks == 23:
                vm.wait_for(a, lambda t: t[0] == "F")
                a("s_mov_b32 s66, 0")
                a.label("L_f3_chk")
                a(f"v_cmp_ne_u32 vcc, s{S_NONCE}, v31"); a("s_cbranch_vccz L_f3_ok")
                a("s_add_u32 s66, s66, 1"); a(f"s_cmp_gt_u32 s66, {SPIN_MAX}"); a("s_cbranch_scc1 L_f3_ok")
                a(f"buffer_load_dword v31, v30, {W}, 0 offen sc1"); a("s_waitcnt vmcnt(0)"); a("s_branch L_f3_chk")
                a.label("L_f3_ok")
                a("v_and_b32 v30, 31, v1"); a("v_lshlrev_b32 v30, 3, v30")
                for j2 in range(4):
                    a(f"s_add_u32 s64, s{S_WAVE}, {j2}"); a("s_and_b32 s64, s64, 3"); a("s_lshl_b32 s65, s41, 2"); a("s_add_u32 s64, s64, s65")
                    a("s_lshl_b32 s64, s64, 8"); a(f"s_add_u32 s64, s64, {WS_G2}")
                    a(f"buffer_load_dwordx2 v[{4+2*j2}:{5+2*j2}], v30, {W}, s64 offen"); vm.issue(("G", j2))
            if jj == 2 and ks == 26:
                a("v_lshrrev_b32 v2, 5, v1"); a("v_lshlrev_b32 v2, 5, v2")
                a("s_lshl_b32 s64, s40, 9"); a(f"s_lshl_b32 s65, s{S_WAVE}, 6"); a("s_add_u32 s64, s64, s65"); a(f"s_add_u32 s64, s64, {WS_CS}")
                a("v_add_u32 v2, s64, v2"); a("v_add_u32 v3, 7168, v2")
                for k in range(2):
                    a(f"buffer_load_dwordx4 v[{48+4*k}:{51+4*k}], v2, {W}, 0 offen offset:{16*k}"); vm.issue(("C", 0))
                    a(f"buffer_load_dwordx4 v[{56+4*k}:{59+4*k}], v3, {W}, 0 offen offset:{16*k}"); vm.issue(("C", 0))
        assert not dmas
    stamp(a, 5); cstamp(a, 10)
    if "prioB" in OPT and "priokeep" not in OPT: a("s_setprio 0")
    if "endnop" in OPT:
        for _ in range(4): a("s_nop 15")
    vm.wait_for(a, lambda t: t[0] in ("G", "C"))
    for jj in range(4):
        b = 32 + 4 * jj
        a(f"v_mov_b32 v{b}, v{4+2*jj}"); a(f"v_mul_f32 v{b+2}, {NLOG2E:#x}, v{5+2*jj}"); a(f"v_mul_f32 v{b+3}, v{5+2*jj}, v{5+2*jj}")
    stamp(a, 6)
    a("v_lshlrev_b32 v6, 4, v1"); a(f"v_add_u32 v6, {WS_HF}, v6")
    for jj in range(4):
        a(f"s_add_u32 s64, s{S_WAVE}, {jj}"); a("s_and_b32 s64, s64, 3")
        a("s_lshl_b32 s65, s41, 2"); a("s_add_u32 s64, s64, s65"); a("s_mul_i32 s64, s64, 112")
        a("s_lshl_b32 s65, s40, 3"); a("s_add_u32 s64, s64, s65"); a(f"s_add_u32 s64, s64, s{S_WAVE}")
        a(f"s_lshl_b32 s{72+jj}, s64, 10")
    for jj in range(4):
        b = 32 + 4 * jj; acc = 64 + 16 * jj; t = 240 + 8 * (jj % 2); o = 24 + 4 * (jj % 2)
        if "nopk" in OPT:
            for e in range(8):
                a(f"v_fma_f32 v{acc+e}, -v{b}, v{48+e}, v{acc+e}"); a(f"v_fma_f32 v{acc+8+e}, -v{b}, v{56+e}, v{acc+8+e}")
            for e in range(8):
                a(f"v_mul_f32 v{t+e}, v{acc+e}, v{b+2}"); a(f"v_mul_f32 v{acc+e}, v{acc+e}, v{acc+8+e}")
                a(f"v_exp_f32 v{t+e}, v{t+e}")
            for e in range(8):
                a(f"v_mul_f32 v{acc+e}, v{acc+e}, v{b+3}"); a(f"v_add_f32 v{t+e}, 1.0, v{t+e}"); a(f"v_rcp_f32 v{t+e}, v{t+e}")
            for k in range(4):
                a(f"v_mul_f32 v{acc+2*k}, v{acc+2*k}, v{t+2*k}"); a(f"v_mul_f32 v{acc+2*k+1}, v{acc+2*k+1}, v{t+2*k+1}")
                a(f"v_cvt_pk_bf16_f32 v{o+k}, v{acc+2*k}, v{acc+2*k+1}")
        else:
            P = lambda r: f"v[{r}:{r+1}]"
            for e in range(0, 8, 2):
                a(f"v_pk_fma_f32 {P(acc+e)}, {P(b)}, {P(48+e)}, {P(acc+e)} op_sel_hi:[0,1,1] neg_lo:[1,0,0] neg_hi:[1,0,0]")
                a(f"v_pk_fma_f32 {P(acc+8+e)}, {P(b)}, {P(56+e)}, {P(acc+8+e)} op_sel_hi:[0,1,1] neg_lo:[1,0,0] neg_hi:[1,0,0]")
            for e in range(0, 8, 2):
                a(f"v_pk_mul_f32 {P(t+e)}, {P(acc+e)}, {P(b+2)} op_sel_hi:[1,0]")
                a(f"v_pk_mul_f32 {P(acc+e)}, {P(acc+e)}, {P(acc+8+e)}")
                a(f"v_exp_f32 v{t+e}, v{t+e}"); a(f"v_exp_f32 v{t+e+1}, v{t+e+1}")
            for e in range(0, 8, 2):
                a(f"v_pk_mul_f32 {P(acc+e)}, {P(acc+e)}, {P(b+2)} op_sel:[0,1] op_sel_hi:[1,1]")
                a(f"v_pk_add_f32 {P(t+e)}, {P(t+e)}, 1.0 op_sel_hi:[1,0]")
                a(f"v_rcp_f32 v{t+e}, v{t+e}"); a(f"v_rcp_f32 v{t+e+1}, v{t+e+1}")
            for k in range(4):
                a(f"v_pk_mul_f32 {P(acc+2*k)}, {P(acc+2*k)}, {P(t+2*k)}")
                a(f"v_cvt_pk_bf16_f32 v{o+k}, v{acc+2*k}, v{acc+2*k+1}")
        a(f"buffer_store_dwordx4 v[{o}:{o+3}], v6, {W}, s{72+jj} offen sc1"); vm.issue(("S", jj))
    if "prio18" in OPT: a("s_setprio 0")
    vm.wait_for(a, lambda t: t[0] == "W2")
    a("s_barrier")
    for (k2, u) in post_tr:
        for x in cw_tr(k2, u): a(x)
    for k2, u in list(zip(rest, rest_units))[:NPRE]:
        cw_dma(a, k2, u); vm.issue(("W2", k2))
    vm.wait_for(a, lambda t: t[0] == "S")
    a("s_waitcnt lgkmcnt(0)")
    stamp(a, 7)
    a("s_barrier")
    a("s_mul_i32 s64, s41, 14"); a("s_add_u32 s64, s64, s40"); a("s_lshl_b32 s64, s64, 6"); a(f"s_add_u32 s64, s64, {WS_FLAG4}")
    publish_flag(a, 64)
    for k2, u in list(zip(rest, rest_units))[NPRE:]:
        cw_dma(a, k2, u)
    if "pf3" in OPT: code_prefetch(a, vt=2, sreg=34)
    phaseC_setup(a)
    a("s_lshr_b32 s64, s79, 1"); a("s_mul_i32 s64, s64, 896"); a(f"s_add_u32 s64, s64, {WS_FLAG4}")
    if rest:
        a("s_waitcnt vmcnt(0)"); a("s_barrier")
        poll_issue(a, "s4", 64, 14, 1, 32)
        for k2, u in zip(rest, rest_units):
            for x in cw_tr(k2, u): a(x)
        a("s_waitcnt lgkmcnt(0)")
    else:
        poll_issue(a, "s4", 64, 14, 1, 32)
    stamp(a, 8)

RED_C = 114688
def phaseC_setup(a):
    srd(a, 52, 26, L * D * 2)
    a(f"s_mul_i32 s40, s76, {28672 if 'c14' in OPT else 40960}"); a("s_lshl_b32 s64, s77, 10"); a("s_add_u32 s41, s40, s64")
    a("v_and_b32 v23, 31, v1"); a("v_lshrrev_b32 v24, 5, v1")
    a("s_lshl_b32 s64, s78, 6"); a("s_lshl_b32 s65, s77, 5"); a("s_add_u32 s64, s64, s65"); a("s_lshl_b32 s65, s50, 4"); a("s_add_u32 s34, s64, s65")
    a("s_lshl_b32 s64, s79, 6"); a("s_and_b32 s65, s76, 1"); a("s_lshl_b32 s65, s65, 5"); a("s_add_u32 s35, s64, s65")
    a("v_lshlrev_b32 v25, 3, v24"); a("v_add_u32 v25, s34, v25"); a("v_add_u32 v26, s35, v23")
    a(f"v_mul_u32_u24 v27, {HTS}, v25"); a("v_lshl_add_u32 v27, v26, 1, v27"); a(f"v_add_u32 v27, {WS_HT}, v27")
    for e in range(8):
        a(f"s_mov_b32 s67, {e*HTS}"); a(f"buffer_load_ushort v{240+e}, v27, {W}, s67 offen")
    a("s_movk_i32 s64, 896"); a("v_mul_lo_u32 v28, v26, s64"); a("v_lshl_add_u32 v28, v25, 1, v28")
    a("v_lshlrev_b32 v5, 4, v1")
    a("s_lshl_b32 s64, s79, 1"); a("s_add_u32 s64, s64, s77"); a("s_mul_i32 s64, s64, 112"); a("s_mul_i32 s65, s76, 28"); a("s_add_u32 s64, s64, s65")
    a("s_lshl_b32 s64, s64, 10"); a(f"s_add_u32 s64, s64, {WS_HF}"); a("v_add_u32 v252, s64, v5")
    a("v_add_u32 v6, s40, v5")
    a("s_and_b32 s64, s76, 1"); a("s_lshl_b32 s64, s64, 10"); a("v_add_u32 v16, s64, v6"); a("s_xor_b32 s64, s64, 1024"); a("v_add_u32 v17, s64, v6")
    for r in range(32): a(f"v_mov_b32 v{64+r}, 0")

def phaseC(a):
    stamp(a, 1)
    stamp(a, 2)
    a("s_waitcnt vmcnt(0)")
    poll_check(a, "s4", 1, 32)
    stamp(a, 3)
    vm = VM()
    NS = 14 if 'c14' in OPT else 20
    def dma_b(k):
        a(f"s_add_u32 m0, s41, {2048*(k % NS)}"); rot_off(a, k, S_RC, 1024)
        a(f"buffer_load_dwordx4 v252, {W}, s67 offen lds"); vm.issue(("B", k))
    PRE = next((int(o[4:]) for o in OPT if o.startswith("cpre")), 8)
    for k in range(PRE): dma_b(k)
    NBUF = 4
    FR = [32, 40, 48, 56]
    def reads(k):
        fb = FR[k % NBUF]
        return [f"ds_read_b128 v[{fb+4*ns}:{fb+4*ns+3}], v{16+ns} offset:{2048*(k % NS)}" for ns in range(2)]
    NK = 28; G = 4; PD = 3
    def need(k_hi):
        assert all(("B", k) in vm.q for k in range(k_hi + 1)), k_hi
        vm.wait_for(a, lambda t: t[1] <= k_hi); a("s_barrier")
    need(3)
    stamp(a, 4)
    for k in range(PD):
        for x in reads(k): a(x)
    ready = 3; nxt = PRE; freed = -1
    for k in range(NK):
        a(f"s_waitcnt lgkmcnt({2*min(PD-1, NK-1-k)})")
        rd = []
        if k + PD < NK:
            if k + PD > ready:
                hi = min(k + PD + G - 1, NK - 1); need(hi); ready = hi; freed = k
            rd = reads(k + PD)
        fb = FR[k % NBUF]; ar = AW + 4 * k
        for ns in range(2):
            acc = 64 + 16 * ns
            a(f"v_mfma_f32_32x32x16_bf16 v[{acc}:{acc+15}], v[{ar}:{ar+3}], v[{fb+4*ns}:{fb+4*ns+3}], v[{acc}:{acc+15}]")
            if rd: a(rd[ns])
        for _ in range(4 if k == 0 else 3 if k < 4 else 2):
            if nxt < NK and (nxt < NS or nxt - NS <= freed):
                dma_b(nxt); nxt += 1
    assert nxt == NK
    stamp(a, 5)
    a("v_lshlrev_b32 v8, 4, v1")
    if 'c14' not in OPT: a("s_barrier")
    for x in range(1, 4):
        ns, hh = x & 1, x >> 1
        a(f"s_xor_b32 s64, s{S_WAVE}, {x}"); a("s_mul_i32 s64, s64, 6144"); a(f"s_add_u32 s64, s64, {RED_C + (x-1)*2048}")
        a("v_add_u32 v22, s64, v8")
        src = 64 + 16 * ns + 8 * hh
        a(f"ds_write_b128 v22, v[{src}:{src+3}]"); a(f"ds_write_b128 v22, v[{src+4}:{src+7}] offset:1024")
    a(f"s_mul_i32 s64, s{S_WAVE}, 6144"); a(f"s_add_u32 s64, s64, {RED_C}"); a("v_add_u32 v22, s64, v8")
    a("s_waitcnt lgkmcnt(0)"); a("s_barrier")
    for x in range(3):
        a(f"ds_read_b128 v[{96+8*x}:{99+8*x}], v22 offset:{2048*x}"); a(f"ds_read_b128 v[{100+8*x}:{103+8*x}], v22 offset:{2048*x+1024}")
    a("s_waitcnt lgkmcnt(0)")
    for x in range(3):
        for r in range(8): a(f"v_add_f32 v{64+r}, v{64+r}, v{96+8*x+r}")
    stamp(a, 6)
    for k in range(4):
        r = 2 * k
        a(f"v_cvt_pk_bf16_f32 v30, v{64+r}, v{65+r}")
        a("v_lshlrev_b32 v31, 16, v30"); a("v_and_b32 v30, 0xffff0000, v30")
        a(f"v_lshlrev_b32 v32, 16, v{240+r}"); a(f"v_lshlrev_b32 v33, 16, v{241+r}")
        a("v_add_f32 v31, v31, v32"); a("v_add_f32 v30, v30, v33")
        a(f"v_cvt_pk_bf16_f32 v{120+k}, v31, v30")
    a("buffer_store_dwordx4 v[120:123], v28, s[52:55], 0 offen")
    a("s_waitcnt vmcnt(0)")
    stamp(a, 7)
```

```python
from asm import *
from pA import (L, D, N, F, LOG2E, NLOG2E, INV2PI, WS_GRAN, WS_CS, WS_FLAG1, WS_FLAG3, WS_G2, WS_XT, WS_FLAG2, WS_FLAG4, WS_HT, HTS, WS_HF, WS_SIZE, SRD_WS, SRD_DBG, SPIN_MAX,
                OPS, OP_CH, KC_CH, KC_CP, SB, TB0, TB_CH, UA0, UA_CH, RA0, RA_CH, LDS_TOTAL, cmul1, cmul2, reduce8, stats_pack)
S_WAVE, S_NONCE = 32, 33
W = f"s[{SRD_WS}:{SRD_WS+3}]"
DBG = f"s[{SRD_DBG}:{SRD_DBG+3}]"
OPT = set()
def FS(): return next((int(o[2:]) for o in OPT if o.startswith('fs')), 6)
RED0 = RA0 + 2 * RA_CH

def prologue(a):
    a("s_load_dwordx16 s[4:19], s[0:1], 0")
    a("s_load_dwordx8 s[20:27], s[0:1], 64")
    a("s_load_dwordx4 s[28:31], s[0:1], 96")
    if "pf0" in OPT: code_prefetch(a)
    a("v_and_b32 v1, 63, v0"); a("v_lshrrev_b32 v2, 6, v0"); a("s_nop 0")
    a(f"v_readfirstlane_b32 s{S_WAVE}, v2")
    a("s_waitcnt lgkmcnt(0)")
    srd(a, SRD_WS, 30, WS_SIZE); srd(a, SRD_DBG, 28, 256)
    a(f"s_or_b32 s64, s2, s{S_WAVE}"); a("s_cmp_eq_u32 s64, 0"); a("s_cbranch_scc0 L_nopub")
    a("s_memrealtime s[64:65]"); a("s_waitcnt lgkmcnt(0)"); a("s_or_b32 s64, s64, 1")
    a("v_mov_b32 v3, s64"); a("v_mov_b32 v4, 0")
    a(f"buffer_store_dword v3, v4, {DBG}, 0 offen sc1")
    a.label("L_nopub")

def get_nonce(a, tag, vt):
    a(f"v_mov_b32 v{vt+1}, 0"); a("s_mov_b32 s66, 0")
    a.label(f"L_nonce_{tag}")
    a(f"buffer_load_dword v{vt}, v{vt+1}, {DBG}, 0 offen sc1")
    a("s_waitcnt vmcnt(0)")
    a(f"v_readfirstlane_b32 s{S_NONCE}, v{vt}")
    a("s_add_u32 s66, s66, 1"); a(f"s_cmp_gt_u32 s66, {SPIN_MAX}"); a(f"s_cbranch_scc1 L_nonce_{tag}_ok")
    a(f"s_cmp_eq_u32 s{S_NONCE}, 0"); a(f"s_cbranch_scc1 L_nonce_{tag}")
    a.label(f"L_nonce_{tag}_ok")

def publish_flag(a, off_sgpr, vt=2):
    lab = f"L_pub_{len(a.lines)}"
    a(f"s_cmp_eq_u32 s{S_WAVE}, 0"); a(f"s_cbranch_scc0 {lab}")
    a(f"v_mov_b32 v{vt}, s{S_NONCE}"); a(f"v_mov_b32 v{vt+1}, s{off_sgpr}")
    a("s_mov_b64 exec, 1")
    a(f"buffer_store_dword v{vt}, v{vt+1}, {W}, 0 offen sc1")
    a("s_mov_b64 exec, -1")
    a.label(lab)

def wait_flags(a, tag, base_sgpr, count, per_lane, vt=32):
    sh = FS() if count == 256 else 6
    a(f"s_cmp_eq_u32 s{S_WAVE}, 0"); a(f"s_cbranch_scc0 L_wf_{tag}_bar")
    a(f"v_lshlrev_b32 v{vt}, {sh}, v1"); a(f"v_add_u32 v{vt}, s{base_sgpr}, v{vt}")
    a("s_mov_b32 s66, 0")
    if count < 64:
        a(f"v_cmp_gt_u32 vcc, {count}, v1"); a("s_and_saveexec_b64 s[68:69], vcc")
    a.label(f"L_wf_{tag}")
    for i in range(per_lane):
        if i == 0: a(f"buffer_load_dword v{vt+1}, v{vt}, {W}, 0 offen sc1")
        else:
            a(f"s_mov_b32 s67, {(64 << sh)*i}"); a(f"buffer_load_dword v{vt+1+i}, v{vt}, {W}, s67 offen sc1")
    a("s_waitcnt vmcnt(0)")
    a(f"v_xor_b32 v{vt+1}, s{S_NONCE}, v{vt+1}")
    for i in range(1, per_lane):
        a(f"v_xor_b32 v{vt+1+i}, s{S_NONCE}, v{vt+1+i}"); a(f"v_or_b32 v{vt+1}, v{vt+1}, v{vt+1+i}")
    a(f"v_cmp_ne_u32 vcc, 0, v{vt+1}")
    a("s_add_u32 s66, s66, 1"); a(f"s_cmp_gt_u32 s66, {SPIN_MAX}"); a(f"s_cbranch_scc1 L_wf_{tag}_ok")
    a(f"s_cbranch_vccnz L_wf_{tag}")
    a.label(f"L_wf_{tag}_ok")
    a("s_mov_b64 exec, -1")
    a.label(f"L_wf_{tag}_bar")
    a("s_barrier")


X8S = 7168
XS0 = RED0
def xp_issue(a):
    srd(a, 36, 4, L * D * 2)
    a(f"s_lshl_b32 s64, s2, 3"); a(f"s_add_u32 s64, s64, s{S_WAVE}"); a("s_mul_i32 s64, s64, 896")
    a("v_lshl_add_u32 v194, v1, 4, s64")
    for r in range(4): a(f"v_mov_b32 v{196+r}, 0")
    a("v_cmp_gt_u32 vcc, 56, v1"); a("s_and_saveexec_b64 s[66:67], vcc")
    a("buffer_load_dwordx4 v[196:199], v194, s[36:39], 0 offen")
    a("s_mov_b64 exec, s[66:67]")
    a("v_mov_b32 v193, 0"); a(f"buffer_load_dword v195, v193, {DBG}, 0 offen sc1")
def xp_mid(a, tag):
    a(f"s_mul_i32 s64, s{S_WAVE}, 912"); a(f"s_add_u32 s64, s64, {XS0}"); a("v_lshl_add_u32 v194, v1, 4, s64")
    a("v_cmp_gt_u32 vcc, 56, v1"); a("s_and_saveexec_b64 s[66:67], vcc")
    a("ds_write_b128 v194, v[196:199]"); a("s_mov_b64 exec, s[66:67]")
    a("v_bfe_u32 v184, v1, 2, 2"); a("v_mul_u32_u24 v184, 912, v184")
    a("v_lshrrev_b32 v185, 4, v1"); a("v_lshl_add_u32 v184, v185, 5, v184"); a("v_and_b32 v185, 3, v1"); a("v_lshl_add_u32 v184, v185, 3, v184")
    a(f"s_lshl_b32 s64, s{S_WAVE}, 7"); a(f"s_add_u32 s64, s64, {XS0}"); a("v_add_u32 v184, s64, v184")
    a(f"s_mul_i32 s64, s2, {X8S}"); a(f"s_lshl_b32 s65, s{S_WAVE}, 10"); a("s_add_u32 s64, s64, s65"); a(f"s_add_u32 s64, s64, {WS_XT}")
    a("v_lshl_add_u32 v185, v1, 4, s64")
    a("s_waitcnt lgkmcnt(0)"); a("s_barrier")
    a(f"s_cmp_ge_u32 s{S_WAVE}, 7"); a(f"s_cbranch_scc1 L_xp_notr_{tag}")
    a("ds_read_b64_tr_b16 v[180:181], v184"); a(f"ds_read_b64_tr_b16 v[182:183], v184 offset:{4*912}")
    a("s_waitcnt lgkmcnt(0)")
    a(f"buffer_store_dwordx4 v[180:183], v185, {W}, 0 offen sc1")
    a.label(f"L_xp_notr_{tag}")
    a("v_mov_b32 v190, 0x3f803f80"); a("v_mov_b32 v188, 0"); a("v_mov_b32 v189, 0")
    for j in range(4):
        a(f"v_dot2_f32_bf16 v188, v{196+j}, v190, v188"); a(f"v_dot2_f32_bf16 v189, v{196+j}, v{196+j}, v189")
    for mod in ("quad_perm:[1,0,3,2]", "quad_perm:[2,3,0,1]", "row_half_mirror", "row_mirror"):
        for r in (188, 189): a(f"v_add_f32_dpp v{r}, v{r}, v{r} {mod} row_mask:0xf bank_mask:0xf")
    for sw in ("v_permlane16_swap_b32", "v_permlane32_swap_b32"):
        a("v_mov_b32 v186, v188"); a("v_mov_b32 v187, v189")
        a(f"{sw} v188, v186"); a(f"{sw} v189, v187")
        a("v_add_f32 v188, v188, v186"); a("v_add_f32 v189, v189, v187")
    stats_pack(a, 188, 189, 186, 184)
    a("v_and_b32 v187, 0xffff0000, v186"); a("v_lshlrev_b32 v186, 16, v186"); a("v_rcp_f32 v188, v187")
    a("v_mul_f32_e64 v189, -v186, v188")
    a(f"s_lshl_b32 s64, s2, 6"); a(f"s_lshl_b32 s65, s{S_WAVE}, 3"); a("s_add_u32 s64, s64, s65"); a("v_mov_b32 v187, s64")
    a("s_mov_b64 exec, 1")
    a(f"buffer_store_dwordx2 v[188:189], v187, {W}, 0 offen offset:{WS_GRAN} sc1")
    a("s_mov_b64 exec, -1")
def xg_mid(a, tag):
    a("v_mov_b32 v190, 0x3f803f80"); a("v_mov_b32 v188, 0"); a("v_mov_b32 v189, 0")
    for j in range(4):
        a(f"v_dot2_f32_bf16 v188, v{196+j}, v190, v188"); a(f"v_dot2_f32_bf16 v189, v{196+j}, v{196+j}, v189")
    for mod in ("quad_perm:[1,0,3,2]", "quad_perm:[2,3,0,1]", "row_half_mirror", "row_mirror"):
        for r in (188, 189): a(f"v_add_f32_dpp v{r}, v{r}, v{r} {mod} row_mask:0xf bank_mask:0xf")
    for sw in ("v_permlane16_swap_b32", "v_permlane32_swap_b32"):
        a("v_mov_b32 v186, v188"); a("v_mov_b32 v187, v189")
        a(f"{sw} v188, v186"); a(f"{sw} v189, v187")
        a("v_add_f32 v188, v188, v186"); a("v_add_f32 v189, v189, v187")
    stats_pack(a, 188, 189, 186, 184)
    a(f"v_readfirstlane_b32 s{S_NONCE}, v195")
    a(f"s_cmp_eq_u32 s{S_NONCE}, 0"); a(f"s_cbranch_scc0 L_xg_have_{tag}")
    get_nonce(a, "xg" + tag, 192)
    a.label(f"L_xg_have_{tag}")
    a(f"v_mov_b32 v187, s{S_NONCE}")
    a(f"s_lshl_b32 s64, s2, 6"); a(f"s_lshl_b32 s65, s{S_WAVE}, 3"); a("s_add_u32 s64, s64, s65"); a("v_mov_b32 v188, s64")
    a("s_mov_b64 exec, 1")
    a(f"buffer_store_dwordx2 v[186:187], v188, {W}, 0 offen offset:{WS_GRAN} sc1")
    a("s_mov_b64 exec, -1")
def xp_pub(a, tag):
    a("s_waitcnt vmcnt(0)")
    a(f"v_readfirstlane_b32 s{S_NONCE}, v195")
    a(f"s_cmp_eq_u32 s{S_NONCE}, 0"); a(f"s_cbranch_scc0 L_xp_have_{tag}")
    get_nonce(a, "xp" + tag, 194)
    a.label(f"L_xp_have_{tag}")
    a("s_barrier")
    a(f"s_lshl_b32 s64, s2, {FS()}"); a(f"s_add_u32 s64, s64, {WS_FLAG1}")
    publish_flag(a, 64, 194)

def touch_w13(a):
    a("s_and_b32 s64, s2, 7"); a("s_lshr_b32 s65, s2, 3")
    a("s_and_b32 s66, s64, 1"); a("s_mul_i32 s66, s66, 7"); a("s_lshr_b32 s67, s65, 2"); a("s_add_u32 s66, s66, s67")
    a("s_and_b32 s65, s65, 3")
    a("s_cmp_lt_u32 s65, 2"); a("s_cselect_b32 s76, s20, s22"); a("s_cselect_b32 s77, s21, s23")
    a(f"s_mov_b32 s78, {D*F*2}"); a("s_mov_b32 s79, 0x20000")
    a("s_and_b32 s65, s65, 1"); a("s_mul_i32 s65, s65, 448"); a(f"s_min_u32 s67, s{S_WAVE}, 6"); a("s_lshl_b32 s67, s67, 6"); a("s_add_u32 s65, s65, s67")
    a("v_add_u32 v192, s65, v1")
    a("v_lshrrev_b32 v191, 1, v192"); a("v_mul_u32_u24 v191, 3584, v191"); a("v_and_b32 v192, 1, v192"); a("v_lshl_add_u32 v191, v192, 7, v191")
    a("s_lshl_b32 s66, s66, 8"); a("v_add_u32 v191, s66, v191")
    a("buffer_load_dword v192, v191, s[76:79], 0 offen")

def touch_weights(a, tag):
    a(f"s_cmp_ge_u32 s{S_WAVE}, 3"); a(f"s_cbranch_scc1 L_touch_skip_{tag}")
    a(f"s_lshl_b32 s64, s{S_WAVE}, 1"); a("s_cmp_eq_u32 s64, 0"); a("s_cselect_b32 s76, s20, s22"); a("s_cselect_b32 s77, s21, s23")
    a("s_cmp_eq_u32 s64, 4"); a("s_cselect_b32 s76, s24, s76"); a("s_cselect_b32 s77, s25, s77")
    a(f"s_mov_b32 s78, {D*F*2}"); a("s_mov_b32 s79, 0x20000")
    a("s_mul_i32 s64, s2, 49"); a("v_add_u32 v191, s64, v1"); a("v_lshlrev_b32 v191, 7, v191")
    a("v_cmp_gt_u32 vcc, 49, v1"); a("s_and_saveexec_b64 s[66:67], vcc")
    a("buffer_load_dword v192, v191, s[76:79], 0 offen")
    a("s_mov_b64 exec, s[66:67]")
    a.label(f"L_touch_skip_{tag}")

def poll_issue(a, tag, base_sgpr, count, per_lane, vt):
    sh = FS() if count == 256 else 6
    a(f"s_cmp_eq_u32 s{S_WAVE}, 0"); a(f"s_cbranch_scc0 L_pi_{tag}")
    a(f"v_lshlrev_b32 v{vt}, {sh}, v1"); a(f"v_add_u32 v{vt}, s{base_sgpr}, v{vt}")
    if count < 64:
        a(f"v_min_u32 v{vt+1}, {count-1}, v1"); a(f"v_lshlrev_b32 v{vt}, 6, v{vt+1}"); a(f"v_add_u32 v{vt}, s{base_sgpr}, v{vt}")
    for i in range(per_lane):
        if i == 0: a(f"buffer_load_dword v{vt+1}, v{vt}, {W}, 0 offen sc1")
        else:
            a(f"s_mov_b32 s67, {(64 << sh)*i}"); a(f"buffer_load_dword v{vt+1+i}, v{vt}, {W}, s67 offen sc1")
    a.label(f"L_pi_{tag}")
def poll_check(a, tag, per_lane, vt):
    sh = FS() if per_lane == 4 else 6
    a(f"s_cmp_eq_u32 s{S_WAVE}, 0"); a(f"s_cbranch_scc0 L_pc_{tag}_bar")
    a("s_mov_b32 s66, 0")
    a.label(f"L_pc_{tag}")
    a(f"v_xor_b32 v{vt+1}, s{S_NONCE}, v{vt+1}")
    for i in range(1, per_lane):
        a(f"v_xor_b32 v{vt+1+i}, s{S_NONCE}, v{vt+1+i}"); a(f"v_or_b32 v{vt+1}, v{vt+1}, v{vt+1+i}")
    a(f"v_cmp_ne_u32 vcc, 0, v{vt+1}")
    a(f"s_cbranch_vccz L_pc_{tag}_bar")
    a("s_add_u32 s66, s66, 1"); a(f"s_cmp_gt_u32 s66, {SPIN_MAX}"); a(f"s_cbranch_scc1 L_pc_{tag}_bar")
    for i in range(per_lane):
        if i == 0: a(f"buffer_load_dword v{vt+1}, v{vt}, {W}, 0 offen sc1")
        else:
            a(f"s_mov_b32 s67, {(64 << sh)*i}"); a(f"buffer_load_dword v{vt+1+i}, v{vt}, {W}, s67 offen sc1")
    a("s_waitcnt vmcnt(0)")
    a(f"s_branch L_pc_{tag}")
    a.label(f"L_pc_{tag}_bar")
    a("s_barrier")

def tlb_touch(a):
    a("v_and_b32 v175, 31, v1"); a("v_lshlrev_b32 v175, 19, v175")
    a(f"buffer_load_dword v176, v175, {W}, 0 offen")
    srd(a, 76, 26, L * D * 2)
    a("buffer_load_dword v174, v175, s[76:79], 0 offen")

def code_prefetch(a, vt=177, sreg=64):
    a(f"s_getpc_b64 s[{sreg}:{sreg+1}]")
    lab = f"L_pc_{len(a.lines)}"
    a.label(lab)
    a(f"s_sub_u32 s{sreg}, s{sreg}, {lab}-KERNEL_START"); a(f"s_subb_u32 s{sreg+1}, s{sreg+1}, 0")
    a(f"v_lshrrev_b32 v{vt+1}, 1, v0"); a(f"v_lshlrev_b32 v{vt+1}, 7, v{vt+1}")
    a(f"v_min_u32 v{vt+1}, KERNEL_END-KERNEL_START-4, v{vt+1}")
    a(f"global_load_dword v{vt}, v{vt+1}, s[{sreg}:{sreg+1}]")

def helper(a):
    a("s_sub_u32 s70, s2, 224")
    xp_issue(a)
    if "G" in OPT:
        a("s_waitcnt vmcnt(0)")
        xg_mid(a, "h")
    else:
        a("s_waitcnt vmcnt(1)")
        xp_mid(a, "h")
        xp_pub(a, "h")
    if "notouch" not in OPT: touch_weights(a, "h")
    stamp(a, 1)
    a("s_cmp_lt_u32 s70, 16")
    a("s_cselect_b32 s36, s20, s22"); a("s_cselect_b32 s37, s21, s23")
    a(f"s_mov_b32 s38, {D*F*2}"); a("s_mov_b32 s39, 0x20000")
    a("s_and_b32 s64, s70, 15"); a("s_mul_i32 s64, s64, 224")
    a("v_lshrrev_b32 v2, 4, v1"); a("v_and_b32 v3, 15, v1")
    a(f"s_mul_i32 s65, s{S_WAVE}, 56"); a("v_add_u32 v4, s65, v2")
    a("s_movk_i32 s65, 3584"); a("v_mul_lo_u32 v4, v4, s65"); a("v_lshl_add_u32 v4, v3, 4, v4"); a("v_add_u32 v4, s64, v4")
    for i in range(14):
        a(f"s_mov_b32 s67, {4*3584*i}")
        a(f"buffer_load_dwordx4 v[{8+4*i}:{11+4*i}], v4, s[36:39], s67 offen")
    for e in range(8): a(f"v_mov_b32 v{72+e}, 0")
    for i in range(14):
        a(f"s_waitcnt vmcnt({13-i})")
        for j in range(4):
            r = 8 + 4 * i + j
            a(f"v_lshlrev_b32 v80, 16, v{r}"); a(f"v_and_b32 v81, 0xffff0000, v{r}")
            a(f"v_add_f32 v{72+2*j}, v{72+2*j}, v80"); a(f"v_add_f32 v{73+2*j}, v{73+2*j}, v81")
    a(f"s_lshl_b32 s65, s{S_WAVE}, 2"); a("v_add_u32 v5, s65, v2"); a("v_lshlrev_b32 v5, 9, v5"); a("v_lshl_add_u32 v5, v3, 5, v5")
    a("ds_write_b128 v5, v[72:75]"); a("ds_write_b128 v5, v[76:79] offset:16")
    a("s_waitcnt lgkmcnt(0)"); a("s_barrier")
    a("v_lshlrev_b32 v5, 2, v0")
    a("v_cmp_gt_u32 vcc, 112, v0"); a("s_and_saveexec_b64 s[64:65], vcc"); a("s_cbranch_execz L_h_cs_done")
    for k in range(32): a(f"ds_read_b32 v{8+k}, v5 offset:{512*k}")
    a("s_waitcnt lgkmcnt(0)")
    for k in range(1, 32): a(f"v_add_f32 v8, v8, v{8+k}")
    a("s_mul_i32 s66, s70, 448"); a(f"s_add_u32 s66, s66, {WS_CS}"); a("v_add_u32 v5, s66, v5")
    a(f"buffer_store_dword v8, v5, {W}, 0 offen sc1")
    a.label("L_h_cs_done")
    a("s_mov_b64 exec, s[64:65]")
    a("s_waitcnt vmcnt(0)"); a("s_barrier")
    a(f"s_lshl_b32 s64, s2, {FS()}"); a(f"s_add_u32 s64, s64, {WS_FLAG2}")
    publish_flag(a, 64)
    a(f"s_mov_b32 s64, {WS_FLAG2}")
    wait_flags(a, "hs2", 64, 256, 4)
    a("v_and_b32 v2, 31, v1"); a("v_lshrrev_b32 v3, 5, v1"); a(f"s_lshl_b32 s64, s{S_WAVE}, 1"); a("v_add_u32 v3, s64, v3")
    a(f"v_mul_u32_u24 v3, {HTS}, v3"); a("v_lshl_add_u32 v3, v2, 2, v3"); a("s_lshl_b32 s64, s70, 7"); a(f"s_add_u32 s64, s64, {WS_HT}"); a("v_add_u32 v3, s64, v3")
    for i in range(28):
        a(f"s_mov_b32 s67, {16*HTS*i}"); a(f"buffer_load_dword v{40+i}, v3, {W}, s67 offen")
    for r in range(4): a(f"v_mov_b32 v{8+r}, 0")
    for i in range(28):
        a(f"s_waitcnt vmcnt({27-i})")
        a(f"v_lshlrev_b32 v12, 16, v{40+i}"); a(f"v_and_b32 v13, 0xffff0000, v{40+i}")
        a("v_add_f32 v8, v8, v12"); a("v_add_f32 v9, v9, v13"); a("v_fma_f32 v10, v12, v12, v10"); a("v_fma_f32 v11, v13, v13, v11")
    for r in range(8, 12):
        a(f"v_mov_b32 v12, v{r}"); a(f"v_permlane32_swap_b32 v{r}, v12"); a(f"v_add_f32 v{r}, v{r}, v12")
    a(f"s_lshl_b32 s64, s{S_WAVE}, 9"); a("v_lshl_add_u32 v4, v2, 4, s64")
    a("ds_write_b128 v4, v[8:11]")
    a("s_waitcnt lgkmcnt(0)"); a("s_barrier")
    a("v_cmp_gt_u32 vcc, 64, v0"); a("s_and_saveexec_b64 s[64:65], vcc"); a("s_cbranch_execz L_h_g2_done")
    a("v_lshrrev_b32 v4, 1, v0"); a("v_lshlrev_b32 v4, 4, v4"); a("v_and_b32 v5, 1, v0"); a("v_lshl_add_u32 v4, v5, 2, v4")
    for k in range(8):
        a(f"ds_read_b32 v{16+k}, v4 offset:{512*k}"); a(f"ds_read_b32 v{24+k}, v4 offset:{512*k+8}")
    a("s_waitcnt lgkmcnt(0)")
    for k in range(1, 8):
        a(f"v_add_f32 v16, v16, v{16+k}"); a(f"v_add_f32 v24, v24, v{24+k}")
    stats_pack(a, 16, 24, 32, 34)
    a("v_and_b32 v33, 0xffff0000, v32"); a("v_lshlrev_b32 v32, 16, v32"); a("v_rcp_f32 v33, v33")
    a("s_lshl_b32 s66, s70, 9"); a(f"s_add_u32 s66, s66, {WS_G2}"); a("v_lshl_add_u32 v4, v0, 3, s66")
    a(f"buffer_store_dwordx2 v[32:33], v4, {W}, 0 offen sc1")
    a.label("L_h_g2_done")
    a("s_mov_b64 exec, s[64:65]")
    a("s_waitcnt vmcnt(0)"); a("s_barrier")
    a("s_lshl_b32 s64, s70, 6"); a(f"s_add_u32 s64, s64, {WS_FLAG3}")
    publish_flag(a, 64)
    stamp(a, 2)

def st2(a, i):
    if "convdiag" not in OPT: stamp(a, i)
def st3(a, i):
    if "convdiag" in OPT: stamp(a, i)
def phaseA(a, hooks):
    XPK = next((int(o[3:]) for o in OPT if o.startswith("xpk")), 8)
    TK = next((int(o[2:]) for o in OPT if o.startswith("tk")), 9)
    a(f"s_lshr_b32 s34, s{S_WAVE}, 2"); a(f"s_and_b32 s35, s{S_WAVE}, 3")
    xp_issue(a)
    srd(a, 40, 6, D * N * 2); srd(a, 44, 8, D * N * 2); srd(a, 48, 10, D * N * 2); srd(a, 52, 12, D * N * 2)
    a("s_and_b32 s64, s2, 7"); a("s_mul_i32 s64, s64, 28"); a("s_lshr_b32 s65, s2, 3"); a("s_add_u32 s75, s64, s65")
    a("s_lshl_b32 s64, s75, 2")
    a("s_load_dword s68, s[14:15], s64"); a("s_load_dword s69, s[16:17], s64")
    a("s_lshl_b32 s70, s75, 1"); a("s_add_u32 s70, s70, s34")
    a("s_lshl_b32 s65, s70, 9"); a("s_lshl_b32 s66, s35, 7"); a("s_add_u32 s65, s65, s66")
    a("v_lshl_add_u32 v3, v1, 1, s65")
    a("buffer_load_ushort v10, v3, s[40:43], 0 offen"); a("buffer_load_ushort v11, v3, s[44:47], 0 offen")
    a("buffer_load_ushort v12, v3, s[48:51], 0 offen"); a("buffer_load_ushort v13, v3, s[52:55], 0 offen")
    if "nopf" not in OPT and "pf0" not in OPT: code_prefetch(a)
    if "tlb" in OPT: tlb_touch(a)
    if "tearly" in OPT: touch_weights(a, "m")
    if "G" in OPT:
        a("v_mul_u32_u24 v179, 896, v1"); a("s_lshl_b32 s65, s75, 2"); a("v_add_u32 v179, s65, v179")
        GW = next((int(o[2:]) for o in OPT if o.startswith("gw")), 1)
        for i in range(GW):
            a(f"s_mul_i32 s65, s{S_WAVE}, {GW}"); a(f"s_add_u32 s65, s65, {i}"); a("s_lshl_b32 s66, s65, 8"); a(f"s_add_u32 m0, s66, {RED0}")
            a(f"s_mul_i32 s67, s65, {64*896}"); a("buffer_load_dword v179, s[36:39], s67 offen lds")
        a(f"s_cmp_eq_u32 s{S_WAVE}, 7"); a("s_cbranch_scc0 L_g_skip")
        for i in range(8 * GW, 32):
            a(f"s_mov_b32 m0, {RED0 + 256*i}"); a(f"s_mov_b32 s67, {64*896*i}")
            a("buffer_load_dword v179, s[36:39], s67 offen lds")
        a.label("L_g_skip")
    a("v_lshlrev_b32 v7, 4, v0"); a(f"v_add_u32 v7, {SB}, v7")
    a("v_mov_b32 v20, 0\nv_mov_b32 v21, 0\nv_mov_b32 v22, 0\nv_mov_b32 v23, 0")
    a("v_cmp_gt_u32 vcc, 30, v0"); a("s_and_saveexec_b64 s[66:67], vcc")
    a(f"ds_write_b128 v7, v[20:23] offset:{UA0-SB}"); a(f"ds_write_b128 v7, v[20:23] offset:{UA0-SB+UA_CH}")
    a("s_mov_b64 exec, s[66:67]")
    a("v_and_b32 v8, 255, v0"); a("v_lshlrev_b32 v9, 3, v8"); a("v_sub_u32 v9, 2047, v9")
    for e in range(11): a(f"v_subrev_u32 v{30+e}, {e}, v9")
    for e in range(0, 12, 2):
        a(f"v_cvt_f32_i32 v{44+e}, v{30+e}")
        if e + 1 < 11: a(f"v_cvt_f32_i32 v{45+e}, v{31+e}")
        a(f"v_cvt_pk_bf16_f32 v{58+e//2}, v{44+e}, v{45+e if e+1 < 11 else 44+e}")
    for e in range(11):
        p = 58 + e // 2; r = 226 + e
        a(f"v_and_b32 v{r}, 0xffff, v{p}" if e % 2 == 0 else f"v_lshrrev_b32 v{r}, 16, v{p}")
        a(f"v_subrev_u32 v{r}, 17024, v{r}"); a(f"v_min_i32 v{30+e}, 128, v{30+e}"); a(f"v_max_i32 v{r}, v{r}, v{30+e}")
    a("v_mov_b32 v64, 641")
    for e in range(8, 11):
        a(f"v_cmp_gt_i32 vcc, {e}, v9"); a(f"v_cndmask_b32 v{226+e}, v{226+e}, v64, vcc")
    a(f"s_mul_i32 s66, s34, {TB_CH}"); a(f"s_add_u32 s72, s66, {TB0}")
    a("v_mov_b32 v65, s72")
    for e in range(11): a(f"v_lshl_add_u32 v{226+e}, v{226+e}, 1, v65")
    a(f"s_mul_i32 s66, s34, {KC_CH}"); a("s_add_u32 s66, s66, 32"); a("v_lshl_add_u32 v237, v8, 4, s66")
    a("v_and_b32 v9, 15, v1"); a("v_lshrrev_b32 v8, 4, v1")
    a(f"s_and_b32 s73, s{S_WAVE}, 1"); a(f"s_bfe_u32 s74, s{S_WAVE}, 0x10001")
    a("s_lshl_b32 s65, s73, 4"); a("v_add_u32 v30, s65, v9")
    a("v_lshlrev_b32 v31, 4, v30"); a("v_lshl_add_u32 v31, v8, 3, v31")
    a("v_lshlrev_b32 v32, 3, v30"); a("v_add_u32 v32, 512, v32")
    a("v_cmp_eq_u32 vcc, 2, v8"); a("v_cndmask_b32 v31, v31, v32, vcc")
    a("v_lshlrev_b32 v32, 2, v30"); a("v_add_u32 v32, 768, v32")
    a("v_add_u32 v33, 4, v31"); a("v_add_u32 v34, 128, v32")
    a("v_cmp_eq_u32 vcc, 3, v8"); a("v_cndmask_b32 v31, v31, v32, vcc"); a("v_cndmask_b32 v33, v33, v34, vcc")
    a("v_lshlrev_b32 v32, 1, v30"); a("v_add_u32 v32, 1024, v32"); a("v_mov_b32 v34, 1288")
    a("v_cmp_eq_u32 vcc, 0, v8")
    for r in range(4):
        a(f"v_add_u32 v35, {64*r}, v32"); a(f"v_cndmask_b32 v{238+r}, v34, v35, vcc")
    a("v_lshl_add_u32 v35, v8, 8, v30"); a("v_mov_b32 v36, 1280")
    a("v_cmp_eq_u32 vcc, 0x100, v35"); a("v_cndmask_b32 v238, v238, v36, vcc")
    a("s_cmp_eq_u32 s74, 0"); a("s_cbranch_scc0 L_tb_rt1")
    a("v_mov_b32 v238, v31"); a("v_mov_b32 v239, v33")
    a.label("L_tb_rt1")
    for r in range(4): a(f"v_add_u32 v{238+r}, s72, v{238+r}")
    a("v_mov_b32 v36, s72"); a("ds_write_b16 v36, v20 offset:1282")
    a(f"s_movk_i32 s65, {OPS}"); a("v_mul_lo_u32 v248, v9, s65"); a("v_lshl_add_u32 v248, v8, 4, v248")
    a(f"s_mul_i32 s66, s34, {OP_CH}"); a("v_add_u32 v248, s66, v248")
    a(f"s_mul_i32 s67, s73, {16*OPS}"); a(f"s_add_u32 s67, s67, {21*OPS}"); a("v_add_u32 v249, s67, v248")
    a(f"s_mul_i32 s67, s74, {16*OPS}"); a("v_add_u32 v248, s67, v248")
    a("v_sub_u32 v30, 3, v9"); a("v_and_b32 v30, 3, v30")
    a(f"s_movk_i32 s65, {KC_CP}"); a("v_mul_lo_u32 v31, v30, s65")
    a("v_lshlrev_b32 v32, 3, v8"); a("v_sub_u32 v32, v32, v9"); a("v_sub_u32 v32, v32, v30"); a("v_add_u32 v32, 2047, v32")
    a("v_lshl_add_u32 v31, v32, 1, v31")
    a(f"s_mul_i32 s66, s34, {KC_CH}"); a(f"s_sub_u32 s66, s66, {64*63}"); a("v_add_u32 v244, s66, v31")
    a(f"s_mul_i32 s66, s34, {UA_CH}"); a(f"s_add_u32 s66, s66, {UA0}")
    a("v_lshlrev_b32 v31, 5, v9"); a("v_lshl_add_u32 v31, v8, 4, v31"); a("v_add_u32 v245, s66, v31")
    a(f"s_mul_i32 s66, s34, {RA_CH}"); a(f"s_add_u32 s66, s66, {RA0}")
    a("v_lshlrev_b32 v31, 6, v9"); a("v_lshl_add_u32 v31, v8, 4, v31"); a("v_add_u32 v246, s66, v31")
    a(f"s_mul_i32 s66, s70, {HTS}"); a(f"s_add_u32 s66, s66, {WS_HT}")
    a("v_lshlrev_b32 v31, 5, v9"); a("v_lshl_add_u32 v31, v8, 3, v31"); a("v_add_u32 v247, s66, v31")
    a(f"s_mul_i32 s71, s34, {OP_CH}"); a("s_lshl_b32 s66, s35, 8"); a("s_add_u32 s71, s71, s66")
    if "prioA" in OPT:
        a(f"s_cmp_ge_u32 s{S_WAVE}, 4"); a("s_cbranch_scc0 L_prioA"); a("s_setprio 1"); a.label("L_prioA")
    a("s_waitcnt lgkmcnt(0)")
    a("s_lshl_b32 s65, s34, 4"); a("s_lshr_b32 s66, s68, s65"); a("s_lshl_b32 s66, s66, 16")
    a(f"v_mov_b32 v14, {LOG2E:#x}"); a("v_mul_f32 v15, s66, v14"); a("v_exp_f32 v15, v15")
    a("v_cvt_pk_bf16_f32 v15, v15, v15"); a("v_lshlrev_b32 v15, 16, v15")
    a("s_mov_b32 m0, s71")
    st2(a, 1)
    if "G" in OPT:
        GW = next((int(o[2:]) for o in OPT if o.startswith("gw")), 1)
        a(f"s_cmp_eq_u32 s{S_WAVE}, 7"); a("s_cbranch_scc1 L_g_w7")
        a(f"s_waitcnt vmcnt({GW})"); a("s_branch L_g_wd")
        a.label("L_g_w7"); a(f"s_waitcnt vmcnt({32 - 7*GW})")
        a.label("L_g_wd")
        xg_mid(a, "m")
    else:
        npf = (0 if ("nopf" in OPT or "pf0" in OPT) else 1) + (2 if "tlb" in OPT else 0)
        a(f"s_waitcnt vmcnt({5+npf})")
        xp_mid(a, "m")
        a(f"s_waitcnt vmcnt({1+npf})")
    a("s_mov_b32 m0, s71")
    st2(a, 2)
    a("v_lshlrev_b32 v16, 16, v10"); a("v_lshlrev_b32 v24, 16, v11"); a("v_mul_f32 v16, v14, v16"); a("v_mul_f32 v24, v24, v15")
    a("v_exp_f32 v16, v16"); a(f"v_mul_f32 v24, {INV2PI:#x}, v24")
    a("v_lshlrev_b32 v30, 16, v12"); a("v_lshlrev_b32 v31, 16, v13")
    a("v_cvt_pk_bf16_f32 v16, v16, v16"); a("v_add_f32 v26, v15, v15")
    a("v_lshlrev_b32 v18, 16, v16")
    a("v_mul_f32 v30, v30, v26"); a("v_mul_f32_e64 v31, -v31, v26")
    a("v_mul_f32 v18, v18, v15"); a("v_mul_f32_e64 v18, -v18, v14")
    P, Q = 18, 24
    X, Xb = 30, 34
    Z = {1: 40, 8: 44, 256: 48, 2: 52, 4: 56}
    for k, t in enumerate((8, 1, 256)):
        tm = 60 + 2 * k
        if t == 1:
            a(f"v_exp_f32 v{tm}, v{P}"); a(f"v_fract_f32 v{tm+1}, v{Q}")
        else:
            c = {8: 0x41000000, 256: 0x43800000}[t]
            a(f"v_mul_f32 v{tm}, {c:#x}, v{P}"); a(f"v_mul_f32 v{tm+1}, {c:#x}, v{Q}")
            a(f"v_exp_f32 v{tm}, v{tm}"); a(f"v_fract_f32 v{tm+1}, v{tm+1}")
    for k, t in enumerate((8, 1, 256)):
        tm = 60 + 2 * k; z = Z[t]
        a(f"v_cos_f32 v{z}, v{tm+1}"); a(f"v_sin_f32 v{z+1}, v{tm+1}")
    for k, t in enumerate((8, 1, 256)):
        tm = 60 + 2 * k; z = Z[t]
        a(f"v_mul_f32 v{z}, v{z}, v{tm}"); a(f"v_mul_f32 v{z+1}, v{z+1}, v{tm}")
    T, T2 = 72, 76
    pk = [80, 81, 82, 83, 84, 85]; pki = [0]
    def put(row, src):
        r = pk[pki[0] % 6]; pki[0] += 1
        a(f"v_cvt_pk_bf16_f32 v{r}, v{src}, v{src+1}")
        a(f"ds_write_addtid_b32 v{r} offset:{row*OPS}")
    Y, X256, X512, X768, XW = 88, 92, 96, 100, 104
    put(0, X); put(22, Z[8])
    a("v_mov_b32 v108, 0x3f80"); a(f"ds_write_addtid_b32 v108 offset:{21*OPS}")
    a(cmul1(0, Z[1], Z[1], T)); a(cmul2(Z[2], Z[1], Z[1], T, False))
    a(cmul1(0, Z[2], Z[2], T)); a(cmul2(Z[4], Z[2], Z[2], T, False))
    xs = [(c, Xb, X if c == 1 else Xb, Z[1]) for c in range(1, 8)]
    xs += [(8, X256, X, Z[256]), (9, XW, X256, Z[2]), (10, XW, XW, Z[2]), (11, XW, XW, Z[2]), (12, X512, X256, Z[256]),
           (13, XW, X512, Z[4]), (14, X768, X512, Z[256]), (15, XW, X768, Z[4]), (16, XW, X768, Z[256])]
    for r in range(17, 21): xs.append((r, XW, XW, Z[256]))
    def s1_issue():
        a(f"buffer_load_dword v223, v3, {W}, 0 offen sc1")
    for k, b in enumerate(range(2, 32)):
        src = Z[8] if b == 2 else Y
        x = xs[k] if k < len(xs) else None
        a(cmul1(0, src, Z[8], T))
        if x: a(cmul1(0, x[2], x[3], T2))
        a(cmul2(Y, src, Z[8], T, False))
        if x: a(cmul2(x[1], x[2], x[3], T2, True))
        put(21 + b, Y)
        if x: put(x[0], x[1])
        if k == XPK and "G" not in OPT:
            xp_pub(a, "m")
        if k == TK and "notouch" not in OPT:
            touch_weights(a, "m")
    st2(a, 3)
    a("s_waitcnt lgkmcnt(0)"); a("s_barrier")
    st2(a, 4)
    if "G" in OPT:
        a("v_and_b32 v221, 255, v0"); a("v_lshlrev_b32 v221, 6, v221")
        def g_issue():
            for i in range(4): a(f"buffer_load_dwordx4 v[{204+4*i}:{207+4*i}], v221, {W}, 0 offen offset:{WS_GRAN+16*i} sc1")
        g_issue()
    else:
        a("v_and_b32 v3, 255, v0"); a(f"v_lshlrev_b32 v3, {FS()}, v3"); a(f"v_add_u32 v3, {WS_FLAG1}, v3")
        s1_issue()
    for r in range(4): a(f"v_mov_b32 v{16+r}, 0")
    NR = 6
    def rd(s):
        b = 32 + 8 * (s % NR)
        a(f"ds_read_b128 v[{b}:{b+3}], v248 offset:{64*s}"); a(f"ds_read_b128 v[{b+4}:{b+7}], v249 offset:{64*s}")
    for s in range(NR - 1): rd(s)
    for s in range(16):
        if s + NR - 1 < 16: rd(s + NR - 1)
        a(f"s_waitcnt lgkmcnt({2*min(15-s, NR-1)})")
        b = 32 + 8 * (s % NR)
        a(f"v_mfma_f32_16x16x32_bf16 v[16:19], v[{b}:{b+3}], v[{b+4}:{b+7}], v[16:19]")
        if s == 9 and "G" not in OPT:
            a("s_mov_b32 s66, 0")
            a.label("L_s1_chk")
            a("s_waitcnt vmcnt(0)")
            a(f"v_cmp_ne_u32 vcc, s{S_NONCE}, v223")
            a("s_cbranch_vccz L_s1_ok")
            a("s_add_u32 s66, s66, 1"); a(f"s_cmp_gt_u32 s66, {SPIN_MAX}"); a("s_cbranch_scc1 L_s1_ok")
            s1_issue()
            a("s_branch L_s1_chk")
            a.label("L_s1_ok")
            a("v_and_b32 v8, 255, v0")
            a(f"v_mul_u32_u24 v3, {X8S}, v8"); a("s_lshl_b32 s66, s70, 4"); a(f"s_add_u32 s66, s66, {WS_XT}"); a("v_add_u32 v3, s66, v3")
            a(f"buffer_load_dwordx4 v[200:203], v3, {W}, 0 offen")
            a(f"s_cmp_lt_u32 s{S_WAVE}, 4"); a("s_cbranch_scc0 L_s1_nost")
            a(f"s_lshl_b32 s66, s{S_WAVE}, 12"); a("v_lshl_add_u32 v3, v1, 4, s66")
            for i in range(4):
                a(f"s_add_u32 m0, s66, {RED0}"); a(f"buffer_load_dwordx4 v3, {W}, 0 offen offset:{1024*i} lds")
            a.label("L_s1_nost")
    a("v_cvt_pk_bf16_f32 v16, v16, v17"); a("v_cvt_pk_bf16_f32 v17, v18, v19")
    a("s_cmp_eq_u32 s74, 0"); a("s_cbranch_scc0 L_tw_rt1")
    a("ds_write_b32 v238, v16"); a("ds_write_b32 v239, v17"); a("s_branch L_tw_done")
    a.label("L_tw_rt1")
    a("ds_write_b16 v238, v16"); a("ds_write_b16_d16_hi v239, v16"); a("ds_write_b16 v240, v17"); a("ds_write_b16_d16_hi v241, v17")
    a.label("L_tw_done")
    a("s_waitcnt lgkmcnt(0)"); a("s_barrier")
    stamp(a, 5)
    hooks["setup"](a)
    stamp(a, 6)
    for e in range(11): a(f"ds_read_u16 v{70+e}, v{226+e}")
    a("v_mov_b32 v20, 0\nv_mov_b32 v21, 0\nv_mov_b32 v22, 0\nv_mov_b32 v23, 0")
    a("v_lshrrev_b32 v16, 1, v0"); a(f"s_movk_i32 s65, {KC_CP}"); a("v_mul_lo_u32 v16, v16, s65")
    a("v_and_b32 v17, 1, v0"); a("v_lshl_add_u32 v16, v17, 4, v16")
    a("s_waitcnt lgkmcnt(0)")
    for c in range(4):
        o = 110 + 4 * c
        for k in range(4):
            lo = 70 + c + 2 * k
            a(f"v_lshl_or_b32 v{o+k}, v{lo+1}, 16, v{lo}")
        a(f"ds_write_b128 v237, v[{o}:{o+3}] offset:{KC_CP*c}")
    a("v_cmp_gt_u32 vcc, 16, v0"); a("s_and_saveexec_b64 s[66:67], vcc")
    a("ds_write_b128 v16, v[20:23] offset:4128"); a("s_mov_b64 exec, s[66:67]")
    if "two" in OPT:
        for k in range(9): hooks["dma"](a, k, 5 + k)
    stamp(a, 7)
    a("s_lshl_b32 s65, s34, 4"); a("s_lshr_b32 s64, s69, s65"); a("s_lshl_b32 s64, s64, 16")
    if "G" in OPT:
        a("s_mov_b32 s66, 0")
        a.label("L_s1_chk")
        a("s_waitcnt vmcnt(0)")
        a(f"v_xor_b32 v16, s{S_NONCE}, v205")
        for i in range(1, 8):
            a(f"v_xor_b32 v17, s{S_NONCE}, v{205+2*i}"); a("v_or_b32 v16, v16, v17")
        a("v_cmp_ne_u32 vcc, 0, v16"); a("s_cbranch_vccz L_s1_ok")
        a("s_add_u32 s66, s66, 1"); a(f"s_cmp_gt_u32 s66, {SPIN_MAX}"); a("s_cbranch_scc1 L_s1_ok")
        g_issue()
        a("s_branch L_s1_chk")
        a.label("L_s1_ok")
        a("s_barrier")
        a("v_and_b32 v8, 255, v0"); a(f"v_lshlrev_b32 v9, 5, v8"); a(f"v_add_u32 v9, {RED0}, v9")
        a("ds_read_b128 v[192:195], v9"); a("ds_read_b128 v[196:199], v9 offset:16")
        a("s_xor_b32 s65, s34, 1"); a("s_lshl_b32 s65, s65, 4")
        for i in range(8):
            st = 204 + 2 * i
            a(f"v_and_b32 v{60+i}, 0xffff0000, v{st}"); a(f"v_rcp_f32 v{60+i}, v{60+i}"); a(f"v_lshlrev_b32 v{68+i}, 16, v{st}")
        a("s_waitcnt lgkmcnt(0)")
        for i in range(8):
            a(f"v_lshlrev_b32 v{30+i}, s65, v{192+i}"); a(f"v_and_b32 v{30+i}, 0xffff0000, v{30+i}")
            a(f"v_sub_f32 v{40+i}, v{30+i}, v{68+i}"); a(f"v_mul_f32 v{40+i}, v{40+i}, v{60+i}")
            a(f"v_fma_f32 v{48+i}, v{40+i}, s64, v{30+i}")
    else:
        a("s_waitcnt vmcnt(9)" if "two" in OPT else "s_waitcnt vmcnt(0)"); a("s_barrier")
        a("v_and_b32 v8, 255, v0"); a(f"v_lshlrev_b32 v9, 6, v8"); a(f"v_add_u32 v9, {RED0}, v9")
        for i in range(4): a(f"ds_read_b128 v[{204+4*i}:{207+4*i}], v9 offset:{16*i}")
        a("s_waitcnt lgkmcnt(0)")
        for i in range(8):
            x = 200 + i // 2; st = 204 + 2 * i
            a(f"v_lshlrev_b32 v{30+i}, 16, v{x}" if i % 2 == 0 else f"v_and_b32 v{30+i}, 0xffff0000, v{x}")
            a(f"v_fma_f32 v{40+i}, v{30+i}, v{st}, v{st+1}")
            a(f"v_fma_f32 v{48+i}, v{40+i}, s64, v{30+i}")
    for k in range(4): a(f"v_cvt_pk_bf16_f32 v{56+k}, v{40+2*k}, v{41+2*k}")
    a("v_and_b32 v8, 255, v0")
    a(f"s_mul_i32 s66, s34, {UA_CH}"); a(f"s_add_u32 s66, s66, {UA0+480}"); a("v_lshl_add_u32 v9, v8, 4, s66")
    a("ds_write_b128 v9, v[56:59]")
    a(f"s_mul_i32 s66, s34, {RA_CH}"); a(f"s_add_u32 s66, s66, {RA0}"); a("v_lshl_add_u32 v9, v8, 5, s66")
    a("ds_write_b128 v9, v[48:51]"); a("ds_write_b128 v9, v[52:55] offset:16")
    a("s_waitcnt vmcnt(0) lgkmcnt(0)"); a("s_barrier")
    stamp(a, 8)
    if "two" in OPT: hooks["tr1"](a)
    for v in range(3):
        a(f"s_cmp_eq_u32 s35, {v}"); a(f"s_cbranch_scc1 L_conv{v}")
    a("s_branch L_conv3")
    for v in range(4):
        a.label(f"L_conv{v}")
        conv(a, v, hooks["dma"])
        if v < 3: a("s_branch L_conv_done")
    a.label("L_conv_done")
    stamp(a, 9)
    a("s_waitcnt vmcnt(0)")
    stamp(a, 10)
    a("s_barrier")
    a(f"s_lshl_b32 s64, s2, {FS()}"); a(f"s_add_u32 s64, s64, {WS_FLAG2}")
    publish_flag(a, 64)
    stamp(a, 11)

def conv(a, p, dma):
    S = [s for s in range(64) if s % 4 == p]
    steps = {s: [(t, 8 * t - s) for t in range(7, -1, -1) if s <= 8 * t + 7] for s in S}
    betas = sorted({b for s in S for t, b in steps[s]}, reverse=True)
    assert len(betas) == 16
    breg = {b: 48 + 4 * i for i, b in enumerate(betas)}
    NAR = 4; PFD = 3
    issued = []
    def ldA(k):
        sa = S[k]; r = 112 + 4 * (k % NAR)
        a(f"ds_read_b64 v[{r}:{r+1}], v244 offset:{64*(63-sa)}"); a(f"ds_read_b64 v[{r+2}:{r+3}], v244 offset:{64*(63-sa)+8}")
        issued.extend([("A", k)] * 2)
    first = {}
    for k, s in enumerate(S):
        for t, b in steps[s]: first.setdefault(b, k)
    def ldB(b):
        a(f"ds_read_b128 v[{breg[b]}:{breg[b]+3}], v245 offset:{64*(b+7)}"); issued.append(("B", b))
    a("v_lshlrev_b32 v2, 4, v1")
    for q in range(4):
        if q == p: continue
        src = [x for x in range(4) if x != q].index(p)
        a(f"s_lshl_b32 s64, s34, 2"); a(f"s_add_u32 s64, s64, {q}"); a("s_mul_i32 s64, s64, 6144"); a(f"s_add_u32 s64, s64, {SB + 2048*src}")
        a(f"v_add_u32 v{4+q}, s64, v2")
    sendq = [q for q in range(4) if q != p]
    def send(q):
        sendq.remove(q)
        a(f"ds_write_b128 v{4+q}, v[{16+8*q}:{19+8*q}]"); a(f"ds_write_b128 v{4+q}, v[{20+8*q}:{23+8*q}] offset:1024")
        issued.extend([("W", q)] * 2)
    st3(a, 1)
    ldA(0)
    for t, b in steps[S[0]]: ldB(b)
    ldA(1)
    if p == 0:
        for t in range(8):
            a(f"ds_read_b128 v[{16+4*t}:{19+4*t}], v246 offset:{1024*t}"); issued.append(("R", t))
    else:
        for r in range(32): a(f"v_mov_b32 v{16+r}, 0")
    for b in betas:
        if first[b] >= 1: ldB(b)
    ldA(2)
    for k, s in enumerate(S):
        if k + PFD < len(S): ldA(k + PFD)
        need = max(i for i, x in enumerate(issued) if x == ("A", k))
        for t, b in steps[s]:
            need = max(need, max(i for i, x in enumerate(issued) if x == ("B", b)))
        if k == 0 and p == 0: need = max(need, max(i for i, x in enumerate(issued) if x[0] == "R"))
        n = len(issued) - 1 - need
        a(f"s_waitcnt lgkmcnt({min(n, 15)})")
        if k == 0: st3(a, 2)
        if k == 1: a("s_barrier")
        ra = 112 + 4 * (k % NAR)
        for j, (t, b) in enumerate(steps[s]):
            a(f"v_mfma_f32_16x16x32_bf16 v[{16+4*t}:{19+4*t}], v[{ra}:{ra+3}], v[{breg[b]}:{breg[b]+3}], v[{16+4*t}:{19+4*t}]")
        for q in list(sendq):
            if k >= 3 and S[k - 2] + 4 > 16 * q + 15 and k - 2 >= 0: send(q)
        if "two" in OPT:
            if 2 + p <= k <= 10 + p: dma(a, 9 + k - 2 - p, 5 + k - 2 - p)
        elif 1 + 2 * p <= k <= 9 + 2 * p: dma(a, k - 1 - 2 * p, 5 + k - 1 - 2 * p)
    st3(a, 3)
    for q in list(sendq): send(q)
    a(f"s_mul_i32 s64, s{S_WAVE}, 6144"); a(f"s_add_u32 s64, s64, {SB}"); a("v_add_u32 v3, s64, v2")
    a("s_waitcnt lgkmcnt(0)"); a("s_barrier")
    st3(a, 4)
    for j in range(3):
        a(f"ds_read_b128 v[{48+8*j}:{51+8*j}], v3 offset:{2048*j}"); a(f"ds_read_b128 v[{52+8*j}:{55+8*j}], v3 offset:{2048*j+1024}")
    a("s_waitcnt lgkmcnt(0)")
    A = 16 + 8 * p
    for j in range(3):
        for r in range(8): a(f"v_add_f32 v{A+r}, v{A+r}, v{48+8*j+r}")
    for i in range(2):
        t = 2 * p + i; o = 80 + 2 * i
        a(f"v_cvt_pk_bf16_f32 v{o}, v{A+4*i}, v{A+4*i+1}"); a(f"v_cvt_pk_bf16_f32 v{o+1}, v{A+4*i+2}, v{A+4*i+3}")
        a(f"buffer_store_dwordx2 v[{o}:{o+1}], v247, {W}, 0 offen offset:{512*t} sc1")
```

```python
from asm import *
from pA import (L, D, N, F, LOG2E, NLOG2E, INV2PI, WS_GRAN, WS_CS, WS_FLAG1, WS_FLAG3, WS_G2, WS_XT, WS_FLAG2, WS_FLAG4, WS_HT, HTS, WS_HF, WS_SIZE, SRD_WS, SRD_DBG, SPIN_MAX,
                OPS, OP_CH, KC_CH, KC_CP, SB, TB0, TB_CH, UA0, UA_CH, RA0, RA_CH, LDS_TOTAL, cmul1, cmul2, reduce8, stats_pack)
S_WAVE, S_NONCE = 32, 33
W = f"s[{SRD_WS}:{SRD_WS+3}]"
DBG = f"s[{SRD_DBG}:{SRD_DBG+3}]"
OPT = set()
def FS(): return next((int(o[2:]) for o in OPT if o.startswith('fs')), 6)
RED0 = RA0 + 2 * RA_CH

def prologue(a):
    a("s_load_dwordx16 s[4:19], s[0:1], 0")
    a("s_load_dwordx8 s[20:27], s[0:1], 64")
    a("s_load_dwordx4 s[28:31], s[0:1], 96")
    if "pf0" in OPT: code_prefetch(a)
    a("v_and_b32 v1, 63, v0"); a("v_lshrrev_b32 v2, 6, v0"); a("s_nop 0")
    a(f"v_readfirstlane_b32 s{S_WAVE}, v2")
    a("s_waitcnt lgkmcnt(0)")
    srd(a, SRD_WS, 30, WS_SIZE); srd(a, SRD_DBG, 28, 256)
    a(f"s_or_b32 s64, s2, s{S_WAVE}"); a("s_cmp_eq_u32 s64, 0"); a("s_cbranch_scc0 L_nopub")
    a("s_memrealtime s[64:65]"); a("s_waitcnt lgkmcnt(0)"); a("s_or_b32 s64, s64, 1")
    a("v_mov_b32 v3, s64"); a("v_mov_b32 v4, 0")
    a(f"buffer_store_dword v3, v4, {DBG}, 0 offen sc1")
    a.label("L_nopub")

def get_nonce(a, tag, vt):
    a(f"v_mov_b32 v{vt+1}, 0"); a("s_mov_b32 s66, 0")
    a.label(f"L_nonce_{tag}")
    a(f"buffer_load_dword v{vt}, v{vt+1}, {DBG}, 0 offen sc1")
    a("s_waitcnt vmcnt(0)")
    a(f"v_readfirstlane_b32 s{S_NONCE}, v{vt}")
    a("s_add_u32 s66, s66, 1"); a(f"s_cmp_gt_u32 s66, {SPIN_MAX}"); a(f"s_cbranch_scc1 L_nonce_{tag}_ok")
    a(f"s_cmp_eq_u32 s{S_NONCE}, 0"); a(f"s_cbranch_scc1 L_nonce_{tag}")
    a.label(f"L_nonce_{tag}_ok")

def publish_flag(a, off_sgpr, vt=2):
    lab = f"L_pub_{len(a.lines)}"
    a(f"s_cmp_eq_u32 s{S_WAVE}, 0"); a(f"s_cbranch_scc0 {lab}")
    a(f"v_mov_b32 v{vt}, s{S_NONCE}"); a(f"v_mov_b32 v{vt+1}, s{off_sgpr}")
    a("s_mov_b64 exec, 1")
    a(f"buffer_store_dword v{vt}, v{vt+1}, {W}, 0 offen sc1")
    a("s_mov_b64 exec, -1")
    a.label(lab)

def wait_flags(a, tag, base_sgpr, count, per_lane, vt=32):
    poll_issue(a, tag, base_sgpr, count, per_lane, vt)
    a("s_waitcnt vmcnt(0)")
    poll_check(a, tag, per_lane, vt, sleep=4)

X8S = 7168
XS0 = RED0
def xp_issue(a):
    srd(a, 36, 4, L * D * 2)
    a(f"s_lshl_b32 s64, s2, 3"); a(f"s_add_u32 s64, s64, s{S_WAVE}"); a("s_mul_i32 s64, s64, 896")
    a("v_lshl_add_u32 v194, v1, 4, s64")
    for r in range(4): a(f"v_mov_b32 v{196+r}, 0")
    a("v_cmp_gt_u32 vcc, 56, v1"); a("s_and_saveexec_b64 s[66:67], vcc")
    a("buffer_load_dwordx4 v[196:199], v194, s[36:39], 0 offen")
    a("s_mov_b64 exec, s[66:67]")
    a("v_mov_b32 v193, 0"); a(f"buffer_load_dword v195, v193, {DBG}, 0 offen sc1")
def xp_mid(a, tag):
    a(f"s_mul_i32 s64, s{S_WAVE}, 912"); a(f"s_add_u32 s64, s64, {XS0}"); a("v_lshl_add_u32 v194, v1, 4, s64")
    a("v_cmp_gt_u32 vcc, 56, v1"); a("s_and_saveexec_b64 s[66:67], vcc")
    a("ds_write_b128 v194, v[196:199]"); a("s_mov_b64 exec, s[66:67]")
    a("v_bfe_u32 v184, v1, 2, 2"); a("v_mul_u32_u24 v184, 912, v184")
    a("v_lshrrev_b32 v185, 4, v1"); a("v_lshl_add_u32 v184, v185, 5, v184"); a("v_and_b32 v185, 3, v1"); a("v_lshl_add_u32 v184, v185, 3, v184")
    a(f"s_lshl_b32 s64, s{S_WAVE}, 7"); a(f"s_add_u32 s64, s64, {XS0}"); a("v_add_u32 v184, s64, v184")
    a(f"s_mul_i32 s64, s2, {X8S}"); a(f"s_lshl_b32 s65, s{S_WAVE}, 10"); a("s_add_u32 s64, s64, s65"); a(f"s_add_u32 s64, s64, {WS_XT}")
    a("v_lshl_add_u32 v185, v1, 4, s64")
    a("s_waitcnt lgkmcnt(0)"); a("s_barrier")
    a(f"s_cmp_ge_u32 s{S_WAVE}, 7"); a(f"s_cbranch_scc1 L_xp_notr_{tag}")
    a("ds_read_b64_tr_b16 v[180:181], v184"); a(f"ds_read_b64_tr_b16 v[182:183], v184 offset:{4*912}")
    a("s_waitcnt lgkmcnt(0)")
    a(f"buffer_store_dwordx4 v[180:183], v185, {W}, 0 offen sc1")
    a.label(f"L_xp_notr_{tag}")
    a("v_mov_b32 v190, 0x3f803f80"); a("v_mov_b32 v188, 0"); a("v_mov_b32 v189, 0")
    for j in range(4):
        a(f"v_dot2_f32_bf16 v188, v{196+j}, v190, v188"); a(f"v_dot2_f32_bf16 v189, v{196+j}, v{196+j}, v189")
    for mod in ("quad_perm:[1,0,3,2]", "quad_perm:[2,3,0,1]", "row_half_mirror", "row_mirror"):
        for r in (188, 189): a(f"v_add_f32_dpp v{r}, v{r}, v{r} {mod} row_mask:0xf bank_mask:0xf")
    for sw in ("v_permlane16_swap_b32", "v_permlane32_swap_b32"):
        a("v_mov_b32 v186, v188"); a("v_mov_b32 v187, v189")
        a(f"{sw} v188, v186"); a(f"{sw} v189, v187")
        a("v_add_f32 v188, v188, v186"); a("v_add_f32 v189, v189, v187")
    stats_pack(a, 188, 189, 186, 184)
    a("v_and_b32 v187, 0xffff0000, v186"); a("v_lshlrev_b32 v186, 16, v186"); a("v_rcp_f32 v188, v187")
    a("v_mul_f32_e64 v189, -v186, v188")
    a(f"s_lshl_b32 s64, s2, 6"); a(f"s_lshl_b32 s65, s{S_WAVE}, 3"); a("s_add_u32 s64, s64, s65"); a("v_mov_b32 v187, s64")
    a("s_mov_b64 exec, 1")
    a(f"buffer_store_dwordx2 v[188:189], v187, {W}, 0 offen offset:{WS_GRAN} sc1")
    a("s_mov_b64 exec, -1")
def xg_mid(a, tag):
    a("v_mov_b32 v190, 0x3f803f80"); a("v_mov_b32 v188, 0"); a("v_mov_b32 v189, 0")
    for j in range(4):
        a(f"v_dot2_f32_bf16 v188, v{196+j}, v190, v188"); a(f"v_dot2_f32_bf16 v189, v{196+j}, v{196+j}, v189")
    for mod in ("quad_perm:[1,0,3,2]", "quad_perm:[2,3,0,1]", "row_half_mirror", "row_mirror"):
        for r in (188, 189): a(f"v_add_f32_dpp v{r}, v{r}, v{r} {mod} row_mask:0xf bank_mask:0xf")
    for sw in ("v_permlane16_swap_b32", "v_permlane32_swap_b32"):
        a("v_mov_b32 v186, v188"); a("v_mov_b32 v187, v189")
        a(f"{sw} v188, v186"); a(f"{sw} v189, v187")
        a("v_add_f32 v188, v188, v186"); a("v_add_f32 v189, v189, v187")
    stats_pack(a, 188, 189, 186, 184)
    a(f"v_readfirstlane_b32 s{S_NONCE}, v195")
    a(f"s_cmp_eq_u32 s{S_NONCE}, 0"); a(f"s_cbranch_scc0 L_xg_have_{tag}")
    get_nonce(a, "xg" + tag, 192)
    a.label(f"L_xg_have_{tag}")
    a(f"v_mov_b32 v187, s{S_NONCE}")
    a(f"s_lshl_b32 s64, s2, 6"); a(f"s_lshl_b32 s65, s{S_WAVE}, 3"); a("s_add_u32 s64, s64, s65"); a("v_mov_b32 v188, s64")
    a("s_mov_b64 exec, 1")
    a(f"buffer_store_dwordx2 v[186:187], v188, {W}, 0 offen offset:{WS_GRAN} sc1")
    a("s_mov_b64 exec, -1")
def xp_pub(a, tag):
    a("s_waitcnt vmcnt(0)")
    a(f"v_readfirstlane_b32 s{S_NONCE}, v195")
    a(f"s_cmp_eq_u32 s{S_NONCE}, 0"); a(f"s_cbranch_scc0 L_xp_have_{tag}")
    get_nonce(a, "xp" + tag, 194)
    a.label(f"L_xp_have_{tag}")
    a("s_barrier")
    a(f"s_lshl_b32 s64, s2, {FS()}"); a(f"s_add_u32 s64, s64, {WS_FLAG1}")
    publish_flag(a, 64, 194)

def touch_w13(a):
    a("s_and_b32 s64, s2, 7"); a("s_lshr_b32 s65, s2, 3")
    a("s_and_b32 s66, s64, 1"); a("s_mul_i32 s66, s66, 7"); a("s_lshr_b32 s67, s65, 2"); a("s_add_u32 s66, s66, s67")
    a("s_and_b32 s65, s65, 3")
    a("s_cmp_lt_u32 s65, 2"); a("s_cselect_b32 s76, s20, s22"); a("s_cselect_b32 s77, s21, s23")
    a(f"s_mov_b32 s78, {D*F*2}"); a("s_mov_b32 s79, 0x20000")
    a("s_and_b32 s65, s65, 1"); a("s_mul_i32 s65, s65, 448"); a(f"s_min_u32 s67, s{S_WAVE}, 6"); a("s_lshl_b32 s67, s67, 6"); a("s_add_u32 s65, s65, s67")
    a("v_add_u32 v192, s65, v1")
    a("v_lshrrev_b32 v191, 1, v192"); a("v_mul_u32_u24 v191, 3584, v191"); a("v_and_b32 v192, 1, v192"); a("v_lshl_add_u32 v191, v192, 7, v191")
    a("s_lshl_b32 s66, s66, 8"); a("v_add_u32 v191, s66, v191")
    a("buffer_load_dword v192, v191, s[76:79], 0 offen")

def touch_weights(a, tag):
    a(f"s_cmp_ge_u32 s{S_WAVE}, 3"); a(f"s_cbranch_scc1 L_touch_skip_{tag}")
    a(f"s_lshl_b32 s64, s{S_WAVE}, 1"); a("s_cmp_eq_u32 s64, 0"); a("s_cselect_b32 s76, s20, s22"); a("s_cselect_b32 s77, s21, s23")
    a("s_cmp_eq_u32 s64, 4"); a("s_cselect_b32 s76, s24, s76"); a("s_cselect_b32 s77, s25, s77")
    a(f"s_mov_b32 s78, {D*F*2}"); a("s_mov_b32 s79, 0x20000")
    a("s_mul_i32 s64, s2, 49"); a("v_add_u32 v191, s64, v1"); a("v_lshlrev_b32 v191, 7, v191")
    a("v_cmp_gt_u32 vcc, 49, v1"); a("s_and_saveexec_b64 s[66:67], vcc")
    a("buffer_load_dword v192, v191, s[76:79], 0 offen")
    a("s_mov_b64 exec, s[66:67]")
    a.label(f"L_touch_skip_{tag}")

def poll_issue(a, tag, base_sgpr, count, per_lane, vt):
    sh = FS() if count == 256 else 6
    a(f"s_cmp_eq_u32 s{S_WAVE}, 0"); a(f"s_cbranch_scc0 L_pi_{tag}")
    a(f"v_lshlrev_b32 v{vt}, {sh}, v1"); a(f"v_add_u32 v{vt}, s{base_sgpr}, v{vt}")
    if count < 64:
        a(f"v_min_u32 v{vt+1}, {count-1}, v1"); a(f"v_lshlrev_b32 v{vt}, 6, v{vt+1}"); a(f"v_add_u32 v{vt}, s{base_sgpr}, v{vt}")
    for i in range(per_lane):
        if i == 0: a(f"buffer_load_dword v{vt+1}, v{vt}, {W}, 0 offen sc1")
        else:
            a(f"s_mov_b32 s67, {(64 << sh)*i}"); a(f"buffer_load_dword v{vt+1+i}, v{vt}, {W}, s67 offen sc1")
    a.label(f"L_pi_{tag}")
def poll_check(a, tag, per_lane, vt, sleep=0):
    sh = FS() if per_lane == 4 else 6
    a(f"s_cmp_eq_u32 s{S_WAVE}, 0"); a(f"s_cbranch_scc0 L_pc_{tag}_bar")
    a("s_mov_b32 s66, 0")
    a.label(f"L_pc_{tag}")
    a(f"v_xor_b32 v{vt+1}, s{S_NONCE}, v{vt+1}")
    for i in range(1, per_lane):
        a(f"v_xor_b32 v{vt+1+i}, s{S_NONCE}, v{vt+1+i}"); a(f"v_or_b32 v{vt+1}, v{vt+1}, v{vt+1+i}")
    a(f"v_cmp_ne_u32 vcc, 0, v{vt+1}")
    a(f"s_cbranch_vccz L_pc_{tag}_bar")
    a("s_add_u32 s66, s66, 1"); a(f"s_cmp_gt_u32 s66, {SPIN_MAX}"); a(f"s_cbranch_scc1 L_pc_{tag}_bar")
    if "mask" in OPT:
        for i in range(per_lane): a(f"v_mov_b32 v{vt+1+i}, s{S_NONCE}")
        a("s_mov_b64 exec, vcc")
    for i in range(per_lane):
        if i == 0: a(f"buffer_load_dword v{vt+1}, v{vt}, {W}, 0 offen sc1")
        else:
            a(f"s_mov_b32 s67, {(64 << sh)*i}"); a(f"buffer_load_dword v{vt+1+i}, v{vt}, {W}, s67 offen sc1")
    if "mask" in OPT: a("s_mov_b64 exec, -1")
    a("s_waitcnt vmcnt(0)")
    if sleep: a(f"s_sleep {sleep}")
    a(f"s_branch L_pc_{tag}")
    a.label(f"L_pc_{tag}_bar")
    a("s_barrier")

def tlb_touch(a):
    a("v_and_b32 v175, 31, v1"); a("v_lshlrev_b32 v175, 19, v175")
    a(f"buffer_load_dword v176, v175, {W}, 0 offen")
    srd(a, 76, 26, L * D * 2)
    a("buffer_load_dword v174, v175, s[76:79], 0 offen")

def code_prefetch(a, vt=177, sreg=64):
    a(f"s_getpc_b64 s[{sreg}:{sreg+1}]")
    lab = f"L_pc_{len(a.lines)}"
    a.label(lab)
    a(f"s_sub_u32 s{sreg}, s{sreg}, {lab}-KERNEL_START"); a(f"s_subb_u32 s{sreg+1}, s{sreg+1}, 0")
    a(f"v_lshrrev_b32 v{vt+1}, 1, v0"); a(f"v_lshlrev_b32 v{vt+1}, 7, v{vt+1}")
    a(f"v_min_u32 v{vt+1}, KERNEL_END-KERNEL_START-4, v{vt+1}")
    a(f"global_load_dword v{vt}, v{vt+1}, s[{sreg}:{sreg+1}]")

def helper(a):
    a("s_sub_u32 s70, s2, 224")
    xp_issue(a)
    if "G" in OPT:
        a("s_waitcnt vmcnt(0)")
        xg_mid(a, "h")
    else:
        a("s_waitcnt vmcnt(1)")
        xp_mid(a, "h")
        xp_pub(a, "h")
    if "notouch" not in OPT: touch_weights(a, "h")
    stamp(a, 1)
    a("s_cmp_lt_u32 s70, 16")
    a("s_cselect_b32 s36, s20, s22"); a("s_cselect_b32 s37, s21, s23")
    a(f"s_mov_b32 s38, {D*F*2}"); a("s_mov_b32 s39, 0x20000")
    a("s_and_b32 s64, s70, 15"); a("s_mul_i32 s64, s64, 224")
    a("v_lshrrev_b32 v2, 4, v1"); a("v_and_b32 v3, 15, v1")
    a(f"s_mul_i32 s65, s{S_WAVE}, 56"); a("v_add_u32 v4, s65, v2")
    a("s_movk_i32 s65, 3584"); a("v_mul_lo_u32 v4, v4, s65"); a("v_lshl_add_u32 v4, v3, 4, v4"); a("v_add_u32 v4, s64, v4")
    for i in range(14):
        a(f"s_mov_b32 s67, {4*3584*i}")
        a(f"buffer_load_dwordx4 v[{8+4*i}:{11+4*i}], v4, s[36:39], s67 offen")
    for e in range(8): a(f"v_mov_b32 v{72+e}, 0")
    for i in range(14):
        a(f"s_waitcnt vmcnt({13-i})")
        for j in range(4):
            r = 8 + 4 * i + j
            a(f"v_lshlrev_b32 v80, 16, v{r}"); a(f"v_and_b32 v81, 0xffff0000, v{r}")
            a(f"v_add_f32 v{72+2*j}, v{72+2*j}, v80"); a(f"v_add_f32 v{73+2*j}, v{73+2*j}, v81")
    a(f"s_lshl_b32 s65, s{S_WAVE}, 2"); a("v_add_u32 v5, s65, v2"); a("v_lshlrev_b32 v5, 9, v5"); a("v_lshl_add_u32 v5, v3, 5, v5")
    a("ds_write_b128 v5, v[72:75]"); a("ds_write_b128 v5, v[76:79] offset:16")
    a("s_waitcnt lgkmcnt(0)"); a("s_barrier")
    a("v_lshlrev_b32 v5, 2, v0")
    a("v_cmp_gt_u32 vcc, 112, v0"); a("s_and_saveexec_b64 s[64:65], vcc"); a("s_cbranch_execz L_h_cs_done")
    for k in range(32): a(f"ds_read_b32 v{8+k}, v5 offset:{512*k}")
    a("s_waitcnt lgkmcnt(0)")
    for k in range(1, 32): a(f"v_add_f32 v8, v8, v{8+k}")
    a("s_mul_i32 s66, s70, 448"); a(f"s_add_u32 s66, s66, {WS_CS}"); a("v_add_u32 v5, s66, v5")
    a(f"buffer_store_dword v8, v5, {W}, 0 offen sc1")
    a.label("L_h_cs_done")
    a("s_mov_b64 exec, s[64:65]")
    a("s_waitcnt vmcnt(0)"); a("s_barrier")
    a(f"s_lshl_b32 s64, s2, {FS()}"); a(f"s_add_u32 s64, s64, {WS_FLAG2}")
    publish_flag(a, 64)
    a(f"s_mov_b32 s64, {WS_FLAG2}")
    wait_flags(a, "hs2", 64, 256, 4)
    a("v_and_b32 v2, 31, v1"); a("v_lshrrev_b32 v3, 5, v1"); a(f"s_lshl_b32 s64, s{S_WAVE}, 1"); a("v_add_u32 v3, s64, v3")
    a(f"v_mul_u32_u24 v3, {HTS}, v3"); a("v_lshl_add_u32 v3, v2, 2, v3"); a("s_lshl_b32 s64, s70, 7"); a(f"s_add_u32 s64, s64, {WS_HT}"); a("v_add_u32 v3, s64, v3")
    for i in range(28):
        a(f"s_mov_b32 s67, {16*HTS*i}"); a(f"buffer_load_dword v{40+i}, v3, {W}, s67 offen")
    for r in range(4): a(f"v_mov_b32 v{8+r}, 0")
    for i in range(28):
        a(f"s_waitcnt vmcnt({27-i})")
        a(f"v_lshlrev_b32 v12, 16, v{40+i}"); a(f"v_and_b32 v13, 0xffff0000, v{40+i}")
        a("v_add_f32 v8, v8, v12"); a("v_add_f32 v9, v9, v13"); a("v_fma_f32 v10, v12, v12, v10"); a("v_fma_f32 v11, v13, v13, v11")
    for r in range(8, 12):
        a(f"v_mov_b32 v12, v{r}"); a(f"v_permlane32_swap_b32 v{r}, v12"); a(f"v_add_f32 v{r}, v{r}, v12")
    a(f"s_lshl_b32 s64, s{S_WAVE}, 9"); a("v_lshl_add_u32 v4, v2, 4, s64")
    a("ds_write_b128 v4, v[8:11]")
    a("s_waitcnt lgkmcnt(0)"); a("s_barrier")
    a("v_cmp_gt_u32 vcc, 64, v0"); a("s_and_saveexec_b64 s[64:65], vcc"); a("s_cbranch_execz L_h_g2_done")
    a("v_lshrrev_b32 v4, 1, v0"); a("v_lshlrev_b32 v4, 4, v4"); a("v_and_b32 v5, 1, v0"); a("v_lshl_add_u32 v4, v5, 2, v4")
    for k in range(8):
        a(f"ds_read_b32 v{16+k}, v4 offset:{512*k}"); a(f"ds_read_b32 v{24+k}, v4 offset:{512*k+8}")
    a("s_waitcnt lgkmcnt(0)")
    for k in range(1, 8):
        a(f"v_add_f32 v16, v16, v{16+k}"); a(f"v_add_f32 v24, v24, v{24+k}")
    stats_pack(a, 16, 24, 32, 34)
    a("v_and_b32 v33, 0xffff0000, v32"); a("v_lshlrev_b32 v32, 16, v32"); a("v_rcp_f32 v33, v33")
    a("s_lshl_b32 s66, s70, 9"); a(f"s_add_u32 s66, s66, {WS_G2}"); a("v_lshl_add_u32 v4, v0, 3, s66")
    a(f"buffer_store_dwordx2 v[32:33], v4, {W}, 0 offen sc1")
    a.label("L_h_g2_done")
    a("s_mov_b64 exec, s[64:65]")
    a("s_waitcnt vmcnt(0)"); a("s_barrier")
    a("s_lshl_b32 s64, s70, 6"); a(f"s_add_u32 s64, s64, {WS_FLAG3}")
    publish_flag(a, 64)
    stamp(a, 2)

def st2(a, i):
    if "convdiag" not in OPT: stamp(a, i)
def st3(a, i):
    if "convdiag" in OPT: stamp(a, i)
def phaseA(a, hooks):
    XPK = next((int(o[3:]) for o in OPT if o.startswith("xpk")), 8)
    TK = next((int(o[2:]) for o in OPT if o.startswith("tk")), 9)
    a(f"s_lshr_b32 s34, s{S_WAVE}, 2"); a(f"s_and_b32 s35, s{S_WAVE}, 3")
    xp_issue(a)
    srd(a, 40, 6, D * N * 2); srd(a, 44, 8, D * N * 2); srd(a, 48, 10, D * N * 2); srd(a, 52, 12, D * N * 2)
    a("s_and_b32 s64, s2, 7"); a("s_mul_i32 s64, s64, 28"); a("s_lshr_b32 s65, s2, 3"); a("s_add_u32 s75, s64, s65")
    a("s_lshl_b32 s64, s75, 2")
    a("s_load_dword s68, s[14:15], s64"); a("s_load_dword s69, s[16:17], s64")
    a("s_lshl_b32 s70, s75, 1"); a("s_add_u32 s70, s70, s34")
    a("s_lshl_b32 s65, s70, 9"); a("s_lshl_b32 s66, s35, 7"); a("s_add_u32 s65, s65, s66")
    a("v_lshl_add_u32 v3, v1, 1, s65")
    a("buffer_load_ushort v10, v3, s[40:43], 0 offen"); a("buffer_load_ushort v11, v3, s[44:47], 0 offen")
    a("buffer_load_ushort v12, v3, s[48:51], 0 offen"); a("buffer_load_ushort v13, v3, s[52:55], 0 offen")
    if "nopf" not in OPT and "pf0" not in OPT: code_prefetch(a)
    if "tlb" in OPT: tlb_touch(a)
    if "tearly" in OPT: touch_weights(a, "m")
    if "G" in OPT:
        a("v_mul_u32_u24 v179, 896, v1"); a("s_lshl_b32 s65, s75, 2"); a("v_add_u32 v179, s65, v179")
        GW = next((int(o[2:]) for o in OPT if o.startswith("gw")), 1)
        for i in range(GW):
            a(f"s_mul_i32 s65, s{S_WAVE}, {GW}"); a(f"s_add_u32 s65, s65, {i}"); a("s_lshl_b32 s66, s65, 8"); a(f"s_add_u32 m0, s66, {RED0}")
            a(f"s_mul_i32 s67, s65, {64*896}"); a("buffer_load_dword v179, s[36:39], s67 offen lds")
        a(f"s_cmp_eq_u32 s{S_WAVE}, 7"); a("s_cbranch_scc0 L_g_skip")
        for i in range(8 * GW, 32):
            a(f"s_mov_b32 m0, {RED0 + 256*i}"); a(f"s_mov_b32 s67, {64*896*i}")
            a("buffer_load_dword v179, s[36:39], s67 offen lds")
        a.label("L_g_skip")
    a("v_lshlrev_b32 v7, 4, v0"); a(f"v_add_u32 v7, {SB}, v7")
    a("v_mov_b32 v20, 0\nv_mov_b32 v21, 0\nv_mov_b32 v22, 0\nv_mov_b32 v23, 0")
    a("v_cmp_gt_u32 vcc, 30, v0"); a("s_and_saveexec_b64 s[66:67], vcc")
    a(f"ds_write_b128 v7, v[20:23] offset:{UA0-SB}"); a(f"ds_write_b128 v7, v[20:23] offset:{UA0-SB+UA_CH}")
    a("s_mov_b64 exec, s[66:67]")
    a("v_and_b32 v8, 255, v0"); a("v_lshlrev_b32 v9, 3, v8"); a("v_sub_u32 v9, 2047, v9")
    for e in range(11): a(f"v_subrev_u32 v{30+e}, {e}, v9")
    for e in range(0, 12, 2):
        a(f"v_cvt_f32_i32 v{44+e}, v{30+e}")
        if e + 1 < 11: a(f"v_cvt_f32_i32 v{45+e}, v{31+e}")
        a(f"v_cvt_pk_bf16_f32 v{58+e//2}, v{44+e}, v{45+e if e+1 < 11 else 44+e}")
    for e in range(11):
        p = 58 + e // 2; r = 226 + e
        a(f"v_and_b32 v{r}, 0xffff, v{p}" if e % 2 == 0 else f"v_lshrrev_b32 v{r}, 16, v{p}")
        a(f"v_subrev_u32 v{r}, 17024, v{r}"); a(f"v_min_i32 v{30+e}, 128, v{30+e}"); a(f"v_max_i32 v{r}, v{r}, v{30+e}")
    a("v_mov_b32 v64, 641")
    for e in range(8, 11):
        a(f"v_cmp_gt_i32 vcc, {e}, v9"); a(f"v_cndmask_b32 v{226+e}, v{226+e}, v64, vcc")
    a(f"s_mul_i32 s66, s34, {TB_CH}"); a(f"s_add_u32 s72, s66, {TB0}")
    a("v_mov_b32 v65, s72")
    for e in range(11): a(f"v_lshl_add_u32 v{226+e}, v{226+e}, 1, v65")
    a(f"s_mul_i32 s66, s34, {KC_CH}"); a("s_add_u32 s66, s66, 32"); a("v_lshl_add_u32 v237, v8, 4, s66")
    a("v_and_b32 v9, 15, v1"); a("v_lshrrev_b32 v8, 4, v1")
    a(f"s_and_b32 s73, s{S_WAVE}, 1"); a(f"s_bfe_u32 s74, s{S_WAVE}, 0x10001")
    a("s_lshl_b32 s65, s73, 4"); a("v_add_u32 v30, s65, v9")
    a("v_lshlrev_b32 v31, 4, v30"); a("v_lshl_add_u32 v31, v8, 3, v31")
    a("v_lshlrev_b32 v32, 3, v30"); a("v_add_u32 v32, 512, v32")
    a("v_cmp_eq_u32 vcc, 2, v8"); a("v_cndmask_b32 v31, v31, v32, vcc")
    a("v_lshlrev_b32 v32, 2, v30"); a("v_add_u32 v32, 768, v32")
    a("v_add_u32 v33, 4, v31"); a("v_add_u32 v34, 128, v32")
    a("v_cmp_eq_u32 vcc, 3, v8"); a("v_cndmask_b32 v31, v31, v32, vcc"); a("v_cndmask_b32 v33, v33, v34, vcc")
    a("v_lshlrev_b32 v32, 1, v30"); a("v_add_u32 v32, 1024, v32"); a("v_mov_b32 v34, 1288")
    a("v_cmp_eq_u32 vcc, 0, v8")
    for r in range(4):
        a(f"v_add_u32 v35, {64*r}, v32"); a(f"v_cndmask_b32 v{238+r}, v34, v35, vcc")
    a("v_lshl_add_u32 v35, v8, 8, v30"); a("v_mov_b32 v36, 1280")
    a("v_cmp_eq_u32 vcc, 0x100, v35"); a("v_cndmask_b32 v238, v238, v36, vcc")
    a("s_cmp_eq_u32 s74, 0"); a("s_cbranch_scc0 L_tb_rt1")
    a("v_mov_b32 v238, v31"); a("v_mov_b32 v239, v33")
    a.label("L_tb_rt1")
    for r in range(4): a(f"v_add_u32 v{238+r}, s72, v{238+r}")
    a("v_mov_b32 v36, s72"); a("ds_write_b16 v36, v20 offset:1282")
    a(f"s_movk_i32 s65, {OPS}"); a("v_mul_lo_u32 v248, v9, s65"); a("v_lshl_add_u32 v248, v8, 4, v248")
    a(f"s_mul_i32 s66, s34, {OP_CH}"); a("v_add_u32 v248, s66, v248")
    a(f"s_mul_i32 s67, s73, {16*OPS}"); a(f"s_add_u32 s67, s67, {21*OPS}"); a("v_add_u32 v249, s67, v248")
    a(f"s_mul_i32 s67, s74, {16*OPS}"); a("v_add_u32 v248, s67, v248")
    a("v_sub_u32 v30, 3, v9"); a("v_and_b32 v30, 3, v30")
    a(f"s_movk_i32 s65, {KC_CP}"); a("v_mul_lo_u32 v31, v30, s65")
    a("v_lshlrev_b32 v32, 3, v8"); a("v_sub_u32 v32, v32, v9"); a("v_sub_u32 v32, v32, v30"); a("v_add_u32 v32, 2047, v32")
    a("v_lshl_add_u32 v31, v32, 1, v31")
    a(f"s_mul_i32 s66, s34, {KC_CH}"); a(f"s_sub_u32 s66, s66, {64*63}"); a("v_add_u32 v244, s66, v31")
    a(f"s_mul_i32 s66, s34, {UA_CH}"); a(f"s_add_u32 s66, s66, {UA0}")
    a("v_lshlrev_b32 v31, 5, v9"); a("v_lshl_add_u32 v31, v8, 4, v31"); a("v_add_u32 v245, s66, v31")
    a(f"s_mul_i32 s66, s34, {RA_CH}"); a(f"s_add_u32 s66, s66, {RA0}")
    a("v_lshlrev_b32 v31, 6, v9"); a("v_lshl_add_u32 v31, v8, 4, v31"); a("v_add_u32 v246, s66, v31")
    a(f"s_mul_i32 s66, s70, {HTS}"); a(f"s_add_u32 s66, s66, {WS_HT}")
    a("v_lshlrev_b32 v31, 5, v9"); a("v_lshl_add_u32 v31, v8, 3, v31"); a("v_add_u32 v247, s66, v31")
    a(f"s_mul_i32 s71, s34, {OP_CH}"); a("s_lshl_b32 s66, s35, 8"); a("s_add_u32 s71, s71, s66")
    if "prioA" in OPT:
        a(f"s_cmp_ge_u32 s{S_WAVE}, 4"); a("s_cbranch_scc0 L_prioA"); a("s_setprio 1"); a.label("L_prioA")
    a("s_waitcnt lgkmcnt(0)")
    a("s_lshl_b32 s65, s34, 4"); a("s_lshr_b32 s66, s68, s65"); a("s_lshl_b32 s66, s66, 16")
    a(f"v_mov_b32 v14, {LOG2E:#x}"); a("v_mul_f32 v15, s66, v14"); a("v_exp_f32 v15, v15")
    a("v_cvt_pk_bf16_f32 v15, v15, v15"); a("v_lshlrev_b32 v15, 16, v15")
    a("s_mov_b32 m0, s71")
    st2(a, 1)
    if "G" in OPT:
        GW = next((int(o[2:]) for o in OPT if o.startswith("gw")), 1)
        a(f"s_cmp_eq_u32 s{S_WAVE}, 7"); a("s_cbranch_scc1 L_g_w7")
        a(f"s_waitcnt vmcnt({GW})"); a("s_branch L_g_wd")
        a.label("L_g_w7"); a(f"s_waitcnt vmcnt({32 - 7*GW})")
        a.label("L_g_wd")
        xg_mid(a, "m")
    else:
        npf = (0 if ("nopf" in OPT or "pf0" in OPT) else 1) + (2 if "tlb" in OPT else 0)
        a(f"s_waitcnt vmcnt({5+npf})")
        xp_mid(a, "m")
        a(f"s_waitcnt vmcnt({1+npf})")
    a("s_mov_b32 m0, s71")
    st2(a, 2)
    a("v_lshlrev_b32 v16, 16, v10"); a("v_lshlrev_b32 v24, 16, v11"); a("v_mul_f32 v16, v14, v16"); a("v_mul_f32 v24, v24, v15")
    a("v_exp_f32 v16, v16"); a(f"v_mul_f32 v24, {INV2PI:#x}, v24")
    a("v_lshlrev_b32 v30, 16, v12"); a("v_lshlrev_b32 v31, 16, v13")
    a("v_cvt_pk_bf16_f32 v16, v16, v16"); a("v_add_f32 v26, v15, v15")
    a("v_lshlrev_b32 v18, 16, v16")
    a("v_mul_f32 v30, v30, v26"); a("v_mul_f32_e64 v31, -v31, v26")
    a("v_mul_f32 v18, v18, v15"); a("v_mul_f32_e64 v18, -v18, v14")
    P, Q = 18, 24
    X, Xb = 30, 34
    Z = {1: 40, 8: 44, 256: 48, 2: 52, 4: 56}
    for k, t in enumerate((8, 1, 256)):
        tm = 60 + 2 * k
        if t == 1:
            a(f"v_exp_f32 v{tm}, v{P}"); a(f"v_fract_f32 v{tm+1}, v{Q}")
        else:
            c = {8: 0x41000000, 256: 0x43800000}[t]
            a(f"v_mul_f32 v{tm}, {c:#x}, v{P}"); a(f"v_mul_f32 v{tm+1}, {c:#x}, v{Q}")
            a(f"v_exp_f32 v{tm}, v{tm}"); a(f"v_fract_f32 v{tm+1}, v{tm+1}")
    for k, t in enumerate((8, 1, 256)):
        tm = 60 + 2 * k; z = Z[t]
        a(f"v_cos_f32 v{z}, v{tm+1}"); a(f"v_sin_f32 v{z+1}, v{tm+1}")
    for k, t in enumerate((8, 1, 256)):
        tm = 60 + 2 * k; z = Z[t]
        a(f"v_mul_f32 v{z}, v{z}, v{tm}"); a(f"v_mul_f32 v{z+1}, v{z+1}, v{tm}")
    T, T2 = 72, 76
    pk = [80, 81, 82, 83, 84, 85]; pki = [0]
    def put(row, src):
        r = pk[pki[0] % 6]; pki[0] += 1
        a(f"v_cvt_pk_bf16_f32 v{r}, v{src}, v{src+1}")
        a(f"ds_write_addtid_b32 v{r} offset:{row*OPS}")
    Y, X256, X512, X768, XW = 88, 92, 96, 100, 104
    put(0, X); put(22, Z[8])
    a("v_mov_b32 v108, 0x3f80"); a(f"ds_write_addtid_b32 v108 offset:{21*OPS}")
    a(cmul1(0, Z[1], Z[1], T)); a(cmul2(Z[2], Z[1], Z[1], T, False))
    a(cmul1(0, Z[2], Z[2], T)); a(cmul2(Z[4], Z[2], Z[2], T, False))
    xs = [(c, Xb, X if c == 1 else Xb, Z[1]) for c in range(1, 8)]
    xs += [(8, X256, X, Z[256]), (9, XW, X256, Z[2]), (10, XW, XW, Z[2]), (11, XW, XW, Z[2]), (12, X512, X256, Z[256]),
           (13, XW, X512, Z[4]), (14, X768, X512, Z[256]), (15, XW, X768, Z[4]), (16, XW, X768, Z[256])]
    for r in range(17, 21): xs.append((r, XW, XW, Z[256]))
    def s1_issue():
        a(f"buffer_load_dword v223, v3, {W}, 0 offen sc1")
    for k, b in enumerate(range(2, 32)):
        src = Z[8] if b == 2 else Y
        x = xs[k] if k < len(xs) else None
        a(cmul1(0, src, Z[8], T))
        if x: a(cmul1(0, x[2], x[3], T2))
        a(cmul2(Y, src, Z[8], T, False))
        if x: a(cmul2(x[1], x[2], x[3], T2, True))
        put(21 + b, Y)
        if x: put(x[0], x[1])
        if k == XPK and "G" not in OPT:
            xp_pub(a, "m")
        if k == TK and "notouch" not in OPT:
            touch_weights(a, "m")
    st2(a, 3)
    a("s_waitcnt lgkmcnt(0)"); a("s_barrier")
    st2(a, 4)
    if "G" in OPT:
        a("v_and_b32 v221, 255, v0"); a("v_lshlrev_b32 v221, 6, v221")
        def g_issue():
            for i in range(4): a(f"buffer_load_dwordx4 v[{204+4*i}:{207+4*i}], v221, {W}, 0 offen offset:{WS_GRAN+16*i} sc1")
        g_issue()
    else:
        a("v_and_b32 v3, 255, v0"); a(f"v_lshlrev_b32 v3, {FS()}, v3"); a(f"v_add_u32 v3, {WS_FLAG1}, v3")
        s1_issue()
    for r in range(4): a(f"v_mov_b32 v{16+r}, 0")
    NR = 6
    def rd(s):
        b = 32 + 8 * (s % NR)
        a(f"ds_read_b128 v[{b}:{b+3}], v248 offset:{64*s}"); a(f"ds_read_b128 v[{b+4}:{b+7}], v249 offset:{64*s}")
    for s in range(NR - 1): rd(s)
    for s in range(16):
        if s + NR - 1 < 16: rd(s + NR - 1)
        a(f"s_waitcnt lgkmcnt({2*min(15-s, NR-1)})")
        b = 32 + 8 * (s % NR)
        a(f"v_mfma_f32_16x16x32_bf16 v[16:19], v[{b}:{b+3}], v[{b+4}:{b+7}], v[16:19]")
        if s == 9 and "G" not in OPT:
            a("s_mov_b32 s66, 0")
            a.label("L_s1_chk")
            a("s_waitcnt vmcnt(0)")
            a(f"v_cmp_ne_u32 vcc, s{S_NONCE}, v223")
            a("s_cbranch_vccz L_s1_ok")
            a("s_add_u32 s66, s66, 1"); a(f"s_cmp_gt_u32 s66, {SPIN_MAX}"); a("s_cbranch_scc1 L_s1_ok")
            if "mask" in OPT: a("s_mov_b64 exec, vcc")
            s1_issue()
            if "mask" in OPT: a("s_mov_b64 exec, -1")
            a("s_branch L_s1_chk")
            a.label("L_s1_ok")
            a("v_and_b32 v8, 255, v0")
            a(f"v_mul_u32_u24 v3, {X8S}, v8"); a("s_lshl_b32 s66, s70, 4"); a(f"s_add_u32 s66, s66, {WS_XT}"); a("v_add_u32 v3, s66, v3")
            a(f"buffer_load_dwordx4 v[200:203], v3, {W}, 0 offen")
            a(f"s_cmp_lt_u32 s{S_WAVE}, 4"); a("s_cbranch_scc0 L_s1_nost")
            a(f"s_lshl_b32 s66, s{S_WAVE}, 12"); a("v_lshl_add_u32 v3, v1, 4, s66")
            for i in range(4):
                a(f"s_add_u32 m0, s66, {RED0}"); a(f"buffer_load_dwordx4 v3, {W}, 0 offen offset:{1024*i} lds")
            a.label("L_s1_nost")
    a("v_cvt_pk_bf16_f32 v16, v16, v17"); a("v_cvt_pk_bf16_f32 v17, v18, v19")
    a("s_cmp_eq_u32 s74, 0"); a("s_cbranch_scc0 L_tw_rt1")
    a("ds_write_b32 v238, v16"); a("ds_write_b32 v239, v17"); a("s_branch L_tw_done")
    a.label("L_tw_rt1")
    a("ds_write_b16 v238, v16"); a("ds_write_b16_d16_hi v239, v16"); a("ds_write_b16 v240, v17"); a("ds_write_b16_d16_hi v241, v17")
    a.label("L_tw_done")
    a("s_waitcnt lgkmcnt(0)"); a("s_barrier")
    stamp(a, 5)
    hooks["setup"](a)
    stamp(a, 6)
    for e in range(11): a(f"ds_read_u16 v{70+e}, v{226+e}")
    a("v_mov_b32 v20, 0\nv_mov_b32 v21, 0\nv_mov_b32 v22, 0\nv_mov_b32 v23, 0")
    a("v_lshrrev_b32 v16, 1, v0"); a(f"s_movk_i32 s65, {KC_CP}"); a("v_mul_lo_u32 v16, v16, s65")
    a("v_and_b32 v17, 1, v0"); a("v_lshl_add_u32 v16, v17, 4, v16")
    a("s_waitcnt lgkmcnt(0)")
    for c in range(4):
        o = 110 + 4 * c
        for k in range(4):
            lo = 70 + c + 2 * k
            a(f"v_lshl_or_b32 v{o+k}, v{lo+1}, 16, v{lo}")
        a(f"ds_write_b128 v237, v[{o}:{o+3}] offset:{KC_CP*c}")
    a("v_cmp_gt_u32 vcc, 16, v0"); a("s_and_saveexec_b64 s[66:67], vcc")
    a("ds_write_b128 v16, v[20:23] offset:4128"); a("s_mov_b64 exec, s[66:67]")
    if "two" in OPT:
        for k in range(9): hooks["dma"](a, k, 5 + k)
    stamp(a, 7)
    a("s_lshl_b32 s65, s34, 4"); a("s_lshr_b32 s64, s69, s65"); a("s_lshl_b32 s64, s64, 16")
    if "G" in OPT:
        a("s_mov_b32 s66, 0")
        a.label("L_s1_chk")
        a("s_waitcnt vmcnt(0)")
        a(f"v_xor_b32 v16, s{S_NONCE}, v205")
        for i in range(1, 8):
            a(f"v_xor_b32 v17, s{S_NONCE}, v{205+2*i}"); a("v_or_b32 v16, v16, v17")
        a("v_cmp_ne_u32 vcc, 0, v16"); a("s_cbranch_vccz L_s1_ok")
        a("s_add_u32 s66, s66, 1"); a(f"s_cmp_gt_u32 s66, {SPIN_MAX}"); a("s_cbranch_scc1 L_s1_ok")
        g_issue()
        a("s_branch L_s1_chk")
        a.label("L_s1_ok")
        a("s_barrier")
        a("v_and_b32 v8, 255, v0"); a(f"v_lshlrev_b32 v9, 5, v8"); a(f"v_add_u32 v9, {RED0}, v9")
        a("ds_read_b128 v[192:195], v9"); a("ds_read_b128 v[196:199], v9 offset:16")
        a("s_xor_b32 s65, s34, 1"); a("s_lshl_b32 s65, s65, 4")
        for i in range(8):
            st = 204 + 2 * i
            a(f"v_and_b32 v{60+i}, 0xffff0000, v{st}"); a(f"v_rcp_f32 v{60+i}, v{60+i}"); a(f"v_lshlrev_b32 v{68+i}, 16, v{st}")
        a("s_waitcnt lgkmcnt(0)")
        for i in range(8):
            a(f"v_lshlrev_b32 v{30+i}, s65, v{192+i}"); a(f"v_and_b32 v{30+i}, 0xffff0000, v{30+i}")
            a(f"v_sub_f32 v{40+i}, v{30+i}, v{68+i}"); a(f"v_mul_f32 v{40+i}, v{40+i}, v{60+i}")
            a(f"v_fma_f32 v{48+i}, v{40+i}, s64, v{30+i}")
    else:
        a("s_waitcnt vmcnt(9)" if "two" in OPT else "s_waitcnt vmcnt(0)"); a("s_barrier")
        a("v_and_b32 v8, 255, v0"); a(f"v_lshlrev_b32 v9, 6, v8"); a(f"v_add_u32 v9, {RED0}, v9")
        for i in range(4): a(f"ds_read_b128 v[{204+4*i}:{207+4*i}], v9 offset:{16*i}")
        a("s_waitcnt lgkmcnt(0)")
        for i in range(8):
            x = 200 + i // 2; st = 204 + 2 * i
            a(f"v_lshlrev_b32 v{30+i}, 16, v{x}" if i % 2 == 0 else f"v_and_b32 v{30+i}, 0xffff0000, v{x}")
            a(f"v_fma_f32 v{40+i}, v{30+i}, v{st}, v{st+1}")
            a(f"v_fma_f32 v{48+i}, v{40+i}, s64, v{30+i}")
    for k in range(4): a(f"v_cvt_pk_bf16_f32 v{56+k}, v{40+2*k}, v{41+2*k}")
    a("v_and_b32 v8, 255, v0")
    a(f"s_mul_i32 s66, s34, {UA_CH}"); a(f"s_add_u32 s66, s66, {UA0+480}"); a("v_lshl_add_u32 v9, v8, 4, s66")
    a("ds_write_b128 v9, v[56:59]")
    a(f"s_mul_i32 s66, s34, {RA_CH}"); a(f"s_add_u32 s66, s66, {RA0}"); a("v_lshl_add_u32 v9, v8, 5, s66")
    a("ds_write_b128 v9, v[48:51]"); a("ds_write_b128 v9, v[52:55] offset:16")
    a("s_waitcnt vmcnt(0) lgkmcnt(0)"); a("s_barrier")
    stamp(a, 8)
    if "two" in OPT: hooks["tr1"](a)
    for v in range(3):
        a(f"s_cmp_eq_u32 s35, {v}"); a(f"s_cbranch_scc1 L_conv{v}")
    a("s_branch L_conv3")
    for v in range(4):
        a.label(f"L_conv{v}")
        conv(a, v, hooks["dma"])
        if v < 3: a("s_branch L_conv_done")
    a.label("L_conv_done")
    stamp(a, 9)
    a("s_waitcnt vmcnt(0)")
    stamp(a, 10)
    a("s_barrier")
    a(f"s_lshl_b32 s64, s2, {FS()}"); a(f"s_add_u32 s64, s64, {WS_FLAG2}")
    publish_flag(a, 64)
    stamp(a, 11)

def conv(a, p, dma):
    S = [s for s in range(64) if s % 4 == p]
    steps = {s: [(t, 8 * t - s) for t in range(7, -1, -1) if s <= 8 * t + 7] for s in S}
    betas = sorted({b for s in S for t, b in steps[s]}, reverse=True)
    assert len(betas) == 16
    breg = {b: 48 + 4 * i for i, b in enumerate(betas)}
    NAR = 4; PFD = 3
    issued = []
    def ldA(k):
        sa = S[k]; r = 112 + 4 * (k % NAR)
        a(f"ds_read_b64 v[{r}:{r+1}], v244 offset:{64*(63-sa)}"); a(f"ds_read_b64 v[{r+2}:{r+3}], v244 offset:{64*(63-sa)+8}")
        issued.extend([("A", k)] * 2)
    first = {}
    for k, s in enumerate(S):
        for t, b in steps[s]: first.setdefault(b, k)
    def ldB(b):
        a(f"ds_read_b128 v[{breg[b]}:{breg[b]+3}], v245 offset:{64*(b+7)}"); issued.append(("B", b))
    a("v_lshlrev_b32 v2, 4, v1")
    for q in range(4):
        if q == p: continue
        src = [x for x in range(4) if x != q].index(p)
        a(f"s_lshl_b32 s64, s34, 2"); a(f"s_add_u32 s64, s64, {q}"); a("s_mul_i32 s64, s64, 6144"); a(f"s_add_u32 s64, s64, {SB + 2048*src}")
        a(f"v_add_u32 v{4+q}, s64, v2")
    sendq = [q for q in range(4) if q != p]
    def send(q):
        sendq.remove(q)
        a(f"ds_write_b128 v{4+q}, v[{16+8*q}:{19+8*q}]"); a(f"ds_write_b128 v{4+q}, v[{20+8*q}:{23+8*q}] offset:1024")
        issued.extend([("W", q)] * 2)
    st3(a, 1)
    ldA(0)
    for t, b in steps[S[0]]: ldB(b)
    ldA(1)
    if p == 0:
        for t in range(8):
            a(f"ds_read_b128 v[{16+4*t}:{19+4*t}], v246 offset:{1024*t}"); issued.append(("R", t))
    else:
        for r in range(32): a(f"v_mov_b32 v{16+r}, 0")
    for b in betas:
        if first[b] >= 1: ldB(b)
    ldA(2)
    for k, s in enumerate(S):
        if k + PFD < len(S): ldA(k + PFD)
        need = max(i for i, x in enumerate(issued) if x == ("A", k))
        for t, b in steps[s]:
            need = max(need, max(i for i, x in enumerate(issued) if x == ("B", b)))
        if k == 0 and p == 0: need = max(need, max(i for i, x in enumerate(issued) if x[0] == "R"))
        n = len(issued) - 1 - need
        a(f"s_waitcnt lgkmcnt({min(n, 15)})")
        if k == 0: st3(a, 2)
        if k == 1: a("s_barrier")
        ra = 112 + 4 * (k % NAR)
        for j, (t, b) in enumerate(steps[s]):
            a(f"v_mfma_f32_16x16x32_bf16 v[{16+4*t}:{19+4*t}], v[{ra}:{ra+3}], v[{breg[b]}:{breg[b]+3}], v[{16+4*t}:{19+4*t}]")
        for q in list(sendq):
            if k >= 3 and S[k - 2] + 4 > 16 * q + 15 and k - 2 >= 0: send(q)
        if "two" in OPT:
            if 2 + p <= k <= 10 + p: dma(a, 9 + k - 2 - p, 5 + k - 2 - p)
        elif 1 + 2 * p <= k <= 9 + 2 * p: dma(a, k - 1 - 2 * p, 5 + k - 1 - 2 * p)
    st3(a, 3)
    for q in list(sendq): send(q)
    a(f"s_mul_i32 s64, s{S_WAVE}, 6144"); a(f"s_add_u32 s64, s64, {SB}"); a("v_add_u32 v3, s64, v2")
    a("s_waitcnt lgkmcnt(0)"); a("s_barrier")
    st3(a, 4)
    for j in range(3):
        a(f"ds_read_b128 v[{48+8*j}:{51+8*j}], v3 offset:{2048*j}"); a(f"ds_read_b128 v[{52+8*j}:{55+8*j}], v3 offset:{2048*j+1024}")
    a("s_waitcnt lgkmcnt(0)")
    A = 16 + 8 * p
    for j in range(3):
        for r in range(8): a(f"v_add_f32 v{A+r}, v{A+r}, v{48+8*j+r}")
    for i in range(2):
        t = 2 * p + i; o = 80 + 2 * i
        a(f"v_cvt_pk_bf16_f32 v{o}, v{A+4*i}, v{A+4*i+1}"); a(f"v_cvt_pk_bf16_f32 v{o+1}, v{A+4*i+2}, v{A+4*i+3}")
        a(f"buffer_store_dwordx2 v[{o}:{o+1}], v247, {W}, 0 offen offset:{512*t} sc1")
```

```python
from asm import *
from pA import (L, D, N, F, LOG2E, NLOG2E, INV2PI, WS_GRAN, WS_CS, WS_FLAG1, WS_FLAG3, WS_G2, WS_XT, WS_FLAG2, WS_FLAG4, WS_HT, HTS, WS_HF, WS_SIZE, SRD_WS, SRD_DBG, SPIN_MAX,
                OPS, OP_CH, KC_CH, KC_CP, SB, TB0, TB_CH, UA0, UA_CH, RA0, RA_CH, LDS_TOTAL, cmul1, cmul2, reduce8, stats_pack)
S_WAVE, S_NONCE = 32, 33
W = f"s[{SRD_WS}:{SRD_WS+3}]"
DBG = f"s[{SRD_DBG}:{SRD_DBG+3}]"
OPT = set()
def FS(): return next((int(o[2:]) for o in OPT if o.startswith('fs')), 6)
RED0 = RA0 + 2 * RA_CH

def prologue(a):
    a("s_load_dwordx16 s[4:19], s[0:1], 0")
    a("s_load_dwordx8 s[20:27], s[0:1], 64")
    a("s_load_dwordx4 s[28:31], s[0:1], 96")
    if "pf0" in OPT: code_prefetch(a)
    a("v_and_b32 v1, 63, v0"); a("v_lshrrev_b32 v2, 6, v0"); a("s_nop 0")
    a(f"v_readfirstlane_b32 s{S_WAVE}, v2")
    a("s_waitcnt lgkmcnt(0)")
    srd(a, SRD_WS, 30, WS_SIZE); srd(a, SRD_DBG, 28, 256)
    a(f"s_or_b32 s64, s2, s{S_WAVE}"); a("s_cmp_eq_u32 s64, 0"); a("s_cbranch_scc0 L_nopub")
    a("s_memrealtime s[64:65]"); a("s_waitcnt lgkmcnt(0)"); a("s_or_b32 s64, s64, 1")
    a("v_mov_b32 v3, s64"); a("v_mov_b32 v4, 0")
    a(f"buffer_store_dword v3, v4, {DBG}, 0 offen sc1")
    a.label("L_nopub")

def get_nonce(a, tag, vt):
    a(f"v_mov_b32 v{vt+1}, 0"); a("s_mov_b32 s66, 0")
    a.label(f"L_nonce_{tag}")
    a(f"buffer_load_dword v{vt}, v{vt+1}, {DBG}, 0 offen sc1")
    a("s_waitcnt vmcnt(0)")
    a(f"v_readfirstlane_b32 s{S_NONCE}, v{vt}")
    a("s_add_u32 s66, s66, 1"); a(f"s_cmp_gt_u32 s66, {SPIN_MAX}"); a(f"s_cbranch_scc1 L_nonce_{tag}_ok")
    a(f"s_cmp_eq_u32 s{S_NONCE}, 0"); a(f"s_cbranch_scc1 L_nonce_{tag}")
    a.label(f"L_nonce_{tag}_ok")

def publish_flag(a, off_sgpr, vt=2):
    lab = f"L_pub_{len(a.lines)}"
    a(f"s_cmp_eq_u32 s{S_WAVE}, 0"); a(f"s_cbranch_scc0 {lab}")
    a(f"v_mov_b32 v{vt}, s{S_NONCE}"); a(f"v_mov_b32 v{vt+1}, s{off_sgpr}")
    a("s_mov_b64 exec, 1")
    a(f"buffer_store_dword v{vt}, v{vt+1}, {W}, 0 offen sc1")
    a("s_mov_b64 exec, -1")
    a.label(lab)

def wait_flags(a, tag, base_sgpr, count, per_lane, vt=32):
    poll_issue(a, tag, base_sgpr, count, per_lane, vt)
    a("s_waitcnt vmcnt(0)")
    poll_check(a, tag, per_lane, vt, sleep=4)

X8S = 7168
XS0 = RED0
def xp_issue(a):
    srd(a, 36, 4, L * D * 2)
    a(f"s_lshl_b32 s64, s2, 3"); a(f"s_add_u32 s64, s64, s{S_WAVE}"); a("s_mul_i32 s64, s64, 896")
    a("v_lshl_add_u32 v194, v1, 4, s64")
    for r in range(4): a(f"v_mov_b32 v{196+r}, 0")
    a("v_cmp_gt_u32 vcc, 56, v1"); a("s_and_saveexec_b64 s[66:67], vcc")
    a("buffer_load_dwordx4 v[196:199], v194, s[36:39], 0 offen")
    a("s_mov_b64 exec, s[66:67]")
    a("v_mov_b32 v193, 0"); a(f"buffer_load_dword v195, v193, {DBG}, 0 offen sc1")
def xp_mid(a, tag):
    a(f"s_mul_i32 s64, s{S_WAVE}, 912"); a(f"s_add_u32 s64, s64, {XS0}"); a("v_lshl_add_u32 v194, v1, 4, s64")
    a("v_cmp_gt_u32 vcc, 56, v1"); a("s_and_saveexec_b64 s[66:67], vcc")
    a("ds_write_b128 v194, v[196:199]"); a("s_mov_b64 exec, s[66:67]")
    a("v_bfe_u32 v184, v1, 2, 2"); a("v_mul_u32_u24 v184, 912, v184")
    a("v_lshrrev_b32 v185, 4, v1"); a("v_lshl_add_u32 v184, v185, 5, v184"); a("v_and_b32 v185, 3, v1"); a("v_lshl_add_u32 v184, v185, 3, v184")
    a(f"s_lshl_b32 s64, s{S_WAVE}, 7"); a(f"s_add_u32 s64, s64, {XS0}"); a("v_add_u32 v184, s64, v184")
    a(f"s_mul_i32 s64, s2, {X8S}"); a(f"s_lshl_b32 s65, s{S_WAVE}, 10"); a("s_add_u32 s64, s64, s65"); a(f"s_add_u32 s64, s64, {WS_XT}")
    a("v_lshl_add_u32 v185, v1, 4, s64")
    a("s_waitcnt lgkmcnt(0)"); a("s_barrier")
    a(f"s_cmp_ge_u32 s{S_WAVE}, 7"); a(f"s_cbranch_scc1 L_xp_notr_{tag}")
    a("ds_read_b64_tr_b16 v[180:181], v184"); a(f"ds_read_b64_tr_b16 v[182:183], v184 offset:{4*912}")
    a("s_waitcnt lgkmcnt(0)")
    a(f"buffer_store_dwordx4 v[180:183], v185, {W}, 0 offen sc1")
    a.label(f"L_xp_notr_{tag}")
    a("v_mov_b32 v190, 0x3f803f80"); a("v_mov_b32 v188, 0"); a("v_mov_b32 v189, 0")
    for j in range(4):
        a(f"v_dot2_f32_bf16 v188, v{196+j}, v190, v188"); a(f"v_dot2_f32_bf16 v189, v{196+j}, v{196+j}, v189")
    for mod in ("quad_perm:[1,0,3,2]", "quad_perm:[2,3,0,1]", "row_half_mirror", "row_mirror"):
        for r in (188, 189): a(f"v_add_f32_dpp v{r}, v{r}, v{r} {mod} row_mask:0xf bank_mask:0xf")
    for sw in ("v_permlane16_swap_b32", "v_permlane32_swap_b32"):
        a("v_mov_b32 v186, v188"); a("v_mov_b32 v187, v189")
        a(f"{sw} v188, v186"); a(f"{sw} v189, v187")
        a("v_add_f32 v188, v188, v186"); a("v_add_f32 v189, v189, v187")
    stats_pack(a, 188, 189, 186, 184)
    a("v_and_b32 v187, 0xffff0000, v186"); a("v_lshlrev_b32 v186, 16, v186"); a("v_rcp_f32 v188, v187")
    a("v_mul_f32_e64 v189, -v186, v188")
    a(f"s_lshl_b32 s64, s2, 6"); a(f"s_lshl_b32 s65, s{S_WAVE}, 3"); a("s_add_u32 s64, s64, s65"); a("v_mov_b32 v187, s64")
    a("s_mov_b64 exec, 1")
    a(f"buffer_store_dwordx2 v[188:189], v187, {W}, 0 offen offset:{WS_GRAN} sc1")
    a("s_mov_b64 exec, -1")
def xg_mid(a, tag):
    a("v_mov_b32 v190, 0x3f803f80"); a("v_mov_b32 v188, 0"); a("v_mov_b32 v189, 0")
    for j in range(4):
        a(f"v_dot2_f32_bf16 v188, v{196+j}, v190, v188"); a(f"v_dot2_f32_bf16 v189, v{196+j}, v{196+j}, v189")
    for mod in ("quad_perm:[1,0,3,2]", "quad_perm:[2,3,0,1]", "row_half_mirror", "row_mirror"):
        for r in (188, 189): a(f"v_add_f32_dpp v{r}, v{r}, v{r} {mod} row_mask:0xf bank_mask:0xf")
    for sw in ("v_permlane16_swap_b32", "v_permlane32_swap_b32"):
        a("v_mov_b32 v186, v188"); a("v_mov_b32 v187, v189")
        a(f"{sw} v188, v186"); a(f"{sw} v189, v187")
        a("v_add_f32 v188, v188, v186"); a("v_add_f32 v189, v189, v187")
    stats_pack(a, 188, 189, 186, 184)
    a(f"v_readfirstlane_b32 s{S_NONCE}, v195")
    a(f"s_cmp_eq_u32 s{S_NONCE}, 0"); a(f"s_cbranch_scc0 L_xg_have_{tag}")
    get_nonce(a, "xg" + tag, 192)
    a.label(f"L_xg_have_{tag}")
    a(f"v_mov_b32 v187, s{S_NONCE}")
    a(f"s_lshl_b32 s64, s2, 6"); a(f"s_lshl_b32 s65, s{S_WAVE}, 3"); a("s_add_u32 s64, s64, s65"); a("v_mov_b32 v188, s64")
    a("s_mov_b64 exec, 1")
    a(f"buffer_store_dwordx2 v[186:187], v188, {W}, 0 offen offset:{WS_GRAN} sc1")
    a("s_mov_b64 exec, -1")
def xp_pub(a, tag):
    a("s_waitcnt vmcnt(0)")
    a(f"v_readfirstlane_b32 s{S_NONCE}, v195")
    a(f"s_cmp_eq_u32 s{S_NONCE}, 0"); a(f"s_cbranch_scc0 L_xp_have_{tag}")
    get_nonce(a, "xp" + tag, 194)
    a.label(f"L_xp_have_{tag}")
    a("s_barrier")
    a(f"s_lshl_b32 s64, s2, {FS()}"); a(f"s_add_u32 s64, s64, {WS_FLAG1}")
    publish_flag(a, 64, 194)

def touch_w13(a):
    a("s_and_b32 s64, s2, 7"); a("s_lshr_b32 s65, s2, 3")
    a("s_and_b32 s66, s64, 1"); a("s_mul_i32 s66, s66, 7"); a("s_lshr_b32 s67, s65, 2"); a("s_add_u32 s66, s66, s67")
    a("s_and_b32 s65, s65, 3")
    a("s_cmp_lt_u32 s65, 2"); a("s_cselect_b32 s76, s20, s22"); a("s_cselect_b32 s77, s21, s23")
    a(f"s_mov_b32 s78, {D*F*2}"); a("s_mov_b32 s79, 0x20000")
    a("s_and_b32 s65, s65, 1"); a("s_mul_i32 s65, s65, 448"); a(f"s_min_u32 s67, s{S_WAVE}, 6"); a("s_lshl_b32 s67, s67, 6"); a("s_add_u32 s65, s65, s67")
    a("v_add_u32 v173, s65, v1")
    a("v_lshrrev_b32 v172, 1, v173"); a("v_mul_u32_u24 v172, 3584, v172"); a("v_and_b32 v173, 1, v173"); a("v_lshl_add_u32 v172, v173, 7, v172")
    a("s_lshl_b32 s66, s66, 8"); a("v_add_u32 v172, s66, v172")
    a("buffer_load_dword v173, v172, s[76:79], 0 offen")

def touch_weights(a, tag):
    a(f"s_cmp_ge_u32 s{S_WAVE}, 3"); a(f"s_cbranch_scc1 L_touch_skip_{tag}")
    a(f"s_lshl_b32 s64, s{S_WAVE}, 1"); a("s_cmp_eq_u32 s64, 0"); a("s_cselect_b32 s76, s20, s22"); a("s_cselect_b32 s77, s21, s23")
    a("s_cmp_eq_u32 s64, 4"); a("s_cselect_b32 s76, s24, s76"); a("s_cselect_b32 s77, s25, s77")
    a(f"s_mov_b32 s78, {D*F*2}"); a("s_mov_b32 s79, 0x20000")
    a("s_mul_i32 s64, s2, 49"); a("v_add_u32 v191, s64, v1"); a("v_lshlrev_b32 v191, 7, v191")
    a("v_cmp_gt_u32 vcc, 49, v1"); a("s_and_saveexec_b64 s[66:67], vcc")
    a("buffer_load_dword v192, v191, s[76:79], 0 offen")
    a("s_mov_b64 exec, s[66:67]")
    a.label(f"L_touch_skip_{tag}")

def poll_issue(a, tag, base_sgpr, count, per_lane, vt):
    sh = FS() if count == 256 else 6
    a(f"s_cmp_eq_u32 s{S_WAVE}, 0"); a(f"s_cbranch_scc0 L_pi_{tag}")
    a(f"v_lshlrev_b32 v{vt}, {sh}, v1"); a(f"v_add_u32 v{vt}, s{base_sgpr}, v{vt}")
    if count < 64:
        a(f"v_min_u32 v{vt+1}, {count-1}, v1"); a(f"v_lshlrev_b32 v{vt}, 6, v{vt+1}"); a(f"v_add_u32 v{vt}, s{base_sgpr}, v{vt}")
    for i in range(per_lane):
        if i == 0: a(f"buffer_load_dword v{vt+1}, v{vt}, {W}, 0 offen sc1")
        else:
            a(f"s_mov_b32 s67, {(64 << sh)*i}"); a(f"buffer_load_dword v{vt+1+i}, v{vt}, {W}, s67 offen sc1")
    a.label(f"L_pi_{tag}")
def poll_check(a, tag, per_lane, vt, sleep=0):
    sh = FS() if per_lane == 4 else 6
    a(f"s_cmp_eq_u32 s{S_WAVE}, 0"); a(f"s_cbranch_scc0 L_pc_{tag}_bar")
    a("s_mov_b32 s66, 0")
    a.label(f"L_pc_{tag}")
    a(f"v_xor_b32 v{vt+1}, s{S_NONCE}, v{vt+1}")
    for i in range(1, per_lane):
        a(f"v_xor_b32 v{vt+1+i}, s{S_NONCE}, v{vt+1+i}"); a(f"v_or_b32 v{vt+1}, v{vt+1}, v{vt+1+i}")
    a(f"v_cmp_ne_u32 vcc, 0, v{vt+1}")
    a(f"s_cbranch_vccz L_pc_{tag}_bar")
    a("s_add_u32 s66, s66, 1"); a(f"s_cmp_gt_u32 s66, {SPIN_MAX}"); a(f"s_cbranch_scc1 L_pc_{tag}_bar")
    if "mask" in OPT:
        for i in range(per_lane): a(f"v_mov_b32 v{vt+1+i}, s{S_NONCE}")
        a("s_mov_b64 exec, vcc")
    for i in range(per_lane):
        if i == 0: a(f"buffer_load_dword v{vt+1}, v{vt}, {W}, 0 offen sc1")
        else:
            a(f"s_mov_b32 s67, {(64 << sh)*i}"); a(f"buffer_load_dword v{vt+1+i}, v{vt}, {W}, s67 offen sc1")
    if "mask" in OPT: a("s_mov_b64 exec, -1")
    a("s_waitcnt vmcnt(0)")
    if sleep: a(f"s_sleep {sleep}")
    a(f"s_branch L_pc_{tag}")
    a.label(f"L_pc_{tag}_bar")
    a("s_barrier")

def tlb_touch(a):
    a("v_and_b32 v175, 31, v1"); a("v_lshlrev_b32 v175, 19, v175")
    a(f"buffer_load_dword v176, v175, {W}, 0 offen")
    srd(a, 76, 26, L * D * 2)
    a("buffer_load_dword v174, v175, s[76:79], 0 offen")

def code_prefetch(a, vt=177, sreg=64):
    a(f"s_getpc_b64 s[{sreg}:{sreg+1}]")
    lab = f"L_pc_{len(a.lines)}"
    a.label(lab)
    a(f"s_sub_u32 s{sreg}, s{sreg}, {lab}-KERNEL_START"); a(f"s_subb_u32 s{sreg+1}, s{sreg+1}, 0")
    a(f"v_lshrrev_b32 v{vt+1}, 1, v0"); a(f"v_lshlrev_b32 v{vt+1}, 7, v{vt+1}")
    a(f"v_min_u32 v{vt+1}, KERNEL_END-KERNEL_START-4, v{vt+1}")
    a(f"global_load_dword v{vt}, v{vt+1}, s[{sreg}:{sreg+1}]")

def helper(a):
    a("s_sub_u32 s70, s2, 224")
    xp_issue(a)
    if "G" in OPT:
        a("s_waitcnt vmcnt(0)")
        xg_mid(a, "h")
    else:
        a("s_waitcnt vmcnt(1)")
        xp_mid(a, "h")
        xp_pub(a, "h")
    if "notouch" not in OPT: touch_weights(a, "h")
    stamp(a, 1)
    a("s_cmp_lt_u32 s70, 16")
    a("s_cselect_b32 s36, s20, s22"); a("s_cselect_b32 s37, s21, s23")
    a(f"s_mov_b32 s38, {D*F*2}"); a("s_mov_b32 s39, 0x20000")
    a("s_and_b32 s64, s70, 15"); a("s_mul_i32 s64, s64, 224")
    a("v_lshrrev_b32 v2, 4, v1"); a("v_and_b32 v3, 15, v1")
    a(f"s_mul_i32 s65, s{S_WAVE}, 56"); a("v_add_u32 v4, s65, v2")
    a("s_movk_i32 s65, 3584"); a("v_mul_lo_u32 v4, v4, s65"); a("v_lshl_add_u32 v4, v3, 4, v4"); a("v_add_u32 v4, s64, v4")
    for i in range(14):
        a(f"s_mov_b32 s67, {4*3584*i}")
        a(f"buffer_load_dwordx4 v[{8+4*i}:{11+4*i}], v4, s[36:39], s67 offen")
    for e in range(8): a(f"v_mov_b32 v{72+e}, 0")
    for i in range(14):
        a(f"s_waitcnt vmcnt({13-i})")
        for j in range(4):
            r = 8 + 4 * i + j
            a(f"v_lshlrev_b32 v80, 16, v{r}"); a(f"v_and_b32 v81, 0xffff0000, v{r}")
            a(f"v_add_f32 v{72+2*j}, v{72+2*j}, v80"); a(f"v_add_f32 v{73+2*j}, v{73+2*j}, v81")
    a(f"s_lshl_b32 s65, s{S_WAVE}, 2"); a("v_add_u32 v5, s65, v2"); a("v_lshlrev_b32 v5, 9, v5"); a("v_lshl_add_u32 v5, v3, 5, v5")
    a("ds_write_b128 v5, v[72:75]"); a("ds_write_b128 v5, v[76:79] offset:16")
    a("s_waitcnt lgkmcnt(0)"); a("s_barrier")
    a("v_lshlrev_b32 v5, 2, v0")
    a("v_cmp_gt_u32 vcc, 112, v0"); a("s_and_saveexec_b64 s[64:65], vcc"); a("s_cbranch_execz L_h_cs_done")
    for k in range(32): a(f"ds_read_b32 v{8+k}, v5 offset:{512*k}")
    a("s_waitcnt lgkmcnt(0)")
    for k in range(1, 32): a(f"v_add_f32 v8, v8, v{8+k}")
    a("s_mul_i32 s66, s70, 448"); a(f"s_add_u32 s66, s66, {WS_CS}"); a("v_add_u32 v5, s66, v5")
    a(f"buffer_store_dword v8, v5, {W}, 0 offen sc1")
    a.label("L_h_cs_done")
    a("s_mov_b64 exec, s[64:65]")
    a("s_waitcnt vmcnt(0)"); a("s_barrier")
    a(f"s_lshl_b32 s64, s2, {FS()}"); a(f"s_add_u32 s64, s64, {WS_FLAG2}")
    publish_flag(a, 64)
    a(f"s_mov_b32 s64, {WS_FLAG2}")
    wait_flags(a, "hs2", 64, 256, 4)
    a("v_and_b32 v2, 31, v1"); a("v_lshrrev_b32 v3, 5, v1"); a(f"s_lshl_b32 s64, s{S_WAVE}, 1"); a("v_add_u32 v3, s64, v3")
    a(f"v_mul_u32_u24 v3, {HTS}, v3"); a("v_lshl_add_u32 v3, v2, 2, v3"); a("s_lshl_b32 s64, s70, 7"); a(f"s_add_u32 s64, s64, {WS_HT}"); a("v_add_u32 v3, s64, v3")
    for i in range(28):
        a(f"s_mov_b32 s67, {16*HTS*i}"); a(f"buffer_load_dword v{40+i}, v3, {W}, s67 offen")
    for r in range(4): a(f"v_mov_b32 v{8+r}, 0")
    for i in range(28):
        a(f"s_waitcnt vmcnt({27-i})")
        a(f"v_lshlrev_b32 v12, 16, v{40+i}"); a(f"v_and_b32 v13, 0xffff0000, v{40+i}")
        a("v_add_f32 v8, v8, v12"); a("v_add_f32 v9, v9, v13"); a("v_fma_f32 v10, v12, v12, v10"); a("v_fma_f32 v11, v13, v13, v11")
    for r in range(8, 12):
        a(f"v_mov_b32 v12, v{r}"); a(f"v_permlane32_swap_b32 v{r}, v12"); a(f"v_add_f32 v{r}, v{r}, v12")
    a(f"s_lshl_b32 s64, s{S_WAVE}, 9"); a("v_lshl_add_u32 v4, v2, 4, s64")
    a("ds_write_b128 v4, v[8:11]")
    a("s_waitcnt lgkmcnt(0)"); a("s_barrier")
    a("v_cmp_gt_u32 vcc, 64, v0"); a("s_and_saveexec_b64 s[64:65], vcc"); a("s_cbranch_execz L_h_g2_done")
    a("v_lshrrev_b32 v4, 1, v0"); a("v_lshlrev_b32 v4, 4, v4"); a("v_and_b32 v5, 1, v0"); a("v_lshl_add_u32 v4, v5, 2, v4")
    for k in range(8):
        a(f"ds_read_b32 v{16+k}, v4 offset:{512*k}"); a(f"ds_read_b32 v{24+k}, v4 offset:{512*k+8}")
    a("s_waitcnt lgkmcnt(0)")
    for k in range(1, 8):
        a(f"v_add_f32 v16, v16, v{16+k}"); a(f"v_add_f32 v24, v24, v{24+k}")
    stats_pack(a, 16, 24, 32, 34)
    a("v_and_b32 v33, 0xffff0000, v32"); a("v_lshlrev_b32 v32, 16, v32"); a("v_rcp_f32 v33, v33")
    a("s_lshl_b32 s66, s70, 9"); a(f"s_add_u32 s66, s66, {WS_G2}"); a("v_lshl_add_u32 v4, v0, 3, s66")
    a(f"buffer_store_dwordx2 v[32:33], v4, {W}, 0 offen sc1")
    a.label("L_h_g2_done")
    a("s_mov_b64 exec, s[64:65]")
    a("s_waitcnt vmcnt(0)"); a("s_barrier")
    a("s_lshl_b32 s64, s70, 6"); a(f"s_add_u32 s64, s64, {WS_FLAG3}")
    publish_flag(a, 64)
    stamp(a, 2)

def st2(a, i):
    if "convdiag" not in OPT: stamp(a, i)
def st3(a, i):
    if "convdiag" in OPT: stamp(a, i)
def phaseA(a, hooks):
    XPK = next((int(o[3:]) for o in OPT if o.startswith("xpk")), 8)
    TK = next((int(o[2:]) for o in OPT if o.startswith("tk")), 9)
    a(f"s_lshr_b32 s34, s{S_WAVE}, 2"); a(f"s_and_b32 s35, s{S_WAVE}, 3")
    xp_issue(a)
    srd(a, 40, 6, D * N * 2); srd(a, 44, 8, D * N * 2); srd(a, 48, 10, D * N * 2); srd(a, 52, 12, D * N * 2)
    a("s_and_b32 s64, s2, 7"); a("s_mul_i32 s64, s64, 28"); a("s_lshr_b32 s65, s2, 3"); a("s_add_u32 s75, s64, s65")
    a("s_lshl_b32 s64, s75, 2")
    a("s_load_dword s68, s[14:15], s64"); a("s_load_dword s69, s[16:17], s64")
    a("s_lshl_b32 s70, s75, 1"); a("s_add_u32 s70, s70, s34")
    a("s_lshl_b32 s65, s70, 9"); a("s_lshl_b32 s66, s35, 7"); a("s_add_u32 s65, s65, s66")
    a("v_lshl_add_u32 v3, v1, 1, s65")
    a("buffer_load_ushort v10, v3, s[40:43], 0 offen"); a("buffer_load_ushort v11, v3, s[44:47], 0 offen")
    a("buffer_load_ushort v12, v3, s[48:51], 0 offen"); a("buffer_load_ushort v13, v3, s[52:55], 0 offen")
    if "nopf" not in OPT and "pf0" not in OPT: code_prefetch(a)
    if "tlb" in OPT: tlb_touch(a)
    if "tearly" in OPT: touch_weights(a, "m")
    if "G" in OPT:
        a("v_mul_u32_u24 v179, 896, v1"); a("s_lshl_b32 s65, s75, 2"); a("v_add_u32 v179, s65, v179")
        GW = next((int(o[2:]) for o in OPT if o.startswith("gw")), 1)
        for i in range(GW):
            a(f"s_mul_i32 s65, s{S_WAVE}, {GW}"); a(f"s_add_u32 s65, s65, {i}"); a("s_lshl_b32 s66, s65, 8"); a(f"s_add_u32 m0, s66, {RED0}")
            a(f"s_mul_i32 s67, s65, {64*896}"); a("buffer_load_dword v179, s[36:39], s67 offen lds")
        a(f"s_cmp_eq_u32 s{S_WAVE}, 7"); a("s_cbranch_scc0 L_g_skip")
        for i in range(8 * GW, 32):
            a(f"s_mov_b32 m0, {RED0 + 256*i}"); a(f"s_mov_b32 s67, {64*896*i}")
            a("buffer_load_dword v179, s[36:39], s67 offen lds")
        a.label("L_g_skip")
    a("v_lshlrev_b32 v7, 4, v0"); a(f"v_add_u32 v7, {SB}, v7")
    a("v_mov_b32 v20, 0\nv_mov_b32 v21, 0\nv_mov_b32 v22, 0\nv_mov_b32 v23, 0")
    a("v_cmp_gt_u32 vcc, 30, v0"); a("s_and_saveexec_b64 s[66:67], vcc")
    a(f"ds_write_b128 v7, v[20:23] offset:{UA0-SB}"); a(f"ds_write_b128 v7, v[20:23] offset:{UA0-SB+UA_CH}")
    a("s_mov_b64 exec, s[66:67]")
    a("v_and_b32 v8, 255, v0"); a("v_lshlrev_b32 v9, 3, v8"); a("v_sub_u32 v9, 2047, v9")
    for e in range(11): a(f"v_subrev_u32 v{30+e}, {e}, v9")
    for e in range(0, 12, 2):
        a(f"v_cvt_f32_i32 v{44+e}, v{30+e}")
        if e + 1 < 11: a(f"v_cvt_f32_i32 v{45+e}, v{31+e}")
        a(f"v_cvt_pk_bf16_f32 v{58+e//2}, v{44+e}, v{45+e if e+1 < 11 else 44+e}")
    for e in range(11):
        p = 58 + e // 2; r = 226 + e
        a(f"v_and_b32 v{r}, 0xffff, v{p}" if e % 2 == 0 else f"v_lshrrev_b32 v{r}, 16, v{p}")
        a(f"v_subrev_u32 v{r}, 17024, v{r}"); a(f"v_min_i32 v{30+e}, 128, v{30+e}"); a(f"v_max_i32 v{r}, v{r}, v{30+e}")
    a("v_mov_b32 v64, 641")
    for e in range(8, 11):
        a(f"v_cmp_gt_i32 vcc, {e}, v9"); a(f"v_cndmask_b32 v{226+e}, v{226+e}, v64, vcc")
    a(f"s_mul_i32 s66, s34, {TB_CH}"); a(f"s_add_u32 s72, s66, {TB0}")
    a("v_mov_b32 v65, s72")
    for e in range(11): a(f"v_lshl_add_u32 v{226+e}, v{226+e}, 1, v65")
    a(f"s_mul_i32 s66, s34, {KC_CH}"); a("s_add_u32 s66, s66, 32"); a("v_lshl_add_u32 v237, v8, 4, s66")
    a("v_and_b32 v9, 15, v1"); a("v_lshrrev_b32 v8, 4, v1")
    a(f"s_and_b32 s73, s{S_WAVE}, 1"); a(f"s_bfe_u32 s74, s{S_WAVE}, 0x10001")
    a("s_lshl_b32 s65, s73, 4"); a("v_add_u32 v30, s65, v9")
    a("v_lshlrev_b32 v31, 4, v30"); a("v_lshl_add_u32 v31, v8, 3, v31")
    a("v_lshlrev_b32 v32, 3, v30"); a("v_add_u32 v32, 512, v32")
    a("v_cmp_eq_u32 vcc, 2, v8"); a("v_cndmask_b32 v31, v31, v32, vcc")
    a("v_lshlrev_b32 v32, 2, v30"); a("v_add_u32 v32, 768, v32")
    a("v_add_u32 v33, 4, v31"); a("v_add_u32 v34, 128, v32")
    a("v_cmp_eq_u32 vcc, 3, v8"); a("v_cndmask_b32 v31, v31, v32, vcc"); a("v_cndmask_b32 v33, v33, v34, vcc")
    a("v_lshlrev_b32 v32, 1, v30"); a("v_add_u32 v32, 1024, v32"); a("v_mov_b32 v34, 1288")
    a("v_cmp_eq_u32 vcc, 0, v8")
    for r in range(4):
        a(f"v_add_u32 v35, {64*r}, v32"); a(f"v_cndmask_b32 v{238+r}, v34, v35, vcc")
    a("v_lshl_add_u32 v35, v8, 8, v30"); a("v_mov_b32 v36, 1280")
    a("v_cmp_eq_u32 vcc, 0x100, v35"); a("v_cndmask_b32 v238, v238, v36, vcc")
    a("s_cmp_eq_u32 s74, 0"); a("s_cbranch_scc0 L_tb_rt1")
    a("v_mov_b32 v238, v31"); a("v_mov_b32 v239, v33")
    a.label("L_tb_rt1")
    for r in range(4): a(f"v_add_u32 v{238+r}, s72, v{238+r}")
    a("v_mov_b32 v36, s72"); a("ds_write_b16 v36, v20 offset:1282")
    a(f"s_movk_i32 s65, {OPS}"); a("v_mul_lo_u32 v248, v9, s65"); a("v_lshl_add_u32 v248, v8, 4, v248")
    a(f"s_mul_i32 s66, s34, {OP_CH}"); a("v_add_u32 v248, s66, v248")
    a(f"s_mul_i32 s67, s73, {16*OPS}"); a(f"s_add_u32 s67, s67, {21*OPS}"); a("v_add_u32 v249, s67, v248")
    a(f"s_mul_i32 s67, s74, {16*OPS}"); a("v_add_u32 v248, s67, v248")
    a("v_sub_u32 v30, 3, v9"); a("v_and_b32 v30, 3, v30")
    a(f"s_movk_i32 s65, {KC_CP}"); a("v_mul_lo_u32 v31, v30, s65")
    a("v_lshlrev_b32 v32, 3, v8"); a("v_sub_u32 v32, v32, v9"); a("v_sub_u32 v32, v32, v30"); a("v_add_u32 v32, 2047, v32")
    a("v_lshl_add_u32 v31, v32, 1, v31")
    a(f"s_mul_i32 s66, s34, {KC_CH}"); a(f"s_sub_u32 s66, s66, {64*63}"); a("v_add_u32 v244, s66, v31")
    a(f"s_mul_i32 s66, s34, {UA_CH}"); a(f"s_add_u32 s66, s66, {UA0}")
    a("v_lshlrev_b32 v31, 5, v9"); a("v_lshl_add_u32 v31, v8, 4, v31"); a("v_add_u32 v245, s66, v31")
    a(f"s_mul_i32 s66, s34, {RA_CH}"); a(f"s_add_u32 s66, s66, {RA0}")
    a("v_lshlrev_b32 v31, 6, v9"); a("v_lshl_add_u32 v31, v8, 4, v31"); a("v_add_u32 v246, s66, v31")
    a(f"s_mul_i32 s66, s70, {HTS}"); a(f"s_add_u32 s66, s66, {WS_HT}")
    a("v_lshlrev_b32 v31, 5, v9"); a("v_lshl_add_u32 v31, v8, 3, v31"); a("v_add_u32 v247, s66, v31")
    a(f"s_mul_i32 s71, s34, {OP_CH}"); a("s_lshl_b32 s66, s35, 8"); a("s_add_u32 s71, s71, s66")
    if "prioA" in OPT:
        a(f"s_cmp_ge_u32 s{S_WAVE}, 4"); a("s_cbranch_scc0 L_prioA"); a("s_setprio 1"); a.label("L_prioA")
    a("s_waitcnt lgkmcnt(0)")
    a("s_lshl_b32 s65, s34, 4"); a("s_lshr_b32 s66, s68, s65"); a("s_lshl_b32 s66, s66, 16")
    a(f"v_mov_b32 v14, {LOG2E:#x}"); a("v_mul_f32 v15, s66, v14"); a("v_exp_f32 v15, v15")
    a("v_cvt_pk_bf16_f32 v15, v15, v15"); a("v_lshlrev_b32 v15, 16, v15")
    a("s_mov_b32 m0, s71")
    st2(a, 1)
    if "G" in OPT:
        GW = next((int(o[2:]) for o in OPT if o.startswith("gw")), 1)
        a(f"s_cmp_eq_u32 s{S_WAVE}, 7"); a("s_cbranch_scc1 L_g_w7")
        a(f"s_waitcnt vmcnt({GW})"); a("s_branch L_g_wd")
        a.label("L_g_w7"); a(f"s_waitcnt vmcnt({32 - 7*GW})")
        a.label("L_g_wd")
        xg_mid(a, "m")
    else:
        npf = (0 if ("nopf" in OPT or "pf0" in OPT) else 1) + (2 if "tlb" in OPT else 0)
        a(f"s_waitcnt vmcnt({5+npf})")
        xp_mid(a, "m")
        a(f"s_waitcnt vmcnt({1+npf})")
    a("s_mov_b32 m0, s71")
    st2(a, 2)
    a("v_lshlrev_b32 v16, 16, v10"); a("v_lshlrev_b32 v24, 16, v11"); a("v_mul_f32 v16, v14, v16"); a("v_mul_f32 v24, v24, v15")
    a("v_exp_f32 v16, v16"); a(f"v_mul_f32 v24, {INV2PI:#x}, v24")
    a("v_lshlrev_b32 v30, 16, v12"); a("v_lshlrev_b32 v31, 16, v13")
    a("v_cvt_pk_bf16_f32 v16, v16, v16"); a("v_add_f32 v26, v15, v15")
    a("v_lshlrev_b32 v18, 16, v16")
    a("v_mul_f32 v30, v30, v26"); a("v_mul_f32_e64 v31, -v31, v26")
    a("v_mul_f32 v18, v18, v15"); a("v_mul_f32_e64 v18, -v18, v14")
    P, Q = 18, 24
    X, Xb = 30, 34
    Z = {1: 40, 8: 44, 256: 48, 2: 52, 4: 56}
    for k, t in enumerate((8, 1, 256)):
        tm = 60 + 2 * k
        if t == 1:
            a(f"v_exp_f32 v{tm}, v{P}"); a(f"v_fract_f32 v{tm+1}, v{Q}")
        else:
            c = {8: 0x41000000, 256: 0x43800000}[t]
            a(f"v_mul_f32 v{tm}, {c:#x}, v{P}"); a(f"v_mul_f32 v{tm+1}, {c:#x}, v{Q}")
            a(f"v_exp_f32 v{tm}, v{tm}"); a(f"v_fract_f32 v{tm+1}, v{tm+1}")
    for k, t in enumerate((8, 1, 256)):
        tm = 60 + 2 * k; z = Z[t]
        a(f"v_cos_f32 v{z}, v{tm+1}"); a(f"v_sin_f32 v{z+1}, v{tm+1}")
    for k, t in enumerate((8, 1, 256)):
        tm = 60 + 2 * k; z = Z[t]
        a(f"v_mul_f32 v{z}, v{z}, v{tm}"); a(f"v_mul_f32 v{z+1}, v{z+1}, v{tm}")
    T, T2 = 72, 76
    pk = [80, 81, 82, 83, 84, 85]; pki = [0]
    def put(row, src):
        r = pk[pki[0] % 6]; pki[0] += 1
        a(f"v_cvt_pk_bf16_f32 v{r}, v{src}, v{src+1}")
        a(f"ds_write_addtid_b32 v{r} offset:{row*OPS}")
    Y, X256, X512, X768, XW = 88, 92, 96, 100, 104
    put(0, X); put(22, Z[8])
    a("v_mov_b32 v108, 0x3f80"); a(f"ds_write_addtid_b32 v108 offset:{21*OPS}")
    a(cmul1(0, Z[1], Z[1], T)); a(cmul2(Z[2], Z[1], Z[1], T, False))
    a(cmul1(0, Z[2], Z[2], T)); a(cmul2(Z[4], Z[2], Z[2], T, False))
    xs = [(c, Xb, X if c == 1 else Xb, Z[1]) for c in range(1, 8)]
    xs += [(8, X256, X, Z[256]), (9, XW, X256, Z[2]), (10, XW, XW, Z[2]), (11, XW, XW, Z[2]), (12, X512, X256, Z[256]),
           (13, XW, X512, Z[4]), (14, X768, X512, Z[256]), (15, XW, X768, Z[4]), (16, XW, X768, Z[256])]
    for r in range(17, 21): xs.append((r, XW, XW, Z[256]))
    def s1_issue():
        a(f"buffer_load_dword v223, v3, {W}, 0 offen sc1")
    for k, b in enumerate(range(2, 32)):
        src = Z[8] if b == 2 else Y
        x = xs[k] if k < len(xs) else None
        a(cmul1(0, src, Z[8], T))
        if x: a(cmul1(0, x[2], x[3], T2))
        a(cmul2(Y, src, Z[8], T, False))
        if x: a(cmul2(x[1], x[2], x[3], T2, True))
        put(21 + b, Y)
        if x: put(x[0], x[1])
        if k == XPK and "G" not in OPT:
            xp_pub(a, "m")
        L2K = next((int(o[3:]) for o in OPT if o.startswith("l2k")), -1)
        if k == L2K: touch_w13(a)
        L2C = next((int(o[3:]) for o in OPT if o.startswith("l2c")), -1)
        if k == L2C:
            srd(a, 76, 24, F * D * 2)
            a("s_lshr_b32 s64, s2, 3"); a("s_mul_i32 s64, s64, 448"); a(f"s_min_u32 s65, s{S_WAVE}, 6"); a("s_lshl_b32 s65, s65, 6"); a("s_add_u32 s64, s64, s65")
            a("v_add_u32 v171, s64, v1"); a("v_lshlrev_b32 v171, 7, v171")
            a("buffer_load_dword v170, v171, s[76:79], 0 offen")
        if k == TK and "notouch" not in OPT:
            touch_weights(a, "m")
    st2(a, 3)
    a("s_waitcnt lgkmcnt(0)"); a("s_barrier")
    st2(a, 4)
    if "G" in OPT:
        a("v_and_b32 v221, 255, v0"); a("v_lshlrev_b32 v221, 6, v221")
        def g_issue():
            for i in range(4): a(f"buffer_load_dwordx4 v[{204+4*i}:{207+4*i}], v221, {W}, 0 offen offset:{WS_GRAN+16*i} sc1")
        g_issue()
    else:
        a("v_and_b32 v3, 255, v0"); a(f"v_lshlrev_b32 v3, {FS()}, v3"); a(f"v_add_u32 v3, {WS_FLAG1}, v3")
        s1_issue()
    for r in range(4): a(f"v_mov_b32 v{16+r}, 0")
    NR = 6
    def rd(s):
        b = 32 + 8 * (s % NR)
        a(f"ds_read_b128 v[{b}:{b+3}], v248 offset:{64*s}"); a(f"ds_read_b128 v[{b+4}:{b+7}], v249 offset:{64*s}")
    for s in range(NR - 1): rd(s)
    for s in range(16):
        if s + NR - 1 < 16: rd(s + NR - 1)
        a(f"s_waitcnt lgkmcnt({2*min(15-s, NR-1)})")
        b = 32 + 8 * (s % NR)
        a(f"v_mfma_f32_16x16x32_bf16 v[16:19], v[{b}:{b+3}], v[{b+4}:{b+7}], v[16:19]")
        if s == 9 and "G" not in OPT:
            a("s_mov_b32 s66, 0")
            a.label("L_s1_chk")
            a("s_waitcnt vmcnt(0)")
            a(f"v_cmp_ne_u32 vcc, s{S_NONCE}, v223")
            a("s_cbranch_vccz L_s1_ok")
            a("s_add_u32 s66, s66, 1"); a(f"s_cmp_gt_u32 s66, {SPIN_MAX}"); a("s_cbranch_scc1 L_s1_ok")
            if "mask" in OPT: a("s_mov_b64 exec, vcc")
            s1_issue()
            if "mask" in OPT: a("s_mov_b64 exec, -1")
            a("s_branch L_s1_chk")
            a.label("L_s1_ok")
            a("v_and_b32 v8, 255, v0")
            a(f"v_mul_u32_u24 v3, {X8S}, v8"); a("s_lshl_b32 s66, s70, 4"); a(f"s_add_u32 s66, s66, {WS_XT}"); a("v_add_u32 v3, s66, v3")
            a(f"buffer_load_dwordx4 v[200:203], v3, {W}, 0 offen")
            a(f"s_cmp_lt_u32 s{S_WAVE}, 4"); a("s_cbranch_scc0 L_s1_nost")
            a(f"s_lshl_b32 s66, s{S_WAVE}, 12"); a("v_lshl_add_u32 v3, v1, 4, s66")
            for i in range(4):
                a(f"s_add_u32 m0, s66, {RED0}"); a(f"buffer_load_dwordx4 v3, {W}, 0 offen offset:{1024*i} lds")
            a.label("L_s1_nost")
    a("v_cvt_pk_bf16_f32 v16, v16, v17"); a("v_cvt_pk_bf16_f32 v17, v18, v19")
    a("s_cmp_eq_u32 s74, 0"); a("s_cbranch_scc0 L_tw_rt1")
    a("ds_write_b32 v238, v16"); a("ds_write_b32 v239, v17"); a("s_branch L_tw_done")
    a.label("L_tw_rt1")
    a("ds_write_b16 v238, v16"); a("ds_write_b16_d16_hi v239, v16"); a("ds_write_b16 v240, v17"); a("ds_write_b16_d16_hi v241, v17")
    a.label("L_tw_done")
    a("s_waitcnt lgkmcnt(0)"); a("s_barrier")
    stamp(a, 5)
    hooks["setup"](a)
    stamp(a, 6)
    for e in range(11): a(f"ds_read_u16 v{70+e}, v{226+e}")
    a("v_mov_b32 v20, 0\nv_mov_b32 v21, 0\nv_mov_b32 v22, 0\nv_mov_b32 v23, 0")
    a("v_lshrrev_b32 v16, 1, v0"); a(f"s_movk_i32 s65, {KC_CP}"); a("v_mul_lo_u32 v16, v16, s65")
    a("v_and_b32 v17, 1, v0"); a("v_lshl_add_u32 v16, v17, 4, v16")
    a("s_waitcnt lgkmcnt(0)")
    for c in range(4):
        o = 110 + 4 * c
        for k in range(4):
            lo = 70 + c + 2 * k
            a(f"v_lshl_or_b32 v{o+k}, v{lo+1}, 16, v{lo}")
        a(f"ds_write_b128 v237, v[{o}:{o+3}] offset:{KC_CP*c}")
    a("v_cmp_gt_u32 vcc, 16, v0"); a("s_and_saveexec_b64 s[66:67], vcc")
    a("ds_write_b128 v16, v[20:23] offset:4128"); a("s_mov_b64 exec, s[66:67]")
    if "two" in OPT:
        for k in range(9): hooks["dma"](a, k, 5 + k)
    stamp(a, 7)
    a("s_lshl_b32 s65, s34, 4"); a("s_lshr_b32 s64, s69, s65"); a("s_lshl_b32 s64, s64, 16")
    if "G" in OPT:
        a("s_mov_b32 s66, 0")
        a.label("L_s1_chk")
        a("s_waitcnt vmcnt(0)")
        a(f"v_xor_b32 v16, s{S_NONCE}, v205")
        for i in range(1, 8):
            a(f"v_xor_b32 v17, s{S_NONCE}, v{205+2*i}"); a("v_or_b32 v16, v16, v17")
        a("v_cmp_ne_u32 vcc, 0, v16"); a("s_cbranch_vccz L_s1_ok")
        a("s_add_u32 s66, s66, 1"); a(f"s_cmp_gt_u32 s66, {SPIN_MAX}"); a("s_cbranch_scc1 L_s1_ok")
        g_issue()
        a("s_branch L_s1_chk")
        a.label("L_s1_ok")
        a("s_barrier")
        a("v_and_b32 v8, 255, v0"); a(f"v_lshlrev_b32 v9, 5, v8"); a(f"v_add_u32 v9, {RED0}, v9")
        a("ds_read_b128 v[192:195], v9"); a("ds_read_b128 v[196:199], v9 offset:16")
        a("s_xor_b32 s65, s34, 1"); a("s_lshl_b32 s65, s65, 4")
        for i in range(8):
            st = 204 + 2 * i
            a(f"v_and_b32 v{60+i}, 0xffff0000, v{st}"); a(f"v_rcp_f32 v{60+i}, v{60+i}"); a(f"v_lshlrev_b32 v{68+i}, 16, v{st}")
        a("s_waitcnt lgkmcnt(0)")
        for i in range(8):
            a(f"v_lshlrev_b32 v{30+i}, s65, v{192+i}"); a(f"v_and_b32 v{30+i}, 0xffff0000, v{30+i}")
            a(f"v_sub_f32 v{40+i}, v{30+i}, v{68+i}"); a(f"v_mul_f32 v{40+i}, v{40+i}, v{60+i}")
            a(f"v_fma_f32 v{48+i}, v{40+i}, s64, v{30+i}")
    else:
        a("s_waitcnt vmcnt(9)" if "two" in OPT else "s_waitcnt vmcnt(0)"); a("s_barrier")
        a("v_and_b32 v8, 255, v0"); a(f"v_lshlrev_b32 v9, 6, v8"); a(f"v_add_u32 v9, {RED0}, v9")
        for i in range(4): a(f"ds_read_b128 v[{204+4*i}:{207+4*i}], v9 offset:{16*i}")
        a("s_waitcnt lgkmcnt(0)")
        for i in range(8):
            x = 200 + i // 2; st = 204 + 2 * i
            a(f"v_lshlrev_b32 v{30+i}, 16, v{x}" if i % 2 == 0 else f"v_and_b32 v{30+i}, 0xffff0000, v{x}")
            a(f"v_fma_f32 v{40+i}, v{30+i}, v{st}, v{st+1}")
            a(f"v_fma_f32 v{48+i}, v{40+i}, s64, v{30+i}")
    for k in range(4): a(f"v_cvt_pk_bf16_f32 v{56+k}, v{40+2*k}, v{41+2*k}")
    a("v_and_b32 v8, 255, v0")
    a(f"s_mul_i32 s66, s34, {UA_CH}"); a(f"s_add_u32 s66, s66, {UA0+480}"); a("v_lshl_add_u32 v9, v8, 4, s66")
    a("ds_write_b128 v9, v[56:59]")
    a(f"s_mul_i32 s66, s34, {RA_CH}"); a(f"s_add_u32 s66, s66, {RA0}"); a("v_lshl_add_u32 v9, v8, 5, s66")
    a("ds_write_b128 v9, v[48:51]"); a("ds_write_b128 v9, v[52:55] offset:16")
    a("s_waitcnt vmcnt(0) lgkmcnt(0)"); a("s_barrier")
    stamp(a, 8)
    if "two" in OPT: hooks["tr1"](a)
    for v in range(3):
        a(f"s_cmp_eq_u32 s35, {v}"); a(f"s_cbranch_scc1 L_conv{v}")
    a("s_branch L_conv3")
    for v in range(4):
        a.label(f"L_conv{v}")
        conv(a, v, hooks["dma"])
        if v < 3: a("s_branch L_conv_done")
    a.label("L_conv_done")
    stamp(a, 9)
    a("s_waitcnt vmcnt(0)")
    stamp(a, 10)
    a("s_barrier")
    a(f"s_lshl_b32 s64, s2, {FS()}"); a(f"s_add_u32 s64, s64, {WS_FLAG2}")
    publish_flag(a, 64)
    stamp(a, 11)

def conv(a, p, dma):
    S = [s for s in range(64) if s % 4 == p]
    steps = {s: [(t, 8 * t - s) for t in range(7, -1, -1) if s <= 8 * t + 7] for s in S}
    betas = sorted({b for s in S for t, b in steps[s]}, reverse=True)
    assert len(betas) == 16
    breg = {b: 48 + 4 * i for i, b in enumerate(betas)}
    NAR = 4; PFD = 3
    issued = []
    def ldA(k):
        sa = S[k]; r = 112 + 4 * (k % NAR)
        a(f"ds_read_b64 v[{r}:{r+1}], v244 offset:{64*(63-sa)}"); a(f"ds_read_b64 v[{r+2}:{r+3}], v244 offset:{64*(63-sa)+8}")
        issued.extend([("A", k)] * 2)
    first = {}
    for k, s in enumerate(S):
        for t, b in steps[s]: first.setdefault(b, k)
    def ldB(b):
        a(f"ds_read_b128 v[{breg[b]}:{breg[b]+3}], v245 offset:{64*(b+7)}"); issued.append(("B", b))
    a("v_lshlrev_b32 v2, 4, v1")
    for q in range(4):
        if q == p: continue
        src = [x for x in range(4) if x != q].index(p)
        a(f"s_lshl_b32 s64, s34, 2"); a(f"s_add_u32 s64, s64, {q}"); a("s_mul_i32 s64, s64, 6144"); a(f"s_add_u32 s64, s64, {SB + 2048*src}")
        a(f"v_add_u32 v{4+q}, s64, v2")
    sendq = [q for q in range(4) if q != p]
    def send(q):
        sendq.remove(q)
        a(f"ds_write_b128 v{4+q}, v[{16+8*q}:{19+8*q}]"); a(f"ds_write_b128 v{4+q}, v[{20+8*q}:{23+8*q}] offset:1024")
        issued.extend([("W", q)] * 2)
    st3(a, 1)
    ldA(0)
    for t, b in steps[S[0]]: ldB(b)
    ldA(1)
    if p == 0:
        for t in range(8):
            a(f"ds_read_b128 v[{16+4*t}:{19+4*t}], v246 offset:{1024*t}"); issued.append(("R", t))
    else:
        for r in range(32): a(f"v_mov_b32 v{16+r}, 0")
    for b in betas:
        if first[b] >= 1: ldB(b)
    ldA(2)
    for k, s in enumerate(S):
        if k + PFD < len(S): ldA(k + PFD)
        need = max(i for i, x in enumerate(issued) if x == ("A", k))
        for t, b in steps[s]:
            need = max(need, max(i for i, x in enumerate(issued) if x == ("B", b)))
        if k == 0 and p == 0: need = max(need, max(i for i, x in enumerate(issued) if x[0] == "R"))
        n = len(issued) - 1 - need
        a(f"s_waitcnt lgkmcnt({min(n, 15)})")
        if k == 0: st3(a, 2)
        if k == 1: a("s_barrier")
        ra = 112 + 4 * (k % NAR)
        for j, (t, b) in enumerate(steps[s]):
            a(f"v_mfma_f32_16x16x32_bf16 v[{16+4*t}:{19+4*t}], v[{ra}:{ra+3}], v[{breg[b]}:{breg[b]+3}], v[{16+4*t}:{19+4*t}]")
        for q in list(sendq):
            if k >= 3 and S[k - 2] + 4 > 16 * q + 15 and k - 2 >= 0: send(q)
        if "two" in OPT:
            if 2 + p <= k <= 10 + p: dma(a, 9 + k - 2 - p, 5 + k - 2 - p)
        elif 1 + 2 * p <= k <= 9 + 2 * p: dma(a, k - 1 - 2 * p, 5 + k - 1 - 2 * p)
    st3(a, 3)
    for q in list(sendq): send(q)
    a(f"s_mul_i32 s64, s{S_WAVE}, 6144"); a(f"s_add_u32 s64, s64, {SB}"); a("v_add_u32 v3, s64, v2")
    a("s_waitcnt lgkmcnt(0)"); a("s_barrier")
    st3(a, 4)
    for j in range(3):
        a(f"ds_read_b128 v[{48+8*j}:{51+8*j}], v3 offset:{2048*j}"); a(f"ds_read_b128 v[{52+8*j}:{55+8*j}], v3 offset:{2048*j+1024}")
    a("s_waitcnt lgkmcnt(0)")
    A = 16 + 8 * p
    for j in range(3):
        for r in range(8): a(f"v_add_f32 v{A+r}, v{A+r}, v{48+8*j+r}")
    for i in range(2):
        t = 2 * p + i; o = 80 + 2 * i
        a(f"v_cvt_pk_bf16_f32 v{o}, v{A+4*i}, v{A+4*i+1}"); a(f"v_cvt_pk_bf16_f32 v{o+1}, v{A+4*i+2}, v{A+4*i+3}")
        a(f"buffer_store_dwordx2 v[{o}:{o+1}], v247, {W}, 0 offen offset:{512*t} sc1")
```

```python
from asm import *
from pA import (L, D, N, F, LOG2E, NLOG2E, INV2PI, WS_GRAN, WS_CS, WS_FLAG1, WS_FLAG3, WS_G2, WS_XT, WS_FLAG2, WS_FLAG4, WS_HT, HTS, WS_HF, WS_SIZE, SRD_WS, SRD_DBG, SPIN_MAX,
                OPS, OP_CH, KC_CH, KC_CP, SB, TB0, TB_CH, UA0, UA_CH, RA0, RA_CH, LDS_TOTAL, cmul1, cmul2, reduce8, stats_pack)
S_WAVE, S_NONCE = 32, 33
W = f"s[{SRD_WS}:{SRD_WS+3}]"
DBG = f"s[{SRD_DBG}:{SRD_DBG+3}]"
OPT = set()
def FS(): return next((int(o[2:]) for o in OPT if o.startswith('fs')), 6)
RED0 = RA0 + 2 * RA_CH

def prologue(a):
    a("s_load_dwordx16 s[4:19], s[0:1], 0")
    a("s_load_dwordx8 s[20:27], s[0:1], 64")
    a("s_load_dwordx4 s[28:31], s[0:1], 96")
    if "pf0" in OPT: code_prefetch(a)
    a("v_and_b32 v1, 63, v0"); a("v_lshrrev_b32 v2, 6, v0"); a("s_nop 0")
    a(f"v_readfirstlane_b32 s{S_WAVE}, v2")
    a("s_waitcnt lgkmcnt(0)")
    srd(a, SRD_WS, 30, WS_SIZE); srd(a, SRD_DBG, 28, 256)
    a(f"s_or_b32 s64, s2, s{S_WAVE}"); a("s_cmp_eq_u32 s64, 0"); a("s_cbranch_scc0 L_nopub")
    a("s_memrealtime s[64:65]"); a("s_waitcnt lgkmcnt(0)"); a("s_or_b32 s64, s64, 1")
    a("v_mov_b32 v3, s64"); a("v_mov_b32 v4, 0")
    a(f"buffer_store_dword v3, v4, {DBG}, 0 offen sc1")
    a.label("L_nopub")

def get_nonce(a, tag, vt):
    a(f"v_mov_b32 v{vt+1}, 0"); a("s_mov_b32 s66, 0")
    a.label(f"L_nonce_{tag}")
    a(f"buffer_load_dword v{vt}, v{vt+1}, {DBG}, 0 offen sc1")
    a("s_waitcnt vmcnt(0)")
    a(f"v_readfirstlane_b32 s{S_NONCE}, v{vt}")
    a("s_add_u32 s66, s66, 1"); a(f"s_cmp_gt_u32 s66, {SPIN_MAX}"); a(f"s_cbranch_scc1 L_nonce_{tag}_ok")
    a(f"s_cmp_eq_u32 s{S_NONCE}, 0"); a(f"s_cbranch_scc1 L_nonce_{tag}")
    a.label(f"L_nonce_{tag}_ok")

def publish_flag(a, off_sgpr, vt=2):
    lab = f"L_pub_{len(a.lines)}"
    a(f"s_cmp_eq_u32 s{S_WAVE}, 0"); a(f"s_cbranch_scc0 {lab}")
    a(f"v_mov_b32 v{vt}, s{S_NONCE}"); a(f"v_mov_b32 v{vt+1}, s{off_sgpr}")
    a("s_mov_b64 exec, 1")
    a(f"buffer_store_dword v{vt}, v{vt+1}, {W}, 0 offen sc1")
    a("s_mov_b64 exec, -1")
    a.label(lab)

def wait_flags(a, tag, base_sgpr, count, per_lane, vt=32):
    poll_issue(a, tag, base_sgpr, count, per_lane, vt)
    a("s_waitcnt vmcnt(0)")
    poll_check(a, tag, per_lane, vt, sleep=4)

X8S = 7168
XS0 = RED0
def xp_issue(a):
    srd(a, 36, 4, L * D * 2)
    a(f"s_lshl_b32 s64, s2, 3"); a(f"s_add_u32 s64, s64, s{S_WAVE}"); a("s_mul_i32 s64, s64, 896")
    a("v_lshl_add_u32 v194, v1, 4, s64")
    for r in range(4): a(f"v_mov_b32 v{196+r}, 0")
    a("v_cmp_gt_u32 vcc, 56, v1"); a("s_and_saveexec_b64 s[66:67], vcc")
    a("buffer_load_dwordx4 v[196:199], v194, s[36:39], 0 offen")
    a("s_mov_b64 exec, s[66:67]")
    a("v_mov_b32 v193, 0"); a(f"buffer_load_dword v195, v193, {DBG}, 0 offen sc1")
def xp_mid(a, tag):
    a(f"s_mul_i32 s64, s{S_WAVE}, 912"); a(f"s_add_u32 s64, s64, {XS0}"); a("v_lshl_add_u32 v194, v1, 4, s64")
    a("v_cmp_gt_u32 vcc, 56, v1"); a("s_and_saveexec_b64 s[66:67], vcc")
    a("ds_write_b128 v194, v[196:199]"); a("s_mov_b64 exec, s[66:67]")
    a("v_bfe_u32 v184, v1, 2, 2"); a("v_mul_u32_u24 v184, 912, v184")
    a("v_lshrrev_b32 v185, 4, v1"); a("v_lshl_add_u32 v184, v185, 5, v184"); a("v_and_b32 v185, 3, v1"); a("v_lshl_add_u32 v184, v185, 3, v184")
    a(f"s_lshl_b32 s64, s{S_WAVE}, 7"); a(f"s_add_u32 s64, s64, {XS0}"); a("v_add_u32 v184, s64, v184")
    a(f"s_mul_i32 s64, s2, {X8S}"); a(f"s_lshl_b32 s65, s{S_WAVE}, 10"); a("s_add_u32 s64, s64, s65"); a(f"s_add_u32 s64, s64, {WS_XT}")
    a("v_lshl_add_u32 v185, v1, 4, s64")
    a("s_waitcnt lgkmcnt(0)"); a("s_barrier")
    a(f"s_cmp_ge_u32 s{S_WAVE}, 7"); a(f"s_cbranch_scc1 L_xp_notr_{tag}")
    a("ds_read_b64_tr_b16 v[180:181], v184"); a(f"ds_read_b64_tr_b16 v[182:183], v184 offset:{4*912}")
    a("s_waitcnt lgkmcnt(0)")
    a(f"buffer_store_dwordx4 v[180:183], v185, {W}, 0 offen sc1")
    a.label(f"L_xp_notr_{tag}")
    a("v_mov_b32 v190, 0x3f803f80"); a("v_mov_b32 v188, 0"); a("v_mov_b32 v189, 0")
    for j in range(4):
        a(f"v_dot2_f32_bf16 v188, v{196+j}, v190, v188"); a(f"v_dot2_f32_bf16 v189, v{196+j}, v{196+j}, v189")
    for mod in ("quad_perm:[1,0,3,2]", "quad_perm:[2,3,0,1]", "row_half_mirror", "row_mirror"):
        for r in (188, 189): a(f"v_add_f32_dpp v{r}, v{r}, v{r} {mod} row_mask:0xf bank_mask:0xf")
    for sw in ("v_permlane16_swap_b32", "v_permlane32_swap_b32"):
        a("v_mov_b32 v186, v188"); a("v_mov_b32 v187, v189")
        a(f"{sw} v188, v186"); a(f"{sw} v189, v187")
        a("v_add_f32 v188, v188, v186"); a("v_add_f32 v189, v189, v187")
    stats_pack(a, 188, 189, 186, 184)
    a("v_and_b32 v187, 0xffff0000, v186"); a("v_lshlrev_b32 v186, 16, v186"); a("v_rcp_f32 v188, v187")
    a("v_mul_f32_e64 v189, -v186, v188")
    a(f"s_lshl_b32 s64, s2, 6"); a(f"s_lshl_b32 s65, s{S_WAVE}, 3"); a("s_add_u32 s64, s64, s65"); a("v_mov_b32 v187, s64")
    a("s_mov_b64 exec, 1")
    a(f"buffer_store_dwordx2 v[188:189], v187, {W}, 0 offen offset:{WS_GRAN} sc1")
    a("s_mov_b64 exec, -1")
def xg_mid(a, tag):
    a("v_mov_b32 v190, 0x3f803f80"); a("v_mov_b32 v188, 0"); a("v_mov_b32 v189, 0")
    for j in range(4):
        a(f"v_dot2_f32_bf16 v188, v{196+j}, v190, v188"); a(f"v_dot2_f32_bf16 v189, v{196+j}, v{196+j}, v189")
    for mod in ("quad_perm:[1,0,3,2]", "quad_perm:[2,3,0,1]", "row_half_mirror", "row_mirror"):
        for r in (188, 189): a(f"v_add_f32_dpp v{r}, v{r}, v{r} {mod} row_mask:0xf bank_mask:0xf")
    for sw in ("v_permlane16_swap_b32", "v_permlane32_swap_b32"):
        a("v_mov_b32 v186, v188"); a("v_mov_b32 v187, v189")
        a(f"{sw} v188, v186"); a(f"{sw} v189, v187")
        a("v_add_f32 v188, v188, v186"); a("v_add_f32 v189, v189, v187")
    stats_pack(a, 188, 189, 186, 184)
    a(f"v_readfirstlane_b32 s{S_NONCE}, v195")
    a(f"s_cmp_eq_u32 s{S_NONCE}, 0"); a(f"s_cbranch_scc0 L_xg_have_{tag}")
    get_nonce(a, "xg" + tag, 192)
    a.label(f"L_xg_have_{tag}")
    a(f"v_mov_b32 v187, s{S_NONCE}")
    a(f"s_lshl_b32 s64, s2, 6"); a(f"s_lshl_b32 s65, s{S_WAVE}, 3"); a("s_add_u32 s64, s64, s65"); a("v_mov_b32 v188, s64")
    a("s_mov_b64 exec, 1")
    a(f"buffer_store_dwordx2 v[186:187], v188, {W}, 0 offen offset:{WS_GRAN} sc1")
    a("s_mov_b64 exec, -1")
def xp_pub(a, tag):
    a("s_waitcnt vmcnt(0)")
    a(f"v_readfirstlane_b32 s{S_NONCE}, v195")
    a(f"s_cmp_eq_u32 s{S_NONCE}, 0"); a(f"s_cbranch_scc0 L_xp_have_{tag}")
    get_nonce(a, "xp" + tag, 194)
    a.label(f"L_xp_have_{tag}")
    a("s_barrier")
    a(f"s_lshl_b32 s64, s2, {FS()}"); a(f"s_add_u32 s64, s64, {WS_FLAG1}")
    publish_flag(a, 64, 194)

def touch_w13(a):
    a("s_and_b32 s64, s2, 7"); a("s_lshr_b32 s65, s2, 3")
    a("s_and_b32 s66, s64, 1"); a("s_mul_i32 s66, s66, 7"); a("s_lshr_b32 s67, s65, 2"); a("s_add_u32 s66, s66, s67")
    a("s_and_b32 s65, s65, 3")
    a("s_cmp_lt_u32 s65, 2"); a("s_cselect_b32 s76, s20, s22"); a("s_cselect_b32 s77, s21, s23")
    a(f"s_mov_b32 s78, {D*F*2}"); a("s_mov_b32 s79, 0x20000")
    a("s_and_b32 s65, s65, 1"); a("s_mul_i32 s65, s65, 448"); a(f"s_min_u32 s67, s{S_WAVE}, 6"); a("s_lshl_b32 s67, s67, 6"); a("s_add_u32 s65, s65, s67")
    a("v_add_u32 v173, s65, v1")
    a("v_lshrrev_b32 v172, 1, v173"); a("v_mul_u32_u24 v172, 3584, v172"); a("v_and_b32 v173, 1, v173"); a("v_lshl_add_u32 v172, v173, 7, v172")
    a("s_lshl_b32 s66, s66, 8"); a("v_add_u32 v172, s66, v172")
    a("buffer_load_dword v173, v172, s[76:79], 0 offen")

def touch_weights(a, tag):
    a(f"s_cmp_ge_u32 s{S_WAVE}, 3"); a(f"s_cbranch_scc1 L_touch_skip_{tag}")
    a(f"s_lshl_b32 s64, s{S_WAVE}, 1"); a("s_cmp_eq_u32 s64, 0"); a("s_cselect_b32 s76, s20, s22"); a("s_cselect_b32 s77, s21, s23")
    a("s_cmp_eq_u32 s64, 4"); a("s_cselect_b32 s76, s24, s76"); a("s_cselect_b32 s77, s25, s77")
    a(f"s_mov_b32 s78, {D*F*2}"); a("s_mov_b32 s79, 0x20000")
    a("s_mul_i32 s64, s2, 49"); a("v_add_u32 v191, s64, v1"); a("v_lshlrev_b32 v191, 7, v191")
    a("v_cmp_gt_u32 vcc, 49, v1"); a("s_and_saveexec_b64 s[66:67], vcc")
    a("buffer_load_dword v192, v191, s[76:79], 0 offen")
    a("s_mov_b64 exec, s[66:67]")
    a.label(f"L_touch_skip_{tag}")

def poll_issue(a, tag, base_sgpr, count, per_lane, vt):
    sh = FS() if count == 256 else 6
    a(f"s_cmp_eq_u32 s{S_WAVE}, 0"); a(f"s_cbranch_scc0 L_pi_{tag}")
    a(f"v_lshlrev_b32 v{vt}, {sh}, v1"); a(f"v_add_u32 v{vt}, s{base_sgpr}, v{vt}")
    if count < 64:
        a(f"v_min_u32 v{vt+1}, {count-1}, v1"); a(f"v_lshlrev_b32 v{vt}, 6, v{vt+1}"); a(f"v_add_u32 v{vt}, s{base_sgpr}, v{vt}")
    for i in range(per_lane):
        if i == 0: a(f"buffer_load_dword v{vt+1}, v{vt}, {W}, 0 offen sc1")
        else:
            a(f"s_mov_b32 s67, {(64 << sh)*i}"); a(f"buffer_load_dword v{vt+1+i}, v{vt}, {W}, s67 offen sc1")
    a.label(f"L_pi_{tag}")
def poll_check(a, tag, per_lane, vt, sleep=0):
    sh = FS() if per_lane == 4 else 6
    a(f"s_cmp_eq_u32 s{S_WAVE}, 0"); a(f"s_cbranch_scc0 L_pc_{tag}_bar")
    a("s_mov_b32 s66, 0")
    a.label(f"L_pc_{tag}")
    a(f"v_xor_b32 v{vt+1}, s{S_NONCE}, v{vt+1}")
    for i in range(1, per_lane):
        a(f"v_xor_b32 v{vt+1+i}, s{S_NONCE}, v{vt+1+i}"); a(f"v_or_b32 v{vt+1}, v{vt+1}, v{vt+1+i}")
    a(f"v_cmp_ne_u32 vcc, 0, v{vt+1}")
    a(f"s_cbranch_vccz L_pc_{tag}_bar")
    a("s_add_u32 s66, s66, 1"); a(f"s_cmp_gt_u32 s66, {SPIN_MAX}"); a(f"s_cbranch_scc1 L_pc_{tag}_bar")
    if "mask" in OPT:
        for i in range(per_lane): a(f"v_mov_b32 v{vt+1+i}, s{S_NONCE}")
        a("s_mov_b64 exec, vcc")
    for i in range(per_lane):
        if i == 0: a(f"buffer_load_dword v{vt+1}, v{vt}, {W}, 0 offen sc1")
        else:
            a(f"s_mov_b32 s67, {(64 << sh)*i}"); a(f"buffer_load_dword v{vt+1+i}, v{vt}, {W}, s67 offen sc1")
    if "mask" in OPT: a("s_mov_b64 exec, -1")
    a("s_waitcnt vmcnt(0)")
    if sleep: a(f"s_sleep {sleep}")
    a(f"s_branch L_pc_{tag}")
    a.label(f"L_pc_{tag}_bar")
    a("s_barrier")

def tlb_touch(a):
    a("v_and_b32 v175, 31, v1"); a("v_lshlrev_b32 v175, 19, v175")
    a(f"buffer_load_dword v176, v175, {W}, 0 offen")
    srd(a, 76, 26, L * D * 2)
    a("buffer_load_dword v174, v175, s[76:79], 0 offen")

def code_prefetch(a, vt=177, sreg=64):
    a(f"s_getpc_b64 s[{sreg}:{sreg+1}]")
    lab = f"L_pc_{len(a.lines)}"
    a.label(lab)
    a(f"s_sub_u32 s{sreg}, s{sreg}, {lab}-KERNEL_START"); a(f"s_subb_u32 s{sreg+1}, s{sreg+1}, 0")
    a(f"v_lshrrev_b32 v{vt+1}, 1, v0"); a(f"v_lshlrev_b32 v{vt+1}, 7, v{vt+1}")
    a(f"v_min_u32 v{vt+1}, KERNEL_END-KERNEL_START-4, v{vt+1}")
    a(f"global_load_dword v{vt}, v{vt+1}, s[{sreg}:{sreg+1}]")

def helper(a):
    a("s_sub_u32 s70, s2, 224")
    xp_issue(a)
    if "G" in OPT:
        a("s_waitcnt vmcnt(0)")
        xg_mid(a, "h")
    else:
        a("s_waitcnt vmcnt(1)")
        xp_mid(a, "h")
        xp_pub(a, "h")
    if "htouch" in OPT:
        a("s_mul_i32 s64, s70, 392"); a("v_min_u32 v170, 391, v0"); a("v_add_u32 v170, s64, v170"); a("v_lshlrev_b32 v170, 7, v170")
        for i, ptr in enumerate((20, 22, 24)):
            srd(a, 76, ptr, D * F * 2)
            a(f"buffer_load_dword v{171+i}, v170, s[76:79], 0 offen")
    elif "notouch" not in OPT: touch_weights(a, "h")
    stamp(a, 1)
    a("s_cmp_lt_u32 s70, 16")
    a("s_cselect_b32 s36, s20, s22"); a("s_cselect_b32 s37, s21, s23")
    a(f"s_mov_b32 s38, {D*F*2}"); a("s_mov_b32 s39, 0x20000")
    a("s_and_b32 s64, s70, 15"); a("s_mul_i32 s64, s64, 224")
    a("v_lshrrev_b32 v2, 4, v1"); a("v_and_b32 v3, 15, v1")
    a(f"s_mul_i32 s65, s{S_WAVE}, 56"); a("v_add_u32 v4, s65, v2")
    a("s_movk_i32 s65, 3584"); a("v_mul_lo_u32 v4, v4, s65"); a("v_lshl_add_u32 v4, v3, 4, v4"); a("v_add_u32 v4, s64, v4")
    for i in range(14):
        a(f"s_mov_b32 s67, {4*3584*i}")
        a(f"buffer_load_dwordx4 v[{8+4*i}:{11+4*i}], v4, s[36:39], s67 offen")
    for e in range(8): a(f"v_mov_b32 v{72+e}, 0")
    for i in range(14):
        a(f"s_waitcnt vmcnt({13-i})")
        for j in range(4):
            r = 8 + 4 * i + j
            a(f"v_lshlrev_b32 v80, 16, v{r}"); a(f"v_and_b32 v81, 0xffff0000, v{r}")
            a(f"v_add_f32 v{72+2*j}, v{72+2*j}, v80"); a(f"v_add_f32 v{73+2*j}, v{73+2*j}, v81")
    a(f"s_lshl_b32 s65, s{S_WAVE}, 2"); a("v_add_u32 v5, s65, v2"); a("v_lshlrev_b32 v5, 9, v5"); a("v_lshl_add_u32 v5, v3, 5, v5")
    a("ds_write_b128 v5, v[72:75]"); a("ds_write_b128 v5, v[76:79] offset:16")
    a("s_waitcnt lgkmcnt(0)"); a("s_barrier")
    a("v_lshlrev_b32 v5, 2, v0")
    a("v_cmp_gt_u32 vcc, 112, v0"); a("s_and_saveexec_b64 s[64:65], vcc"); a("s_cbranch_execz L_h_cs_done")
    for k in range(32): a(f"ds_read_b32 v{8+k}, v5 offset:{512*k}")
    a("s_waitcnt lgkmcnt(0)")
    for k in range(1, 32): a(f"v_add_f32 v8, v8, v{8+k}")
    a("s_mul_i32 s66, s70, 448"); a(f"s_add_u32 s66, s66, {WS_CS}"); a("v_add_u32 v5, s66, v5")
    a(f"buffer_store_dword v8, v5, {W}, 0 offen sc1")
    a.label("L_h_cs_done")
    a("s_mov_b64 exec, s[64:65]")
    a("s_waitcnt vmcnt(0)"); a("s_barrier")
    a(f"s_lshl_b32 s64, s2, {FS()}"); a(f"s_add_u32 s64, s64, {WS_FLAG2}")
    publish_flag(a, 64)
    a(f"s_mov_b32 s64, {WS_FLAG2}")
    wait_flags(a, "hs2", 64, 256, 4)
    a("v_and_b32 v2, 31, v1"); a("v_lshrrev_b32 v3, 5, v1"); a(f"s_lshl_b32 s64, s{S_WAVE}, 1"); a("v_add_u32 v3, s64, v3")
    a(f"v_mul_u32_u24 v3, {HTS}, v3"); a("v_lshl_add_u32 v3, v2, 2, v3"); a("s_lshl_b32 s64, s70, 7"); a(f"s_add_u32 s64, s64, {WS_HT}"); a("v_add_u32 v3, s64, v3")
    for i in range(28):
        a(f"s_mov_b32 s67, {16*HTS*i}"); a(f"buffer_load_dword v{40+i}, v3, {W}, s67 offen")
    for r in range(4): a(f"v_mov_b32 v{8+r}, 0")
    for i in range(28):
        a(f"s_waitcnt vmcnt({27-i})")
        a(f"v_lshlrev_b32 v12, 16, v{40+i}"); a(f"v_and_b32 v13, 0xffff0000, v{40+i}")
        a("v_add_f32 v8, v8, v12"); a("v_add_f32 v9, v9, v13"); a("v_fma_f32 v10, v12, v12, v10"); a("v_fma_f32 v11, v13, v13, v11")
    for r in range(8, 12):
        a(f"v_mov_b32 v12, v{r}"); a(f"v_permlane32_swap_b32 v{r}, v12"); a(f"v_add_f32 v{r}, v{r}, v12")
    a(f"s_lshl_b32 s64, s{S_WAVE}, 9"); a("v_lshl_add_u32 v4, v2, 4, s64")
    a("ds_write_b128 v4, v[8:11]")
    a("s_waitcnt lgkmcnt(0)"); a("s_barrier")
    a("v_cmp_gt_u32 vcc, 64, v0"); a("s_and_saveexec_b64 s[64:65], vcc"); a("s_cbranch_execz L_h_g2_done")
    a("v_lshrrev_b32 v4, 1, v0"); a("v_lshlrev_b32 v4, 4, v4"); a("v_and_b32 v5, 1, v0"); a("v_lshl_add_u32 v4, v5, 2, v4")
    for k in range(8):
        a(f"ds_read_b32 v{16+k}, v4 offset:{512*k}"); a(f"ds_read_b32 v{24+k}, v4 offset:{512*k+8}")
    a("s_waitcnt lgkmcnt(0)")
    for k in range(1, 8):
        a(f"v_add_f32 v16, v16, v{16+k}"); a(f"v_add_f32 v24, v24, v{24+k}")
    stats_pack(a, 16, 24, 32, 34)
    a("v_and_b32 v33, 0xffff0000, v32"); a("v_lshlrev_b32 v32, 16, v32"); a("v_rcp_f32 v33, v33")
    a("s_lshl_b32 s66, s70, 9"); a(f"s_add_u32 s66, s66, {WS_G2}"); a("v_lshl_add_u32 v4, v0, 3, s66")
    a(f"buffer_store_dwordx2 v[32:33], v4, {W}, 0 offen sc1")
    a.label("L_h_g2_done")
    a("s_mov_b64 exec, s[64:65]")
    a("s_waitcnt vmcnt(0)"); a("s_barrier")
    a("s_lshl_b32 s64, s70, 6"); a(f"s_add_u32 s64, s64, {WS_FLAG3}")
    publish_flag(a, 64)
    stamp(a, 2)

def st2(a, i):
    if "convdiag" not in OPT: stamp(a, i)
def st3(a, i):
    if "convdiag" in OPT: stamp(a, i)
def phaseA(a, hooks):
    XPK = next((int(o[3:]) for o in OPT if o.startswith("xpk")), 8)
    TK = next((int(o[2:]) for o in OPT if o.startswith("tk")), 9)
    a(f"s_lshr_b32 s34, s{S_WAVE}, 2"); a(f"s_and_b32 s35, s{S_WAVE}, 3")
    xp_issue(a)
    srd(a, 40, 6, D * N * 2); srd(a, 44, 8, D * N * 2); srd(a, 48, 10, D * N * 2); srd(a, 52, 12, D * N * 2)
    a("s_and_b32 s64, s2, 7"); a("s_mul_i32 s64, s64, 28"); a("s_lshr_b32 s65, s2, 3"); a("s_add_u32 s75, s64, s65")
    a("s_lshl_b32 s64, s75, 2")
    a("s_load_dword s68, s[14:15], s64"); a("s_load_dword s69, s[16:17], s64")
    a("s_lshl_b32 s70, s75, 1"); a("s_add_u32 s70, s70, s34")
    a("s_lshl_b32 s65, s70, 9"); a("s_lshl_b32 s66, s35, 7"); a("s_add_u32 s65, s65, s66")
    a("v_lshl_add_u32 v3, v1, 1, s65")
    a("buffer_load_ushort v10, v3, s[40:43], 0 offen"); a("buffer_load_ushort v11, v3, s[44:47], 0 offen")
    a("buffer_load_ushort v12, v3, s[48:51], 0 offen"); a("buffer_load_ushort v13, v3, s[52:55], 0 offen")
    if "nopf" not in OPT and "pf0" not in OPT: code_prefetch(a)
    if "tlb" in OPT: tlb_touch(a)
    if "tearly" in OPT: touch_weights(a, "m")
    if "G" in OPT:
        a("v_mul_u32_u24 v179, 896, v1"); a("s_lshl_b32 s65, s75, 2"); a("v_add_u32 v179, s65, v179")
        GW = next((int(o[2:]) for o in OPT if o.startswith("gw")), 1)
        for i in range(GW):
            a(f"s_mul_i32 s65, s{S_WAVE}, {GW}"); a(f"s_add_u32 s65, s65, {i}"); a("s_lshl_b32 s66, s65, 8"); a(f"s_add_u32 m0, s66, {RED0}")
            a(f"s_mul_i32 s67, s65, {64*896}"); a("buffer_load_dword v179, s[36:39], s67 offen lds")
        a(f"s_cmp_eq_u32 s{S_WAVE}, 7"); a("s_cbranch_scc0 L_g_skip")
        for i in range(8 * GW, 32):
            a(f"s_mov_b32 m0, {RED0 + 256*i}"); a(f"s_mov_b32 s67, {64*896*i}")
            a("buffer_load_dword v179, s[36:39], s67 offen lds")
        a.label("L_g_skip")
    a("v_lshlrev_b32 v7, 4, v0"); a(f"v_add_u32 v7, {SB}, v7")
    a("v_mov_b32 v20, 0\nv_mov_b32 v21, 0\nv_mov_b32 v22, 0\nv_mov_b32 v23, 0")
    a("v_cmp_gt_u32 vcc, 30, v0"); a("s_and_saveexec_b64 s[66:67], vcc")
    a(f"ds_write_b128 v7, v[20:23] offset:{UA0-SB}"); a(f"ds_write_b128 v7, v[20:23] offset:{UA0-SB+UA_CH}")
    a("s_mov_b64 exec, s[66:67]")
    a("v_and_b32 v8, 255, v0"); a("v_lshlrev_b32 v9, 3, v8"); a("v_sub_u32 v9, 2047, v9")
    for e in range(11): a(f"v_subrev_u32 v{30+e}, {e}, v9")
    for e in range(0, 12, 2):
        a(f"v_cvt_f32_i32 v{44+e}, v{30+e}")
        if e + 1 < 11: a(f"v_cvt_f32_i32 v{45+e}, v{31+e}")
        a(f"v_cvt_pk_bf16_f32 v{58+e//2}, v{44+e}, v{45+e if e+1 < 11 else 44+e}")
    for e in range(11):
        p = 58 + e // 2; r = 226 + e
        a(f"v_and_b32 v{r}, 0xffff, v{p}" if e % 2 == 0 else f"v_lshrrev_b32 v{r}, 16, v{p}")
        a(f"v_subrev_u32 v{r}, 17024, v{r}"); a(f"v_min_i32 v{30+e}, 128, v{30+e}"); a(f"v_max_i32 v{r}, v{r}, v{30+e}")
    a("v_mov_b32 v64, 641")
    for e in range(8, 11):
        a(f"v_cmp_gt_i32 vcc, {e}, v9"); a(f"v_cndmask_b32 v{226+e}, v{226+e}, v64, vcc")
    a(f"s_mul_i32 s66, s34, {TB_CH}"); a(f"s_add_u32 s72, s66, {TB0}")
    a("v_mov_b32 v65, s72")
    for e in range(11): a(f"v_lshl_add_u32 v{226+e}, v{226+e}, 1, v65")
    a(f"s_mul_i32 s66, s34, {KC_CH}"); a("s_add_u32 s66, s66, 32"); a("v_lshl_add_u32 v237, v8, 4, s66")
    a("v_and_b32 v9, 15, v1"); a("v_lshrrev_b32 v8, 4, v1")
    a(f"s_and_b32 s73, s{S_WAVE}, 1"); a(f"s_bfe_u32 s74, s{S_WAVE}, 0x10001")
    a("s_lshl_b32 s65, s73, 4"); a("v_add_u32 v30, s65, v9")
    a("v_lshlrev_b32 v31, 4, v30"); a("v_lshl_add_u32 v31, v8, 3, v31")
    a("v_lshlrev_b32 v32, 3, v30"); a("v_add_u32 v32, 512, v32")
    a("v_cmp_eq_u32 vcc, 2, v8"); a("v_cndmask_b32 v31, v31, v32, vcc")
    a("v_lshlrev_b32 v32, 2, v30"); a("v_add_u32 v32, 768, v32")
    a("v_add_u32 v33, 4, v31"); a("v_add_u32 v34, 128, v32")
    a("v_cmp_eq_u32 vcc, 3, v8"); a("v_cndmask_b32 v31, v31, v32, vcc"); a("v_cndmask_b32 v33, v33, v34, vcc")
    a("v_lshlrev_b32 v32, 1, v30"); a("v_add_u32 v32, 1024, v32"); a("v_mov_b32 v34, 1288")
    a("v_cmp_eq_u32 vcc, 0, v8")
    for r in range(4):
        a(f"v_add_u32 v35, {64*r}, v32"); a(f"v_cndmask_b32 v{238+r}, v34, v35, vcc")
    a("v_lshl_add_u32 v35, v8, 8, v30"); a("v_mov_b32 v36, 1280")
    a("v_cmp_eq_u32 vcc, 0x100, v35"); a("v_cndmask_b32 v238, v238, v36, vcc")
    a("s_cmp_eq_u32 s74, 0"); a("s_cbranch_scc0 L_tb_rt1")
    a("v_mov_b32 v238, v31"); a("v_mov_b32 v239, v33")
    a.label("L_tb_rt1")
    for r in range(4): a(f"v_add_u32 v{238+r}, s72, v{238+r}")
    a("v_mov_b32 v36, s72"); a("ds_write_b16 v36, v20 offset:1282")
    a(f"s_movk_i32 s65, {OPS}"); a("v_mul_lo_u32 v248, v9, s65"); a("v_lshl_add_u32 v248, v8, 4, v248")
    a(f"s_mul_i32 s66, s34, {OP_CH}"); a("v_add_u32 v248, s66, v248")
    a(f"s_mul_i32 s67, s73, {16*OPS}"); a(f"s_add_u32 s67, s67, {21*OPS}"); a("v_add_u32 v249, s67, v248")
    a(f"s_mul_i32 s67, s74, {16*OPS}"); a("v_add_u32 v248, s67, v248")
    a("v_sub_u32 v30, 3, v9"); a("v_and_b32 v30, 3, v30")
    a(f"s_movk_i32 s65, {KC_CP}"); a("v_mul_lo_u32 v31, v30, s65")
    a("v_lshlrev_b32 v32, 3, v8"); a("v_sub_u32 v32, v32, v9"); a("v_sub_u32 v32, v32, v30"); a("v_add_u32 v32, 2047, v32")
    a("v_lshl_add_u32 v31, v32, 1, v31")
    a(f"s_mul_i32 s66, s34, {KC_CH}"); a(f"s_sub_u32 s66, s66, {64*63}"); a("v_add_u32 v244, s66, v31")
    a(f"s_mul_i32 s66, s34, {UA_CH}"); a(f"s_add_u32 s66, s66, {UA0}")
    a("v_lshlrev_b32 v31, 5, v9"); a("v_lshl_add_u32 v31, v8, 4, v31"); a("v_add_u32 v245, s66, v31")
    a(f"s_mul_i32 s66, s34, {RA_CH}"); a(f"s_add_u32 s66, s66, {RA0}")
    a("v_lshlrev_b32 v31, 6, v9"); a("v_lshl_add_u32 v31, v8, 4, v31"); a("v_add_u32 v246, s66, v31")
    a(f"s_mul_i32 s66, s70, {HTS}"); a(f"s_add_u32 s66, s66, {WS_HT}")
    a("v_lshlrev_b32 v31, 5, v9"); a("v_lshl_add_u32 v31, v8, 3, v31"); a("v_add_u32 v247, s66, v31")
    a(f"s_mul_i32 s71, s34, {OP_CH}"); a("s_lshl_b32 s66, s35, 8"); a("s_add_u32 s71, s71, s66")
    if "prioA" in OPT:
        a(f"s_cmp_ge_u32 s{S_WAVE}, 4"); a("s_cbranch_scc0 L_prioA"); a("s_setprio 1"); a.label("L_prioA")
    a("s_waitcnt lgkmcnt(0)")
    a("s_lshl_b32 s65, s34, 4"); a("s_lshr_b32 s66, s68, s65"); a("s_lshl_b32 s66, s66, 16")
    a(f"v_mov_b32 v14, {LOG2E:#x}"); a("v_mul_f32 v15, s66, v14"); a("v_exp_f32 v15, v15")
    a("v_cvt_pk_bf16_f32 v15, v15, v15"); a("v_lshlrev_b32 v15, 16, v15")
    a("s_mov_b32 m0, s71")
    st2(a, 1)
    if "G" in OPT:
        GW = next((int(o[2:]) for o in OPT if o.startswith("gw")), 1)
        a(f"s_cmp_eq_u32 s{S_WAVE}, 7"); a("s_cbranch_scc1 L_g_w7")
        a(f"s_waitcnt vmcnt({GW})"); a("s_branch L_g_wd")
        a.label("L_g_w7"); a(f"s_waitcnt vmcnt({32 - 7*GW})")
        a.label("L_g_wd")
        xg_mid(a, "m")
    else:
        npf = (0 if ("nopf" in OPT or "pf0" in OPT) else 1) + (2 if "tlb" in OPT else 0)
        a(f"s_waitcnt vmcnt({5+npf})")
        xp_mid(a, "m")
        a(f"s_waitcnt vmcnt({1+npf})")
    a("s_mov_b32 m0, s71")
    st2(a, 2)
    a("v_lshlrev_b32 v16, 16, v10"); a("v_lshlrev_b32 v24, 16, v11"); a("v_mul_f32 v16, v14, v16"); a("v_mul_f32 v24, v24, v15")
    a("v_exp_f32 v16, v16"); a(f"v_mul_f32 v24, {INV2PI:#x}, v24")
    a("v_lshlrev_b32 v30, 16, v12"); a("v_lshlrev_b32 v31, 16, v13")
    a("v_cvt_pk_bf16_f32 v16, v16, v16"); a("v_add_f32 v26, v15, v15")
    a("v_lshlrev_b32 v18, 16, v16")
    a("v_mul_f32 v30, v30, v26"); a("v_mul_f32_e64 v31, -v31, v26")
    a("v_mul_f32 v18, v18, v15"); a("v_mul_f32_e64 v18, -v18, v14")
    P, Q = 18, 24
    X, Xb = 30, 34
    Z = {1: 40, 8: 44, 256: 48, 2: 52, 4: 56}
    for k, t in enumerate((8, 1, 256)):
        tm = 60 + 2 * k
        if t == 1:
            a(f"v_exp_f32 v{tm}, v{P}"); a(f"v_fract_f32 v{tm+1}, v{Q}")
        else:
            c = {8: 0x41000000, 256: 0x43800000}[t]
            a(f"v_mul_f32 v{tm}, {c:#x}, v{P}"); a(f"v_mul_f32 v{tm+1}, {c:#x}, v{Q}")
            a(f"v_exp_f32 v{tm}, v{tm}"); a(f"v_fract_f32 v{tm+1}, v{tm+1}")
    for k, t in enumerate((8, 1, 256)):
        tm = 60 + 2 * k; z = Z[t]
        a(f"v_cos_f32 v{z}, v{tm+1}"); a(f"v_sin_f32 v{z+1}, v{tm+1}")
    for k, t in enumerate((8, 1, 256)):
        tm = 60 + 2 * k; z = Z[t]
        a(f"v_mul_f32 v{z}, v{z}, v{tm}"); a(f"v_mul_f32 v{z+1}, v{z+1}, v{tm}")
    T, T2 = 72, 76
    pk = [80, 81, 82, 83, 84, 85]; pki = [0]
    def put(row, src):
        r = pk[pki[0] % 6]; pki[0] += 1
        a(f"v_cvt_pk_bf16_f32 v{r}, v{src}, v{src+1}")
        a(f"ds_write_addtid_b32 v{r} offset:{row*OPS}")
    Y, X256, X512, X768, XW = 88, 92, 96, 100, 104
    put(0, X); put(22, Z[8])
    a("v_mov_b32 v108, 0x3f80"); a(f"ds_write_addtid_b32 v108 offset:{21*OPS}")
    a(cmul1(0, Z[1], Z[1], T)); a(cmul2(Z[2], Z[1], Z[1], T, False))
    a(cmul1(0, Z[2], Z[2], T)); a(cmul2(Z[4], Z[2], Z[2], T, False))
    xs = [(c, Xb, X if c == 1 else Xb, Z[1]) for c in range(1, 8)]
    xs += [(8, X256, X, Z[256]), (9, XW, X256, Z[2]), (10, XW, XW, Z[2]), (11, XW, XW, Z[2]), (12, X512, X256, Z[256]),
           (13, XW, X512, Z[4]), (14, X768, X512, Z[256]), (15, XW, X768, Z[4]), (16, XW, X768, Z[256])]
    for r in range(17, 21): xs.append((r, XW, XW, Z[256]))
    def s1_issue():
        a(f"buffer_load_dword v223, v3, {W}, 0 offen sc1")
    for k, b in enumerate(range(2, 32)):
        src = Z[8] if b == 2 else Y
        x = xs[k] if k < len(xs) else None
        a(cmul1(0, src, Z[8], T))
        if x: a(cmul1(0, x[2], x[3], T2))
        a(cmul2(Y, src, Z[8], T, False))
        if x: a(cmul2(x[1], x[2], x[3], T2, True))
        put(21 + b, Y)
        if x: put(x[0], x[1])
        if k == XPK and "G" not in OPT:
            xp_pub(a, "m")
        L2K = next((int(o[3:]) for o in OPT if o.startswith("l2k")), -1)
        if k == L2K: touch_w13(a)
        L2C = next((int(o[3:]) for o in OPT if o.startswith("l2c")), -1)
        if k == L2C:
            srd(a, 76, 24, F * D * 2)
            a("s_lshr_b32 s64, s2, 3"); a("s_mul_i32 s64, s64, 448"); a(f"s_min_u32 s65, s{S_WAVE}, 6"); a("s_lshl_b32 s65, s65, 6"); a("s_add_u32 s64, s64, s65")
            a("v_add_u32 v171, s64, v1"); a("v_lshlrev_b32 v171, 7, v171")
            a("buffer_load_dword v170, v171, s[76:79], 0 offen")
        if k == TK and "notouch" not in OPT and "htouch" not in OPT:
            touch_weights(a, "m")
    st2(a, 3)
    a("s_waitcnt lgkmcnt(0)"); a("s_barrier")
    st2(a, 4)
    if "G" in OPT:
        a("v_and_b32 v221, 255, v0"); a("v_lshlrev_b32 v221, 6, v221")
        def g_issue():
            for i in range(4): a(f"buffer_load_dwordx4 v[{204+4*i}:{207+4*i}], v221, {W}, 0 offen offset:{WS_GRAN+16*i} sc1")
        g_issue()
    else:
        a("v_and_b32 v3, 255, v0"); a(f"v_lshlrev_b32 v3, {FS()}, v3"); a(f"v_add_u32 v3, {WS_FLAG1}, v3")
        s1_issue()
    for r in range(4): a(f"v_mov_b32 v{16+r}, 0")
    NR = 6
    def rd(s):
        b = 32 + 8 * (s % NR)
        a(f"ds_read_b128 v[{b}:{b+3}], v248 offset:{64*s}"); a(f"ds_read_b128 v[{b+4}:{b+7}], v249 offset:{64*s}")
    for s in range(NR - 1): rd(s)
    for s in range(16):
        if s + NR - 1 < 16: rd(s + NR - 1)
        a(f"s_waitcnt lgkmcnt({2*min(15-s, NR-1)})")
        b = 32 + 8 * (s % NR)
        a(f"v_mfma_f32_16x16x32_bf16 v[16:19], v[{b}:{b+3}], v[{b+4}:{b+7}], v[16:19]")
        if s == 9 and "G" not in OPT:
            a("s_mov_b32 s66, 0")
            a.label("L_s1_chk")
            a("s_waitcnt vmcnt(0)")
            a(f"v_cmp_ne_u32 vcc, s{S_NONCE}, v223")
            a("s_cbranch_vccz L_s1_ok")
            a("s_add_u32 s66, s66, 1"); a(f"s_cmp_gt_u32 s66, {SPIN_MAX}"); a("s_cbranch_scc1 L_s1_ok")
            if "mask" in OPT: a("s_mov_b64 exec, vcc")
            s1_issue()
            if "mask" in OPT: a("s_mov_b64 exec, -1")
            a("s_branch L_s1_chk")
            a.label("L_s1_ok")
            a("v_and_b32 v8, 255, v0")
            a(f"v_mul_u32_u24 v3, {X8S}, v8"); a("s_lshl_b32 s66, s70, 4"); a(f"s_add_u32 s66, s66, {WS_XT}"); a("v_add_u32 v3, s66, v3")
            a(f"buffer_load_dwordx4 v[200:203], v3, {W}, 0 offen")
            a(f"s_cmp_lt_u32 s{S_WAVE}, 4"); a("s_cbranch_scc0 L_s1_nost")
            a(f"s_lshl_b32 s66, s{S_WAVE}, 12"); a("v_lshl_add_u32 v3, v1, 4, s66")
            for i in range(4):
                a(f"s_add_u32 m0, s66, {RED0}"); a(f"buffer_load_dwordx4 v3, {W}, 0 offen offset:{1024*i} lds")
            a.label("L_s1_nost")
    a("v_cvt_pk_bf16_f32 v16, v16, v17"); a("v_cvt_pk_bf16_f32 v17, v18, v19")
    a("s_cmp_eq_u32 s74, 0"); a("s_cbranch_scc0 L_tw_rt1")
    a("ds_write_b32 v238, v16"); a("ds_write_b32 v239, v17"); a("s_branch L_tw_done")
    a.label("L_tw_rt1")
    a("ds_write_b16 v238, v16"); a("ds_write_b16_d16_hi v239, v16"); a("ds_write_b16 v240, v17"); a("ds_write_b16_d16_hi v241, v17")
    a.label("L_tw_done")
    a("s_waitcnt lgkmcnt(0)"); a("s_barrier")
    stamp(a, 5)
    hooks["setup"](a)
    stamp(a, 6)
    for e in range(11): a(f"ds_read_u16 v{70+e}, v{226+e}")
    a("v_mov_b32 v20, 0\nv_mov_b32 v21, 0\nv_mov_b32 v22, 0\nv_mov_b32 v23, 0")
    a("v_lshrrev_b32 v16, 1, v0"); a(f"s_movk_i32 s65, {KC_CP}"); a("v_mul_lo_u32 v16, v16, s65")
    a("v_and_b32 v17, 1, v0"); a("v_lshl_add_u32 v16, v17, 4, v16")
    a("s_waitcnt lgkmcnt(0)")
    for c in range(4):
        o = 110 + 4 * c
        for k in range(4):
            lo = 70 + c + 2 * k
            a(f"v_lshl_or_b32 v{o+k}, v{lo+1}, 16, v{lo}")
        a(f"ds_write_b128 v237, v[{o}:{o+3}] offset:{KC_CP*c}")
    a("v_cmp_gt_u32 vcc, 16, v0"); a("s_and_saveexec_b64 s[66:67], vcc")
    a("ds_write_b128 v16, v[20:23] offset:4128"); a("s_mov_b64 exec, s[66:67]")
    if "two" in OPT:
        for k in range(9): hooks["dma"](a, k, 5 + k)
    stamp(a, 7)
    a("s_lshl_b32 s65, s34, 4"); a("s_lshr_b32 s64, s69, s65"); a("s_lshl_b32 s64, s64, 16")
    if "G" in OPT:
        a("s_mov_b32 s66, 0")
        a.label("L_s1_chk")
        a("s_waitcnt vmcnt(0)")
        a(f"v_xor_b32 v16, s{S_NONCE}, v205")
        for i in range(1, 8):
            a(f"v_xor_b32 v17, s{S_NONCE}, v{205+2*i}"); a("v_or_b32 v16, v16, v17")
        a("v_cmp_ne_u32 vcc, 0, v16"); a("s_cbranch_vccz L_s1_ok")
        a("s_add_u32 s66, s66, 1"); a(f"s_cmp_gt_u32 s66, {SPIN_MAX}"); a("s_cbranch_scc1 L_s1_ok")
        g_issue()
        a("s_branch L_s1_chk")
        a.label("L_s1_ok")
        a("s_barrier")
        a("v_and_b32 v8, 255, v0"); a(f"v_lshlrev_b32 v9, 5, v8"); a(f"v_add_u32 v9, {RED0}, v9")
        a("ds_read_b128 v[192:195], v9"); a("ds_read_b128 v[196:199], v9 offset:16")
        a("s_xor_b32 s65, s34, 1"); a("s_lshl_b32 s65, s65, 4")
        for i in range(8):
            st = 204 + 2 * i
            a(f"v_and_b32 v{60+i}, 0xffff0000, v{st}"); a(f"v_rcp_f32 v{60+i}, v{60+i}"); a(f"v_lshlrev_b32 v{68+i}, 16, v{st}")
        a("s_waitcnt lgkmcnt(0)")
        for i in range(8):
            a(f"v_lshlrev_b32 v{30+i}, s65, v{192+i}"); a(f"v_and_b32 v{30+i}, 0xffff0000, v{30+i}")
            a(f"v_sub_f32 v{40+i}, v{30+i}, v{68+i}"); a(f"v_mul_f32 v{40+i}, v{40+i}, v{60+i}")
            a(f"v_fma_f32 v{48+i}, v{40+i}, s64, v{30+i}")
    else:
        a("s_waitcnt vmcnt(9)" if "two" in OPT else "s_waitcnt vmcnt(0)"); a("s_barrier")
        a("v_and_b32 v8, 255, v0"); a(f"v_lshlrev_b32 v9, 6, v8"); a(f"v_add_u32 v9, {RED0}, v9")
        for i in range(4): a(f"ds_read_b128 v[{204+4*i}:{207+4*i}], v9 offset:{16*i}")
        a("s_waitcnt lgkmcnt(0)")
        for i in range(8):
            x = 200 + i // 2; st = 204 + 2 * i
            a(f"v_lshlrev_b32 v{30+i}, 16, v{x}" if i % 2 == 0 else f"v_and_b32 v{30+i}, 0xffff0000, v{x}")
            a(f"v_fma_f32 v{40+i}, v{30+i}, v{st}, v{st+1}")
            a(f"v_fma_f32 v{48+i}, v{40+i}, s64, v{30+i}")
    for k in range(4): a(f"v_cvt_pk_bf16_f32 v{56+k}, v{40+2*k}, v{41+2*k}")
    a("v_and_b32 v8, 255, v0")
    a(f"s_mul_i32 s66, s34, {UA_CH}"); a(f"s_add_u32 s66, s66, {UA0+480}"); a("v_lshl_add_u32 v9, v8, 4, s66")
    a("ds_write_b128 v9, v[56:59]")
    a(f"s_mul_i32 s66, s34, {RA_CH}"); a(f"s_add_u32 s66, s66, {RA0}"); a("v_lshl_add_u32 v9, v8, 5, s66")
    a("ds_write_b128 v9, v[48:51]"); a("ds_write_b128 v9, v[52:55] offset:16")
    a("s_waitcnt vmcnt(0) lgkmcnt(0)"); a("s_barrier")
    stamp(a, 8)
    if "two" in OPT: hooks["tr1"](a)
    for v in range(3):
        a(f"s_cmp_eq_u32 s35, {v}"); a(f"s_cbranch_scc1 L_conv{v}")
    a("s_branch L_conv3")
    for v in range(4):
        a.label(f"L_conv{v}")
        conv(a, v, hooks["dma"])
        if v < 3: a("s_branch L_conv_done")
    a.label("L_conv_done")
    stamp(a, 9)
    a("s_waitcnt vmcnt(0)")
    stamp(a, 10)
    a("s_barrier")
    a(f"s_lshl_b32 s64, s2, {FS()}"); a(f"s_add_u32 s64, s64, {WS_FLAG2}")
    publish_flag(a, 64)
    stamp(a, 11)

def conv(a, p, dma):
    S = [s for s in range(64) if s % 4 == p]
    steps = {s: [(t, 8 * t - s) for t in range(7, -1, -1) if s <= 8 * t + 7] for s in S}
    betas = sorted({b for s in S for t, b in steps[s]}, reverse=True)
    assert len(betas) == 16
    breg = {b: 48 + 4 * i for i, b in enumerate(betas)}
    NAR = 4; PFD = 3
    issued = []
    def ldA(k):
        sa = S[k]; r = 112 + 4 * (k % NAR)
        a(f"ds_read_b64 v[{r}:{r+1}], v244 offset:{64*(63-sa)}"); a(f"ds_read_b64 v[{r+2}:{r+3}], v244 offset:{64*(63-sa)+8}")
        issued.extend([("A", k)] * 2)
    first = {}
    for k, s in enumerate(S):
        for t, b in steps[s]: first.setdefault(b, k)
    def ldB(b):
        a(f"ds_read_b128 v[{breg[b]}:{breg[b]+3}], v245 offset:{64*(b+7)}"); issued.append(("B", b))
    a("v_lshlrev_b32 v2, 4, v1")
    for q in range(4):
        if q == p: continue
        src = [x for x in range(4) if x != q].index(p)
        a(f"s_lshl_b32 s64, s34, 2"); a(f"s_add_u32 s64, s64, {q}"); a("s_mul_i32 s64, s64, 6144"); a(f"s_add_u32 s64, s64, {SB + 2048*src}")
        a(f"v_add_u32 v{4+q}, s64, v2")
    sendq = [q for q in range(4) if q != p]
    def send(q):
        sendq.remove(q)
        a(f"ds_write_b128 v{4+q}, v[{16+8*q}:{19+8*q}]"); a(f"ds_write_b128 v{4+q}, v[{20+8*q}:{23+8*q}] offset:1024")
        issued.extend([("W", q)] * 2)
    st3(a, 1)
    ldA(0)
    for t, b in steps[S[0]]: ldB(b)
    ldA(1)
    if p == 0:
        for t in range(8):
            a(f"ds_read_b128 v[{16+4*t}:{19+4*t}], v246 offset:{1024*t}"); issued.append(("R", t))
    else:
        for r in range(32): a(f"v_mov_b32 v{16+r}, 0")
    for b in betas:
        if first[b] >= 1: ldB(b)
    ldA(2)
    for k, s in enumerate(S):
        if k + PFD < len(S): ldA(k + PFD)
        need = max(i for i, x in enumerate(issued) if x == ("A", k))
        for t, b in steps[s]:
            need = max(need, max(i for i, x in enumerate(issued) if x == ("B", b)))
        if k == 0 and p == 0: need = max(need, max(i for i, x in enumerate(issued) if x[0] == "R"))
        n = len(issued) - 1 - need
        a(f"s_waitcnt lgkmcnt({min(n, 15)})")
        if k == 0: st3(a, 2)
        if k == 1: a("s_barrier")
        ra = 112 + 4 * (k % NAR)
        for j, (t, b) in enumerate(steps[s]):
            a(f"v_mfma_f32_16x16x32_bf16 v[{16+4*t}:{19+4*t}], v[{ra}:{ra+3}], v[{breg[b]}:{breg[b]+3}], v[{16+4*t}:{19+4*t}]")
        for q in list(sendq):
            if k >= 3 and S[k - 2] + 4 > 16 * q + 15 and k - 2 >= 0: send(q)
        if "two" in OPT:
            if 2 + p <= k <= 10 + p: dma(a, 9 + k - 2 - p, 5 + k - 2 - p)
        elif 1 + 2 * p <= k <= 9 + 2 * p: dma(a, k - 1 - 2 * p, 5 + k - 1 - 2 * p)
    st3(a, 3)
    for q in list(sendq): send(q)
    a(f"s_mul_i32 s64, s{S_WAVE}, 6144"); a(f"s_add_u32 s64, s64, {SB}"); a("v_add_u32 v3, s64, v2")
    a("s_waitcnt lgkmcnt(0)"); a("s_barrier")
    st3(a, 4)
    for j in range(3):
        a(f"ds_read_b128 v[{48+8*j}:{51+8*j}], v3 offset:{2048*j}"); a(f"ds_read_b128 v[{52+8*j}:{55+8*j}], v3 offset:{2048*j+1024}")
    a("s_waitcnt lgkmcnt(0)")
    A = 16 + 8 * p
    for j in range(3):
        for r in range(8): a(f"v_add_f32 v{A+r}, v{A+r}, v{48+8*j+r}")
    for i in range(2):
        t = 2 * p + i; o = 80 + 2 * i
        a(f"v_cvt_pk_bf16_f32 v{o}, v{A+4*i}, v{A+4*i+1}"); a(f"v_cvt_pk_bf16_f32 v{o+1}, v{A+4*i+2}, v{A+4*i+3}")
        a(f"buffer_store_dwordx2 v[{o}:{o+1}], v247, {W}, 0 offen offset:{512*t} sc1")
```

```python
from asm import *
from pA import (L, D, N, F, LOG2E, NLOG2E, INV2PI, WS_GRAN, WS_CS, WS_FLAG1, WS_FLAG3, WS_G2, WS_XT, WS_FLAG2, WS_FLAG4, WS_HT, HTS, WS_HF, WS_SIZE, SRD_WS, SRD_DBG, SPIN_MAX,
                OPS, OP_CH, KC_CH, KC_CP, SB, TB0, TB_CH, UA0, UA_CH, RA0, RA_CH, LDS_TOTAL, cmul1, cmul2, reduce8, stats_pack)
S_WAVE, S_NONCE = 32, 33
W = f"s[{SRD_WS}:{SRD_WS+3}]"
DBG = f"s[{SRD_DBG}:{SRD_DBG+3}]"
OPT = set()
def FS(): return next((int(o[2:]) for o in OPT if o.startswith('fs')), 6)
RED0 = RA0 + 2 * RA_CH

def prologue(a):
    a("s_load_dwordx16 s[4:19], s[0:1], 0")
    a("s_load_dwordx8 s[20:27], s[0:1], 64")
    a("s_load_dwordx4 s[28:31], s[0:1], 96")
    if "pf0" in OPT: code_prefetch(a)
    a("v_and_b32 v1, 63, v0"); a("v_lshrrev_b32 v2, 6, v0"); a("s_nop 0")
    a(f"v_readfirstlane_b32 s{S_WAVE}, v2")
    a("s_waitcnt lgkmcnt(0)")
    srd(a, SRD_WS, 30, WS_SIZE); srd(a, SRD_DBG, 28, 256)
    a(f"s_or_b32 s64, s2, s{S_WAVE}"); a("s_cmp_eq_u32 s64, 0"); a("s_cbranch_scc0 L_nopub")
    a("s_memrealtime s[64:65]"); a("s_waitcnt lgkmcnt(0)"); a("s_or_b32 s64, s64, 1")
    a("v_mov_b32 v3, s64"); a("v_mov_b32 v4, 0")
    a(f"buffer_store_dword v3, v4, {DBG}, 0 offen sc1")
    a.label("L_nopub")

def get_nonce(a, tag, vt):
    a(f"v_mov_b32 v{vt+1}, 0"); a("s_mov_b32 s66, 0")
    a.label(f"L_nonce_{tag}")
    a(f"buffer_load_dword v{vt}, v{vt+1}, {DBG}, 0 offen sc1")
    a("s_waitcnt vmcnt(0)")
    a(f"v_readfirstlane_b32 s{S_NONCE}, v{vt}")
    a("s_add_u32 s66, s66, 1"); a(f"s_cmp_gt_u32 s66, {SPIN_MAX}"); a(f"s_cbranch_scc1 L_nonce_{tag}_ok")
    a(f"s_cmp_eq_u32 s{S_NONCE}, 0"); a(f"s_cbranch_scc1 L_nonce_{tag}")
    a.label(f"L_nonce_{tag}_ok")

def publish_flag(a, off_sgpr, vt=2):
    lab = f"L_pub_{len(a.lines)}"
    a(f"s_cmp_eq_u32 s{S_WAVE}, 0"); a(f"s_cbranch_scc0 {lab}")
    a(f"v_mov_b32 v{vt}, s{S_NONCE}"); a(f"v_mov_b32 v{vt+1}, s{off_sgpr}")
    a("s_mov_b64 exec, 1")
    a(f"buffer_store_dword v{vt}, v{vt+1}, {W}, 0 offen sc1")
    a("s_mov_b64 exec, -1")
    a.label(lab)

def wait_flags(a, tag, base_sgpr, count, per_lane, vt=32):
    poll_issue(a, tag, base_sgpr, count, per_lane, vt)
    a("s_waitcnt vmcnt(0)")
    poll_check(a, tag, per_lane, vt, sleep=4)

X8S = 7168
XS0 = RED0
def xp_issue(a):
    srd(a, 36, 4, L * D * 2)
    a(f"s_lshl_b32 s64, s2, 3"); a(f"s_add_u32 s64, s64, s{S_WAVE}"); a("s_mul_i32 s64, s64, 896")
    a("v_lshl_add_u32 v194, v1, 4, s64")
    for r in range(4): a(f"v_mov_b32 v{196+r}, 0")
    a("v_cmp_gt_u32 vcc, 56, v1"); a("s_and_saveexec_b64 s[66:67], vcc")
    a("buffer_load_dwordx4 v[196:199], v194, s[36:39], 0 offen")
    a("s_mov_b64 exec, s[66:67]")
    a("v_mov_b32 v193, 0")
    if "n0" in OPT:
        a(f"s_cmp_eq_u32 s{S_WAVE}, 0"); a("s_cselect_b32 s65, 0, 0x1000"); a("v_mov_b32 v193, s65")
    a(f"buffer_load_dword v195, v193, {DBG}, 0 offen sc1")
def xp_mid(a, tag):
    a(f"s_mul_i32 s64, s{S_WAVE}, 912"); a(f"s_add_u32 s64, s64, {XS0}"); a("v_lshl_add_u32 v194, v1, 4, s64")
    a("v_cmp_gt_u32 vcc, 56, v1"); a("s_and_saveexec_b64 s[66:67], vcc")
    a("ds_write_b128 v194, v[196:199]"); a("s_mov_b64 exec, s[66:67]")
    a("v_bfe_u32 v184, v1, 2, 2"); a("v_mul_u32_u24 v184, 912, v184")
    a("v_lshrrev_b32 v185, 4, v1"); a("v_lshl_add_u32 v184, v185, 5, v184"); a("v_and_b32 v185, 3, v1"); a("v_lshl_add_u32 v184, v185, 3, v184")
    a(f"s_lshl_b32 s64, s{S_WAVE}, 7"); a(f"s_add_u32 s64, s64, {XS0}"); a("v_add_u32 v184, s64, v184")
    a(f"s_mul_i32 s64, s2, {X8S}"); a(f"s_lshl_b32 s65, s{S_WAVE}, 10"); a("s_add_u32 s64, s64, s65"); a(f"s_add_u32 s64, s64, {WS_XT}")
    a("v_lshl_add_u32 v185, v1, 4, s64")
    a("s_waitcnt lgkmcnt(0)"); a("s_barrier")
    a(f"s_cmp_ge_u32 s{S_WAVE}, 7"); a(f"s_cbranch_scc1 L_xp_notr_{tag}")
    a("ds_read_b64_tr_b16 v[180:181], v184"); a(f"ds_read_b64_tr_b16 v[182:183], v184 offset:{4*912}")
    a("s_waitcnt lgkmcnt(0)")
    a(f"buffer_store_dwordx4 v[180:183], v185, {W}, 0 offen sc1")
    a.label(f"L_xp_notr_{tag}")
    a("v_mov_b32 v190, 0x3f803f80"); a("v_mov_b32 v188, 0"); a("v_mov_b32 v189, 0")
    for j in range(4):
        a(f"v_dot2_f32_bf16 v188, v{196+j}, v190, v188"); a(f"v_dot2_f32_bf16 v189, v{196+j}, v{196+j}, v189")
    for mod in ("quad_perm:[1,0,3,2]", "quad_perm:[2,3,0,1]", "row_half_mirror", "row_mirror"):
        for r in (188, 189): a(f"v_add_f32_dpp v{r}, v{r}, v{r} {mod} row_mask:0xf bank_mask:0xf")
    for sw in ("v_permlane16_swap_b32", "v_permlane32_swap_b32"):
        a("v_mov_b32 v186, v188"); a("v_mov_b32 v187, v189")
        a(f"{sw} v188, v186"); a(f"{sw} v189, v187")
        a("v_add_f32 v188, v188, v186"); a("v_add_f32 v189, v189, v187")
    stats_pack(a, 188, 189, 186, 184)
    a("v_and_b32 v187, 0xffff0000, v186"); a("v_lshlrev_b32 v186, 16, v186"); a("v_rcp_f32 v188, v187")
    a("v_mul_f32_e64 v189, -v186, v188")
    a(f"s_lshl_b32 s64, s2, 6"); a(f"s_lshl_b32 s65, s{S_WAVE}, 3"); a("s_add_u32 s64, s64, s65"); a("v_mov_b32 v187, s64")
    a("s_mov_b64 exec, 1")
    a(f"buffer_store_dwordx2 v[188:189], v187, {W}, 0 offen offset:{WS_GRAN} sc1")
    a("s_mov_b64 exec, -1")
def xg_mid(a, tag):
    a("v_mov_b32 v190, 0x3f803f80"); a("v_mov_b32 v188, 0"); a("v_mov_b32 v189, 0")
    for j in range(4):
        a(f"v_dot2_f32_bf16 v188, v{196+j}, v190, v188"); a(f"v_dot2_f32_bf16 v189, v{196+j}, v{196+j}, v189")
    for mod in ("quad_perm:[1,0,3,2]", "quad_perm:[2,3,0,1]", "row_half_mirror", "row_mirror"):
        for r in (188, 189): a(f"v_add_f32_dpp v{r}, v{r}, v{r} {mod} row_mask:0xf bank_mask:0xf")
    for sw in ("v_permlane16_swap_b32", "v_permlane32_swap_b32"):
        a("v_mov_b32 v186, v188"); a("v_mov_b32 v187, v189")
        a(f"{sw} v188, v186"); a(f"{sw} v189, v187")
        a("v_add_f32 v188, v188, v186"); a("v_add_f32 v189, v189, v187")
    stats_pack(a, 188, 189, 186, 184)
    a(f"v_readfirstlane_b32 s{S_NONCE}, v195")
    a(f"s_cmp_eq_u32 s{S_NONCE}, 0"); a(f"s_cbranch_scc0 L_xg_have_{tag}")
    get_nonce(a, "xg" + tag, 192)
    a.label(f"L_xg_have_{tag}")
    a(f"v_mov_b32 v187, s{S_NONCE}")
    a(f"s_lshl_b32 s64, s2, 6"); a(f"s_lshl_b32 s65, s{S_WAVE}, 3"); a("s_add_u32 s64, s64, s65"); a("v_mov_b32 v188, s64")
    a("s_mov_b64 exec, 1")
    a(f"buffer_store_dwordx2 v[186:187], v188, {W}, 0 offen offset:{WS_GRAN} sc1")
    a("s_mov_b64 exec, -1")
def xp_pub(a, tag):
    a("s_waitcnt vmcnt(0)")
    if "n0" in OPT:
        a(f"s_cmp_eq_u32 s{S_WAVE}, 0"); a(f"s_cbranch_scc0 L_xp_have_{tag}")
    a(f"v_readfirstlane_b32 s{S_NONCE}, v195")
    a(f"s_cmp_eq_u32 s{S_NONCE}, 0"); a(f"s_cbranch_scc0 L_xp_got_{tag}")
    get_nonce(a, "xp" + tag, 194)
    a.label(f"L_xp_got_{tag}")
    if "n0" in OPT:
        a(f"v_mov_b32 v194, s{S_NONCE}"); a(f"v_mov_b32 v195, {XS0 + 8000}"); a("ds_write_b32 v195, v194"); a("s_waitcnt lgkmcnt(0)")
    a.label(f"L_xp_have_{tag}")
    a("s_barrier")
    if "n0" in OPT:
        a(f"v_mov_b32 v195, {XS0 + 8000}"); a("ds_read_b32 v194, v195"); a("s_waitcnt lgkmcnt(0)"); a(f"v_readfirstlane_b32 s{S_NONCE}, v194")
    a(f"s_lshl_b32 s64, s2, {FS()}"); a(f"s_add_u32 s64, s64, {WS_FLAG1}")
    publish_flag(a, 64, 194)

def touch_w13(a):
    a("s_and_b32 s64, s2, 7"); a("s_lshr_b32 s65, s2, 3")
    a("s_and_b32 s66, s64, 1"); a("s_mul_i32 s66, s66, 7"); a("s_lshr_b32 s67, s65, 2"); a("s_add_u32 s66, s66, s67")
    a("s_and_b32 s65, s65, 3")
    a("s_cmp_lt_u32 s65, 2"); a("s_cselect_b32 s76, s20, s22"); a("s_cselect_b32 s77, s21, s23")
    a(f"s_mov_b32 s78, {D*F*2}"); a("s_mov_b32 s79, 0x20000")
    a("s_and_b32 s65, s65, 1"); a("s_mul_i32 s65, s65, 448"); a(f"s_min_u32 s67, s{S_WAVE}, 6"); a("s_lshl_b32 s67, s67, 6"); a("s_add_u32 s65, s65, s67")
    a("v_add_u32 v173, s65, v1")
    a("v_lshrrev_b32 v172, 1, v173"); a("v_mul_u32_u24 v172, 3584, v172"); a("v_and_b32 v173, 1, v173"); a("v_lshl_add_u32 v172, v173, 7, v172")
    a("s_lshl_b32 s66, s66, 8"); a("v_add_u32 v172, s66, v172")
    a("buffer_load_dword v173, v172, s[76:79], 0 offen")

def touch_weights(a, tag):
    a(f"s_cmp_ge_u32 s{S_WAVE}, 3"); a(f"s_cbranch_scc1 L_touch_skip_{tag}")
    a(f"s_lshl_b32 s64, s{S_WAVE}, 1"); a("s_cmp_eq_u32 s64, 0"); a("s_cselect_b32 s76, s20, s22"); a("s_cselect_b32 s77, s21, s23")
    a("s_cmp_eq_u32 s64, 4"); a("s_cselect_b32 s76, s24, s76"); a("s_cselect_b32 s77, s25, s77")
    a(f"s_mov_b32 s78, {D*F*2}"); a("s_mov_b32 s79, 0x20000")
    a("s_mul_i32 s64, s2, 49"); a("v_add_u32 v191, s64, v1"); a("v_lshlrev_b32 v191, 7, v191")
    a("v_cmp_gt_u32 vcc, 49, v1"); a("s_and_saveexec_b64 s[66:67], vcc")
    a("buffer_load_dword v192, v191, s[76:79], 0 offen")
    a("s_mov_b64 exec, s[66:67]")
    a.label(f"L_touch_skip_{tag}")

def poll_issue(a, tag, base_sgpr, count, per_lane, vt):
    sh = FS() if count == 256 else 6
    a(f"s_cmp_eq_u32 s{S_WAVE}, 0"); a(f"s_cbranch_scc0 L_pi_{tag}")
    a(f"v_lshlrev_b32 v{vt}, {sh}, v1"); a(f"v_add_u32 v{vt}, s{base_sgpr}, v{vt}")
    if count < 64:
        a(f"v_min_u32 v{vt+1}, {count-1}, v1"); a(f"v_lshlrev_b32 v{vt}, 6, v{vt+1}"); a(f"v_add_u32 v{vt}, s{base_sgpr}, v{vt}")
    for i in range(per_lane):
        if i == 0: a(f"buffer_load_dword v{vt+1}, v{vt}, {W}, 0 offen sc1")
        else:
            a(f"s_mov_b32 s67, {(64 << sh)*i}"); a(f"buffer_load_dword v{vt+1+i}, v{vt}, {W}, s67 offen sc1")
    a.label(f"L_pi_{tag}")
def poll_check(a, tag, per_lane, vt, sleep=0):
    sh = FS() if per_lane == 4 else 6
    a(f"s_cmp_eq_u32 s{S_WAVE}, 0"); a(f"s_cbranch_scc0 L_pc_{tag}_bar")
    a("s_mov_b32 s66, 0")
    a.label(f"L_pc_{tag}")
    a(f"v_xor_b32 v{vt+1}, s{S_NONCE}, v{vt+1}")
    for i in range(1, per_lane):
        a(f"v_xor_b32 v{vt+1+i}, s{S_NONCE}, v{vt+1+i}"); a(f"v_or_b32 v{vt+1}, v{vt+1}, v{vt+1+i}")
    a(f"v_cmp_ne_u32 vcc, 0, v{vt+1}")
    a(f"s_cbranch_vccz L_pc_{tag}_bar")
    a("s_add_u32 s66, s66, 1"); a(f"s_cmp_gt_u32 s66, {SPIN_MAX}"); a(f"s_cbranch_scc1 L_pc_{tag}_bar")
    if "mask" in OPT:
        for i in range(per_lane): a(f"v_mov_b32 v{vt+1+i}, s{S_NONCE}")
        a("s_mov_b64 exec, vcc")
    for i in range(per_lane):
        if i == 0: a(f"buffer_load_dword v{vt+1}, v{vt}, {W}, 0 offen sc1")
        else:
            a(f"s_mov_b32 s67, {(64 << sh)*i}"); a(f"buffer_load_dword v{vt+1+i}, v{vt}, {W}, s67 offen sc1")
    if "mask" in OPT: a("s_mov_b64 exec, -1")
    a("s_waitcnt vmcnt(0)")
    if sleep: a(f"s_sleep {sleep}")
    a(f"s_branch L_pc_{tag}")
    a.label(f"L_pc_{tag}_bar")
    a("s_barrier")

def tlb_touch(a):
    a("v_and_b32 v175, 31, v1"); a("v_lshlrev_b32 v175, 19, v175")
    a(f"buffer_load_dword v176, v175, {W}, 0 offen")
    srd(a, 76, 26, L * D * 2)
    a("buffer_load_dword v174, v175, s[76:79], 0 offen")

def code_prefetch(a, vt=177, sreg=64):
    a(f"s_getpc_b64 s[{sreg}:{sreg+1}]")
    lab = f"L_pc_{len(a.lines)}"
    a.label(lab)
    a(f"s_sub_u32 s{sreg}, s{sreg}, {lab}-KERNEL_START"); a(f"s_subb_u32 s{sreg+1}, s{sreg+1}, 0")
    a(f"v_lshrrev_b32 v{vt+1}, 1, v0"); a(f"v_lshlrev_b32 v{vt+1}, 7, v{vt+1}")
    a(f"v_min_u32 v{vt+1}, KERNEL_END-KERNEL_START-4, v{vt+1}")
    a(f"global_load_dword v{vt}, v{vt+1}, s[{sreg}:{sreg+1}]")

def helper(a):
    a("s_sub_u32 s70, s2, 224")
    xp_issue(a)
    if "pfh" in OPT: code_prefetch(a)
    if "G" in OPT:
        a("s_waitcnt vmcnt(0)")
        xg_mid(a, "h")
    else:
        a(f"s_waitcnt vmcnt({2 if 'pfh' in OPT else 1})")
        xp_mid(a, "h")
        xp_pub(a, "h")
    if "htouch" in OPT:
        a("s_mul_i32 s64, s70, 392"); a("v_min_u32 v170, 391, v0"); a("v_add_u32 v170, s64, v170"); a("v_lshlrev_b32 v170, 7, v170")
        for i, ptr in enumerate((20, 22, 24)):
            srd(a, 76, ptr, D * F * 2)
            a(f"buffer_load_dword v{171+i}, v170, s[76:79], 0 offen")
    elif "notouch" not in OPT: touch_weights(a, "h")
    stamp(a, 1)
    a("s_cmp_lt_u32 s70, 16")
    a("s_cselect_b32 s36, s20, s22"); a("s_cselect_b32 s37, s21, s23")
    a(f"s_mov_b32 s38, {D*F*2}"); a("s_mov_b32 s39, 0x20000")
    a("s_and_b32 s64, s70, 15"); a("s_mul_i32 s64, s64, 224")
    a("v_lshrrev_b32 v2, 4, v1"); a("v_and_b32 v3, 15, v1")
    a(f"s_mul_i32 s65, s{S_WAVE}, 56"); a("v_add_u32 v4, s65, v2")
    a("s_movk_i32 s65, 3584"); a("v_mul_lo_u32 v4, v4, s65"); a("v_lshl_add_u32 v4, v3, 4, v4"); a("v_add_u32 v4, s64, v4")
    for i in range(14):
        a(f"s_mov_b32 s67, {4*3584*i}")
        a(f"buffer_load_dwordx4 v[{8+4*i}:{11+4*i}], v4, s[36:39], s67 offen")
    for e in range(8): a(f"v_mov_b32 v{72+e}, 0")
    for i in range(14):
        a(f"s_waitcnt vmcnt({13-i})")
        for j in range(4):
            r = 8 + 4 * i + j
            a(f"v_lshlrev_b32 v80, 16, v{r}"); a(f"v_and_b32 v81, 0xffff0000, v{r}")
            a(f"v_add_f32 v{72+2*j}, v{72+2*j}, v80"); a(f"v_add_f32 v{73+2*j}, v{73+2*j}, v81")
    a(f"s_lshl_b32 s65, s{S_WAVE}, 2"); a("v_add_u32 v5, s65, v2"); a("v_lshlrev_b32 v5, 9, v5"); a("v_lshl_add_u32 v5, v3, 5, v5")
    a("ds_write_b128 v5, v[72:75]"); a("ds_write_b128 v5, v[76:79] offset:16")
    a("s_waitcnt lgkmcnt(0)"); a("s_barrier")
    a("v_lshlrev_b32 v5, 2, v0")
    a("v_cmp_gt_u32 vcc, 112, v0"); a("s_and_saveexec_b64 s[64:65], vcc"); a("s_cbranch_execz L_h_cs_done")
    for k in range(32): a(f"ds_read_b32 v{8+k}, v5 offset:{512*k}")
    a("s_waitcnt lgkmcnt(0)")
    for k in range(1, 32): a(f"v_add_f32 v8, v8, v{8+k}")
    a("s_mul_i32 s66, s70, 448"); a(f"s_add_u32 s66, s66, {WS_CS}"); a("v_add_u32 v5, s66, v5")
    a(f"buffer_store_dword v8, v5, {W}, 0 offen sc1")
    a.label("L_h_cs_done")
    a("s_mov_b64 exec, s[64:65]")
    a("s_waitcnt vmcnt(0)"); a("s_barrier")
    a(f"s_lshl_b32 s64, s2, {FS()}"); a(f"s_add_u32 s64, s64, {WS_FLAG2}")
    publish_flag(a, 64)
    a(f"s_mov_b32 s64, {WS_FLAG2}")
    wait_flags(a, "hs2", 64, 256, 4)
    a("v_and_b32 v2, 31, v1"); a("v_lshrrev_b32 v3, 5, v1"); a(f"s_lshl_b32 s64, s{S_WAVE}, 1"); a("v_add_u32 v3, s64, v3")
    a(f"v_mul_u32_u24 v3, {HTS}, v3"); a("v_lshl_add_u32 v3, v2, 2, v3"); a("s_lshl_b32 s64, s70, 7"); a(f"s_add_u32 s64, s64, {WS_HT}"); a("v_add_u32 v3, s64, v3")
    for i in range(28):
        a(f"s_mov_b32 s67, {16*HTS*i}"); a(f"buffer_load_dword v{40+i}, v3, {W}, s67 offen")
    for r in range(4): a(f"v_mov_b32 v{8+r}, 0")
    for i in range(28):
        a(f"s_waitcnt vmcnt({27-i})")
        a(f"v_lshlrev_b32 v12, 16, v{40+i}"); a(f"v_and_b32 v13, 0xffff0000, v{40+i}")
        a("v_add_f32 v8, v8, v12"); a("v_add_f32 v9, v9, v13"); a("v_fma_f32 v10, v12, v12, v10"); a("v_fma_f32 v11, v13, v13, v11")
    for r in range(8, 12):
        a(f"v_mov_b32 v12, v{r}"); a(f"v_permlane32_swap_b32 v{r}, v12"); a(f"v_add_f32 v{r}, v{r}, v12")
    a(f"s_lshl_b32 s64, s{S_WAVE}, 9"); a("v_lshl_add_u32 v4, v2, 4, s64")
    a("ds_write_b128 v4, v[8:11]")
    a("s_waitcnt lgkmcnt(0)"); a("s_barrier")
    a("v_cmp_gt_u32 vcc, 64, v0"); a("s_and_saveexec_b64 s[64:65], vcc"); a("s_cbranch_execz L_h_g2_done")
    a("v_lshrrev_b32 v4, 1, v0"); a("v_lshlrev_b32 v4, 4, v4"); a("v_and_b32 v5, 1, v0"); a("v_lshl_add_u32 v4, v5, 2, v4")
    for k in range(8):
        a(f"ds_read_b32 v{16+k}, v4 offset:{512*k}"); a(f"ds_read_b32 v{24+k}, v4 offset:{512*k+8}")
    a("s_waitcnt lgkmcnt(0)")
    for k in range(1, 8):
        a(f"v_add_f32 v16, v16, v{16+k}"); a(f"v_add_f32 v24, v24, v{24+k}")
    stats_pack(a, 16, 24, 32, 34)
    a("v_and_b32 v33, 0xffff0000, v32"); a("v_lshlrev_b32 v32, 16, v32"); a("v_rcp_f32 v33, v33")
    a("s_lshl_b32 s66, s70, 9"); a(f"s_add_u32 s66, s66, {WS_G2}"); a("v_lshl_add_u32 v4, v0, 3, s66")
    a(f"buffer_store_dwordx2 v[32:33], v4, {W}, 0 offen sc1")
    a.label("L_h_g2_done")
    a("s_mov_b64 exec, s[64:65]")
    a("s_waitcnt vmcnt(0)"); a("s_barrier")
    a("s_lshl_b32 s64, s70, 6"); a(f"s_add_u32 s64, s64, {WS_FLAG3}")
    publish_flag(a, 64)
    stamp(a, 2)

def st2(a, i):
    if "convdiag" not in OPT: stamp(a, i)
def st3(a, i):
    if "convdiag" in OPT: stamp(a, i)
def phaseA(a, hooks):
    XPK = next((int(o[3:]) for o in OPT if o.startswith("xpk")), 8)
    TK = next((int(o[2:]) for o in OPT if o.startswith("tk")), 9)
    a(f"s_lshr_b32 s34, s{S_WAVE}, 2"); a(f"s_and_b32 s35, s{S_WAVE}, 3")
    xp_issue(a)
    srd(a, 40, 6, D * N * 2); srd(a, 44, 8, D * N * 2); srd(a, 48, 10, D * N * 2); srd(a, 52, 12, D * N * 2)
    a("s_and_b32 s64, s2, 7"); a("s_mul_i32 s64, s64, 28"); a("s_lshr_b32 s65, s2, 3"); a("s_add_u32 s75, s64, s65")
    a("s_lshl_b32 s64, s75, 2")
    a("s_load_dword s68, s[14:15], s64"); a("s_load_dword s69, s[16:17], s64")
    a("s_lshl_b32 s70, s75, 1"); a("s_add_u32 s70, s70, s34")
    a("s_lshl_b32 s65, s70, 9"); a("s_lshl_b32 s66, s35, 7"); a("s_add_u32 s65, s65, s66")
    a("v_lshl_add_u32 v3, v1, 1, s65")
    a("buffer_load_ushort v10, v3, s[40:43], 0 offen"); a("buffer_load_ushort v11, v3, s[44:47], 0 offen")
    a("buffer_load_ushort v12, v3, s[48:51], 0 offen"); a("buffer_load_ushort v13, v3, s[52:55], 0 offen")
    if "nopf" not in OPT and "pf0" not in OPT and "pfh" not in OPT: code_prefetch(a)
    if "tlb" in OPT: tlb_touch(a)
    if "tearly" in OPT: touch_weights(a, "m")
    if "G" in OPT:
        a("v_mul_u32_u24 v179, 896, v1"); a("s_lshl_b32 s65, s75, 2"); a("v_add_u32 v179, s65, v179")
        GW = next((int(o[2:]) for o in OPT if o.startswith("gw")), 1)
        for i in range(GW):
            a(f"s_mul_i32 s65, s{S_WAVE}, {GW}"); a(f"s_add_u32 s65, s65, {i}"); a("s_lshl_b32 s66, s65, 8"); a(f"s_add_u32 m0, s66, {RED0}")
            a(f"s_mul_i32 s67, s65, {64*896}"); a("buffer_load_dword v179, s[36:39], s67 offen lds")
        a(f"s_cmp_eq_u32 s{S_WAVE}, 7"); a("s_cbranch_scc0 L_g_skip")
        for i in range(8 * GW, 32):
            a(f"s_mov_b32 m0, {RED0 + 256*i}"); a(f"s_mov_b32 s67, {64*896*i}")
            a("buffer_load_dword v179, s[36:39], s67 offen lds")
        a.label("L_g_skip")
    a("v_lshlrev_b32 v7, 4, v0"); a(f"v_add_u32 v7, {SB}, v7")
    a("v_mov_b32 v20, 0\nv_mov_b32 v21, 0\nv_mov_b32 v22, 0\nv_mov_b32 v23, 0")
    a("v_cmp_gt_u32 vcc, 30, v0"); a("s_and_saveexec_b64 s[66:67], vcc")
    a(f"ds_write_b128 v7, v[20:23] offset:{UA0-SB}"); a(f"ds_write_b128 v7, v[20:23] offset:{UA0-SB+UA_CH}")
    a("s_mov_b64 exec, s[66:67]")
    a("v_and_b32 v8, 255, v0"); a("v_lshlrev_b32 v9, 3, v8"); a("v_sub_u32 v9, 2047, v9")
    for e in range(11): a(f"v_subrev_u32 v{30+e}, {e}, v9")
    for e in range(0, 12, 2):
        a(f"v_cvt_f32_i32 v{44+e}, v{30+e}")
        if e + 1 < 11: a(f"v_cvt_f32_i32 v{45+e}, v{31+e}")
        a(f"v_cvt_pk_bf16_f32 v{58+e//2}, v{44+e}, v{45+e if e+1 < 11 else 44+e}")
    for e in range(11):
        p = 58 + e // 2; r = 226 + e
        a(f"v_and_b32 v{r}, 0xffff, v{p}" if e % 2 == 0 else f"v_lshrrev_b32 v{r}, 16, v{p}")
        a(f"v_subrev_u32 v{r}, 17024, v{r}"); a(f"v_min_i32 v{30+e}, 128, v{30+e}"); a(f"v_max_i32 v{r}, v{r}, v{30+e}")
    a("v_mov_b32 v64, 641")
    for e in range(8, 11):
        a(f"v_cmp_gt_i32 vcc, {e}, v9"); a(f"v_cndmask_b32 v{226+e}, v{226+e}, v64, vcc")
    a(f"s_mul_i32 s66, s34, {TB_CH}"); a(f"s_add_u32 s72, s66, {TB0}")
    a("v_mov_b32 v65, s72")
    for e in range(11): a(f"v_lshl_add_u32 v{226+e}, v{226+e}, 1, v65")
    a(f"s_mul_i32 s66, s34, {KC_CH}"); a("s_add_u32 s66, s66, 32"); a("v_lshl_add_u32 v237, v8, 4, s66")
    a("v_and_b32 v9, 15, v1"); a("v_lshrrev_b32 v8, 4, v1")
    a(f"s_and_b32 s73, s{S_WAVE}, 1"); a(f"s_bfe_u32 s74, s{S_WAVE}, 0x10001")
    a("s_lshl_b32 s65, s73, 4"); a("v_add_u32 v30, s65, v9")
    a("v_lshlrev_b32 v31, 4, v30"); a("v_lshl_add_u32 v31, v8, 3, v31")
    a("v_lshlrev_b32 v32, 3, v30"); a("v_add_u32 v32, 512, v32")
    a("v_cmp_eq_u32 vcc, 2, v8"); a("v_cndmask_b32 v31, v31, v32, vcc")
    a("v_lshlrev_b32 v32, 2, v30"); a("v_add_u32 v32, 768, v32")
    a("v_add_u32 v33, 4, v31"); a("v_add_u32 v34, 128, v32")
    a("v_cmp_eq_u32 vcc, 3, v8"); a("v_cndmask_b32 v31, v31, v32, vcc"); a("v_cndmask_b32 v33, v33, v34, vcc")
    a("v_lshlrev_b32 v32, 1, v30"); a("v_add_u32 v32, 1024, v32"); a("v_mov_b32 v34, 1288")
    a("v_cmp_eq_u32 vcc, 0, v8")
    for r in range(4):
        a(f"v_add_u32 v35, {64*r}, v32"); a(f"v_cndmask_b32 v{238+r}, v34, v35, vcc")
    a("v_lshl_add_u32 v35, v8, 8, v30"); a("v_mov_b32 v36, 1280")
    a("v_cmp_eq_u32 vcc, 0x100, v35"); a("v_cndmask_b32 v238, v238, v36, vcc")
    a("s_cmp_eq_u32 s74, 0"); a("s_cbranch_scc0 L_tb_rt1")
    a("v_mov_b32 v238, v31"); a("v_mov_b32 v239, v33")
    a.label("L_tb_rt1")
    for r in range(4): a(f"v_add_u32 v{238+r}, s72, v{238+r}")
    a("v_mov_b32 v36, s72"); a("ds_write_b16 v36, v20 offset:1282")
    a(f"s_movk_i32 s65, {OPS}"); a("v_mul_lo_u32 v248, v9, s65"); a("v_lshl_add_u32 v248, v8, 4, v248")
    a(f"s_mul_i32 s66, s34, {OP_CH}"); a("v_add_u32 v248, s66, v248")
    a(f"s_mul_i32 s67, s73, {16*OPS}"); a(f"s_add_u32 s67, s67, {21*OPS}"); a("v_add_u32 v249, s67, v248")
    a(f"s_mul_i32 s67, s74, {16*OPS}"); a("v_add_u32 v248, s67, v248")
    a("v_sub_u32 v30, 3, v9"); a("v_and_b32 v30, 3, v30")
    a(f"s_movk_i32 s65, {KC_CP}"); a("v_mul_lo_u32 v31, v30, s65")
    a("v_lshlrev_b32 v32, 3, v8"); a("v_sub_u32 v32, v32, v9"); a("v_sub_u32 v32, v32, v30"); a("v_add_u32 v32, 2047, v32")
    a("v_lshl_add_u32 v31, v32, 1, v31")
    a(f"s_mul_i32 s66, s34, {KC_CH}"); a(f"s_sub_u32 s66, s66, {64*63}"); a("v_add_u32 v244, s66, v31")
    a(f"s_mul_i32 s66, s34, {UA_CH}"); a(f"s_add_u32 s66, s66, {UA0}")
    a("v_lshlrev_b32 v31, 5, v9"); a("v_lshl_add_u32 v31, v8, 4, v31"); a("v_add_u32 v245, s66, v31")
    a(f"s_mul_i32 s66, s34, {RA_CH}"); a(f"s_add_u32 s66, s66, {RA0}")
    a("v_lshlrev_b32 v31, 6, v9"); a("v_lshl_add_u32 v31, v8, 4, v31"); a("v_add_u32 v246, s66, v31")
    a(f"s_mul_i32 s66, s70, {HTS}"); a(f"s_add_u32 s66, s66, {WS_HT}")
    a("v_lshlrev_b32 v31, 5, v9"); a("v_lshl_add_u32 v31, v8, 3, v31"); a("v_add_u32 v247, s66, v31")
    a(f"s_mul_i32 s71, s34, {OP_CH}"); a("s_lshl_b32 s66, s35, 8"); a("s_add_u32 s71, s71, s66")
    if "prioA" in OPT:
        a(f"s_cmp_ge_u32 s{S_WAVE}, 4"); a("s_cbranch_scc0 L_prioA"); a("s_setprio 1"); a.label("L_prioA")
    a("s_waitcnt lgkmcnt(0)")
    a("s_lshl_b32 s65, s34, 4"); a("s_lshr_b32 s66, s68, s65"); a("s_lshl_b32 s66, s66, 16")
    a(f"v_mov_b32 v14, {LOG2E:#x}"); a("v_mul_f32 v15, s66, v14"); a("v_exp_f32 v15, v15")
    a("v_cvt_pk_bf16_f32 v15, v15, v15"); a("v_lshlrev_b32 v15, 16, v15")
    a("s_mov_b32 m0, s71")
    st2(a, 1)
    if "G" in OPT:
        GW = next((int(o[2:]) for o in OPT if o.startswith("gw")), 1)
        a(f"s_cmp_eq_u32 s{S_WAVE}, 7"); a("s_cbranch_scc1 L_g_w7")
        a(f"s_waitcnt vmcnt({GW})"); a("s_branch L_g_wd")
        a.label("L_g_w7"); a(f"s_waitcnt vmcnt({32 - 7*GW})")
        a.label("L_g_wd")
        xg_mid(a, "m")
    else:
        npf = (0 if ("nopf" in OPT or "pf0" in OPT or "pfh" in OPT) else 1) + (2 if "tlb" in OPT else 0)
        a(f"s_waitcnt vmcnt({5+npf})")
        xp_mid(a, "m")
        a(f"s_waitcnt vmcnt({1+npf})")
    a("s_mov_b32 m0, s71")
    st2(a, 2)
    a("v_lshlrev_b32 v16, 16, v10"); a("v_lshlrev_b32 v24, 16, v11"); a("v_mul_f32 v16, v14, v16"); a("v_mul_f32 v24, v24, v15")
    a("v_exp_f32 v16, v16"); a(f"v_mul_f32 v24, {INV2PI:#x}, v24")
    a("v_lshlrev_b32 v30, 16, v12"); a("v_lshlrev_b32 v31, 16, v13")
    a("v_cvt_pk_bf16_f32 v16, v16, v16"); a("v_add_f32 v26, v15, v15")
    a("v_lshlrev_b32 v18, 16, v16")
    a("v_mul_f32 v30, v30, v26"); a("v_mul_f32_e64 v31, -v31, v26")
    a("v_mul_f32 v18, v18, v15"); a("v_mul_f32_e64 v18, -v18, v14")
    P, Q = 18, 24
    X, Xb = 30, 34
    Z = {1: 40, 8: 44, 256: 48, 2: 52, 4: 56}
    for k, t in enumerate((8, 1, 256)):
        tm = 60 + 2 * k
        if t == 1:
            a(f"v_exp_f32 v{tm}, v{P}"); a(f"v_fract_f32 v{tm+1}, v{Q}")
        else:
            c = {8: 0x41000000, 256: 0x43800000}[t]
            a(f"v_mul_f32 v{tm}, {c:#x}, v{P}"); a(f"v_mul_f32 v{tm+1}, {c:#x}, v{Q}")
            a(f"v_exp_f32 v{tm}, v{tm}"); a(f"v_fract_f32 v{tm+1}, v{tm+1}")
    for k, t in enumerate((8, 1, 256)):
        tm = 60 + 2 * k; z = Z[t]
        a(f"v_cos_f32 v{z}, v{tm+1}"); a(f"v_sin_f32 v{z+1}, v{tm+1}")
    for k, t in enumerate((8, 1, 256)):
        tm = 60 + 2 * k; z = Z[t]
        a(f"v_mul_f32 v{z}, v{z}, v{tm}"); a(f"v_mul_f32 v{z+1}, v{z+1}, v{tm}")
    T, T2 = 72, 76
    pk = [80, 81, 82, 83, 84, 85]; pki = [0]
    def put(row, src):
        r = pk[pki[0] % 6]; pki[0] += 1
        a(f"v_cvt_pk_bf16_f32 v{r}, v{src}, v{src+1}")
        a(f"ds_write_addtid_b32 v{r} offset:{row*OPS}")
    Y, X256, X512, X768, XW = 88, 92, 96, 100, 104
    put(0, X); put(22, Z[8])
    a("v_mov_b32 v108, 0x3f80"); a(f"ds_write_addtid_b32 v108 offset:{21*OPS}")
    a(cmul1(0, Z[1], Z[1], T)); a(cmul2(Z[2], Z[1], Z[1], T, False))
    a(cmul1(0, Z[2], Z[2], T)); a(cmul2(Z[4], Z[2], Z[2], T, False))
    xs = [(c, Xb, X if c == 1 else Xb, Z[1]) for c in range(1, 8)]
    xs += [(8, X256, X, Z[256]), (9, XW, X256, Z[2]), (10, XW, XW, Z[2]), (11, XW, XW, Z[2]), (12, X512, X256, Z[256]),
           (13, XW, X512, Z[4]), (14, X768, X512, Z[256]), (15, XW, X768, Z[4]), (16, XW, X768, Z[256])]
    for r in range(17, 21): xs.append((r, XW, XW, Z[256]))
    def s1_issue():
        a(f"buffer_load_dword v223, v3, {W}, 0 offen sc1")
    for k, b in enumerate(range(2, 32)):
        src = Z[8] if b == 2 else Y
        x = xs[k] if k < len(xs) else None
        a(cmul1(0, src, Z[8], T))
        if x: a(cmul1(0, x[2], x[3], T2))
        a(cmul2(Y, src, Z[8], T, False))
        if x: a(cmul2(x[1], x[2], x[3], T2, True))
        put(21 + b, Y)
        if x: put(x[0], x[1])
        if k == XPK and "G" not in OPT:
            xp_pub(a, "m")
        L2K = next((int(o[3:]) for o in OPT if o.startswith("l2k")), -1)
        if k == L2K: touch_w13(a)
        L2C = next((int(o[3:]) for o in OPT if o.startswith("l2c")), -1)
        if k == L2C:
            srd(a, 76, 24, F * D * 2)
            a("s_lshr_b32 s64, s2, 3"); a("s_mul_i32 s64, s64, 448"); a(f"s_min_u32 s65, s{S_WAVE}, 6"); a("s_lshl_b32 s65, s65, 6"); a("s_add_u32 s64, s64, s65")
            a("v_add_u32 v171, s64, v1"); a("v_lshlrev_b32 v171, 7, v171")
            a("buffer_load_dword v170, v171, s[76:79], 0 offen")
        if k == TK and "notouch" not in OPT and "htouch" not in OPT:
            touch_weights(a, "m")
    st2(a, 3)
    a("s_waitcnt lgkmcnt(0)"); a("s_barrier")
    st2(a, 4)
    if "G" in OPT:
        a("v_and_b32 v221, 255, v0"); a("v_lshlrev_b32 v221, 6, v221")
        def g_issue():
            for i in range(4): a(f"buffer_load_dwordx4 v[{204+4*i}:{207+4*i}], v221, {W}, 0 offen offset:{WS_GRAN+16*i} sc1")
        g_issue()
    else:
        a("v_and_b32 v3, 255, v0"); a(f"v_lshlrev_b32 v3, {FS()}, v3"); a(f"v_add_u32 v3, {WS_FLAG1}, v3")
        s1_issue()
    for r in range(4): a(f"v_mov_b32 v{16+r}, 0")
    NR = 6
    def rd(s):
        b = 32 + 8 * (s % NR)
        a(f"ds_read_b128 v[{b}:{b+3}], v248 offset:{64*s}"); a(f"ds_read_b128 v[{b+4}:{b+7}], v249 offset:{64*s}")
    for s in range(NR - 1): rd(s)
    for s in range(16):
        if s + NR - 1 < 16: rd(s + NR - 1)
        a(f"s_waitcnt lgkmcnt({2*min(15-s, NR-1)})")
        b = 32 + 8 * (s % NR)
        a(f"v_mfma_f32_16x16x32_bf16 v[16:19], v[{b}:{b+3}], v[{b+4}:{b+7}], v[16:19]")
        if s == 9 and "G" not in OPT:
            a("s_mov_b32 s66, 0")
            a.label("L_s1_chk")
            a("s_waitcnt vmcnt(0)")
            a(f"v_cmp_ne_u32 vcc, s{S_NONCE}, v223")
            a("s_cbranch_vccz L_s1_ok")
            a("s_add_u32 s66, s66, 1"); a(f"s_cmp_gt_u32 s66, {SPIN_MAX}"); a("s_cbranch_scc1 L_s1_ok")
            if "mask" in OPT: a("s_mov_b64 exec, vcc")
            s1_issue()
            if "mask" in OPT: a("s_mov_b64 exec, -1")
            a("s_branch L_s1_chk")
            a.label("L_s1_ok")
            a("v_and_b32 v8, 255, v0")
            a(f"v_mul_u32_u24 v3, {X8S}, v8"); a("s_lshl_b32 s66, s70, 4"); a(f"s_add_u32 s66, s66, {WS_XT}"); a("v_add_u32 v3, s66, v3")
            a(f"buffer_load_dwordx4 v[200:203], v3, {W}, 0 offen")
            a(f"s_cmp_lt_u32 s{S_WAVE}, 4"); a("s_cbranch_scc0 L_s1_nost")
            a(f"s_lshl_b32 s66, s{S_WAVE}, 12"); a("v_lshl_add_u32 v3, v1, 4, s66")
            for i in range(4):
                a(f"s_add_u32 m0, s66, {RED0}"); a(f"buffer_load_dwordx4 v3, {W}, 0 offen offset:{1024*i} lds")
            a.label("L_s1_nost")
    a("v_cvt_pk_bf16_f32 v16, v16, v17"); a("v_cvt_pk_bf16_f32 v17, v18, v19")
    a("s_cmp_eq_u32 s74, 0"); a("s_cbranch_scc0 L_tw_rt1")
    a("ds_write_b32 v238, v16"); a("ds_write_b32 v239, v17"); a("s_branch L_tw_done")
    a.label("L_tw_rt1")
    a("ds_write_b16 v238, v16"); a("ds_write_b16_d16_hi v239, v16"); a("ds_write_b16 v240, v17"); a("ds_write_b16_d16_hi v241, v17")
    a.label("L_tw_done")
    a("s_waitcnt lgkmcnt(0)"); a("s_barrier")
    stamp(a, 5)
    hooks["setup"](a)
    stamp(a, 6)
    for e in range(11): a(f"ds_read_u16 v{70+e}, v{226+e}")
    a("v_mov_b32 v20, 0\nv_mov_b32 v21, 0\nv_mov_b32 v22, 0\nv_mov_b32 v23, 0")
    a("v_lshrrev_b32 v16, 1, v0"); a(f"s_movk_i32 s65, {KC_CP}"); a("v_mul_lo_u32 v16, v16, s65")
    a("v_and_b32 v17, 1, v0"); a("v_lshl_add_u32 v16, v17, 4, v16")
    a("s_waitcnt lgkmcnt(0)")
    for c in range(4):
        o = 110 + 4 * c
        for k in range(4):
            lo = 70 + c + 2 * k
            a(f"v_lshl_or_b32 v{o+k}, v{lo+1}, 16, v{lo}")
        a(f"ds_write_b128 v237, v[{o}:{o+3}] offset:{KC_CP*c}")
    a("v_cmp_gt_u32 vcc, 16, v0"); a("s_and_saveexec_b64 s[66:67], vcc")
    a("ds_write_b128 v16, v[20:23] offset:4128"); a("s_mov_b64 exec, s[66:67]")
    if "two" in OPT:
        for k in range(9): hooks["dma"](a, k, 5 + k)
    stamp(a, 7)
    a("s_lshl_b32 s65, s34, 4"); a("s_lshr_b32 s64, s69, s65"); a("s_lshl_b32 s64, s64, 16")
    if "G" in OPT:
        a("s_mov_b32 s66, 0")
        a.label("L_s1_chk")
        a("s_waitcnt vmcnt(0)")
        a(f"v_xor_b32 v16, s{S_NONCE}, v205")
        for i in range(1, 8):
            a(f"v_xor_b32 v17, s{S_NONCE}, v{205+2*i}"); a("v_or_b32 v16, v16, v17")
        a("v_cmp_ne_u32 vcc, 0, v16"); a("s_cbranch_vccz L_s1_ok")
        a("s_add_u32 s66, s66, 1"); a(f"s_cmp_gt_u32 s66, {SPIN_MAX}"); a("s_cbranch_scc1 L_s1_ok")
        g_issue()
        a("s_branch L_s1_chk")
        a.label("L_s1_ok")
        a("s_barrier")
        a("v_and_b32 v8, 255, v0"); a(f"v_lshlrev_b32 v9, 5, v8"); a(f"v_add_u32 v9, {RED0}, v9")
        a("ds_read_b128 v[192:195], v9"); a("ds_read_b128 v[196:199], v9 offset:16")
        a("s_xor_b32 s65, s34, 1"); a("s_lshl_b32 s65, s65, 4")
        for i in range(8):
            st = 204 + 2 * i
            a(f"v_and_b32 v{60+i}, 0xffff0000, v{st}"); a(f"v_rcp_f32 v{60+i}, v{60+i}"); a(f"v_lshlrev_b32 v{68+i}, 16, v{st}")
        a("s_waitcnt lgkmcnt(0)")
        for i in range(8):
            a(f"v_lshlrev_b32 v{30+i}, s65, v{192+i}"); a(f"v_and_b32 v{30+i}, 0xffff0000, v{30+i}")
            a(f"v_sub_f32 v{40+i}, v{30+i}, v{68+i}"); a(f"v_mul_f32 v{40+i}, v{40+i}, v{60+i}")
            a(f"v_fma_f32 v{48+i}, v{40+i}, s64, v{30+i}")
    else:
        a("s_waitcnt vmcnt(9)" if "two" in OPT else "s_waitcnt vmcnt(0)"); a("s_barrier")
        a("v_and_b32 v8, 255, v0"); a(f"v_lshlrev_b32 v9, 6, v8"); a(f"v_add_u32 v9, {RED0}, v9")
        for i in range(4): a(f"ds_read_b128 v[{204+4*i}:{207+4*i}], v9 offset:{16*i}")
        a("s_waitcnt lgkmcnt(0)")
        for i in range(8):
            x = 200 + i // 2; st = 204 + 2 * i
            a(f"v_lshlrev_b32 v{30+i}, 16, v{x}" if i % 2 == 0 else f"v_and_b32 v{30+i}, 0xffff0000, v{x}")
            a(f"v_fma_f32 v{40+i}, v{30+i}, v{st}, v{st+1}")
            a(f"v_fma_f32 v{48+i}, v{40+i}, s64, v{30+i}")
    for k in range(4): a(f"v_cvt_pk_bf16_f32 v{56+k}, v{40+2*k}, v{41+2*k}")
    a("v_and_b32 v8, 255, v0")
    a(f"s_mul_i32 s66, s34, {UA_CH}"); a(f"s_add_u32 s66, s66, {UA0+480}"); a("v_lshl_add_u32 v9, v8, 4, s66")
    a("ds_write_b128 v9, v[56:59]")
    a(f"s_mul_i32 s66, s34, {RA_CH}"); a(f"s_add_u32 s66, s66, {RA0}"); a("v_lshl_add_u32 v9, v8, 5, s66")
    a("ds_write_b128 v9, v[48:51]"); a("ds_write_b128 v9, v[52:55] offset:16")
    a("s_waitcnt vmcnt(0) lgkmcnt(0)"); a("s_barrier")
    stamp(a, 8)
    if "two" in OPT: hooks["tr1"](a)
    for v in range(3):
        a(f"s_cmp_eq_u32 s35, {v}"); a(f"s_cbranch_scc1 L_conv{v}")
    a("s_branch L_conv3")
    for v in range(4):
        a.label(f"L_conv{v}")
        conv(a, v, hooks["dma"])
        if v < 3: a("s_branch L_conv_done")
    a.label("L_conv_done")
    stamp(a, 9)
    a("s_waitcnt vmcnt(0)")
    stamp(a, 10)
    a("s_barrier")
    a(f"s_lshl_b32 s64, s2, {FS()}"); a(f"s_add_u32 s64, s64, {WS_FLAG2}")
    publish_flag(a, 64)
    stamp(a, 11)

def conv(a, p, dma):
    S = [s for s in range(64) if s % 4 == p]
    steps = {s: [(t, 8 * t - s) for t in range(7, -1, -1) if s <= 8 * t + 7] for s in S}
    betas = sorted({b for s in S for t, b in steps[s]}, reverse=True)
    assert len(betas) == 16
    breg = {b: 48 + 4 * i for i, b in enumerate(betas)}
    NAR = 4; PFD = 3
    issued = []
    def ldA(k):
        sa = S[k]; r = 112 + 4 * (k % NAR)
        a(f"ds_read_b64 v[{r}:{r+1}], v244 offset:{64*(63-sa)}"); a(f"ds_read_b64 v[{r+2}:{r+3}], v244 offset:{64*(63-sa)+8}")
        issued.extend([("A", k)] * 2)
    first = {}
    for k, s in enumerate(S):
        for t, b in steps[s]: first.setdefault(b, k)
    def ldB(b):
        a(f"ds_read_b128 v[{breg[b]}:{breg[b]+3}], v245 offset:{64*(b+7)}"); issued.append(("B", b))
    a("v_lshlrev_b32 v2, 4, v1")
    for q in range(4):
        if q == p: continue
        src = [x for x in range(4) if x != q].index(p)
        a(f"s_lshl_b32 s64, s34, 2"); a(f"s_add_u32 s64, s64, {q}"); a("s_mul_i32 s64, s64, 6144"); a(f"s_add_u32 s64, s64, {SB + 2048*src}")
        a(f"v_add_u32 v{4+q}, s64, v2")
    sendq = [q for q in range(4) if q != p]
    def send(q):
        sendq.remove(q)
        a(f"ds_write_b128 v{4+q}, v[{16+8*q}:{19+8*q}]"); a(f"ds_write_b128 v{4+q}, v[{20+8*q}:{23+8*q}] offset:1024")
        issued.extend([("W", q)] * 2)
    st3(a, 1)
    ldA(0)
    for t, b in steps[S[0]]: ldB(b)
    ldA(1)
    if p == 0:
        for t in range(8):
            a(f"ds_read_b128 v[{16+4*t}:{19+4*t}], v246 offset:{1024*t}"); issued.append(("R", t))
    else:
        for r in range(32): a(f"v_mov_b32 v{16+r}, 0")
    for b in betas:
        if first[b] >= 1: ldB(b)
    ldA(2)
    for k, s in enumerate(S):
        if k + PFD < len(S): ldA(k + PFD)
        need = max(i for i, x in enumerate(issued) if x == ("A", k))
        for t, b in steps[s]:
            need = max(need, max(i for i, x in enumerate(issued) if x == ("B", b)))
        if k == 0 and p == 0: need = max(need, max(i for i, x in enumerate(issued) if x[0] == "R"))
        n = len(issued) - 1 - need
        a(f"s_waitcnt lgkmcnt({min(n, 15)})")
        if k == 0: st3(a, 2)
        if k == 1: a("s_barrier")
        ra = 112 + 4 * (k % NAR)
        for j, (t, b) in enumerate(steps[s]):
            a(f"v_mfma_f32_16x16x32_bf16 v[{16+4*t}:{19+4*t}], v[{ra}:{ra+3}], v[{breg[b]}:{breg[b]+3}], v[{16+4*t}:{19+4*t}]")
        for q in list(sendq):
            if k >= 3 and S[k - 2] + 4 > 16 * q + 15 and k - 2 >= 0: send(q)
        if "two" in OPT:
            if 2 + p <= k <= 10 + p: dma(a, 9 + k - 2 - p, 5 + k - 2 - p)
        elif 1 + 2 * p <= k <= 9 + 2 * p: dma(a, k - 1 - 2 * p, 5 + k - 1 - 2 * p)
    st3(a, 3)
    for q in list(sendq): send(q)
    a(f"s_mul_i32 s64, s{S_WAVE}, 6144"); a(f"s_add_u32 s64, s64, {SB}"); a("v_add_u32 v3, s64, v2")
    a("s_waitcnt lgkmcnt(0)"); a("s_barrier")
    st3(a, 4)
    for j in range(3):
        a(f"ds_read_b128 v[{48+8*j}:{51+8*j}], v3 offset:{2048*j}"); a(f"ds_read_b128 v[{52+8*j}:{55+8*j}], v3 offset:{2048*j+1024}")
    a("s_waitcnt lgkmcnt(0)")
    A = 16 + 8 * p
    for j in range(3):
        for r in range(8): a(f"v_add_f32 v{A+r}, v{A+r}, v{48+8*j+r}")
    for i in range(2):
        t = 2 * p + i; o = 80 + 2 * i
        a(f"v_cvt_pk_bf16_f32 v{o}, v{A+4*i}, v{A+4*i+1}"); a(f"v_cvt_pk_bf16_f32 v{o+1}, v{A+4*i+2}, v{A+4*i+3}")
        a(f"buffer_store_dwordx2 v[{o}:{o+1}], v247, {W}, 0 offen offset:{512*t} sc1")
```

```python
from asm import *
from p8a import *

class VM:
    def __init__(self): self.q = []
    def issue(self, tag): self.q.append(tag)
    def wait_for(self, a, pred):
        last = max((i for i, t in enumerate(self.q) if pred(t)), default=-1)
        n = len(self.q) - 1 - last
        a(f"s_waitcnt vmcnt({min(n,63)})")

def tr_lane_decode(a):
    a("v_lshrrev_b32 v8, 4, v1"); a("v_and_b32 v9, 1, v8"); a("v_lshrrev_b32 v10, 1, v8")
    a("v_bfe_u32 v11, v1, 2, 2"); a("v_and_b32 v12, 3, v1")
    a("v_lshl_add_u32 v13, v10, 3, v11")

AW = 128
S_RB, S_RC = 51, 48
def rot_off(a, r, rho, stride, mod=28):
    if "norot" in OPT:
        a(f"s_mov_b32 s67, {stride*r}"); return
    a(f"s_add_u32 s67, s{rho}, {r}"); a(f"s_sub_u32 s65, s67, {mod}"); a(f"s_cmp_ge_u32 s67, {mod}"); a("s_cselect_b32 s67, s65, s67")
    a(f"s_mul_i32 s67, s67, {stride}")
NEARLY = 9
def bw_setup(a):
    a("s_and_b32 s64, s2, 7"); a("s_lshr_b32 s65, s2, 3")
    a("s_lshr_b32 s41, s64, 1"); a("s_lshl_b32 s41, s41, 2"); a("s_and_b32 s66, s65, 3"); a("s_add_u32 s41, s41, s66")
    a("s_and_b32 s40, s64, 1"); a("s_mul_i32 s40, s40, 7"); a("s_lshr_b32 s66, s65, 2"); a("s_add_u32 s40, s40, s66")
    a("s_and_b32 s64, s65, 3"); a("s_mul_i32 s64, s64, 3"); a("s_lshr_b32 s66, s65, 2"); a("s_lshl_b32 s66, s66, 1"); a("s_add_u32 s64, s64, s66")
    a("s_sub_u32 s66, s64, 14"); a("s_cmp_ge_u32 s64, 14"); a("s_cselect_b32 s64, s66, s64"); a("s_sub_u32 s66, s64, 14"); a("s_cmp_ge_u32 s64, 14"); a("s_cselect_b32 s64, s66, s64")
    a(f"s_lshl_b32 s{S_RB}, s64, 1")
    a(f"s_lshr_b32 s42, s{S_WAVE}, 2"); a(f"s_lshl_b32 s43, s{S_WAVE}, 10")
    a("s_cmp_eq_u32 s42, 0")
    a("s_cselect_b32 s52, s20, s22"); a("s_cselect_b32 s53, s21, s23")
    a(f"s_mov_b32 s54, {D*F*2}"); a("s_mov_b32 s55, 0x20000")
    a("v_lshrrev_b32 v2, 4, v1"); a("v_and_b32 v3, 15, v1")
    a("v_lshlrev_b32 v250, 1, v2"); a("v_add_u32 v250, s42, v250"); a("v_lshlrev_b32 v250, 1, v250"); a("v_xor_b32 v250, v250, v3"); a("v_lshlrev_b32 v250, 4, v250")
    a(f"s_and_b32 s64, s{S_WAVE}, 3"); a("s_lshl_b32 s64, s64, 2"); a("v_add_u32 v2, s64, v2")
    a("s_movk_i32 s65, 3584"); a("v_mul_lo_u32 v2, v2, s65"); a("v_add_u32 v250, v250, v2")
    a("s_lshl_b32 s65, s40, 8"); a("v_add_u32 v250, s65, v250")
def bw_dma(a, ks, slot, vreg=250):
    a(f"s_add_u32 m0, s43, {8192*slot}"); rot_off(a, ks, S_RB, 57344)
    a(f"buffer_load_dwordx4 v{vreg}, s[52:55], s67 offen lds")
def bw_tr_setup(a):
    tr_lane_decode(a)
    a("v_and_b32 v14, 1, v12"); a(f"s_lshl_b32 s64, s{S_WAVE}, 1"); a("v_add_u32 v14, s64, v14")
    a("v_lshlrev_b32 v15, 1, v11"); a("v_add_u32 v15, v15, v9"); a("v_lshlrev_b32 v15, 1, v15")
    a("v_xor_b32 v14, v14, v15"); a("v_lshlrev_b32 v14, 4, v14")
    a("v_lshrrev_b32 v15, 1, v12"); a("v_lshl_add_u32 v14, v15, 3, v14")
    a("v_lshl_add_u32 v14, v13, 8, v14"); a("v_lshl_add_u32 v14, v9, 12, v14")
    a("s_lshl_b32 s64, s42, 10"); a("v_add_u32 v240, s64, v14"); a("s_xor_b32 s64, s64, 1024"); a("v_add_u32 v241, s64, v14")
    a("v_add_u32 v242, 0x10000, v240"); a("v_add_u32 v243, 0x10000, v241")
def bw_tr1(a):
    bw_tr_setup(a)
    for ks in range(9):
        off = 8192 * (5 + ks); r = AW + 4 * ks; va = 240 + 2 * (off >> 16); o = off & 0xffff
        a(f"ds_read_b64_tr_b16 v[{r}:{r+1}], v{va} offset:{o}"); a(f"ds_read_b64_tr_b16 v[{r+2}:{r+3}], v{va+1} offset:{o}")
    a("s_waitcnt lgkmcnt(0)")

def cw_setup(a):
    a("s_and_b32 s64, s2, 7"); a("s_mul_i32 s64, s64, 28"); a("s_lshr_b32 s65, s2, 3"); a("s_add_u32 s64, s64, s65")
    a("s_mul_i32 s79, s64, 9363"); a("s_lshr_b32 s79, s79, 16"); a("s_mul_i32 s65, s79, 7"); a("s_sub_u32 s78, s64, s65")
    a(f"s_and_b32 s76, s{S_WAVE}, 3"); a(f"s_lshr_b32 s77, s{S_WAVE}, 2"); a("s_lshr_b32 s50, s76, 1")
    srd(a, 44, 24, F * D * 2)
    a("s_and_b32 s64, s79, 3"); a("s_mul_i32 s64, s64, 7"); a("s_lshl_b32 s65, s78, 2"); a("s_add_u32 s64, s64, s65")
    a("s_sub_u32 s65, s64, 28"); a("s_cmp_ge_u32 s64, 28"); a(f"s_cselect_b32 s{S_RC}, s65, s64")
    a("v_lshrrev_b32 v3, 3, v1"); a("v_and_b32 v4, 7, v1")
    a("v_bfe_u32 v20, v3, 1, 1"); a("v_lshlrev_b32 v20, 2, v20"); a("v_xor_b32 v20, v20, v4"); a("v_lshlrev_b32 v20, 4, v20")
    a("s_mul_i32 s64, s76, 448"); a("s_lshl_b32 s65, s77, 3"); a("s_add_u32 s64, s64, s65"); a("v_add_u32 v3, s64, v3")
    a("s_movk_i32 s65, 896"); a("v_mul_lo_u32 v3, v3, s65"); a("v_add_u32 v20, v20, v3")
    a("s_lshl_b32 s65, s78, 7"); a("v_add_u32 v20, s65, v20")
    if "priv" in OPT:
        a("v_lshrrev_b32 v3, 2, v1"); a("s_mul_i32 s64, s76, 448"); a("v_add_u32 v3, s64, v3"); a("s_movk_i32 s65, 896"); a("v_mul_lo_u32 v20, v3, s65")
        a("v_and_b32 v4, 3, v1"); a("v_lshl_add_u32 v20, v4, 4, v20"); a("s_lshl_b32 s65, s78, 7"); a("s_lshl_b32 s64, s77, 6"); a("s_add_u32 s65, s65, s64"); a("v_add_u32 v20, s65, v20")
        a(f"s_lshl_b32 s49, s{S_WAVE}, 10")
        a("v_xor_b32 v14, s50, v9"); a("v_lshlrev_b32 v14, 2, v14")
        a("v_and_b32 v15, 1, v12"); a("v_lshl_add_u32 v14, v15, 1, v14"); a("v_lshrrev_b32 v15, 1, v12"); a("v_add_u32 v14, v14, v15")
        a("v_lshlrev_b32 v14, 3, v14"); a("v_lshl_add_u32 v14, v13, 6, v14")
        a("v_add_u32 v14, s49, v14"); a("v_add_u32 v15, 0x10000, v14"); a("v_add_u32 v18, 0x20000, v14")
        return
    a("s_lshl_b32 s49, s76, 11"); a("s_lshl_b32 s64, s77, 10"); a("s_add_u32 s49, s49, s64")
    a("v_xor_b32 v14, s50, v9"); a("v_lshlrev_b32 v14, 1, v14")
    a("v_and_b32 v15, 1, v12"); a("v_add_u32 v14, v14, v15"); a("s_lshl_b32 s64, s77, 2"); a("v_add_u32 v14, s64, v14")
    a("v_bfe_u32 v15, v11, 1, 1"); a("v_lshlrev_b32 v15, 2, v15"); a("v_xor_b32 v14, v14, v15"); a("v_lshlrev_b32 v14, 4, v14")
    a("v_lshrrev_b32 v15, 1, v12"); a("v_lshl_add_u32 v14, v15, 3, v14"); a("v_lshl_add_u32 v14, v13, 7, v14")
    a("s_lshl_b32 s64, s76, 11"); a("v_add_u32 v14, s64, v14"); a("v_add_u32 v15, 0x10000, v14"); a("v_add_u32 v18, 0x20000, v14")
def cw_dma(a, ksl, unit):
    a(f"s_add_u32 m0, s49, {8192*unit}"); rot_off(a, ksl, S_RC, 14336)
    a("buffer_load_dwordx4 v20, s[44:47], s67 offen lds")
def cw_tr(ksl, unit):
    r = AW + 4 * ksl; off = 8192 * unit; reg = [14, 15, 18][off >> 16]; off &= 0xffff
    second = 256 if "priv" in OPT else 512
    return [f"ds_read_b64_tr_b16 v[{r}:{r+1}], v{reg} offset:{off}", f"ds_read_b64_tr_b16 v[{r+2}:{r+3}], v{reg} offset:{off+second}"]

class LG:
    def __init__(self): self.q = []
    def issue(self, tag): self.q.append(tag)
    def wait_for(self, a, pred):
        last = max((i for i, t in enumerate(self.q) if pred(t)), default=-1)
        a(f"s_waitcnt lgkmcnt({min(len(self.q) - 1 - last, 15)})")

def phaseB(a):
    tr_lane_decode(a)
    a("v_and_b32 v14, 1, v12"); a(f"s_lshl_b32 s64, s{S_WAVE}, 1"); a("v_add_u32 v14, s64, v14")
    a("v_lshlrev_b32 v15, 1, v11"); a("v_add_u32 v15, v15, v9"); a("v_lshlrev_b32 v15, 1, v15")
    a("v_xor_b32 v14, v14, v15"); a("v_lshlrev_b32 v14, 4, v14")
    a("v_lshrrev_b32 v15, 1, v12"); a("v_lshl_add_u32 v14, v15, 3, v14")
    a("v_lshl_add_u32 v14, v13, 8, v14"); a("v_lshl_add_u32 v14, v9, 12, v14")
    a("s_lshl_b32 s64, s42, 10"); a("v_add_u32 v16, s64, v14"); a("s_xor_b32 s64, s64, 1024"); a("v_add_u32 v17, s64, v14")
    a("v_add_u32 v18, 0x10000, v16"); a("v_add_u32 v19, 0x10000, v17")
    def tr_w(ks, slot):
        off = 8192 * slot; r = AW + 4 * ks
        va = 16 + 2 * (off >> 16); o = off & 0xffff
        a(f"ds_read_b64_tr_b16 v[{r}:{r+1}], v{va} offset:{o}"); a(f"ds_read_b64_tr_b16 v[{r+2}:{r+3}], v{va+1} offset:{o}")
    TWO = "two" in OPT
    if TWO:
        for ks in range(9, 18): tr_w(ks, ks - 4)
        a("s_waitcnt lgkmcnt(0)"); a("s_barrier")
        for ks in range(18, 28): bw_dma(a, ks, ks - 18)
    else:
        for ks in range(9): tr_w(ks, 5 + ks)
        a("s_waitcnt lgkmcnt(0)"); a("s_barrier")
        for ks in range(9, 18): bw_dma(a, ks, ks - 9)
    stamp(a, 1)
    for jj in range(4):
        a(f"s_add_u32 s64, s{S_WAVE}, {jj}"); a("s_and_b32 s64, s64, 3")
        a(f"v_xor_b32 v{22+jj}, s64, v11"); a(f"v_lshlrev_b32 v{22+jj}, 6, v{22+jj}")
        a(f"v_lshl_add_u32 v{22+jj}, v13, 8, v{22+jj}")
        a(f"v_lshl_add_u32 v{22+jj}, v9, 5, v{22+jj}"); a(f"v_lshl_add_u32 v{22+jj}, v12, 3, v{22+jj}")
        a("s_lshl_b32 s64, s42, 10"); a(f"v_add_u32 v{22+jj}, s64, v{22+jj}")
        a("s_lshl_b32 s64, s42, 11"); a("s_sub_u32 s64, 1024, s64"); a(f"v_add_u32 v{26+jj}, s64, v{22+jj}")
    for r in range(64): a(f"v_mov_b32 v{64+r}, 0")
    a("v_lshrrev_b32 v3, 4, v1"); a("v_and_b32 v4, 15, v1")
    a("v_lshlrev_b32 v21, 2, v3"); a("v_xor_b32 v21, v21, v4"); a("v_lshlrev_b32 v21, 4, v21")
    a(f"v_mul_u32_u24 v6, {HTS}, v3"); a("v_add_u32 v21, v21, v6")
    a(f"s_mul_i32 s64, s{S_WAVE}, {4*HTS}"); a("s_lshl_b32 s65, s41, 8"); a("s_add_u32 s64, s64, s65"); a(f"s_add_u32 s64, s64, {WS_HT}")
    a("v_add_u32 v21, s64, v21")
    a("s_waitcnt vmcnt(0)"); a("s_barrier")
    a(f"s_mov_b32 s64, {WS_FLAG2}")
    poll_issue(a, "s2", 64, 256, 4, 32)
    if TWO:
        for ks in range(18, 28): tr_w(ks, ks - 18)
        a("s_waitcnt lgkmcnt(0)"); cw_setup(a)
    else:
        for ks in range(9, 18): tr_w(ks, ks - 9)
        a("v_mov_b32 v5, v16"); a("v_mov_b32 v6, v17")
        a("s_waitcnt lgkmcnt(0)"); cw_setup(a)
        a("v_mov_b32 v16, v5"); a("v_mov_b32 v17, v6")
        a("v_add_u32 v19, 0x24000, v17"); a("v_add_u32 v13, 0x24000, v16")
        a("v_add_u32 v16, 0x14000, v16"); a("v_add_u32 v17, 0x14000, v17")
        a("v_mov_b32 v12, v250")

    stamp(a, 2)
    if "pf2" in OPT: code_prefetch(a, vt=2)
    a("s_waitcnt vmcnt(0)")
    poll_check(a, "s2", 4, 32)
    stamp(a, 3)
    vm = VM(); lg = LG()
    def dma_h(g):
        a(f"s_add_u32 m0, s43, {8192*g}"); rot_off(a, 2 * g, S_RB, 16 * HTS)
        a(f"buffer_load_dwordx4 v21, {W}, s67 offen lds"); vm.issue(("H", g))
    HPRE = next((int(o[4:]) for o in OPT if o.startswith("hpre")), 4)
    for g in range(HPRE): dma_h(g)
    FR = [32, 48, 240]
    hi = [False]
    def reads(ks):
        fb = FR[ks % 3]
        pre = []
        if ks >= 16 and not hi[0]:
            hi[0] = True
            pre = [f"v_add_u32 v{22+jj}, 0x10000, v{22+jj}" for jj in range(8)]
        ho = 4096 * (ks - 16 if ks >= 16 else ks)
        return pre, [f"ds_read_b64_tr_b16 v[{fb+4*jj+2*h}:{fb+4*jj+2*h+1}], v{22+4*h+jj} offset:{ho}" for jj in range(4) for h in range(2)]
    NK = 28
    bars = {2: 7, 6: 15, 10: 19, 14: 19, 18: 23, 22: 27} if "two" not in OPT else {2: 7, 6: 15, 10: 19, 14: 23, 18: 27, 22: 27}
    if "bar18" in OPT: bars = {2: 7, 6: 15, 10: 19, 14: 19, 18: 27}
    if "bar16" in OPT: bars = {2: 7, 6: 15, 10: 19, 14: 19, 17: 27}
    blist = sorted(bars)
    vm.wait_for(a, lambda t: t[0] == "H" and t[1] <= 1); a("s_barrier")
    if "prioB" in OPT:
        a(f"s_cmp_ge_u32 s{S_WAVE}, 4"); a("s_cbranch_scc0 L_prioB"); a("s_setprio 1"); a.label("L_prioB")
    stamp(a, 4); cstamp(a, 9)
    for ks in (0, 1):
        pre, rd = reads(ks)
        for x in pre + rd: a(x); lg.issue(("F", ks))
    W2N = next((int(o[3:]) for o in OPT if o.startswith("w2n")), 16)
    free_from = {u: min([b for b in blist if b >= 2 * u + 1], default=99) for u in range(14)}
    plan_dma = {k: [] for k in range(NK)}; plan_tr = {k: [] for k in range(NK)}; post_tr = []
    if TWO:
        hq = [(0, g) for g in range(HPRE, 14)]; lq = []
        for u in range(14, 20): free_from[u] = 0
    else:
        hq = [(0 if g < 10 else 14, g) for g in range(HPRE, 14)]; lq = list(range(18, 28))
        for u in range(14, 20): free_from[u] = 14
        for u in range(10, 14): free_from[u] = 99
    late_tr = {11: list(range(18, 23)), 12: list(range(23, 28))} if not TWO else {}
    nxt = 0
    LAT = next((int(o[3:]) for o in OPT if o.startswith("lat")), 4)
    for k in range(NK):
        cap = 3 if ((hq and hq[0][0] <= k) or lq) and k < 6 else 2
        while len(plan_dma[k]) < cap and hq and hq[0][0] <= k: plan_dma[k].append(("H", hq.pop(0)[1]))
        while len(plan_dma[k]) < cap and lq: plan_dma[k].append(("L", lq.pop(0)))
        while len(plan_dma[k]) < cap and nxt < W2N:
            cand = [u for u in free_from if free_from[u] <= k]
            if not cand: break
            u = min(cand)
            free_from[u] = 99
            plan_dma[k].append(("W2", nxt, u))
            if "priv" in OPT:
                t = max(k + LAT, nxt + 1)
                while t < NK and (len(plan_tr[t]) >= 2 or t in late_tr): t += 1
                if t <= NK - 1:
                    plan_tr[t].append((nxt, u)); free_from[u] = t + 3
                else: post_tr.append((nxt, u))
                nxt += 1
                continue
            lb = min([b for b in blist if b >= k + 3], default=None)
            if "notrin" not in OPT and lb is not None and max(lb, nxt + 1) <= NK - 3:
                t = max(lb, nxt + 1)
                while len(plan_tr[t]) >= 3 or t in late_tr: t += 1
                if t <= NK - 3:
                    plan_tr[t].append((nxt, u)); free_from[u] = min([b for b in blist if b >= t + 3], default=99)
                else: post_tr.append((nxt, u))
            else:
                post_tr.append((nxt, u))
            nxt += 1
    assert not hq and not lq
    rest = list(range(nxt, 28))
    busy = {u for _, u in post_tr}
    NPRE = next((int(o[3:]) for o in OPT if o.startswith("pre")), 0)
    fr = [u for u in range(20) if u not in busy]
    assert NPRE <= len(fr)
    rest_units = fr[:NPRE] + [u for u in range(20) if u not in fr[:NPRE]][:len(rest) - NPRE] if len(rest) > NPRE else fr[:len(rest)]
    assert len(rest_units) == len(rest)
    if "verbose" in OPT: print("dma", plan_dma, "\ntr", plan_tr, "\npost", post_tr, "rest", rest, rest_units)
    issued_at = {}
    for ks in range(NK):
        lg.wait_for(a, lambda t: t == ("F", ks) or (ks == 13 and t[0] == "T"))
        rd = []; pre = []
        if ks in bars:
            assert all(("H", g) in vm.q for g in range(bars[ks] // 2 + 1)), ks
            vm.wait_for(a, lambda t: (t[0] == "H" and t[1] <= bars[ks] // 2) or ("priv" not in OPT and t[0] == "W2" and issued_at[t[1]] <= ks - 3) or (t[0] == "L" and ks >= 10))
            if "vm0at18" in OPT and ks == 18: a("s_waitcnt vmcnt(0)")
            if "dg_nobar" not in OPT: a("s_barrier")
        if "prio18" in OPT and ks == 18:
            a(f"s_cmp_lt_u32 s{S_WAVE}, 4"); a("s_cbranch_scc0 L_prio18"); a("s_setprio 2"); a.label("L_prio18")
        if ks + 2 < NK: pre, rd = reads(ks + 2)
        for x in pre: a(x)
        if "priv" in OPT and plan_tr[ks]:
            want = {k2 for k2, _ in plan_tr[ks]}
            vm.wait_for(a, lambda t: t[0] == "W2" and t[1] in want)
        extra = [x for (k2, u) in plan_tr[ks] for x in cw_tr(k2, u)]
        for kk in late_tr.get(ks, []):
            r = AW + 4 * kk; sl = kk - 18
            (va, vb), off = ((16, 17), 8192 * sl) if sl < 8 else ((13, 19), 8192 * (sl - 8))
            extra += [f"ds_read_b64_tr_b16 v[{r}:{r+1}], v{va} offset:{off}", f"ds_read_b64_tr_b16 v[{r+2}:{r+3}], v{vb} offset:{off}"]
        dmas = list(plan_dma[ks])
        fb = FR[ks % 3]; ar = AW + 4 * ks
        for jj in range(4):
            acc = 64 + 16 * jj
            a(f"v_mfma_f32_32x32x16_bf16 v[{acc}:{acc+15}], v[{ar}:{ar+3}], v[{fb+4*jj}:{fb+4*jj+3}], v[{acc}:{acc+15}]")
            for x in rd[2*jj:2*jj+2]:
                if "dg_noread" not in OPT: a(x)
                lg.issue(("F", ks + 2))
            for x in extra[3*jj:3*jj+3]: a(x); lg.issue(("T", ks))
            if jj >= 1 and dmas:
                d = dmas.pop(0)
                if "dg_nodma" in OPT and d[0] != "H":
                    vm.issue((d[0], d[1])); issued_at[d[1]] = ks if d[0] == "W2" else issued_at.get(d[1], ks)
                elif d[0] == "H": dma_h(d[1])
                elif d[0] == "L":
                    bw_dma(a, d[1], d[1] - 8, 12); vm.issue(("L", d[1]))
                else:
                    cw_dma(a, d[1], d[2]); vm.issue(("W2", d[1])); issued_at[d[1]] = ks
            if jj == 0 and ks == 19:
                a("s_lshl_b32 s64, s41, 7"); a(f"s_add_u32 s64, s64, {WS_FLAG3}"); a("v_and_b32 v30, 1, v1"); a("v_lshl_add_u32 v30, v30, 6, s64")
                a(f"buffer_load_dword v31, v30, {W}, 0 offen sc1"); vm.issue(("F", 0))
            if jj == 0 and ks == 23:
                vm.wait_for(a, lambda t: t[0] == "F")
                a("s_mov_b32 s66, 0")
                a.label("L_f3_chk")
                a(f"v_cmp_ne_u32 vcc, s{S_NONCE}, v31"); a("s_cbranch_vccz L_f3_ok")
                a("s_add_u32 s66, s66, 1"); a(f"s_cmp_gt_u32 s66, {SPIN_MAX}"); a("s_cbranch_scc1 L_f3_ok")
                a(f"buffer_load_dword v31, v30, {W}, 0 offen sc1"); a("s_waitcnt vmcnt(0)"); a("s_branch L_f3_chk")
                a.label("L_f3_ok")
                a("v_and_b32 v30, 31, v1"); a("v_lshlrev_b32 v30, 3, v30")
                for j2 in range(4):
                    a(f"s_add_u32 s64, s{S_WAVE}, {j2}"); a("s_and_b32 s64, s64, 3"); a("s_lshl_b32 s65, s41, 2"); a("s_add_u32 s64, s64, s65")
                    a("s_lshl_b32 s64, s64, 8"); a(f"s_add_u32 s64, s64, {WS_G2}")
                    a(f"buffer_load_dwordx2 v[{4+2*j2}:{5+2*j2}], v30, {W}, s64 offen"); vm.issue(("G", j2))
            if jj == 2 and ks == 26:
                a("v_lshrrev_b32 v2, 5, v1"); a("v_lshlrev_b32 v2, 5, v2")
                a("s_lshl_b32 s64, s40, 9"); a(f"s_lshl_b32 s65, s{S_WAVE}, 6"); a("s_add_u32 s64, s64, s65"); a(f"s_add_u32 s64, s64, {WS_CS}")
                a("v_add_u32 v2, s64, v2"); a("v_add_u32 v3, 7168, v2")
                for k in range(2):
                    a(f"buffer_load_dwordx4 v[{48+4*k}:{51+4*k}], v2, {W}, 0 offen offset:{16*k}"); vm.issue(("C", 0))
                    a(f"buffer_load_dwordx4 v[{56+4*k}:{59+4*k}], v3, {W}, 0 offen offset:{16*k}"); vm.issue(("C", 0))
        assert not dmas
    stamp(a, 5); cstamp(a, 10)
    if "prioB" in OPT and "priokeep" not in OPT: a("s_setprio 0")
    if "endnop" in OPT:
        for _ in range(4): a("s_nop 15")
    vm.wait_for(a, lambda t: t[0] in ("G", "C"))
    for jj in range(4):
        b = 32 + 4 * jj
        a(f"v_mov_b32 v{b}, v{4+2*jj}"); a(f"v_mul_f32 v{b+2}, {NLOG2E:#x}, v{5+2*jj}"); a(f"v_mul_f32 v{b+3}, v{5+2*jj}, v{5+2*jj}")
    stamp(a, 6)
    a("v_lshlrev_b32 v6, 4, v1"); a(f"v_add_u32 v6, {WS_HF}, v6")
    for jj in range(4):
        a(f"s_add_u32 s64, s{S_WAVE}, {jj}"); a("s_and_b32 s64, s64, 3")
        a("s_lshl_b32 s65, s41, 2"); a("s_add_u32 s64, s64, s65"); a("s_mul_i32 s64, s64, 112")
        a("s_lshl_b32 s65, s40, 3"); a("s_add_u32 s64, s64, s65"); a(f"s_add_u32 s64, s64, s{S_WAVE}")
        a(f"s_lshl_b32 s{72+jj}, s64, 10")
    for jj in range(4):
        b = 32 + 4 * jj; acc = 64 + 16 * jj; t = 240 + 8 * (jj % 2); o = 24 + 4 * (jj % 2)
        if "nopk" in OPT:
            for e in range(8):
                a(f"v_fma_f32 v{acc+e}, -v{b}, v{48+e}, v{acc+e}"); a(f"v_fma_f32 v{acc+8+e}, -v{b}, v{56+e}, v{acc+8+e}")
            for e in range(8):
                a(f"v_mul_f32 v{t+e}, v{acc+e}, v{b+2}"); a(f"v_mul_f32 v{acc+e}, v{acc+e}, v{acc+8+e}")
                a(f"v_exp_f32 v{t+e}, v{t+e}")
            for e in range(8):
                a(f"v_mul_f32 v{acc+e}, v{acc+e}, v{b+3}"); a(f"v_add_f32 v{t+e}, 1.0, v{t+e}"); a(f"v_rcp_f32 v{t+e}, v{t+e}")
            for k in range(4):
                a(f"v_mul_f32 v{acc+2*k}, v{acc+2*k}, v{t+2*k}"); a(f"v_mul_f32 v{acc+2*k+1}, v{acc+2*k+1}, v{t+2*k+1}")
                a(f"v_cvt_pk_bf16_f32 v{o+k}, v{acc+2*k}, v{acc+2*k+1}")
        else:
            P = lambda r: f"v[{r}:{r+1}]"
            for e in range(0, 8, 2):
                a(f"v_pk_fma_f32 {P(acc+e)}, {P(b)}, {P(48+e)}, {P(acc+e)} op_sel_hi:[0,1,1] neg_lo:[1,0,0] neg_hi:[1,0,0]")
                a(f"v_pk_fma_f32 {P(acc+8+e)}, {P(b)}, {P(56+e)}, {P(acc+8+e)} op_sel_hi:[0,1,1] neg_lo:[1,0,0] neg_hi:[1,0,0]")
            for e in range(0, 8, 2):
                a(f"v_pk_mul_f32 {P(t+e)}, {P(acc+e)}, {P(b+2)} op_sel_hi:[1,0]")
                a(f"v_pk_mul_f32 {P(acc+e)}, {P(acc+e)}, {P(acc+8+e)}")
                a(f"v_exp_f32 v{t+e}, v{t+e}"); a(f"v_exp_f32 v{t+e+1}, v{t+e+1}")
            for e in range(0, 8, 2):
                a(f"v_pk_mul_f32 {P(acc+e)}, {P(acc+e)}, {P(b+2)} op_sel:[0,1] op_sel_hi:[1,1]")
                a(f"v_pk_add_f32 {P(t+e)}, {P(t+e)}, 1.0 op_sel_hi:[1,0]")
                a(f"v_rcp_f32 v{t+e}, v{t+e}"); a(f"v_rcp_f32 v{t+e+1}, v{t+e+1}")
            for k in range(4):
                a(f"v_pk_mul_f32 {P(acc+2*k)}, {P(acc+2*k)}, {P(t+2*k)}")
                a(f"v_cvt_pk_bf16_f32 v{o+k}, v{acc+2*k}, v{acc+2*k+1}")
        a(f"buffer_store_dwordx4 v[{o}:{o+3}], v6, {W}, s{72+jj} offen sc1"); vm.issue(("S", jj))
    if "prio18" in OPT: a("s_setprio 0")
    vm.wait_for(a, lambda t: t[0] == "W2")
    if "priv" not in OPT or rest: a("s_barrier")
    for (k2, u) in post_tr:
        for x in cw_tr(k2, u): a(x)
    for k2, u in list(zip(rest, rest_units))[:NPRE]:
        cw_dma(a, k2, u); vm.issue(("W2", k2))
    vm.wait_for(a, lambda t: t[0] == "S")
    a("s_waitcnt lgkmcnt(0)")
    stamp(a, 7)
    a("s_barrier")
    a("s_mul_i32 s64, s41, 14"); a("s_add_u32 s64, s64, s40"); a("s_lshl_b32 s64, s64, 6"); a(f"s_add_u32 s64, s64, {WS_FLAG4}")
    publish_flag(a, 64)
    for k2, u in list(zip(rest, rest_units))[NPRE:]:
        cw_dma(a, k2, u)
    if "pf3" in OPT: code_prefetch(a, vt=2, sreg=34)
    phaseC_setup(a)
    a("s_lshr_b32 s64, s79, 1"); a("s_mul_i32 s64, s64, 896"); a(f"s_add_u32 s64, s64, {WS_FLAG4}")
    if rest:
        a("s_waitcnt vmcnt(0)"); a("s_barrier")
        poll_issue(a, "s4", 64, 14, 1, 32)
        for k2, u in zip(rest, rest_units):
            for x in cw_tr(k2, u): a(x)
        a("s_waitcnt lgkmcnt(0)")
    else:
        poll_issue(a, "s4", 64, 14, 1, 32)
    stamp(a, 8)

RED_C = 114688
def phaseC_setup(a):
    srd(a, 52, 26, L * D * 2)
    a(f"s_mul_i32 s40, s76, {28672 if 'c14' in OPT else 40960}"); a("s_lshl_b32 s64, s77, 10"); a("s_add_u32 s41, s40, s64")
    a("v_and_b32 v23, 31, v1"); a("v_lshrrev_b32 v24, 5, v1")
    a("s_lshl_b32 s64, s78, 6"); a("s_lshl_b32 s65, s77, 5"); a("s_add_u32 s64, s64, s65"); a("s_lshl_b32 s65, s50, 4"); a("s_add_u32 s34, s64, s65")
    a("s_lshl_b32 s64, s79, 6"); a("s_and_b32 s65, s76, 1"); a("s_lshl_b32 s65, s65, 5"); a("s_add_u32 s35, s64, s65")
    a("v_lshlrev_b32 v25, 3, v24"); a("v_add_u32 v25, s34, v25"); a("v_add_u32 v26, s35, v23")
    a(f"v_mul_u32_u24 v27, {HTS}, v25"); a("v_lshl_add_u32 v27, v26, 1, v27"); a(f"v_add_u32 v27, {WS_HT}, v27")
    for e in range(8):
        a(f"s_mov_b32 s67, {e*HTS}"); a(f"buffer_load_ushort v{240+e}, v27, {W}, s67 offen")
    a("s_movk_i32 s64, 896"); a("v_mul_lo_u32 v28, v26, s64"); a("v_lshl_add_u32 v28, v25, 1, v28")
    a("v_lshlrev_b32 v5, 4, v1")
    a("s_lshl_b32 s64, s79, 1"); a("s_add_u32 s64, s64, s77"); a("s_mul_i32 s64, s64, 112"); a("s_mul_i32 s65, s76, 28"); a("s_add_u32 s64, s64, s65")
    a("s_lshl_b32 s64, s64, 10"); a(f"s_add_u32 s64, s64, {WS_HF}"); a("v_add_u32 v252, s64, v5")
    a("v_add_u32 v6, s40, v5")
    a("s_and_b32 s64, s76, 1"); a("s_lshl_b32 s64, s64, 10"); a("v_add_u32 v16, s64, v6"); a("s_xor_b32 s64, s64, 1024"); a("v_add_u32 v17, s64, v6")
    for r in range(32): a(f"v_mov_b32 v{64+r}, 0")

def phaseC(a):
    stamp(a, 1)
    stamp(a, 2)
    a("s_waitcnt vmcnt(0)")
    poll_check(a, "s4", 1, 32)
    stamp(a, 3)
    vm = VM()
    NS = 14 if 'c14' in OPT else 20
    def dma_b(k):
        a(f"s_add_u32 m0, s41, {2048*(k % NS)}"); rot_off(a, k, S_RC, 1024)
        a(f"buffer_load_dwordx4 v252, {W}, s67 offen lds"); vm.issue(("B", k))
    PRE = next((int(o[4:]) for o in OPT if o.startswith("cpre")), 8)
    for k in range(PRE): dma_b(k)
    NBUF = 4
    FR = [32, 40, 48, 56]
    def reads(k):
        fb = FR[k % NBUF]
        return [f"ds_read_b128 v[{fb+4*ns}:{fb+4*ns+3}], v{16+ns} offset:{2048*(k % NS)}" for ns in range(2)]
    NK = 28; G = 4; PD = 3
    def need(k_hi):
        assert all(("B", k) in vm.q for k in range(k_hi + 1)), k_hi
        vm.wait_for(a, lambda t: t[1] <= k_hi); a("s_barrier")
    need(3)
    stamp(a, 4)
    for k in range(PD):
        for x in reads(k): a(x)
    ready = 3; nxt = PRE; freed = -1
    for k in range(NK):
        a(f"s_waitcnt lgkmcnt({2*min(PD-1, NK-1-k)})")
        rd = []
        if k + PD < NK:
            if k + PD > ready:
                hi = min(k + PD + G - 1, NK - 1); need(hi); ready = hi; freed = k
            rd = reads(k + PD)
        fb = FR[k % NBUF]; ar = AW + 4 * k
        for ns in range(2):
            acc = 64 + 16 * ns
            a(f"v_mfma_f32_32x32x16_bf16 v[{acc}:{acc+15}], v[{ar}:{ar+3}], v[{fb+4*ns}:{fb+4*ns+3}], v[{acc}:{acc+15}]")
            if rd: a(rd[ns])
        for _ in range(4 if k == 0 else 3 if k < 4 else 2):
            if nxt < NK and (nxt < NS or nxt - NS <= freed):
                dma_b(nxt); nxt += 1
    assert nxt == NK
    stamp(a, 5)
    a("v_lshlrev_b32 v8, 4, v1")
    if 'c14' not in OPT: a("s_barrier")
    for x in range(1, 4):
        ns, hh = x & 1, x >> 1
        a(f"s_xor_b32 s64, s{S_WAVE}, {x}"); a("s_mul_i32 s64, s64, 6144"); a(f"s_add_u32 s64, s64, {RED_C + (x-1)*2048}")
        a("v_add_u32 v22, s64, v8")
        src = 64 + 16 * ns + 8 * hh
        a(f"ds_write_b128 v22, v[{src}:{src+3}]"); a(f"ds_write_b128 v22, v[{src+4}:{src+7}] offset:1024")
    a(f"s_mul_i32 s64, s{S_WAVE}, 6144"); a(f"s_add_u32 s64, s64, {RED_C}"); a("v_add_u32 v22, s64, v8")
    a("s_waitcnt lgkmcnt(0)"); a("s_barrier")
    for x in range(3):
        a(f"ds_read_b128 v[{96+8*x}:{99+8*x}], v22 offset:{2048*x}"); a(f"ds_read_b128 v[{100+8*x}:{103+8*x}], v22 offset:{2048*x+1024}")
    a("s_waitcnt lgkmcnt(0)")
    for x in range(3):
        for r in range(8): a(f"v_add_f32 v{64+r}, v{64+r}, v{96+8*x+r}")
    stamp(a, 6)
    for k in range(4):
        r = 2 * k
        a(f"v_cvt_pk_bf16_f32 v30, v{64+r}, v{65+r}")
        a("v_lshlrev_b32 v31, 16, v30"); a("v_and_b32 v30, 0xffff0000, v30")
        a(f"v_lshlrev_b32 v32, 16, v{240+r}"); a(f"v_lshlrev_b32 v33, 16, v{241+r}")
        a("v_add_f32 v31, v31, v32"); a("v_add_f32 v30, v30, v33")
        a(f"v_cvt_pk_bf16_f32 v{120+k}, v31, v30")
    a("buffer_store_dwordx4 v[120:123], v28, s[52:55], 0 offen" + (" sc1" if "outsc1" in OPT else " nt" if "outnt" in OPT else ""))
    if "noendwait" not in OPT: a("s_waitcnt vmcnt(0)")
    stamp(a, 7)
```

```python
from asm import *
from pA import (L, D, N, F, LOG2E, NLOG2E, INV2PI, WS_GRAN, WS_CS, WS_FLAG1, WS_FLAG3, WS_G2, WS_XT, WS_FLAG2, WS_FLAG4, WS_HT, HTS, WS_HF, WS_SIZE, SRD_WS, SRD_DBG, SPIN_MAX,
                OPS, OP_CH, KC_CH, KC_CP, SB, TB0, TB_CH, UA0, UA_CH, RA0, RA_CH, LDS_TOTAL, cmul1, cmul2, reduce8, stats_pack)
S_WAVE, S_NONCE = 32, 33
W = f"s[{SRD_WS}:{SRD_WS+3}]"
DBG = f"s[{SRD_DBG}:{SRD_DBG+3}]"
OPT = set()
def FS(): return next((int(o[2:]) for o in OPT if o.startswith('fs')), 6)
RED0 = RA0 + 2 * RA_CH

def prologue(a):
    a("s_load_dwordx16 s[4:19], s[0:1], 0")
    a("s_load_dwordx8 s[20:27], s[0:1], 64")
    a("s_load_dwordx4 s[28:31], s[0:1], 96")
    if "pf0" in OPT: code_prefetch(a)
    a("v_and_b32 v1, 63, v0"); a("v_lshrrev_b32 v2, 6, v0"); a("s_nop 0")
    a(f"v_readfirstlane_b32 s{S_WAVE}, v2")
    a("s_waitcnt lgkmcnt(0)")
    srd(a, SRD_WS, 30, WS_SIZE); srd(a, SRD_DBG, 28, 256)
    a(f"s_or_b32 s64, s2, s{S_WAVE}"); a("s_cmp_eq_u32 s64, 0"); a("s_cbranch_scc0 L_nopub")
    a("s_memrealtime s[64:65]"); a("s_waitcnt lgkmcnt(0)"); a("s_or_b32 s64, s64, 1")
    a("v_mov_b32 v3, s64"); a("v_mov_b32 v4, 0")
    a(f"buffer_store_dword v3, v4, {DBG}, 0 offen sc1")
    a.label("L_nopub")

def get_nonce(a, tag, vt):
    a(f"v_mov_b32 v{vt+1}, 0"); a("s_mov_b32 s66, 0")
    a.label(f"L_nonce_{tag}")
    a(f"buffer_load_dword v{vt}, v{vt+1}, {DBG}, 0 offen sc1")
    a("s_waitcnt vmcnt(0)")
    a(f"v_readfirstlane_b32 s{S_NONCE}, v{vt}")
    a("s_add_u32 s66, s66, 1"); a(f"s_cmp_gt_u32 s66, {SPIN_MAX}"); a(f"s_cbranch_scc1 L_nonce_{tag}_ok")
    a(f"s_cmp_eq_u32 s{S_NONCE}, 0"); a(f"s_cbranch_scc1 L_nonce_{tag}")
    a.label(f"L_nonce_{tag}_ok")

def publish_flag(a, off_sgpr, vt=2, plain=False):
    lab = f"L_pub_{len(a.lines)}"
    a(f"s_cmp_eq_u32 s{S_WAVE}, 0"); a(f"s_cbranch_scc0 {lab}")
    a(f"v_mov_b32 v{vt}, s{S_NONCE}"); a(f"v_mov_b32 v{vt+1}, s{off_sgpr}")
    a("s_mov_b64 exec, 1")
    a(f"buffer_store_dword v{vt}, v{vt+1}, {W}, 0 offen" + ("" if plain else " sc1"))
    a("s_mov_b64 exec, -1")
    a.label(lab)

def wait_flags(a, tag, base_sgpr, count, per_lane, vt=32):
    poll_issue(a, tag, base_sgpr, count, per_lane, vt)
    a("s_waitcnt vmcnt(0)")
    poll_check(a, tag, per_lane, vt, sleep=4, count=count)

X8S = 7168
XS0 = RED0
def xp_issue(a):
    srd(a, 36, 4, L * D * 2)
    a(f"s_lshl_b32 s64, s2, 3"); a(f"s_add_u32 s64, s64, s{S_WAVE}"); a("s_mul_i32 s64, s64, 896")
    a("v_lshl_add_u32 v194, v1, 4, s64")
    for r in range(4): a(f"v_mov_b32 v{196+r}, 0")
    a("v_cmp_gt_u32 vcc, 56, v1"); a("s_and_saveexec_b64 s[66:67], vcc")
    a("buffer_load_dwordx4 v[196:199], v194, s[36:39], 0 offen")
    a("s_mov_b64 exec, s[66:67]")
    a("v_mov_b32 v193, 0")
    if "n0" in OPT:
        a(f"s_cmp_eq_u32 s{S_WAVE}, 0"); a("s_cselect_b32 s65, 0, 0x1000"); a("v_mov_b32 v193, s65")
    a(f"buffer_load_dword v195, v193, {DBG}, 0 offen sc1")
def xp_mid(a, tag):
    a(f"s_mul_i32 s64, s{S_WAVE}, 912"); a(f"s_add_u32 s64, s64, {XS0}"); a("v_lshl_add_u32 v194, v1, 4, s64")
    a("v_cmp_gt_u32 vcc, 56, v1"); a("s_and_saveexec_b64 s[66:67], vcc")
    a("ds_write_b128 v194, v[196:199]"); a("s_mov_b64 exec, s[66:67]")
    a("v_bfe_u32 v184, v1, 2, 2"); a("v_mul_u32_u24 v184, 912, v184")
    a("v_lshrrev_b32 v185, 4, v1"); a("v_lshl_add_u32 v184, v185, 5, v184"); a("v_and_b32 v185, 3, v1"); a("v_lshl_add_u32 v184, v185, 3, v184")
    a(f"s_lshl_b32 s64, s{S_WAVE}, 7"); a(f"s_add_u32 s64, s64, {XS0}"); a("v_add_u32 v184, s64, v184")
    a(f"s_mul_i32 s64, s2, {X8S}"); a(f"s_lshl_b32 s65, s{S_WAVE}, 10"); a("s_add_u32 s64, s64, s65"); a(f"s_add_u32 s64, s64, {WS_XT}")
    a("v_lshl_add_u32 v185, v1, 4, s64")
    a("s_waitcnt lgkmcnt(0)"); a("s_barrier")
    a(f"s_cmp_ge_u32 s{S_WAVE}, 7"); a(f"s_cbranch_scc1 L_xp_notr_{tag}")
    a("ds_read_b64_tr_b16 v[180:181], v184"); a(f"ds_read_b64_tr_b16 v[182:183], v184 offset:{4*912}")
    a("s_waitcnt lgkmcnt(0)")
    a(f"buffer_store_dwordx4 v[180:183], v185, {W}, 0 offen sc1")
    a.label(f"L_xp_notr_{tag}")
    a("v_mov_b32 v190, 0x3f803f80"); a("v_mov_b32 v188, 0"); a("v_mov_b32 v189, 0")
    for j in range(4):
        a(f"v_dot2_f32_bf16 v188, v{196+j}, v190, v188"); a(f"v_dot2_f32_bf16 v189, v{196+j}, v{196+j}, v189")
    for mod in ("quad_perm:[1,0,3,2]", "quad_perm:[2,3,0,1]", "row_half_mirror", "row_mirror"):
        for r in (188, 189): a(f"v_add_f32_dpp v{r}, v{r}, v{r} {mod} row_mask:0xf bank_mask:0xf")
    for sw in ("v_permlane16_swap_b32", "v_permlane32_swap_b32"):
        a("v_mov_b32 v186, v188"); a("v_mov_b32 v187, v189")
        a(f"{sw} v188, v186"); a(f"{sw} v189, v187")
        a("v_add_f32 v188, v188, v186"); a("v_add_f32 v189, v189, v187")
    stats_pack(a, 188, 189, 186, 184)
    a("v_and_b32 v187, 0xffff0000, v186"); a("v_lshlrev_b32 v186, 16, v186"); a("v_rcp_f32 v188, v187")
    a("v_mul_f32_e64 v189, -v186, v188")
    a(f"s_lshl_b32 s64, s2, 6"); a(f"s_lshl_b32 s65, s{S_WAVE}, 3"); a("s_add_u32 s64, s64, s65"); a("v_mov_b32 v187, s64")
    a("s_mov_b64 exec, 1")
    a(f"buffer_store_dwordx2 v[188:189], v187, {W}, 0 offen offset:{WS_GRAN} sc1")
    a("s_mov_b64 exec, -1")
def xg_mid(a, tag):
    a("v_mov_b32 v190, 0x3f803f80"); a("v_mov_b32 v188, 0"); a("v_mov_b32 v189, 0")
    for j in range(4):
        a(f"v_dot2_f32_bf16 v188, v{196+j}, v190, v188"); a(f"v_dot2_f32_bf16 v189, v{196+j}, v{196+j}, v189")
    for mod in ("quad_perm:[1,0,3,2]", "quad_perm:[2,3,0,1]", "row_half_mirror", "row_mirror"):
        for r in (188, 189): a(f"v_add_f32_dpp v{r}, v{r}, v{r} {mod} row_mask:0xf bank_mask:0xf")
    for sw in ("v_permlane16_swap_b32", "v_permlane32_swap_b32"):
        a("v_mov_b32 v186, v188"); a("v_mov_b32 v187, v189")
        a(f"{sw} v188, v186"); a(f"{sw} v189, v187")
        a("v_add_f32 v188, v188, v186"); a("v_add_f32 v189, v189, v187")
    stats_pack(a, 188, 189, 186, 184)
    a(f"v_readfirstlane_b32 s{S_NONCE}, v195")
    a(f"s_cmp_eq_u32 s{S_NONCE}, 0"); a(f"s_cbranch_scc0 L_xg_have_{tag}")
    get_nonce(a, "xg" + tag, 192)
    a.label(f"L_xg_have_{tag}")
    a(f"v_mov_b32 v187, s{S_NONCE}")
    a(f"s_lshl_b32 s64, s2, 6"); a(f"s_lshl_b32 s65, s{S_WAVE}, 3"); a("s_add_u32 s64, s64, s65"); a("v_mov_b32 v188, s64")
    a("s_mov_b64 exec, 1")
    a(f"buffer_store_dwordx2 v[186:187], v188, {W}, 0 offen offset:{WS_GRAN} sc1")
    a("s_mov_b64 exec, -1")
def xp_pub(a, tag):
    a("s_waitcnt vmcnt(0)")
    if "n0" in OPT:
        a(f"s_cmp_eq_u32 s{S_WAVE}, 0"); a(f"s_cbranch_scc0 L_xp_have_{tag}")
    a(f"v_readfirstlane_b32 s{S_NONCE}, v195")
    a(f"s_cmp_eq_u32 s{S_NONCE}, 0"); a(f"s_cbranch_scc0 L_xp_got_{tag}")
    get_nonce(a, "xp" + tag, 194)
    a.label(f"L_xp_got_{tag}")
    if "n0" in OPT:
        a(f"v_mov_b32 v194, s{S_NONCE}"); a(f"v_mov_b32 v195, {XS0 + 8000}"); a("ds_write_b32 v195, v194"); a("s_waitcnt lgkmcnt(0)")
    a.label(f"L_xp_have_{tag}")
    a("s_barrier")
    if "n0" in OPT:
        a(f"v_mov_b32 v195, {XS0 + 8000}"); a("ds_read_b32 v194, v195"); a("s_waitcnt lgkmcnt(0)"); a(f"v_readfirstlane_b32 s{S_NONCE}, v194")
    a(f"s_lshl_b32 s64, s2, {FS()}"); a(f"s_add_u32 s64, s64, {WS_FLAG1}")
    publish_flag(a, 64, 194)

def touch_w13(a):
    a("s_and_b32 s64, s2, 7"); a("s_lshr_b32 s65, s2, 3")
    a("s_and_b32 s66, s64, 1"); a("s_mul_i32 s66, s66, 7"); a("s_lshr_b32 s67, s65, 2"); a("s_add_u32 s66, s66, s67")
    a("s_and_b32 s65, s65, 3")
    a("s_cmp_lt_u32 s65, 2"); a("s_cselect_b32 s76, s20, s22"); a("s_cselect_b32 s77, s21, s23")
    a(f"s_mov_b32 s78, {D*F*2}"); a("s_mov_b32 s79, 0x20000")
    a("s_and_b32 s65, s65, 1"); a("s_mul_i32 s65, s65, 448"); a(f"s_min_u32 s67, s{S_WAVE}, 6"); a("s_lshl_b32 s67, s67, 6"); a("s_add_u32 s65, s65, s67")
    a("v_add_u32 v173, s65, v1")
    a("v_lshrrev_b32 v172, 1, v173"); a("v_mul_u32_u24 v172, 3584, v172"); a("v_and_b32 v173, 1, v173"); a("v_lshl_add_u32 v172, v173, 7, v172")
    a("s_lshl_b32 s66, s66, 8"); a("v_add_u32 v172, s66, v172")
    a("buffer_load_dword v173, v172, s[76:79], 0 offen")

def touch_weights(a, tag):
    a(f"s_cmp_ge_u32 s{S_WAVE}, 3"); a(f"s_cbranch_scc1 L_touch_skip_{tag}")
    a(f"s_lshl_b32 s64, s{S_WAVE}, 1"); a("s_cmp_eq_u32 s64, 0"); a("s_cselect_b32 s76, s20, s22"); a("s_cselect_b32 s77, s21, s23")
    a("s_cmp_eq_u32 s64, 4"); a("s_cselect_b32 s76, s24, s76"); a("s_cselect_b32 s77, s25, s77")
    a(f"s_mov_b32 s78, {D*F*2}"); a("s_mov_b32 s79, 0x20000")
    a("s_mul_i32 s64, s2, 49"); a("v_add_u32 v191, s64, v1"); a("v_lshlrev_b32 v191, 7, v191")
    a("v_cmp_gt_u32 vcc, 49, v1"); a("s_and_saveexec_b64 s[66:67], vcc")
    a("buffer_load_dword v192, v191, s[76:79], 0 offen")
    a("s_mov_b64 exec, s[66:67]")
    a.label(f"L_touch_skip_{tag}")

def poll_loads(a, per_lane, vt, sh, count):
    for i in range(per_lane):
        if i == 0: a(f"buffer_load_dword v{vt+1}, v{vt}, {W}, 0 offen sc1")
        elif count == 224 and i == 3:
            a(f"buffer_load_dword v{vt+4}, v{vt+5}, {W}, 0 offen sc1")
        else:
            a(f"s_mov_b32 s67, {(64 << sh)*i}"); a(f"buffer_load_dword v{vt+1+i}, v{vt}, {W}, s67 offen sc1")
def poll_issue(a, tag, base_sgpr, count, per_lane, vt):
    sh = FS() if count >= 224 else 6
    a(f"s_cmp_eq_u32 s{S_WAVE}, 0"); a(f"s_cbranch_scc0 L_pi_{tag}")
    a(f"v_lshlrev_b32 v{vt}, {sh}, v1"); a(f"v_add_u32 v{vt}, s{base_sgpr}, v{vt}")
    if count < 64:
        a(f"v_min_u32 v{vt+1}, {count-1}, v1"); a(f"v_lshlrev_b32 v{vt}, 6, v{vt+1}"); a(f"v_add_u32 v{vt}, s{base_sgpr}, v{vt}")
    if count == 224:
        a(f"v_add_u32 v{vt+5}, 192, v1"); a(f"v_min_u32 v{vt+5}, 223, v{vt+5}"); a(f"v_lshlrev_b32 v{vt+5}, {sh}, v{vt+5}"); a(f"v_add_u32 v{vt+5}, s{base_sgpr}, v{vt+5}")
    poll_loads(a, per_lane, vt, sh, count)
    a.label(f"L_pi_{tag}")
def poll_check(a, tag, per_lane, vt, sleep=0, count=256):
    sh = FS() if per_lane == 4 else 6
    a(f"s_cmp_eq_u32 s{S_WAVE}, 0"); a(f"s_cbranch_scc0 L_pc_{tag}_bar")
    a("s_mov_b32 s66, 0")
    a.label(f"L_pc_{tag}")
    a(f"v_xor_b32 v{vt+1}, s{S_NONCE}, v{vt+1}")
    for i in range(1, per_lane):
        a(f"v_xor_b32 v{vt+1+i}, s{S_NONCE}, v{vt+1+i}"); a(f"v_or_b32 v{vt+1}, v{vt+1}, v{vt+1+i}")
    a(f"v_cmp_ne_u32 vcc, 0, v{vt+1}")
    a(f"s_cbranch_vccz L_pc_{tag}_bar")
    a("s_add_u32 s66, s66, 1"); a(f"s_cmp_gt_u32 s66, {SPIN_MAX}"); a(f"s_cbranch_scc1 L_pc_{tag}_bar")
    if "mask" in OPT:
        for i in range(per_lane): a(f"v_mov_b32 v{vt+1+i}, s{S_NONCE}")
        a("s_mov_b64 exec, vcc")
    poll_loads(a, per_lane, vt, sh, count)
    if "mask" in OPT: a("s_mov_b64 exec, -1")
    a("s_waitcnt vmcnt(0)")
    if sleep: a(f"s_sleep {sleep}")
    a(f"s_branch L_pc_{tag}")
    a.label(f"L_pc_{tag}_bar")
    a("s_barrier")

def tlb_touch_placeholder(): pass

def tlb_touch(a):
    a("v_and_b32 v175, 31, v1"); a("v_lshlrev_b32 v175, 19, v175")
    a(f"buffer_load_dword v176, v175, {W}, 0 offen")
    srd(a, 76, 26, L * D * 2)
    a("buffer_load_dword v174, v175, s[76:79], 0 offen")

def code_prefetch(a, vt=177, sreg=64):
    a(f"s_getpc_b64 s[{sreg}:{sreg+1}]")
    lab = f"L_pc_{len(a.lines)}"
    a.label(lab)
    a(f"s_sub_u32 s{sreg}, s{sreg}, {lab}-KERNEL_START"); a(f"s_subb_u32 s{sreg+1}, s{sreg+1}, 0")
    a(f"v_lshrrev_b32 v{vt+1}, 1, v0"); a(f"v_lshlrev_b32 v{vt+1}, 7, v{vt+1}")
    a(f"v_min_u32 v{vt+1}, KERNEL_END-KERNEL_START-4, v{vt+1}")
    a(f"global_load_dword v{vt}, v{vt+1}, s[{sreg}:{sreg+1}]")

def helper(a):
    a("s_sub_u32 s70, s2, 224")
    xp_issue(a)
    if "pfh" in OPT: code_prefetch(a)
    if "G" in OPT:
        a("s_waitcnt vmcnt(0)")
        xg_mid(a, "h")
    else:
        a(f"s_waitcnt vmcnt({2 if 'pfh' in OPT else 1})")
        xp_mid(a, "h")
        xp_pub(a, "h")
    if "htouch" in OPT:
        a("s_mul_i32 s64, s70, 392"); a("v_min_u32 v170, 391, v0"); a("v_add_u32 v170, s64, v170"); a("v_lshlrev_b32 v170, 7, v170")
        for i, ptr in enumerate((20, 22, 24)):
            srd(a, 76, ptr, D * F * 2)
            a(f"buffer_load_dword v{171+i}, v170, s[76:79], 0 offen")
    elif "notouch" not in OPT: touch_weights(a, "h")
    stamp(a, 1)
    a("s_cmp_lt_u32 s70, 16")
    a("s_cselect_b32 s36, s20, s22"); a("s_cselect_b32 s37, s21, s23")
    a(f"s_mov_b32 s38, {D*F*2}"); a("s_mov_b32 s39, 0x20000")
    a("s_and_b32 s64, s70, 15"); a("s_mul_i32 s64, s64, 224")
    a("v_lshrrev_b32 v2, 4, v1"); a("v_and_b32 v3, 15, v1")
    a(f"s_mul_i32 s65, s{S_WAVE}, 56"); a("v_add_u32 v4, s65, v2")
    a("s_movk_i32 s65, 3584"); a("v_mul_lo_u32 v4, v4, s65"); a("v_lshl_add_u32 v4, v3, 4, v4"); a("v_add_u32 v4, s64, v4")
    for i in range(14):
        a(f"s_mov_b32 s67, {4*3584*i}")
        a(f"buffer_load_dwordx4 v[{8+4*i}:{11+4*i}], v4, s[36:39], s67 offen")
    for e in range(8): a(f"v_mov_b32 v{72+e}, 0")
    for i in range(14):
        a(f"s_waitcnt vmcnt({13-i})")
        for j in range(4):
            r = 8 + 4 * i + j
            a(f"v_lshlrev_b32 v80, 16, v{r}"); a(f"v_and_b32 v81, 0xffff0000, v{r}")
            a(f"v_add_f32 v{72+2*j}, v{72+2*j}, v80"); a(f"v_add_f32 v{73+2*j}, v{73+2*j}, v81")
    a(f"s_lshl_b32 s65, s{S_WAVE}, 2"); a("v_add_u32 v5, s65, v2"); a("v_lshlrev_b32 v5, 9, v5"); a("v_lshl_add_u32 v5, v3, 5, v5")
    a("ds_write_b128 v5, v[72:75]"); a("ds_write_b128 v5, v[76:79] offset:16")
    a("s_waitcnt lgkmcnt(0)"); a("s_barrier")
    a("v_lshlrev_b32 v5, 2, v0")
    a("v_cmp_gt_u32 vcc, 112, v0"); a("s_and_saveexec_b64 s[64:65], vcc"); a("s_cbranch_execz L_h_cs_done")
    for k in range(32): a(f"ds_read_b32 v{8+k}, v5 offset:{512*k}")
    a("s_waitcnt lgkmcnt(0)")
    for k in range(1, 32): a(f"v_add_f32 v8, v8, v{8+k}")
    a("s_mul_i32 s66, s70, 448"); a(f"s_add_u32 s66, s66, {WS_CS}"); a("v_add_u32 v5, s66, v5")
    a(f"buffer_store_dword v8, v5, {W}, 0 offen sc1")
    a.label("L_h_cs_done")
    a("s_mov_b64 exec, s[64:65]")
    a("s_waitcnt vmcnt(0)"); a("s_barrier")
    if "cs2" in OPT:
        a(f"s_lshl_b32 s64, s2, {FS()}"); a(f"s_add_u32 s64, s64, {WS_FLAG2}")
    else:
        a("s_lshl_b32 s64, s70, 6"); a(f"s_add_u32 s64, s64, {WS_FLAG3 + 2048}")
    publish_flag(a, 64)
    stamp(a, 3)
    a(f"s_mov_b32 s64, {WS_FLAG2}")
    wait_flags(a, "hs2", 64, 256 if "cs2" in OPT else 224, 4)
    stamp(a, 4)
    a("v_and_b32 v2, 31, v1"); a("v_lshrrev_b32 v3, 5, v1"); a(f"s_lshl_b32 s64, s{S_WAVE}, 1"); a("v_add_u32 v3, s64, v3")
    a(f"v_mul_u32_u24 v3, {HTS}, v3"); a("v_lshl_add_u32 v3, v2, 2, v3"); a("s_lshl_b32 s64, s70, 7"); a(f"s_add_u32 s64, s64, {WS_HT}"); a("v_add_u32 v3, s64, v3")
    for i in range(28):
        a(f"s_mov_b32 s67, {16*HTS*i}"); a(f"buffer_load_dword v{40+i}, v3, {W}, s67 offen")
    for r in range(4): a(f"v_mov_b32 v{8+r}, 0")
    for i in range(28):
        a(f"s_waitcnt vmcnt({27-i})")
        a(f"v_lshlrev_b32 v12, 16, v{40+i}"); a(f"v_and_b32 v13, 0xffff0000, v{40+i}")
        a("v_add_f32 v8, v8, v12"); a("v_add_f32 v9, v9, v13"); a("v_fma_f32 v10, v12, v12, v10"); a("v_fma_f32 v11, v13, v13, v11")
    for r in range(8, 12):
        a(f"v_mov_b32 v12, v{r}"); a(f"v_permlane32_swap_b32 v{r}, v12"); a(f"v_add_f32 v{r}, v{r}, v12")
    a(f"s_lshl_b32 s64, s{S_WAVE}, 9"); a("v_lshl_add_u32 v4, v2, 4, s64")
    a("ds_write_b128 v4, v[8:11]")
    a("s_waitcnt lgkmcnt(0)"); a("s_barrier")
    a("v_cmp_gt_u32 vcc, 64, v0"); a("s_and_saveexec_b64 s[64:65], vcc"); a("s_cbranch_execz L_h_g2_done")
    a("v_lshrrev_b32 v4, 1, v0"); a("v_lshlrev_b32 v4, 4, v4"); a("v_and_b32 v5, 1, v0"); a("v_lshl_add_u32 v4, v5, 2, v4")
    for k in range(8):
        a(f"ds_read_b32 v{16+k}, v4 offset:{512*k}"); a(f"ds_read_b32 v{24+k}, v4 offset:{512*k+8}")
    a("s_waitcnt lgkmcnt(0)")
    for k in range(1, 8):
        a(f"v_add_f32 v16, v16, v{16+k}"); a(f"v_add_f32 v24, v24, v{24+k}")
    stats_pack(a, 16, 24, 32, 34)
    a("v_and_b32 v33, 0xffff0000, v32"); a("v_lshlrev_b32 v32, 16, v32"); a("v_rcp_f32 v33, v33")
    a("s_lshl_b32 s66, s70, 9"); a(f"s_add_u32 s66, s66, {WS_G2}"); a("v_lshl_add_u32 v4, v0, 3, s66")
    a(f"buffer_store_dwordx2 v[32:33], v4, {W}, 0 offen sc1")
    a.label("L_h_g2_done")
    a("s_mov_b64 exec, s[64:65]")
    a("s_waitcnt vmcnt(0)"); a("s_barrier")
    a("s_lshl_b32 s64, s70, 6"); a(f"s_add_u32 s64, s64, {WS_FLAG3}")
    publish_flag(a, 64)
    stamp(a, 2)

def st2(a, i):
    if "convdiag" not in OPT: stamp(a, i)
def st3(a, i):
    if "convdiag" in OPT: stamp(a, i)
def phaseA(a, hooks):
    XPK = next((int(o[3:]) for o in OPT if o.startswith("xpk")), 8)
    TK = next((int(o[2:]) for o in OPT if o.startswith("tk")), 9)
    a(f"s_lshr_b32 s34, s{S_WAVE}, 2"); a(f"s_and_b32 s35, s{S_WAVE}, 3")
    xp_issue(a)
    srd(a, 40, 6, D * N * 2); srd(a, 44, 8, D * N * 2); srd(a, 48, 10, D * N * 2); srd(a, 52, 12, D * N * 2)
    a("s_and_b32 s64, s2, 7"); a("s_mul_i32 s64, s64, 28"); a("s_lshr_b32 s65, s2, 3"); a("s_add_u32 s75, s64, s65")
    a("s_lshl_b32 s64, s75, 2")
    a("s_load_dword s68, s[14:15], s64"); a("s_load_dword s69, s[16:17], s64")
    a("s_lshl_b32 s70, s75, 1"); a("s_add_u32 s70, s70, s34")
    a("s_lshl_b32 s65, s70, 9"); a("s_lshl_b32 s66, s35, 7"); a("s_add_u32 s65, s65, s66")
    a("v_lshl_add_u32 v3, v1, 1, s65")
    a("buffer_load_ushort v10, v3, s[40:43], 0 offen"); a("buffer_load_ushort v11, v3, s[44:47], 0 offen")
    a("buffer_load_ushort v12, v3, s[48:51], 0 offen"); a("buffer_load_ushort v13, v3, s[52:55], 0 offen")
    if "nopf" not in OPT and "pf0" not in OPT and "pfh" not in OPT: code_prefetch(a)
    if "tlb" in OPT: tlb_touch(a)
    if "tearly" in OPT: touch_weights(a, "m")
    if "G" in OPT:
        a("v_mul_u32_u24 v179, 896, v1"); a("s_lshl_b32 s65, s75, 2"); a("v_add_u32 v179, s65, v179")
        GW = next((int(o[2:]) for o in OPT if o.startswith("gw")), 1)
        for i in range(GW):
            a(f"s_mul_i32 s65, s{S_WAVE}, {GW}"); a(f"s_add_u32 s65, s65, {i}"); a("s_lshl_b32 s66, s65, 8"); a(f"s_add_u32 m0, s66, {RED0}")
            a(f"s_mul_i32 s67, s65, {64*896}"); a("buffer_load_dword v179, s[36:39], s67 offen lds")
        a(f"s_cmp_eq_u32 s{S_WAVE}, 7"); a("s_cbranch_scc0 L_g_skip")
        for i in range(8 * GW, 32):
            a(f"s_mov_b32 m0, {RED0 + 256*i}"); a(f"s_mov_b32 s67, {64*896*i}")
            a("buffer_load_dword v179, s[36:39], s67 offen lds")
        a.label("L_g_skip")
    a("v_lshlrev_b32 v7, 4, v0"); a(f"v_add_u32 v7, {SB}, v7")
    a("v_mov_b32 v20, 0\nv_mov_b32 v21, 0\nv_mov_b32 v22, 0\nv_mov_b32 v23, 0")
    a("v_cmp_gt_u32 vcc, 30, v0"); a("s_and_saveexec_b64 s[66:67], vcc")
    a(f"ds_write_b128 v7, v[20:23] offset:{UA0-SB}"); a(f"ds_write_b128 v7, v[20:23] offset:{UA0-SB+UA_CH}")
    a("s_mov_b64 exec, s[66:67]")
    a("v_and_b32 v8, 255, v0"); a("v_lshlrev_b32 v9, 3, v8"); a("v_sub_u32 v9, 2047, v9")
    for e in range(11): a(f"v_subrev_u32 v{30+e}, {e}, v9")
    for e in range(0, 12, 2):
        a(f"v_cvt_f32_i32 v{44+e}, v{30+e}")
        if e + 1 < 11: a(f"v_cvt_f32_i32 v{45+e}, v{31+e}")
        a(f"v_cvt_pk_bf16_f32 v{58+e//2}, v{44+e}, v{45+e if e+1 < 11 else 44+e}")
    for e in range(11):
        p = 58 + e // 2; r = 226 + e
        a(f"v_and_b32 v{r}, 0xffff, v{p}" if e % 2 == 0 else f"v_lshrrev_b32 v{r}, 16, v{p}")
        a(f"v_subrev_u32 v{r}, 17024, v{r}"); a(f"v_min_i32 v{30+e}, 128, v{30+e}"); a(f"v_max_i32 v{r}, v{r}, v{30+e}")
    a("v_mov_b32 v64, 641")
    for e in range(8, 11):
        a(f"v_cmp_gt_i32 vcc, {e}, v9"); a(f"v_cndmask_b32 v{226+e}, v{226+e}, v64, vcc")
    a(f"s_mul_i32 s66, s34, {TB_CH}"); a(f"s_add_u32 s72, s66, {TB0}")
    a("v_mov_b32 v65, s72")
    for e in range(11): a(f"v_lshl_add_u32 v{226+e}, v{226+e}, 1, v65")
    a(f"s_mul_i32 s66, s34, {KC_CH}"); a("s_add_u32 s66, s66, 32"); a("v_lshl_add_u32 v237, v8, 4, s66")
    a("v_and_b32 v9, 15, v1"); a("v_lshrrev_b32 v8, 4, v1")
    a(f"s_and_b32 s73, s{S_WAVE}, 1"); a(f"s_bfe_u32 s74, s{S_WAVE}, 0x10001")
    a("s_lshl_b32 s65, s73, 4"); a("v_add_u32 v30, s65, v9")
    a("v_lshlrev_b32 v31, 4, v30"); a("v_lshl_add_u32 v31, v8, 3, v31")
    a("v_lshlrev_b32 v32, 3, v30"); a("v_add_u32 v32, 512, v32")
    a("v_cmp_eq_u32 vcc, 2, v8"); a("v_cndmask_b32 v31, v31, v32, vcc")
    a("v_lshlrev_b32 v32, 2, v30"); a("v_add_u32 v32, 768, v32")
    a("v_add_u32 v33, 4, v31"); a("v_add_u32 v34, 128, v32")
    a("v_cmp_eq_u32 vcc, 3, v8"); a("v_cndmask_b32 v31, v31, v32, vcc"); a("v_cndmask_b32 v33, v33, v34, vcc")
    a("v_lshlrev_b32 v32, 1, v30"); a("v_add_u32 v32, 1024, v32"); a("v_mov_b32 v34, 1288")
    a("v_cmp_eq_u32 vcc, 0, v8")
    for r in range(4):
        a(f"v_add_u32 v35, {64*r}, v32"); a(f"v_cndmask_b32 v{238+r}, v34, v35, vcc")
    a("v_lshl_add_u32 v35, v8, 8, v30"); a("v_mov_b32 v36, 1280")
    a("v_cmp_eq_u32 vcc, 0x100, v35"); a("v_cndmask_b32 v238, v238, v36, vcc")
    a("s_cmp_eq_u32 s74, 0"); a("s_cbranch_scc0 L_tb_rt1")
    a("v_mov_b32 v238, v31"); a("v_mov_b32 v239, v33")
    a.label("L_tb_rt1")
    for r in range(4): a(f"v_add_u32 v{238+r}, s72, v{238+r}")
    a("v_mov_b32 v36, s72"); a("ds_write_b16 v36, v20 offset:1282")
    a(f"s_movk_i32 s65, {OPS}"); a("v_mul_lo_u32 v248, v9, s65"); a("v_lshl_add_u32 v248, v8, 4, v248")
    a(f"s_mul_i32 s66, s34, {OP_CH}"); a("v_add_u32 v248, s66, v248")
    a(f"s_mul_i32 s67, s73, {16*OPS}"); a(f"s_add_u32 s67, s67, {21*OPS}"); a("v_add_u32 v249, s67, v248")
    a(f"s_mul_i32 s67, s74, {16*OPS}"); a("v_add_u32 v248, s67, v248")
    a("v_sub_u32 v30, 3, v9"); a("v_and_b32 v30, 3, v30")
    a(f"s_movk_i32 s65, {KC_CP}"); a("v_mul_lo_u32 v31, v30, s65")
    a("v_lshlrev_b32 v32, 3, v8"); a("v_sub_u32 v32, v32, v9"); a("v_sub_u32 v32, v32, v30"); a("v_add_u32 v32, 2047, v32")
    a("v_lshl_add_u32 v31, v32, 1, v31")
    a(f"s_mul_i32 s66, s34, {KC_CH}"); a(f"s_sub_u32 s66, s66, {64*63}"); a("v_add_u32 v244, s66, v31")
    a(f"s_mul_i32 s66, s34, {UA_CH}"); a(f"s_add_u32 s66, s66, {UA0}")
    a("v_lshlrev_b32 v31, 5, v9"); a("v_lshl_add_u32 v31, v8, 4, v31"); a("v_add_u32 v245, s66, v31")
    a(f"s_mul_i32 s66, s34, {RA_CH}"); a(f"s_add_u32 s66, s66, {RA0}")
    a("v_lshlrev_b32 v31, 6, v9"); a("v_lshl_add_u32 v31, v8, 4, v31"); a("v_add_u32 v246, s66, v31")
    a(f"s_mul_i32 s66, s70, {HTS}"); a(f"s_add_u32 s66, s66, {WS_HT}")
    a("v_lshlrev_b32 v31, 5, v9"); a("v_lshl_add_u32 v31, v8, 3, v31"); a("v_add_u32 v247, s66, v31")
    a(f"s_mul_i32 s71, s34, {OP_CH}"); a("s_lshl_b32 s66, s35, 8"); a("s_add_u32 s71, s71, s66")
    if "prioA" in OPT:
        a(f"s_cmp_ge_u32 s{S_WAVE}, 4"); a("s_cbranch_scc0 L_prioA"); a("s_setprio 1"); a.label("L_prioA")
    a("s_waitcnt lgkmcnt(0)")
    a("s_lshl_b32 s65, s34, 4"); a("s_lshr_b32 s66, s68, s65"); a("s_lshl_b32 s66, s66, 16")
    a(f"v_mov_b32 v14, {LOG2E:#x}"); a("v_mul_f32 v15, s66, v14"); a("v_exp_f32 v15, v15")
    a("v_cvt_pk_bf16_f32 v15, v15, v15"); a("v_lshlrev_b32 v15, 16, v15")
    a("s_mov_b32 m0, s71")
    st2(a, 1)
    if "G" in OPT:
        GW = next((int(o[2:]) for o in OPT if o.startswith("gw")), 1)
        a(f"s_cmp_eq_u32 s{S_WAVE}, 7"); a("s_cbranch_scc1 L_g_w7")
        a(f"s_waitcnt vmcnt({GW})"); a("s_branch L_g_wd")
        a.label("L_g_w7"); a(f"s_waitcnt vmcnt({32 - 7*GW})")
        a.label("L_g_wd")
        xg_mid(a, "m")
    else:
        npf = (0 if ("nopf" in OPT or "pf0" in OPT or "pfh" in OPT) else 1) + (2 if "tlb" in OPT else 0)
        a(f"s_waitcnt vmcnt({5+npf})")
        xp_mid(a, "m")
        a(f"s_waitcnt vmcnt({1+npf})")
    a("s_mov_b32 m0, s71")
    st2(a, 2)
    a("v_lshlrev_b32 v16, 16, v10"); a("v_lshlrev_b32 v24, 16, v11"); a("v_mul_f32 v16, v14, v16"); a("v_mul_f32 v24, v24, v15")
    a("v_exp_f32 v16, v16"); a(f"v_mul_f32 v24, {INV2PI:#x}, v24")
    a("v_lshlrev_b32 v30, 16, v12"); a("v_lshlrev_b32 v31, 16, v13")
    a("v_cvt_pk_bf16_f32 v16, v16, v16"); a("v_add_f32 v26, v15, v15")
    a("v_lshlrev_b32 v18, 16, v16")
    a("v_mul_f32 v30, v30, v26"); a("v_mul_f32_e64 v31, -v31, v26")
    a("v_mul_f32 v18, v18, v15"); a("v_mul_f32_e64 v18, -v18, v14")
    P, Q = 18, 24
    X, Xb = 30, 34
    Z = {1: 40, 8: 44, 256: 48, 2: 52, 4: 56}
    for k, t in enumerate((8, 1, 256)):
        tm = 60 + 2 * k
        if t == 1:
            a(f"v_exp_f32 v{tm}, v{P}"); a(f"v_fract_f32 v{tm+1}, v{Q}")
        else:
            c = {8: 0x41000000, 256: 0x43800000}[t]
            a(f"v_mul_f32 v{tm}, {c:#x}, v{P}"); a(f"v_mul_f32 v{tm+1}, {c:#x}, v{Q}")
            a(f"v_exp_f32 v{tm}, v{tm}"); a(f"v_fract_f32 v{tm+1}, v{tm+1}")
    for k, t in enumerate((8, 1, 256)):
        tm = 60 + 2 * k; z = Z[t]
        a(f"v_cos_f32 v{z}, v{tm+1}"); a(f"v_sin_f32 v{z+1}, v{tm+1}")
    for k, t in enumerate((8, 1, 256)):
        tm = 60 + 2 * k; z = Z[t]
        a(f"v_mul_f32 v{z}, v{z}, v{tm}"); a(f"v_mul_f32 v{z+1}, v{z+1}, v{tm}")
    T, T2 = 72, 76
    pk = [80, 81, 82, 83, 84, 85]; pki = [0]
    def put(row, src):
        r = pk[pki[0] % 6]; pki[0] += 1
        a(f"v_cvt_pk_bf16_f32 v{r}, v{src}, v{src+1}")
        a(f"ds_write_addtid_b32 v{r} offset:{row*OPS}")
    Y, X256, X512, X768, XW = 88, 92, 96, 100, 104
    put(0, X); put(22, Z[8])
    a("v_mov_b32 v108, 0x3f80"); a(f"ds_write_addtid_b32 v108 offset:{21*OPS}")
    a(cmul1(0, Z[1], Z[1], T)); a(cmul2(Z[2], Z[1], Z[1], T, False))
    a(cmul1(0, Z[2], Z[2], T)); a(cmul2(Z[4], Z[2], Z[2], T, False))
    xs = [(c, Xb, X if c == 1 else Xb, Z[1]) for c in range(1, 8)]
    xs += [(8, X256, X, Z[256]), (9, XW, X256, Z[2]), (10, XW, XW, Z[2]), (11, XW, XW, Z[2]), (12, X512, X256, Z[256]),
           (13, XW, X512, Z[4]), (14, X768, X512, Z[256]), (15, XW, X768, Z[4]), (16, XW, X768, Z[256])]
    for r in range(17, 21): xs.append((r, XW, XW, Z[256]))
    def s1_issue():
        a(f"buffer_load_dword v223, v3, {W}, 0 offen sc1")
    for k, b in enumerate(range(2, 32)):
        src = Z[8] if b == 2 else Y
        x = xs[k] if k < len(xs) else None
        a(cmul1(0, src, Z[8], T))
        if x: a(cmul1(0, x[2], x[3], T2))
        a(cmul2(Y, src, Z[8], T, False))
        if x: a(cmul2(x[1], x[2], x[3], T2, True))
        put(21 + b, Y)
        if x: put(x[0], x[1])
        if k == XPK and "G" not in OPT:
            xp_pub(a, "m")
        L2K = next((int(o[3:]) for o in OPT if o.startswith("l2k")), -1)
        if k == L2K: touch_w13(a)
        L2C = next((int(o[3:]) for o in OPT if o.startswith("l2c")), -1)
        if k == L2C:
            srd(a, 76, 24, F * D * 2)
            a("s_lshr_b32 s64, s2, 3"); a("s_mul_i32 s64, s64, 448"); a(f"s_min_u32 s65, s{S_WAVE}, 6"); a("s_lshl_b32 s65, s65, 6"); a("s_add_u32 s64, s64, s65")
            a("v_add_u32 v171, s64, v1"); a("v_lshlrev_b32 v171, 7, v171")
            a("buffer_load_dword v170, v171, s[76:79], 0 offen")
        if k == TK and "notouch" not in OPT and "htouch" not in OPT:
            touch_weights(a, "m")
    st2(a, 3)
    a("s_waitcnt lgkmcnt(0)"); a("s_barrier")
    st2(a, 4)
    if "G" in OPT:
        a("v_and_b32 v221, 255, v0"); a("v_lshlrev_b32 v221, 6, v221")
        def g_issue():
            for i in range(4): a(f"buffer_load_dwordx4 v[{204+4*i}:{207+4*i}], v221, {W}, 0 offen offset:{WS_GRAN+16*i} sc1")
        g_issue()
    else:
        a("v_and_b32 v3, 255, v0"); a(f"v_lshlrev_b32 v3, {FS()}, v3"); a(f"v_add_u32 v3, {WS_FLAG1}, v3")
        s1_issue()
    for r in range(4): a(f"v_mov_b32 v{16+r}, 0")
    NR = 6
    def rd(s):
        b = 32 + 8 * (s % NR)
        a(f"ds_read_b128 v[{b}:{b+3}], v248 offset:{64*s}"); a(f"ds_read_b128 v[{b+4}:{b+7}], v249 offset:{64*s}")
    for s in range(NR - 1): rd(s)
    for s in range(16):
        if s + NR - 1 < 16: rd(s + NR - 1)
        a(f"s_waitcnt lgkmcnt({2*min(15-s, NR-1)})")
        b = 32 + 8 * (s % NR)
        a(f"v_mfma_f32_16x16x32_bf16 v[16:19], v[{b}:{b+3}], v[{b+4}:{b+7}], v[16:19]")
        if s == 9 and "G" not in OPT:
            a("s_mov_b32 s66, 0")
            a.label("L_s1_chk")
            a("s_waitcnt vmcnt(0)")
            a(f"v_cmp_ne_u32 vcc, s{S_NONCE}, v223")
            a("s_cbranch_vccz L_s1_ok")
            a("s_add_u32 s66, s66, 1"); a(f"s_cmp_gt_u32 s66, {SPIN_MAX}"); a("s_cbranch_scc1 L_s1_ok")
            if "mask" in OPT: a("s_mov_b64 exec, vcc")
            s1_issue()
            if "mask" in OPT: a("s_mov_b64 exec, -1")
            a("s_branch L_s1_chk")
            a.label("L_s1_ok")
            a("v_and_b32 v8, 255, v0")
            a(f"v_mul_u32_u24 v3, {X8S}, v8"); a("s_lshl_b32 s66, s70, 4"); a(f"s_add_u32 s66, s66, {WS_XT}"); a("v_add_u32 v3, s66, v3")
            a(f"buffer_load_dwordx4 v[200:203], v3, {W}, 0 offen")
            a(f"s_cmp_lt_u32 s{S_WAVE}, 4"); a("s_cbranch_scc0 L_s1_nost")
            a(f"s_lshl_b32 s66, s{S_WAVE}, 12"); a("v_lshl_add_u32 v3, v1, 4, s66")
            for i in range(4):
                a(f"s_add_u32 m0, s66, {RED0}"); a(f"buffer_load_dwordx4 v3, {W}, 0 offen offset:{1024*i} lds")
            a.label("L_s1_nost")
    a("v_cvt_pk_bf16_f32 v16, v16, v17"); a("v_cvt_pk_bf16_f32 v17, v18, v19")
    a("s_cmp_eq_u32 s74, 0"); a("s_cbranch_scc0 L_tw_rt1")
    a("ds_write_b32 v238, v16"); a("ds_write_b32 v239, v17"); a("s_branch L_tw_done")
    a.label("L_tw_rt1")
    a("ds_write_b16 v238, v16"); a("ds_write_b16_d16_hi v239, v16"); a("ds_write_b16 v240, v17"); a("ds_write_b16_d16_hi v241, v17")
    a.label("L_tw_done")
    a("s_waitcnt lgkmcnt(0)"); a("s_barrier")
    stamp(a, 5)
    hooks["setup"](a)
    stamp(a, 6)
    for e in range(11): a(f"ds_read_u16 v{70+e}, v{226+e}")
    a("v_mov_b32 v20, 0\nv_mov_b32 v21, 0\nv_mov_b32 v22, 0\nv_mov_b32 v23, 0")
    a("v_lshrrev_b32 v16, 1, v0"); a(f"s_movk_i32 s65, {KC_CP}"); a("v_mul_lo_u32 v16, v16, s65")
    a("v_and_b32 v17, 1, v0"); a("v_lshl_add_u32 v16, v17, 4, v16")
    a("s_waitcnt lgkmcnt(0)")
    for c in range(4):
        o = 110 + 4 * c
        for k in range(4):
            lo = 70 + c + 2 * k
            a(f"v_lshl_or_b32 v{o+k}, v{lo+1}, 16, v{lo}")
        a(f"ds_write_b128 v237, v[{o}:{o+3}] offset:{KC_CP*c}")
    a("v_cmp_gt_u32 vcc, 16, v0"); a("s_and_saveexec_b64 s[66:67], vcc")
    a("ds_write_b128 v16, v[20:23] offset:4128"); a("s_mov_b64 exec, s[66:67]")
    if "two" in OPT:
        for k in range(9): hooks["dma"](a, k, 5 + k)
    stamp(a, 7)
    a("s_lshl_b32 s65, s34, 4"); a("s_lshr_b32 s64, s69, s65"); a("s_lshl_b32 s64, s64, 16")
    if "G" in OPT:
        a("s_mov_b32 s66, 0")
        a.label("L_s1_chk")
        a("s_waitcnt vmcnt(0)")
        a(f"v_xor_b32 v16, s{S_NONCE}, v205")
        for i in range(1, 8):
            a(f"v_xor_b32 v17, s{S_NONCE}, v{205+2*i}"); a("v_or_b32 v16, v16, v17")
        a("v_cmp_ne_u32 vcc, 0, v16"); a("s_cbranch_vccz L_s1_ok")
        a("s_add_u32 s66, s66, 1"); a(f"s_cmp_gt_u32 s66, {SPIN_MAX}"); a("s_cbranch_scc1 L_s1_ok")
        g_issue()
        a("s_branch L_s1_chk")
        a.label("L_s1_ok")
        a("s_barrier")
        a("v_and_b32 v8, 255, v0"); a(f"v_lshlrev_b32 v9, 5, v8"); a(f"v_add_u32 v9, {RED0}, v9")
        a("ds_read_b128 v[192:195], v9"); a("ds_read_b128 v[196:199], v9 offset:16")
        a("s_xor_b32 s65, s34, 1"); a("s_lshl_b32 s65, s65, 4")
        for i in range(8):
            st = 204 + 2 * i
            a(f"v_and_b32 v{60+i}, 0xffff0000, v{st}"); a(f"v_rcp_f32 v{60+i}, v{60+i}"); a(f"v_lshlrev_b32 v{68+i}, 16, v{st}")
        a("s_waitcnt lgkmcnt(0)")
        for i in range(8):
            a(f"v_lshlrev_b32 v{30+i}, s65, v{192+i}"); a(f"v_and_b32 v{30+i}, 0xffff0000, v{30+i}")
            a(f"v_sub_f32 v{40+i}, v{30+i}, v{68+i}"); a(f"v_mul_f32 v{40+i}, v{40+i}, v{60+i}")
            a(f"v_fma_f32 v{48+i}, v{40+i}, s64, v{30+i}")
    else:
        a("s_waitcnt vmcnt(9)" if "two" in OPT else "s_waitcnt vmcnt(0)"); a("s_barrier")
        a("v_and_b32 v8, 255, v0"); a(f"v_lshlrev_b32 v9, 6, v8"); a(f"v_add_u32 v9, {RED0}, v9")
        for i in range(4): a(f"ds_read_b128 v[{204+4*i}:{207+4*i}], v9 offset:{16*i}")
        a("s_waitcnt lgkmcnt(0)")
        for i in range(8):
            x = 200 + i // 2; st = 204 + 2 * i
            a(f"v_lshlrev_b32 v{30+i}, 16, v{x}" if i % 2 == 0 else f"v_and_b32 v{30+i}, 0xffff0000, v{x}")
            a(f"v_fma_f32 v{40+i}, v{30+i}, v{st}, v{st+1}")
            a(f"v_fma_f32 v{48+i}, v{40+i}, s64, v{30+i}")
    for k in range(4): a(f"v_cvt_pk_bf16_f32 v{56+k}, v{40+2*k}, v{41+2*k}")
    a("v_and_b32 v8, 255, v0")
    a(f"s_mul_i32 s66, s34, {UA_CH}"); a(f"s_add_u32 s66, s66, {UA0+480}"); a("v_lshl_add_u32 v9, v8, 4, s66")
    a("ds_write_b128 v9, v[56:59]")
    a(f"s_mul_i32 s66, s34, {RA_CH}"); a(f"s_add_u32 s66, s66, {RA0}"); a("v_lshl_add_u32 v9, v8, 5, s66")
    a("ds_write_b128 v9, v[48:51]"); a("ds_write_b128 v9, v[52:55] offset:16")
    a("s_waitcnt vmcnt(0) lgkmcnt(0)"); a("s_barrier")
    stamp(a, 8)
    if "two" in OPT: hooks["tr1"](a)
    for v in range(3):
        a(f"s_cmp_eq_u32 s35, {v}"); a(f"s_cbranch_scc1 L_conv{v}")
    a("s_branch L_conv3")
    for v in range(4):
        a.label(f"L_conv{v}")
        conv(a, v, hooks["dma"])
        if v < 3: a("s_branch L_conv_done")
    a.label("L_conv_done")
    stamp(a, 9)
    a("s_waitcnt vmcnt(0)")
    stamp(a, 10)
    a("s_barrier")
    a(f"s_lshl_b32 s64, s2, {FS()}"); a(f"s_add_u32 s64, s64, {WS_FLAG2}")
    publish_flag(a, 64)
    stamp(a, 11)

def conv(a, p, dma):
    S = [s for s in range(64) if s % 4 == p]
    steps = {s: [(t, 8 * t - s) for t in range(7, -1, -1) if s <= 8 * t + 7] for s in S}
    betas = sorted({b for s in S for t, b in steps[s]}, reverse=True)
    assert len(betas) == 16
    breg = {b: 48 + 4 * i for i, b in enumerate(betas)}
    NAR = 4; PFD = 3
    issued = []
    def ldA(k):
        sa = S[k]; r = 112 + 4 * (k % NAR)
        a(f"ds_read_b64 v[{r}:{r+1}], v244 offset:{64*(63-sa)}"); a(f"ds_read_b64 v[{r+2}:{r+3}], v244 offset:{64*(63-sa)+8}")
        issued.extend([("A", k)] * 2)
    first = {}
    for k, s in enumerate(S):
        for t, b in steps[s]: first.setdefault(b, k)
    def ldB(b):
        a(f"ds_read_b128 v[{breg[b]}:{breg[b]+3}], v245 offset:{64*(b+7)}"); issued.append(("B", b))
    a("v_lshlrev_b32 v2, 4, v1")
    for q in range(4):
        if q == p: continue
        src = [x for x in range(4) if x != q].index(p)
        a(f"s_lshl_b32 s64, s34, 2"); a(f"s_add_u32 s64, s64, {q}"); a("s_mul_i32 s64, s64, 6144"); a(f"s_add_u32 s64, s64, {SB + 2048*src}")
        a(f"v_add_u32 v{4+q}, s64, v2")
    sendq = [q for q in range(4) if q != p]
    def send(q):
        sendq.remove(q)
        a(f"ds_write_b128 v{4+q}, v[{16+8*q}:{19+8*q}]"); a(f"ds_write_b128 v{4+q}, v[{20+8*q}:{23+8*q}] offset:1024")
        issued.extend([("W", q)] * 2)
    st3(a, 1)
    ldA(0)
    for t, b in steps[S[0]]: ldB(b)
    ldA(1)
    if p == 0:
        for t in range(8):
            a(f"ds_read_b128 v[{16+4*t}:{19+4*t}], v246 offset:{1024*t}"); issued.append(("R", t))
    else:
        for r in range(32): a(f"v_mov_b32 v{16+r}, 0")
    for b in betas:
        if first[b] >= 1: ldB(b)
    ldA(2)
    for k, s in enumerate(S):
        if k + PFD < len(S): ldA(k + PFD)
        need = max(i for i, x in enumerate(issued) if x == ("A", k))
        for t, b in steps[s]:
            need = max(need, max(i for i, x in enumerate(issued) if x == ("B", b)))
        if k == 0 and p == 0: need = max(need, max(i for i, x in enumerate(issued) if x[0] == "R"))
        n = len(issued) - 1 - need
        a(f"s_waitcnt lgkmcnt({min(n, 15)})")
        if k == 0: st3(a, 2)
        if k == 1: a("s_barrier")
        ra = 112 + 4 * (k % NAR)
        for j, (t, b) in enumerate(steps[s]):
            a(f"v_mfma_f32_16x16x32_bf16 v[{16+4*t}:{19+4*t}], v[{ra}:{ra+3}], v[{breg[b]}:{breg[b]+3}], v[{16+4*t}:{19+4*t}]")
        for q in list(sendq):
            if k >= 3 and S[k - 2] + 4 > 16 * q + 15 and k - 2 >= 0: send(q)
        if "two" in OPT:
            if 2 + p <= k <= 10 + p: dma(a, 9 + k - 2 - p, 5 + k - 2 - p)
        elif 1 + 2 * p <= k <= 9 + 2 * p: dma(a, k - 1 - 2 * p, 5 + k - 1 - 2 * p)
    st3(a, 3)
    for q in list(sendq): send(q)
    a(f"s_mul_i32 s64, s{S_WAVE}, 6144"); a(f"s_add_u32 s64, s64, {SB}"); a("v_add_u32 v3, s64, v2")
    a("s_waitcnt lgkmcnt(0)"); a("s_barrier")
    st3(a, 4)
    for j in range(3):
        a(f"ds_read_b128 v[{48+8*j}:{51+8*j}], v3 offset:{2048*j}"); a(f"ds_read_b128 v[{52+8*j}:{55+8*j}], v3 offset:{2048*j+1024}")
    a("s_waitcnt lgkmcnt(0)")
    A = 16 + 8 * p
    for j in range(3):
        for r in range(8): a(f"v_add_f32 v{A+r}, v{A+r}, v{48+8*j+r}")
    for i in range(2):
        t = 2 * p + i; o = 80 + 2 * i
        a(f"v_cvt_pk_bf16_f32 v{o}, v{A+4*i}, v{A+4*i+1}"); a(f"v_cvt_pk_bf16_f32 v{o+1}, v{A+4*i+2}, v{A+4*i+3}")
        a(f"buffer_store_dwordx2 v[{o}:{o+1}], v247, {W}, 0 offen offset:{512*t} sc1")
```

```python
from asm import *
from p8a import *

class VM:
    def __init__(self): self.q = []
    def issue(self, tag): self.q.append(tag)
    def wait_for(self, a, pred):
        last = max((i for i, t in enumerate(self.q) if pred(t)), default=-1)
        n = len(self.q) - 1 - last
        a(f"s_waitcnt vmcnt({min(n,63)})")

def tr_lane_decode(a):
    a("v_lshrrev_b32 v8, 4, v1"); a("v_and_b32 v9, 1, v8"); a("v_lshrrev_b32 v10, 1, v8")
    a("v_bfe_u32 v11, v1, 2, 2"); a("v_and_b32 v12, 3, v1")
    a("v_lshl_add_u32 v13, v10, 3, v11")

AW = 128
S_RB, S_RC = 51, 48
def rot_off(a, r, rho, stride, mod=28):
    if "norot" in OPT:
        a(f"s_mov_b32 s67, {stride*r}"); return
    a(f"s_add_u32 s67, s{rho}, {r}"); a(f"s_sub_u32 s65, s67, {mod}"); a(f"s_cmp_ge_u32 s67, {mod}"); a("s_cselect_b32 s67, s65, s67")
    a(f"s_mul_i32 s67, s67, {stride}")
NEARLY = 9
def bw_setup(a):
    a("s_and_b32 s64, s2, 7"); a("s_lshr_b32 s65, s2, 3")
    a("s_lshr_b32 s41, s64, 1"); a("s_lshl_b32 s41, s41, 2"); a("s_and_b32 s66, s65, 3"); a("s_add_u32 s41, s41, s66")
    a("s_and_b32 s40, s64, 1"); a("s_mul_i32 s40, s40, 7"); a("s_lshr_b32 s66, s65, 2"); a("s_add_u32 s40, s40, s66")
    if "xloc" in OPT:
        a("s_cmp_ge_u32 s65, 14"); a("s_cselect_b32 s66, 1, 0"); a("s_lshl_b32 s41, s64, 1"); a("s_add_u32 s41, s41, s66")
        a("s_mul_i32 s66, s66, 14"); a("s_sub_u32 s40, s65, s66")
    a("s_and_b32 s64, s65, 3"); a("s_mul_i32 s64, s64, 3"); a("s_lshr_b32 s66, s65, 2"); a("s_lshl_b32 s66, s66, 1"); a("s_add_u32 s64, s64, s66")
    a("s_sub_u32 s66, s64, 14"); a("s_cmp_ge_u32 s64, 14"); a("s_cselect_b32 s64, s66, s64"); a("s_sub_u32 s66, s64, 14"); a("s_cmp_ge_u32 s64, 14"); a("s_cselect_b32 s64, s66, s64")
    a(f"s_lshl_b32 s{S_RB}, s64, 1")
    a(f"s_lshr_b32 s42, s{S_WAVE}, 2"); a(f"s_lshl_b32 s43, s{S_WAVE}, 10")
    a("s_cmp_eq_u32 s42, 0")
    a("s_cselect_b32 s52, s20, s22"); a("s_cselect_b32 s53, s21, s23")
    a(f"s_mov_b32 s54, {D*F*2}"); a("s_mov_b32 s55, 0x20000")
    a("v_lshrrev_b32 v2, 4, v1"); a("v_and_b32 v3, 15, v1")
    a("v_lshlrev_b32 v250, 1, v2"); a("v_add_u32 v250, s42, v250"); a("v_lshlrev_b32 v250, 1, v250"); a("v_xor_b32 v250, v250, v3"); a("v_lshlrev_b32 v250, 4, v250")
    a(f"s_and_b32 s64, s{S_WAVE}, 3"); a("s_lshl_b32 s64, s64, 2"); a("v_add_u32 v2, s64, v2")
    a("s_movk_i32 s65, 3584"); a("v_mul_lo_u32 v2, v2, s65"); a("v_add_u32 v250, v250, v2")
    a("s_lshl_b32 s65, s40, 8"); a("v_add_u32 v250, s65, v250")
def bw_dma(a, ks, slot, vreg=250):
    a(f"s_add_u32 m0, s43, {8192*slot}"); rot_off(a, ks, S_RB, 57344)
    a(f"buffer_load_dwordx4 v{vreg}, s[52:55], s67 offen lds")
def bw_tr_setup(a):
    tr_lane_decode(a)
    a("v_and_b32 v14, 1, v12"); a(f"s_lshl_b32 s64, s{S_WAVE}, 1"); a("v_add_u32 v14, s64, v14")
    a("v_lshlrev_b32 v15, 1, v11"); a("v_add_u32 v15, v15, v9"); a("v_lshlrev_b32 v15, 1, v15")
    a("v_xor_b32 v14, v14, v15"); a("v_lshlrev_b32 v14, 4, v14")
    a("v_lshrrev_b32 v15, 1, v12"); a("v_lshl_add_u32 v14, v15, 3, v14")
    a("v_lshl_add_u32 v14, v13, 8, v14"); a("v_lshl_add_u32 v14, v9, 12, v14")
    a("s_lshl_b32 s64, s42, 10"); a("v_add_u32 v240, s64, v14"); a("s_xor_b32 s64, s64, 1024"); a("v_add_u32 v241, s64, v14")
    a("v_add_u32 v242, 0x10000, v240"); a("v_add_u32 v243, 0x10000, v241")
def bw_tr1(a):
    bw_tr_setup(a)
    for ks in range(9):
        off = 8192 * (5 + ks); r = AW + 4 * ks; va = 240 + 2 * (off >> 16); o = off & 0xffff
        a(f"ds_read_b64_tr_b16 v[{r}:{r+1}], v{va} offset:{o}"); a(f"ds_read_b64_tr_b16 v[{r+2}:{r+3}], v{va+1} offset:{o}")
    a("s_waitcnt lgkmcnt(0)")

def cw_setup(a):
    a("s_and_b32 s64, s2, 7"); a("s_mul_i32 s64, s64, 28"); a("s_lshr_b32 s65, s2, 3"); a("s_add_u32 s64, s64, s65")
    a("s_mul_i32 s79, s64, 9363"); a("s_lshr_b32 s79, s79, 16"); a("s_mul_i32 s65, s79, 7"); a("s_sub_u32 s78, s64, s65")
    a(f"s_and_b32 s76, s{S_WAVE}, 3"); a(f"s_lshr_b32 s77, s{S_WAVE}, 2"); a("s_lshr_b32 s50, s76, 1")
    srd(a, 44, 24, F * D * 2)
    a("s_and_b32 s64, s79, 3"); a("s_mul_i32 s64, s64, 7"); a("s_lshl_b32 s65, s78, 2"); a("s_add_u32 s64, s64, s65")
    a("s_sub_u32 s65, s64, 28"); a("s_cmp_ge_u32 s64, 28"); a(f"s_cselect_b32 s{S_RC}, s65, s64")
    a("v_lshrrev_b32 v3, 3, v1"); a("v_and_b32 v4, 7, v1")
    a("v_bfe_u32 v20, v3, 1, 1"); a("v_lshlrev_b32 v20, 2, v20"); a("v_xor_b32 v20, v20, v4"); a("v_lshlrev_b32 v20, 4, v20")
    a("s_mul_i32 s64, s76, 448"); a("s_lshl_b32 s65, s77, 3"); a("s_add_u32 s64, s64, s65"); a("v_add_u32 v3, s64, v3")
    a("s_movk_i32 s65, 896"); a("v_mul_lo_u32 v3, v3, s65"); a("v_add_u32 v20, v20, v3")
    a("s_lshl_b32 s65, s78, 7"); a("v_add_u32 v20, s65, v20")
    if "priv" in OPT:
        a("v_lshrrev_b32 v3, 2, v1"); a("s_mul_i32 s64, s76, 448"); a("v_add_u32 v3, s64, v3"); a("s_movk_i32 s65, 896"); a("v_mul_lo_u32 v20, v3, s65")
        a("v_and_b32 v4, 3, v1"); a("v_lshl_add_u32 v20, v4, 4, v20"); a("s_lshl_b32 s65, s78, 7"); a("s_lshl_b32 s64, s77, 6"); a("s_add_u32 s65, s65, s64"); a("v_add_u32 v20, s65, v20")
        a(f"s_lshl_b32 s49, s{S_WAVE}, 10")
        a("v_xor_b32 v14, s50, v9"); a("v_lshlrev_b32 v14, 2, v14")
        a("v_and_b32 v15, 1, v12"); a("v_lshl_add_u32 v14, v15, 1, v14"); a("v_lshrrev_b32 v15, 1, v12"); a("v_add_u32 v14, v14, v15")
        a("v_lshlrev_b32 v14, 3, v14"); a("v_lshl_add_u32 v14, v13, 6, v14")
        a("v_add_u32 v14, s49, v14"); a("v_add_u32 v15, 0x10000, v14"); a("v_add_u32 v18, 0x20000, v14")
        return
    a("s_lshl_b32 s49, s76, 11"); a("s_lshl_b32 s64, s77, 10"); a("s_add_u32 s49, s49, s64")
    a("v_xor_b32 v14, s50, v9"); a("v_lshlrev_b32 v14, 1, v14")
    a("v_and_b32 v15, 1, v12"); a("v_add_u32 v14, v14, v15"); a("s_lshl_b32 s64, s77, 2"); a("v_add_u32 v14, s64, v14")
    a("v_bfe_u32 v15, v11, 1, 1"); a("v_lshlrev_b32 v15, 2, v15"); a("v_xor_b32 v14, v14, v15"); a("v_lshlrev_b32 v14, 4, v14")
    a("v_lshrrev_b32 v15, 1, v12"); a("v_lshl_add_u32 v14, v15, 3, v14"); a("v_lshl_add_u32 v14, v13, 7, v14")
    a("s_lshl_b32 s64, s76, 11"); a("v_add_u32 v14, s64, v14"); a("v_add_u32 v15, 0x10000, v14"); a("v_add_u32 v18, 0x20000, v14")
def cw_dma(a, ksl, unit):
    a(f"s_add_u32 m0, s49, {8192*unit}"); rot_off(a, ksl, S_RC, 14336)
    a("buffer_load_dwordx4 v20, s[44:47], s67 offen lds")
def cw_tr(ksl, unit):
    r = AW + 4 * ksl; off = 8192 * unit; reg = [14, 15, 18][off >> 16]; off &= 0xffff
    second = 256 if "priv" in OPT else 512
    return [f"ds_read_b64_tr_b16 v[{r}:{r+1}], v{reg} offset:{off}", f"ds_read_b64_tr_b16 v[{r+2}:{r+3}], v{reg} offset:{off+second}"]

class LG:
    def __init__(self): self.q = []
    def issue(self, tag): self.q.append(tag)
    def wait_for(self, a, pred):
        last = max((i for i, t in enumerate(self.q) if pred(t)), default=-1)
        a(f"s_waitcnt lgkmcnt({min(len(self.q) - 1 - last, 15)})")

def phaseB(a):
    tr_lane_decode(a)
    a("v_and_b32 v14, 1, v12"); a(f"s_lshl_b32 s64, s{S_WAVE}, 1"); a("v_add_u32 v14, s64, v14")
    a("v_lshlrev_b32 v15, 1, v11"); a("v_add_u32 v15, v15, v9"); a("v_lshlrev_b32 v15, 1, v15")
    a("v_xor_b32 v14, v14, v15"); a("v_lshlrev_b32 v14, 4, v14")
    a("v_lshrrev_b32 v15, 1, v12"); a("v_lshl_add_u32 v14, v15, 3, v14")
    a("v_lshl_add_u32 v14, v13, 8, v14"); a("v_lshl_add_u32 v14, v9, 12, v14")
    a("s_lshl_b32 s64, s42, 10"); a("v_add_u32 v16, s64, v14"); a("s_xor_b32 s64, s64, 1024"); a("v_add_u32 v17, s64, v14")
    a("v_add_u32 v18, 0x10000, v16"); a("v_add_u32 v19, 0x10000, v17")
    def tr_w(ks, slot):
        off = 8192 * slot; r = AW + 4 * ks
        va = 16 + 2 * (off >> 16); o = off & 0xffff
        a(f"ds_read_b64_tr_b16 v[{r}:{r+1}], v{va} offset:{o}"); a(f"ds_read_b64_tr_b16 v[{r+2}:{r+3}], v{va+1} offset:{o}")
    TWO = "two" in OPT
    if TWO:
        for ks in range(9, 18): tr_w(ks, ks - 4)
        a("s_waitcnt lgkmcnt(0)"); a("s_barrier")
        for ks in range(18, 28): bw_dma(a, ks, ks - 18)
    else:
        for ks in range(9): tr_w(ks, 5 + ks)
        a("s_waitcnt lgkmcnt(0)"); a("s_barrier")
        for ks in range(9, 18): bw_dma(a, ks, ks - 9)
    stamp(a, 1)
    for jj in range(4):
        a(f"s_add_u32 s64, s{S_WAVE}, {jj}"); a("s_and_b32 s64, s64, 3")
        a(f"v_xor_b32 v{22+jj}, s64, v11"); a(f"v_lshlrev_b32 v{22+jj}, 6, v{22+jj}")
        a(f"v_lshl_add_u32 v{22+jj}, v13, 8, v{22+jj}")
        a(f"v_lshl_add_u32 v{22+jj}, v9, 5, v{22+jj}"); a(f"v_lshl_add_u32 v{22+jj}, v12, 3, v{22+jj}")
        a("s_lshl_b32 s64, s42, 10"); a(f"v_add_u32 v{22+jj}, s64, v{22+jj}")
        a("s_lshl_b32 s64, s42, 11"); a("s_sub_u32 s64, 1024, s64"); a(f"v_add_u32 v{26+jj}, s64, v{22+jj}")
    for r in range(64): a(f"v_mov_b32 v{64+r}, 0")
    a("v_lshrrev_b32 v3, 4, v1"); a("v_and_b32 v4, 15, v1")
    a("v_lshlrev_b32 v21, 2, v3"); a("v_xor_b32 v21, v21, v4"); a("v_lshlrev_b32 v21, 4, v21")
    a(f"v_mul_u32_u24 v6, {HTS}, v3"); a("v_add_u32 v21, v21, v6")
    a(f"s_mul_i32 s64, s{S_WAVE}, {4*HTS}"); a("s_lshl_b32 s65, s41, 8"); a("s_add_u32 s64, s64, s65"); a(f"s_add_u32 s64, s64, {WS_HT}")
    a("v_add_u32 v21, s64, v21")
    a("s_waitcnt vmcnt(0)"); a("s_barrier")
    a(f"s_mov_b32 s64, {WS_FLAG2}")
    poll_issue(a, "s2", 64, 256 if "cs2" in OPT else 224, 4, 32)
    if TWO:
        for ks in range(18, 28): tr_w(ks, ks - 18)
        a("s_waitcnt lgkmcnt(0)"); cw_setup(a)
    else:
        for ks in range(9, 18): tr_w(ks, ks - 9)
        a("v_mov_b32 v5, v16"); a("v_mov_b32 v6, v17")
        a("s_waitcnt lgkmcnt(0)"); cw_setup(a)
        a("v_mov_b32 v16, v5"); a("v_mov_b32 v17, v6")
        a("v_add_u32 v19, 0x24000, v17"); a("v_add_u32 v13, 0x24000, v16")
        a("v_add_u32 v16, 0x14000, v16"); a("v_add_u32 v17, 0x14000, v17")
        a("v_mov_b32 v12, v250")

    stamp(a, 2)
    if "pf2" in OPT: code_prefetch(a, vt=2)
    a("s_waitcnt vmcnt(0)")
    poll_check(a, "s2", 4, 32, count=256 if "cs2" in OPT else 224)
    stamp(a, 3)
    vm = VM(); lg = LG()
    def dma_h(g):
        a(f"s_add_u32 m0, s43, {8192*g}"); rot_off(a, 2 * g, S_RB, 16 * HTS)
        a(f"buffer_load_dwordx4 v21, {W}, s67 offen lds"); vm.issue(("H", g))
    HPRE = next((int(o[4:]) for o in OPT if o.startswith("hpre")), 4)
    for g in range(HPRE): dma_h(g)
    FR = [32, 48, 240]
    hi = [False]
    def reads(ks):
        fb = FR[ks % 3]
        pre = []
        if ks >= 16 and not hi[0]:
            hi[0] = True
            pre = [f"v_add_u32 v{22+jj}, 0x10000, v{22+jj}" for jj in range(8)]
        ho = 4096 * (ks - 16 if ks >= 16 else ks)
        return pre, [f"ds_read_b64_tr_b16 v[{fb+4*jj+2*h}:{fb+4*jj+2*h+1}], v{22+4*h+jj} offset:{ho}" for jj in range(4) for h in range(2)]
    NK = 28
    bars = {2: 7, 6: 15, 10: 19, 14: 19, 18: 23, 22: 27} if "two" not in OPT else {2: 7, 6: 15, 10: 19, 14: 23, 18: 27, 22: 27}
    if "bar18" in OPT: bars = {2: 7, 6: 15, 10: 19, 14: 19, 18: 27}
    if "bar16" in OPT: bars = {2: 7, 6: 15, 10: 19, 14: 19, 17: 27}
    blist = sorted(bars)
    vm.wait_for(a, lambda t: t[0] == "H" and t[1] <= 1); a("s_barrier")
    if "prioB" in OPT:
        a(f"s_cmp_ge_u32 s{S_WAVE}, 4"); a("s_cbranch_scc0 L_prioB"); a("s_setprio 1"); a.label("L_prioB")
    stamp(a, 4); cstamp(a, 9)
    for ks in (0, 1):
        pre, rd = reads(ks)
        for x in pre + rd: a(x); lg.issue(("F", ks))
    W2N = next((int(o[3:]) for o in OPT if o.startswith("w2n")), 16)
    free_from = {u: min([b for b in blist if b >= 2 * u + 1], default=99) for u in range(14)}
    plan_dma = {k: [] for k in range(NK)}; plan_tr = {k: [] for k in range(NK)}; post_tr = []
    if TWO:
        hq = [(0, g) for g in range(HPRE, 14)]; lq = []
        for u in range(14, 20): free_from[u] = 0
    else:
        hq = [(0 if g < 10 else 14, g) for g in range(HPRE, 14)]; lq = list(range(18, 28))
        for u in range(14, 20): free_from[u] = 14
        for u in range(10, 14): free_from[u] = 99
    late_tr = {11: list(range(18, 23)), 12: list(range(23, 28))} if not TWO else {}
    nxt = 0
    LAT = next((int(o[3:]) for o in OPT if o.startswith("lat")), 4)
    for k in range(NK):
        cap = 3 if ((hq and hq[0][0] <= k) or lq) and k < 6 else 2
        while len(plan_dma[k]) < cap and hq and hq[0][0] <= k: plan_dma[k].append(("H", hq.pop(0)[1]))
        while len(plan_dma[k]) < cap and lq: plan_dma[k].append(("L", lq.pop(0)))
        while len(plan_dma[k]) < cap and nxt < W2N:
            cand = [u for u in free_from if free_from[u] <= k]
            if not cand: break
            u = min(cand)
            free_from[u] = 99
            plan_dma[k].append(("W2", nxt, u))
            if "priv" in OPT:
                t = max(k + LAT, nxt + 1)
                while t < NK and (len(plan_tr[t]) >= 2 or t in late_tr): t += 1
                if t <= NK - 1:
                    plan_tr[t].append((nxt, u)); free_from[u] = t + 3
                else: post_tr.append((nxt, u))
                nxt += 1
                continue
            lb = min([b for b in blist if b >= k + 3], default=None)
            if "notrin" not in OPT and lb is not None and max(lb, nxt + 1) <= NK - 3:
                t = max(lb, nxt + 1)
                while len(plan_tr[t]) >= 3 or t in late_tr: t += 1
                if t <= NK - 3:
                    plan_tr[t].append((nxt, u)); free_from[u] = min([b for b in blist if b >= t + 3], default=99)
                else: post_tr.append((nxt, u))
            else:
                post_tr.append((nxt, u))
            nxt += 1
    assert not hq and not lq
    rest = list(range(nxt, 28))
    busy = {u for _, u in post_tr}
    NPRE = next((int(o[3:]) for o in OPT if o.startswith("pre")), 0)
    fr = [u for u in range(20) if u not in busy]
    assert NPRE <= len(fr)
    rest_units = fr[:NPRE] + [u for u in range(20) if u not in fr[:NPRE]][:len(rest) - NPRE] if len(rest) > NPRE else fr[:len(rest)]
    assert len(rest_units) == len(rest)
    if "verbose" in OPT: print("dma", plan_dma, "\ntr", plan_tr, "\npost", post_tr, "rest", rest, rest_units)
    issued_at = {}
    for ks in range(NK):
        lg.wait_for(a, lambda t: t == ("F", ks) or (ks == 13 and t[0] == "T"))
        rd = []; pre = []
        if ks in bars:
            assert all(("H", g) in vm.q for g in range(bars[ks] // 2 + 1)), ks
            vm.wait_for(a, lambda t: (t[0] == "H" and t[1] <= bars[ks] // 2) or ("priv" not in OPT and t[0] == "W2" and issued_at[t[1]] <= ks - 3) or (t[0] == "L" and ks >= 10))
            if "vm0at18" in OPT and ks == 18: a("s_waitcnt vmcnt(0)")
            if "dg_nobar" not in OPT: a("s_barrier")
        if "prio18" in OPT and ks == 18:
            a(f"s_cmp_lt_u32 s{S_WAVE}, 4"); a("s_cbranch_scc0 L_prio18"); a("s_setprio 2"); a.label("L_prio18")
        if ks + 2 < NK: pre, rd = reads(ks + 2)
        for x in pre: a(x)
        if "priv" in OPT and plan_tr[ks]:
            want = {k2 for k2, _ in plan_tr[ks]}
            vm.wait_for(a, lambda t: t[0] == "W2" and t[1] in want)
        extra = [x for (k2, u) in plan_tr[ks] for x in cw_tr(k2, u)]
        for kk in late_tr.get(ks, []):
            r = AW + 4 * kk; sl = kk - 18
            (va, vb), off = ((16, 17), 8192 * sl) if sl < 8 else ((13, 19), 8192 * (sl - 8))
            extra += [f"ds_read_b64_tr_b16 v[{r}:{r+1}], v{va} offset:{off}", f"ds_read_b64_tr_b16 v[{r+2}:{r+3}], v{vb} offset:{off}"]
        dmas = list(plan_dma[ks])
        fb = FR[ks % 3]; ar = AW + 4 * ks
        for jj in range(4):
            acc = 64 + 16 * jj
            a(f"v_mfma_f32_32x32x16_bf16 v[{acc}:{acc+15}], v[{ar}:{ar+3}], v[{fb+4*jj}:{fb+4*jj+3}], v[{acc}:{acc+15}]")
            for x in rd[2*jj:2*jj+2]:
                if "dg_noread" not in OPT: a(x)
                lg.issue(("F", ks + 2))
            for x in extra[3*jj:3*jj+3]: a(x); lg.issue(("T", ks))
            if jj >= 1 and dmas:
                d = dmas.pop(0)
                if "dg_nodma" in OPT and d[0] != "H":
                    vm.issue((d[0], d[1])); issued_at[d[1]] = ks if d[0] == "W2" else issued_at.get(d[1], ks)
                elif d[0] == "H": dma_h(d[1])
                elif d[0] == "L":
                    bw_dma(a, d[1], d[1] - 8, 12); vm.issue(("L", d[1]))
                else:
                    cw_dma(a, d[1], d[2]); vm.issue(("W2", d[1])); issued_at[d[1]] = ks
            if jj == 0 and ks == 19:
                a("s_lshl_b32 s64, s41, 7"); a(f"s_add_u32 s64, s64, {WS_FLAG3}"); a("v_and_b32 v30, 1, v1"); a("v_lshl_add_u32 v30, v30, 6, s64")
                if "cs2" not in OPT:
                    a("v_lshlrev_b32 v31, 6, v1"); a(f"v_add_u32 v31, {WS_FLAG3 + 2048}, v31"); a("v_cmp_gt_u32 vcc, 32, v1"); a("v_cndmask_b32 v30, v30, v31, vcc")
                a(f"buffer_load_dword v31, v30, {W}, 0 offen sc1"); vm.issue(("F", 0))
            if jj == 0 and ks == 23:
                vm.wait_for(a, lambda t: t[0] == "F")
                a("s_mov_b32 s66, 0")
                a.label("L_f3_chk")
                a(f"v_cmp_ne_u32 vcc, s{S_NONCE}, v31"); a("s_cbranch_vccz L_f3_ok")
                a("s_add_u32 s66, s66, 1"); a(f"s_cmp_gt_u32 s66, {SPIN_MAX}"); a("s_cbranch_scc1 L_f3_ok")
                a(f"buffer_load_dword v31, v30, {W}, 0 offen sc1"); a("s_waitcnt vmcnt(0)"); a("s_branch L_f3_chk")
                a.label("L_f3_ok")
                a("v_and_b32 v30, 31, v1"); a("v_lshlrev_b32 v30, 3, v30")
                for j2 in range(4):
                    a(f"s_add_u32 s64, s{S_WAVE}, {j2}"); a("s_and_b32 s64, s64, 3"); a("s_lshl_b32 s65, s41, 2"); a("s_add_u32 s64, s64, s65")
                    a("s_lshl_b32 s64, s64, 8"); a(f"s_add_u32 s64, s64, {WS_G2}")
                    a(f"buffer_load_dwordx2 v[{4+2*j2}:{5+2*j2}], v30, {W}, s64 offen"); vm.issue(("G", j2))
            if jj == 2 and ks == 26:
                a("v_lshrrev_b32 v2, 5, v1"); a("v_lshlrev_b32 v2, 5, v2")
                a("s_lshl_b32 s64, s40, 9"); a(f"s_lshl_b32 s65, s{S_WAVE}, 6"); a("s_add_u32 s64, s64, s65"); a(f"s_add_u32 s64, s64, {WS_CS}")
                a("v_add_u32 v2, s64, v2"); a("v_add_u32 v3, 7168, v2")
                for k in range(2):
                    a(f"buffer_load_dwordx4 v[{48+4*k}:{51+4*k}], v2, {W}, 0 offen offset:{16*k}"); vm.issue(("C", 0))
                    a(f"buffer_load_dwordx4 v[{56+4*k}:{59+4*k}], v3, {W}, 0 offen offset:{16*k}"); vm.issue(("C", 0))
        assert not dmas
    stamp(a, 5); cstamp(a, 10)
    if "prioB" in OPT and "priokeep" not in OPT: a("s_setprio 0")
    if "endnop" in OPT:
        for _ in range(4): a("s_nop 15")
    vm.wait_for(a, lambda t: t[0] in ("G", "C"))
    for jj in range(4):
        b = 32 + 4 * jj
        a(f"v_mov_b32 v{b}, v{4+2*jj}"); a(f"v_mul_f32 v{b+2}, {NLOG2E:#x}, v{5+2*jj}"); a(f"v_mul_f32 v{b+3}, v{5+2*jj}, v{5+2*jj}")
    stamp(a, 6)
    a("v_lshlrev_b32 v6, 4, v1"); a(f"v_add_u32 v6, {WS_HF}, v6")
    for jj in range(4):
        a(f"s_add_u32 s64, s{S_WAVE}, {jj}"); a("s_and_b32 s64, s64, 3")
        a("s_lshl_b32 s65, s41, 2"); a("s_add_u32 s64, s64, s65"); a("s_mul_i32 s64, s64, 112")
        a("s_lshl_b32 s65, s40, 3"); a("s_add_u32 s64, s64, s65"); a(f"s_add_u32 s64, s64, s{S_WAVE}")
        a(f"s_lshl_b32 s{72+jj}, s64, 10")
    for jj in range(4):
        b = 32 + 4 * jj; acc = 64 + 16 * jj; t = 240 + 8 * (jj % 2); o = 24 + 4 * (jj % 2)
        if "nopk" in OPT:
            for e in range(8):
                a(f"v_fma_f32 v{acc+e}, -v{b}, v{48+e}, v{acc+e}"); a(f"v_fma_f32 v{acc+8+e}, -v{b}, v{56+e}, v{acc+8+e}")
            for e in range(8):
                a(f"v_mul_f32 v{t+e}, v{acc+e}, v{b+2}"); a(f"v_mul_f32 v{acc+e}, v{acc+e}, v{acc+8+e}")
                a(f"v_exp_f32 v{t+e}, v{t+e}")
            for e in range(8):
                a(f"v_mul_f32 v{acc+e}, v{acc+e}, v{b+3}"); a(f"v_add_f32 v{t+e}, 1.0, v{t+e}"); a(f"v_rcp_f32 v{t+e}, v{t+e}")
            for k in range(4):
                a(f"v_mul_f32 v{acc+2*k}, v{acc+2*k}, v{t+2*k}"); a(f"v_mul_f32 v{acc+2*k+1}, v{acc+2*k+1}, v{t+2*k+1}")
                a(f"v_cvt_pk_bf16_f32 v{o+k}, v{acc+2*k}, v{acc+2*k+1}")
        else:
            P = lambda r: f"v[{r}:{r+1}]"
            for e in range(0, 8, 2):
                a(f"v_pk_fma_f32 {P(acc+e)}, {P(b)}, {P(48+e)}, {P(acc+e)} op_sel_hi:[0,1,1] neg_lo:[1,0,0] neg_hi:[1,0,0]")
                a(f"v_pk_fma_f32 {P(acc+8+e)}, {P(b)}, {P(56+e)}, {P(acc+8+e)} op_sel_hi:[0,1,1] neg_lo:[1,0,0] neg_hi:[1,0,0]")
            for e in range(0, 8, 2):
                a(f"v_pk_mul_f32 {P(t+e)}, {P(acc+e)}, {P(b+2)} op_sel_hi:[1,0]")
                a(f"v_pk_mul_f32 {P(acc+e)}, {P(acc+e)}, {P(acc+8+e)}")
                a(f"v_exp_f32 v{t+e}, v{t+e}"); a(f"v_exp_f32 v{t+e+1}, v{t+e+1}")
            for e in range(0, 8, 2):
                a(f"v_pk_mul_f32 {P(acc+e)}, {P(acc+e)}, {P(b+2)} op_sel:[0,1] op_sel_hi:[1,1]")
                a(f"v_pk_add_f32 {P(t+e)}, {P(t+e)}, 1.0 op_sel_hi:[1,0]")
                a(f"v_rcp_f32 v{t+e}, v{t+e}"); a(f"v_rcp_f32 v{t+e+1}, v{t+e+1}")
            for k in range(4):
                a(f"v_pk_mul_f32 {P(acc+2*k)}, {P(acc+2*k)}, {P(t+2*k)}")
                a(f"v_cvt_pk_bf16_f32 v{o+k}, v{acc+2*k}, v{acc+2*k+1}")
        a(f"buffer_store_dwordx4 v[{o}:{o+3}], v6, {W}, s{72+jj} offen" + ("" if "xloc" in OPT else " sc1")); vm.issue(("S", jj))
    if "prio18" in OPT: a("s_setprio 0")
    vm.wait_for(a, lambda t: t[0] == "W2")
    if "priv" not in OPT or rest: a("s_barrier")
    for (k2, u) in post_tr:
        for x in cw_tr(k2, u): a(x)
    for k2, u in list(zip(rest, rest_units))[:NPRE]:
        cw_dma(a, k2, u); vm.issue(("W2", k2))
    vm.wait_for(a, lambda t: t[0] == "S")
    a("s_waitcnt lgkmcnt(0)")
    stamp(a, 7)
    a("s_barrier")
    a("s_mul_i32 s64, s41, 14"); a("s_add_u32 s64, s64, s40"); a("s_lshl_b32 s64, s64, 6"); a(f"s_add_u32 s64, s64, {WS_FLAG4}")
    publish_flag(a, 64, plain=("xloc" in OPT and "flagsc1" not in OPT))
    for k2, u in list(zip(rest, rest_units))[NPRE:]:
        cw_dma(a, k2, u)
    if "pf3" in OPT: code_prefetch(a, vt=2, sreg=34)
    phaseC_setup(a)
    a("s_lshr_b32 s64, s79, 1"); a("s_mul_i32 s64, s64, 896"); a(f"s_add_u32 s64, s64, {WS_FLAG4}")
    if rest:
        a("s_waitcnt vmcnt(0)"); a("s_barrier")
        poll_issue(a, "s4", 64, 14, 1, 32)
        for k2, u in zip(rest, rest_units):
            for x in cw_tr(k2, u): a(x)
        a("s_waitcnt lgkmcnt(0)")
    else:
        poll_issue(a, "s4", 64, 14, 1, 32)
    stamp(a, 8)

RED_C = 114688
def phaseC_setup(a):
    srd(a, 52, 26, L * D * 2)
    a(f"s_mul_i32 s40, s76, {28672 if 'c14' in OPT else 40960}"); a("s_lshl_b32 s64, s77, 10"); a("s_add_u32 s41, s40, s64")
    a("v_and_b32 v23, 31, v1"); a("v_lshrrev_b32 v24, 5, v1")
    a("s_lshl_b32 s64, s78, 6"); a("s_lshl_b32 s65, s77, 5"); a("s_add_u32 s64, s64, s65"); a("s_lshl_b32 s65, s50, 4"); a("s_add_u32 s34, s64, s65")
    a("s_lshl_b32 s64, s79, 6"); a("s_and_b32 s65, s76, 1"); a("s_lshl_b32 s65, s65, 5"); a("s_add_u32 s35, s64, s65")
    a("v_lshlrev_b32 v25, 3, v24"); a("v_add_u32 v25, s34, v25"); a("v_add_u32 v26, s35, v23")
    a(f"v_mul_u32_u24 v27, {HTS}, v25"); a("v_lshl_add_u32 v27, v26, 1, v27"); a(f"v_add_u32 v27, {WS_HT}, v27")
    for e in range(8):
        a(f"s_mov_b32 s67, {e*HTS}"); a(f"buffer_load_ushort v{240+e}, v27, {W}, s67 offen")
    a("s_movk_i32 s64, 896"); a("v_mul_lo_u32 v28, v26, s64"); a("v_lshl_add_u32 v28, v25, 1, v28")
    a("v_lshlrev_b32 v5, 4, v1")
    a("s_lshl_b32 s64, s79, 1"); a("s_add_u32 s64, s64, s77"); a("s_mul_i32 s64, s64, 112"); a("s_mul_i32 s65, s76, 28"); a("s_add_u32 s64, s64, s65")
    a("s_lshl_b32 s64, s64, 10"); a(f"s_add_u32 s64, s64, {WS_HF}"); a("v_add_u32 v252, s64, v5")
    a("v_add_u32 v6, s40, v5")
    a("s_and_b32 s64, s76, 1"); a("s_lshl_b32 s64, s64, 10"); a("v_add_u32 v16, s64, v6"); a("s_xor_b32 s64, s64, 1024"); a("v_add_u32 v17, s64, v6")
    for r in range(32): a(f"v_mov_b32 v{64+r}, 0")

def phaseC(a):
    stamp(a, 1)
    stamp(a, 2)
    a("s_waitcnt vmcnt(0)")
    poll_check(a, "s4", 1, 32)
    stamp(a, 3)
    vm = VM()
    NS = 14 if 'c14' in OPT else 20
    def dma_b(k):
        a(f"s_add_u32 m0, s41, {2048*(k % NS)}"); rot_off(a, k, S_RC, 1024)
        a(f"buffer_load_dwordx4 v252, {W}, s67 offen lds"); vm.issue(("B", k))
    PRE = next((int(o[4:]) for o in OPT if o.startswith("cpre")), 8)
    for k in range(PRE): dma_b(k)
    NBUF = 4
    FR = [32, 40, 48, 56]
    def reads(k):
        fb = FR[k % NBUF]
        return [f"ds_read_b128 v[{fb+4*ns}:{fb+4*ns+3}], v{16+ns} offset:{2048*(k % NS)}" for ns in range(2)]
    NK = 28; G = 4; PD = 3
    def need(k_hi):
        assert all(("B", k) in vm.q for k in range(k_hi + 1)), k_hi
        vm.wait_for(a, lambda t: t[1] <= k_hi); a("s_barrier")
    need(3)
    stamp(a, 4)
    for k in range(PD):
        for x in reads(k): a(x)
    ready = 3; nxt = PRE; freed = -1
    for k in range(NK):
        a(f"s_waitcnt lgkmcnt({2*min(PD-1, NK-1-k)})")
        rd = []
        if k + PD < NK:
            if k + PD > ready:
                hi = min(k + PD + G - 1, NK - 1); need(hi); ready = hi; freed = k
            rd = reads(k + PD)
        fb = FR[k % NBUF]; ar = AW + 4 * k
        for ns in range(2):
            acc = 64 + 16 * ns
            a(f"v_mfma_f32_32x32x16_bf16 v[{acc}:{acc+15}], v[{ar}:{ar+3}], v[{fb+4*ns}:{fb+4*ns+3}], v[{acc}:{acc+15}]")
            if rd: a(rd[ns])
        for _ in range(4 if k == 0 else 3 if k < 4 else 2):
            if nxt < NK and (nxt < NS or nxt - NS <= freed):
                dma_b(nxt); nxt += 1
    assert nxt == NK
    stamp(a, 5)
    a("v_lshlrev_b32 v8, 4, v1")
    if 'c14' not in OPT: a("s_barrier")
    for x in range(1, 4):
        ns, hh = x & 1, x >> 1
        a(f"s_xor_b32 s64, s{S_WAVE}, {x}"); a("s_mul_i32 s64, s64, 6144"); a(f"s_add_u32 s64, s64, {RED_C + (x-1)*2048}")
        a("v_add_u32 v22, s64, v8")
        src = 64 + 16 * ns + 8 * hh
        a(f"ds_write_b128 v22, v[{src}:{src+3}]"); a(f"ds_write_b128 v22, v[{src+4}:{src+7}] offset:1024")
    a(f"s_mul_i32 s64, s{S_WAVE}, 6144"); a(f"s_add_u32 s64, s64, {RED_C}"); a("v_add_u32 v22, s64, v8")
    a("s_waitcnt lgkmcnt(0)"); a("s_barrier")
    for x in range(3):
        a(f"ds_read_b128 v[{96+8*x}:{99+8*x}], v22 offset:{2048*x}"); a(f"ds_read_b128 v[{100+8*x}:{103+8*x}], v22 offset:{2048*x+1024}")
    a("s_waitcnt lgkmcnt(0)")
    for x in range(3):
        for r in range(8): a(f"v_add_f32 v{64+r}, v{64+r}, v{96+8*x+r}")
    stamp(a, 6)
    for k in range(4):
        r = 2 * k
        a(f"v_cvt_pk_bf16_f32 v30, v{64+r}, v{65+r}")
        a("v_lshlrev_b32 v31, 16, v30"); a("v_and_b32 v30, 0xffff0000, v30")
        a(f"v_lshlrev_b32 v32, 16, v{240+r}"); a(f"v_lshlrev_b32 v33, 16, v{241+r}")
        a("v_add_f32 v31, v31, v32"); a("v_add_f32 v30, v30, v33")
        a(f"v_cvt_pk_bf16_f32 v{120+k}, v31, v30")
    a("buffer_store_dwordx4 v[120:123], v28, s[52:55], 0 offen" + (" sc1" if "outsc1" in OPT else " nt" if "outnt" in OPT else ""))
    if "noendwait" not in OPT: a("s_waitcnt vmcnt(0)")
    stamp(a, 7)
```
